```python
import torch

def _softmax(x, axis=-1):
    return torch.softmax(x, dim=axis)
def _gelu(x):
    return torch.nn.functional.gelu(x, approximate="tanh")
def _silu(x):
    return torch.nn.functional.silu(x)
def _sigmoid(x):
    return torch.sigmoid(x)
def _layernorm(x, axis=-1, eps=1e-5):
    m = x.mean(dim=axis, keepdim=True)
    v = x.var(dim=axis, keepdim=True, unbiased=False)
    return (x - m) / torch.sqrt(v + eps)
def _scatter_add(tgt, idx, src, axis=0):
    return tgt.clone().index_add_(axis, idx, src)
def _segment_sum(src, seg, n):
    out = torch.zeros((n,) + src.shape[1:], dtype=src.dtype)
    return out.index_add_(0, seg, src)
def _pad(x, pw):
    flat = tuple(v for pair in reversed(pw) for v in pair)
    return torch.nn.functional.pad(x, flat)

kernel_name = 'sequential_preLN__compressed_kv_cla__glu_gated_reglu__prompt'

def setup_inputs():

    _w = (lambda a: (lambda t: t.to(torch.bfloat16) if t.is_floating_point() else t)(torch.as_tensor(a)))
    def _A_setup():
        B, H, Sq, Sk, D, M = 1, 16, 2048, 2048, 256, 448
        Dc = 4 * D
        return {
            "x": _w((lambda *s: torch.randn(*s, dtype=torch.bfloat16) * 0.05)(B, Sq, M)),
            "c_kv": _w((lambda *s: torch.randn(*s, dtype=torch.bfloat16) * 0.4)(B, Sk, Dc)),
            "w_q": _w((lambda *s: torch.randn(*s, dtype=torch.bfloat16) * 1.6)(M, H, D) * (M ** -0.5)),
            "w_uk": _w((lambda *s: torch.randn(*s, dtype=torch.bfloat16) * 1.6)(Dc, H, D) * (Dc ** -0.5)),
            "w_uv": _w((lambda *s: torch.randn(*s, dtype=torch.bfloat16) * 0.4)(Dc, H, D) * (Dc ** -0.5)),
            "w_o": _w((lambda *s: torch.randn(*s, dtype=torch.bfloat16) * 0.4)(H, D, M) * ((H * D) ** -0.5)),
        }
    _A_in = _A_setup()

    def _B_setup():
        B, S, D, F = 1, 2048, 448, 1792
        return {
            "x": _w((lambda *s: torch.randn(*s, dtype=torch.bfloat16) * 0.05)(B, S, D)),
            "W_gate": _w((lambda *s: torch.randn(*s, dtype=torch.bfloat16) * 0.2)(D, F) * (2.0 / D) ** 0.5),
            "W_up": _w((lambda *s: torch.randn(*s, dtype=torch.bfloat16) * 0.2)(D, F) * (2.0 / D) ** 0.5),
            "W_down": _w((lambda *s: torch.randn(*s, dtype=torch.bfloat16) * 0.2)(F, D) * (1.0 / F) ** 0.5),
        }
    _B_in = _B_setup()

    return {
        "A_x": _A_in["x"],
        "A_c_kv": _A_in["c_kv"],
        "A_w_q": _A_in["w_q"],
        "A_w_uk": _A_in["w_uk"],
        "A_w_uv": _A_in["w_uv"],
        "A_w_o": _A_in["w_o"],
        "B_x": _B_in["x"],
        "B_W_gate": _B_in["W_gate"],
        "B_W_up": _B_in["W_up"],
        "B_W_down": _B_in["W_down"],
    }

def reference(A_x, A_c_kv, A_w_q, A_w_uk, A_w_uv, A_w_o, B_x, B_W_gate, B_W_up, B_W_down):
    def _A_ref(x, c_kv, w_q, w_uk, w_uv, w_o):
        B, Sq, M = x.shape[0], x.shape[1], x.shape[2]
        Sk = c_kv.shape[1]
        H, D = w_q.shape[1], w_q.shape[2]
        q = torch.einsum("bqm,mhd->bhqd", x, w_q)
        k = torch.einsum("bkc,chd->bhkd", c_kv, w_uk)
        v = torch.einsum("bkc,chd->bhkd", c_kv, w_uv)
        scores = torch.einsum("bhqd,bhkd->bhqk", q, k) * (D ** -0.5)
        off = Sk - Sq
        qi = torch.arange(Sq)[:, None]
        kj = torch.arange(Sk)[None, :]
        cmask = kj <= (qi + off)
        scores = torch.where(cmask[None, None], scores, -1e9)
        p = _softmax(scores, axis=-1)
        ctx = torch.einsum("bhqk,bhkd->bhqd", p, v)
        return torch.einsum("bhqd,hdm->bqm", ctx, w_o)

    def _B_ref(x, W_gate, W_up, W_down):
        gate = torch.einsum("bsd,df->bsf", x, W_gate)
        up = torch.einsum("bsd,df->bsf", x, W_up)
        gate = gate * (lambda x, dt: x.to(dt))(gate > 0, gate.dtype)
        h = gate * up
        return torch.einsum("bsf,fd->bsd", h, W_down)

    x = A_x
    h = x + _A_ref(_layernorm(x, axis=-1), A_c_kv, A_w_q, A_w_uk, A_w_uv, A_w_o)
    h2 = h + _B_ref(_layernorm(h, axis=-1), B_W_gate, B_W_up, B_W_down)
    return h2
```

```python
class Emit:
    def __init__(self):
        self.lines = []
    def __call__(self, s):
        for l in s.split("\n"):
            l = l.strip()
            if l: self.lines.append(l)
    def text(self):
        return "\n".join(("" if l.endswith(":") else "  ") + l for l in self.lines) + "\n"

def vr(base, n=1):
    return f"v{base}" if n == 1 else f"v[{base}:{base+n-1}]"
def ar(base, n=1):
    return f"a{base}" if n == 1 else f"a[{base}:{base+n-1}]"
def sr(base, n=1):
    return f"s{base}" if n == 1 else f"s[{base}:{base+n-1}]"

def interleave(mfmas, fillers, start=0, per_gap=None, plan=None):
    out = []
    if plan is None:
        n = len(mfmas)
        plan = [min(n - 1, start + k) for k in range(len(fillers))]
    by = {}
    for f, g in zip(fillers, plan):
        by.setdefault(g, []).append(f)
    for g in sorted(by):
        assert -1 <= g < len(mfmas), (g, len(mfmas))
    for f in by.get(-1, []): out.append(f)
    for i, m in enumerate(mfmas):
        out.append(m)
        for f in by.get(i, []): out.append(f)
    return out

def kernel_desc(name, vgpr, acc, sgpr=102):
    return f""".section .rodata,"a"
.p2align 6
.amdhsa_kernel {name}
  .amdhsa_next_free_vgpr {vgpr}
  .amdhsa_next_free_sgpr {sgpr}
  .amdhsa_accum_offset {acc}
  .amdhsa_group_segment_fixed_size 0
  .amdhsa_kernarg_size 104
  .amdhsa_user_sgpr_count 2
  .amdhsa_user_sgpr_kernarg_segment_ptr 1
  .amdhsa_system_sgpr_workgroup_id_x 1
  .amdhsa_float_denorm_mode_32 3
.end_amdhsa_kernel
.text
"""
def kernel_head(name):
    return f""".globl {name}
.p2align 8
.type {name},@function
{name}:
"""
```

```python
import sys
from asmlib import *
import k0, k1, k2, t1, t2, t3
HDR = '.amdgcn_target "amdgcn-amd-amdhsa--gfx950"\n.text\n'
ABBR = [("v_mfma_f32_16x16x32_bf16", "MF"), ("ds_read_b64_tr_b16", "DT"), ("ds_read_b128", "DR"), ("buffer_load_dwordx4", "BL"),
        ("buffer_store_dwordx4", "BS"), ("v_accvgpr_read_b32", "AR"), ("v_accvgpr_write_b32", "AW"), ("v_cvt_pk_bf16_f32", "CV"),
        ("v_exp_f32", "EX"), ("v_add_f32", "FA"), ("v_mul_f32", "FM"), ("s_waitcnt", "WT"), ("v_cndmask_b32", "CM"), ("s_add_u32", "SA"), ("v_sub_f32", "FS")]
def compact(t):
    lines = t.split("\n")
    out = []; started = False
    for l in lines:
        st = l.strip()
        if st.startswith(".amdgcn_target") and not started:
            out.append(st); started = True
            for full, ab in ABBR:
                out.append(f".macro {ab} a:vararg\n{full} \\a\n.endm")
            continue
        if not started or st.startswith("."):
            out.append(l); continue
        p = st.split(None, 1)
        if len(p) == 2:
            for full, ab in ABBR:
                if p[0] == full: st = ab + " " + p[1].replace(", ", ","); break
            else: st = p[0] + " " + p[1].replace(", ", ",")
        out.append(st)
    return "\n".join(out)
def make(kernels, path):
    t = ""
    for (name, grid, block, lds, body, vgpr, acc) in kernels:
        t += f"; @launch kernel={name} grid=({grid},1,1) block=({block},1,1) lds={lds}\n"
    t += HDR
    seen = set()
    for (name, grid, block, lds, body, vgpr, acc) in kernels:
        if name in seen: continue
        seen.add(name)
        t += kernel_head(name) + body + kernel_desc(name, vgpr, acc)
    open(path, "w").write(compact(t))
K0 = lambda: ("k0_kernel", 256, 256, 0, k0.gen_k0(), 32, 32)
K1 = lambda **kw: ("k1_kernel", 256, 256, 163840, k1.gen_k1(**kw), 512, 256)
K2 = lambda **kw: ("k2_kernel", 256, 256, 163840, k2.gen_k2(**kw), 512, 256)
T1 = lambda: ("t1_kernel", 256, 512, 1024, t1.gen_t1(), 128, 128)
T2 = lambda: ("t2_kernel", 224, 256, 147456, t2.gen_t2(), 384, 256)
T3 = lambda: ("t3_kernel", 224, 256, 131072, t3.gen_t3(), 320, 256)
if __name__ == "__main__":
    make([K0(), K1(), K2(), T1(), T2(), T3()], "full.s")
    make([K0(), K1()], "t_k01.s")
    make([K0(), K1(), K2()], "t_k012.s")
    make([K0(), K1(), K2(stamps=True)], "t_k012_st.s")
    for ex in ["mid", "mid_noslow_nodma", "mid_noslow_nosm", "mid_noslow_nords", "mid_noslow_nodma_nosm", "mid_noslow_nodma_nobar", "mid_noslow_nodma_nosm_nords_nobar", "mid_noslow_nobar"]:
        make([K0(), K1(), K2(stamps=True, exp=ex)], f"t_k2x_{ex}.s")
    make([K1(stamps=True)], "t_k1_st.s")
    make([K1(stamps=True, exp="noq")], "t_k1_noq_st.s")
```

```python
from asmlib import *
from ws import *
def gen_k0(name="k0_kernel"):
    E = Emit()
    E("s_cmp_ge_u32 s2, 256")
    E(f"s_cbranch_scc1 {name}_end")
    E("s_load_dwordx2 s[4:5], s[0:1], 0")
    E("s_load_dwordx2 s[6:7], s[0:1], 96")
    ln_body(E, name, 4, 6, 8, 12)
    E(f"{name}_end:")
    E("s_endpgm")
    return E.text()

def ln_body(E, name, sx, sws, srd_in, srd_out, sc=""):
    E("v_and_b32 v1, 31, v0")
    E("v_lshrrev_b32 v2, 5, v0")
    E("s_lshl_b32 s16, s2, 3")
    E("v_add_u32 v2, s16, v2")
    E("v_mul_u32_u24 v2, 896, v2")
    E("v_lshlrev_b32 v3, 4, v1")
    E("v_add_u32 v2, v2, v3")
    E("v_add_u32 v3, 512, v2")
    E("v_cmp_gt_u32 vcc, 24, v1")
    E("v_mov_b32 v4, 0x7ffffff0")
    E("s_nop 0")
    E("v_cndmask_b32 v3, v4, v3, vcc")
    E("s_waitcnt lgkmcnt(0)")
    E(f"s_mov_b32 s{srd_in}, s{sx}\ns_mov_b32 s{srd_in+1}, s{sx+1}\ns_mov_b32 s{srd_in+2}, {2048*896}\ns_mov_b32 s{srd_in+3}, 0x20000")
    E(f"s_add_u32 s{srd_out}, s{sws}, {WS_XN}\ns_addc_u32 s{srd_out+1}, s{sws+1}, 0\ns_mov_b32 s{srd_out+2}, {2048*896}\ns_mov_b32 s{srd_out+3}, 0x20000")
    E(f"buffer_load_dwordx4 v[4:7], v2, s[{srd_in}:{srd_in+3}], 0 offen")
    E(f"buffer_load_dwordx4 v[8:11], v3, s[{srd_in}:{srd_in+3}], 0 offen")
    E("s_waitcnt vmcnt(0)")
    for i in range(8):
        E(f"v_lshlrev_b32 v{12+2*i}, 16, v{4+i}")
        E(f"v_and_b32 v{13+2*i}, 0xffff0000, v{4+i}")
    def reduce(r, t):
        E("s_nop 1")
        for rot in (8, 4, 2, 1):
            E(f"v_add_f32_dpp v{r}, v{r}, v{r} row_ror:{rot} row_mask:0xf bank_mask:0xf")
            E("s_nop 1")
        E(f"ds_swizzle_b32 v{t}, v{r} offset:0x401F")
        E("s_waitcnt lgkmcnt(0)")
        E(f"v_add_f32 v{r}, v{r}, v{t}")
    E("v_add_f32 v28, v12, v13")
    for i in range(14, 28): E(f"v_add_f32 v28, v28, v{i}")
    reduce(28, 29)
    E(f"v_mul_f32 v28, {1.0/448.0!r}, v28".replace(repr(1.0/448.0), "0x3b124925"))
    for i in range(12, 28): E(f"v_sub_f32 v{i}, v{i}, v28")
    for i in range(20, 28): E(f"v_cndmask_b32 v{i}, 0, v{i}, vcc")
    E("v_mul_f32 v29, v12, v12")
    for i in range(13, 28): E(f"v_fmac_f32 v29, v{i}, v{i}")
    reduce(29, 30)
    E("v_mov_b32 v30, 0x3727c5ac")
    E("v_fmac_f32 v30, 0x3b124925, v29")
    E("v_rsq_f32 v30, v30")
    E("s_nop 0")
    for i in range(12, 28): E(f"v_mul_f32 v{i}, v{i}, v30")
    for i in range(8): E(f"v_cvt_pk_bf16_f32 v{4+i}, v{12+2*i}, v{13+2*i}")
    E(f"buffer_store_dwordx4 v[4:7], v2, s[{srd_out}:{srd_out+3}], 0 offen {sc}")
    E(f"buffer_store_dwordx4 v[8:11], v3, s[{srd_out}:{srd_out+3}], 0 offen {sc}")
```

```python
from asmlib import *
from ws import *

def stamp_code(E, i, on):
    if on: E(f"s_memtime s[{76+4*i}:{77+4*i}]\ns_memrealtime s[{78+4*i}:{79+4*i}]")

def stamp_dump(E, n, lab, sws=6):
    E("s_waitcnt vmcnt(0) lgkmcnt(0)")
    E(f"s_mov_b32 s60, s{sws}\ns_mov_b32 s61, s{sws+1}\ns_mov_b32 s62, 0x10000000\ns_mov_b32 s63, 0x20000")
    E(f"s_lshl_b32 s64, s2, 6\ns_add_u32 s64, s64, {WS_DBG}")
    E("v_cmp_eq_u32 vcc, 0, v0\ns_and_saveexec_b64 s[66:67], vcc\ns_cbranch_execz " + f"{lab}_stsk")
    for i in range(n):
        E(f"v_mov_b32 v4, s{76+4*i}\nv_mov_b32 v5, s{78+4*i}\nv_mov_b32 v6, {8*i}")
        E("buffer_store_dwordx2 v[4:5], v6, s[60:63], s64 offen")
        E("s_nop 1")
    E(f"{lab}_stsk:\ns_mov_b64 exec, s[66:67]")

def gen_k1(name="k1_kernel", stamps=False, exp="", ln_flags=False):
    E = Emit()
    XSLOT = 32768; WBASE = 98304; WSLOT = 16384
    XF = lambda st, i: 64 + st * 32 + i * 4
    WF = lambda st, j: 128 + st * 32 + j * 4
    XA = lambda t, seg: 10 + t * 2 + seg
    WA = lambda j: 14 + j
    XD = lambda p: 22 + p
    WD = lambda p: 26 + p
    XQ = lambda p: 30 + p
    sX, sW, sO, sXq, sWq, sOq = 8, 12, 16, 36, 40, 44
    sWave, sXk, sWk, sM0X, sM0W, sSel, sH, sMB = 20, 21, 22, 23, 24, 26, 27, 28
    sXqk, sWqk, sHq, sRB = 48, 49, 50, 51
    NKV, NQ = 32, 14
    NG = NKV + NQ
    if "noq" in exp: NG = NKV
    E("s_cmp_ge_u32 s2, 256")
    E(f"s_cbranch_scc1 {name}_end")
    stamp_code(E, 0, stamps)
    E("s_load_dwordx4 s[4:7], s[0:1], 8")
    E("s_load_dwordx4 s[32:35], s[0:1], 24")
    E("s_load_dwordx2 s[52:53], s[0:1], 96")
    E("s_and_b32 s29, s2, 7")
    E("s_lshr_b32 s30, s2, 3")
    E(f"s_lshr_b32 s{sMB}, s30, 2")
    E("s_and_b32 s31, s30, 3")
    E("s_lshl_b32 s25, s29, 2")
    E("s_add_u32 s25, s25, s31")
    E(f"s_lshr_b32 s{sSel}, s25, 4")
    E(f"s_and_b32 s{sH}, s25, 15")
    E("s_and_b32 s31, s30, 1")
    E("s_lshl_b32 s29, s29, 1")
    E(f"s_add_u32 s{sHq}, s29, s31")
    E(f"s_lshr_b32 s{sRB}, s2, 4")
    E("v_and_b32 v1, 63, v0")
    E("v_lshrrev_b32 v2, 6, v0")
    E("s_nop 0")
    E(f"v_readfirstlane_b32 s{sWave}, v2")
    E("v_lshrrev_b32 v3, 3, v1")
    E("v_lshlrev_b32 v4, 5, v2")
    E("v_add_u32 v3, v3, v4")
    E("v_and_b32 v4, 7, v1")
    E("v_lshrrev_b32 v5, 4, v1")
    E("v_xor_b32 v4, v4, v5")
    E("v_xor_b32 v5, 4, v4")
    E("v_lshlrev_b32 v4, 4, v4")
    E("v_lshlrev_b32 v5, 4, v5")
    E("v_lshlrev_b32 v6, 11, v3")
    E("v_mul_u32_u24 v7, 896, v3")
    for p in range(4):
        c = "v4" if p % 2 == 0 else "v5"
        E(f"v_add_u32 v8, v6, {c}")
        E(f"v_add_u32 v{XD(p)}, {p*(8*2048-1024)}, v8")
        E(f"v_add_u32 v8, v7, {c}")
        E(f"v_add_u32 v{XQ(p)}, {p*(8*896-1024)}, v8")
    E("v_lshrrev_b32 v3, 5, v1")
    E("v_lshlrev_b32 v4, 3, v2")
    E("v_add_u32 v4, v4, v3")
    E("v_lshlrev_b32 v4, 13, v4")
    E("v_and_b32 v5, 31, v1")
    E("v_and_b32 v7, 1, v2")
    E("v_lshlrev_b32 v7, 3, v7")
    E("v_xor_b32 v5, v5, v7")
    for p in range(4):
        E(f"v_add_u32 v6, {2*p}, v3")
        E("v_and_b32 v6, 3, v6")
        E("v_lshlrev_b32 v6, 1, v6")
        E("v_xor_b32 v6, v6, v5")
        E("v_lshlrev_b32 v6, 4, v6")
        E("v_add_u32 v6, v6, v4")
        E(f"v_add_u32 v{WD(p)}, {p*(2*8192-1024)}, v6")
    E("s_waitcnt lgkmcnt(0)")
    def srd(s, lo, hi, off_s, size):
        if off_s is None:
            E(f"s_mov_b32 s{s}, s{lo}\ns_mov_b32 s{s+1}, s{hi}")
        else:
            E(f"s_add_u32 s{s}, s{lo}, {off_s}\ns_addc_u32 s{s+1}, s{hi}, 0")
        E(f"s_mov_b32 s{s+2}, {size}\ns_mov_b32 s{s+3}, 0x20000")
    E(f"s_lshl_b32 s29, s{sMB}, 19")
    srd(sX, 4, 5, "s29", 0x80000)
    E(f"s_cmp_eq_u32 s{sSel}, 0")
    E("s_cselect_b32 s30, s32, s34")
    E("s_cselect_b32 s31, s33, s35")
    E(f"s_lshl_b32 s29, s{sH}, 9")
    srd(sW, 30, 31, "s29", 0x800000)
    E(f"s_sub_u32 s{sW+2}, s{sW+2}, s29")
    E(f"s_lshl_b32 s{sM0X}, s{sWave}, 12")
    E(f"s_add_u32 s{sM0W}, s{sM0X}, {WBASE}")
    E(f"s_mov_b32 s{sXk}, 0")
    E(f"s_mov_b32 s{sWk}, 0")

    vm = []
    def dma_x(grp, hf):
        slot = grp % 3
        u = []
        if grp < 16:
            so = hf * 128 * 2048 + grp * 128
            reg, srd_, lds = XD, sX, slot * XSLOT + hf * 16384
        else:
            so = (grp - 16) * 128
            reg, srd_, lds = XQ, sXq, slot * XSLOT
        u.append(f"s_add_u32 m0, s{sM0X}, {lds}\ns_mov_b32 s{sXk}, {so}\nbuffer_load_dwordx4 v{reg(0)}, s[{srd_}:{srd_+3}], s{sXk} offen lds")
        for p in range(1, 4):
            u.append(f"buffer_load_dwordx4 v{reg(p)}, s[{srd_}:{srd_+3}], s{sXk} offen offset:{p*1024} lds")
        vm.extend([("X", grp)] * 4)
        return u
    def dma_w(G):
        slot = G % 4
        if G < NKV: so, srd_ = G * 32 * 8192, sW
        else: so, srd_ = (G - NKV) * 32 * 8192, sWq
        u = [f"s_add_u32 m0, s{sM0W}, {slot*WSLOT}\ns_mov_b32 s{sWk}, {so}\nbuffer_load_dwordx4 v{WD(0)}, s[{srd_}:{srd_+3}], s{sWk} offen lds"]
        for p in range(1, 4):
            u.append(f"buffer_load_dwordx4 v{WD(p)}, s[{srd_}:{srd_+3}], s{sWk} offen offset:{p*1024} lds")
        vm.extend([("W", G)] * 4)
        return u
    def need(*tags):
        idx = max(max(i for i, t in enumerate(vm) if t == tag) for tag in tags)
        return len(vm) - 1 - idx
    def xgrp(G): return G >> 1 if G < NKV else 16 + ((G - NKV) >> 1)
    def reads(G, st):
        grp = xgrp(G); t = G & 1
        slot = grp % 3
        seg = 1 if slot == 2 else 0
        xb = slot * XSLOT - seg * 65536
        nx = 8 if G < NKV else 4
        xr = [f"ds_read_b128 v[{XF(st,i)}:{XF(st,i)+3}], v{XA(t,seg)} offset:{xb + i*2048}" for i in range(nx)]
        wb = (G % 4) * WSLOT
        wr = []
        for j in range(8):
            for tt in range(2):
                wr.append(f"ds_read_b64_tr_b16 v[{WF(st,j)+2*tt}:{WF(st,j)+2*tt+1}], v{WA(j)} offset:{wb + tt*2048}")
        return [xr[0]] + wr + xr[1:]
    def mfmas(G, st, sel):
        m = []
        first = G == 0 or G == NKV
        nx = 8 if G < NKV else 4
        for i in range(nx):
            for j in range(8):
                b = (i*8+j)*4
                acc = f"a[{b}:{b+3}]"
                x = f"v[{XF(st,i)}:{XF(st,i)+3}]"; w = f"v[{WF(st,j)}:{WF(st,j)+3}]"
                c = "0" if first else acc
                if sel == 0 or G >= NKV: m.append(f"v_mfma_f32_16x16x32_bf16 {acc}, {w}, {x}, {c}")
                else:                    m.append(f"v_mfma_f32_16x16x32_bf16 {acc}, {x}, {w}, {c}")
        return m

    for u in dma_x(0,0) + dma_x(0,1) + dma_w(0) + dma_w(1) + dma_x(1,0) + dma_x(1,1) + dma_w(2) + dma_w(3) + dma_x(2,0) + dma_x(2,1): E(u)
    E(f"s_lshl_b32 s29, s{sSel}, 24")
    E(f"s_lshl_b32 s30, s{sH}, 20")
    E("s_add_u32 s29, s29, s30")
    srd(sO, 52, 53, "s29", 0x100000)
    E(f"s_mul_i32 s29, s{sRB}, {128*896}")
    E(f"s_add_u32 s29, s29, {WS_XN}")
    srd(sXq, 52, 53, "s29", 128*896)
    E(f"s_lshl_b32 s29, s{sHq}, 9")
    srd(sWq, 6, 7, "s29", 448*8192)
    E(f"s_sub_u32 s{sWq+2}, s{sWq+2}, s29")
    E(f"s_lshl_b32 s29, s{sHq}, 20")
    E(f"s_add_u32 s29, s29, {WS_Q}")
    srd(sOq, 52, 53, "s29", 0x100000)
    E("v_and_b32 v3, 15, v1")
    E("v_lshrrev_b32 v4, 4, v1")
    E("v_bfe_u32 v5, v1, 1, 3")
    E("v_xor_b32 v4, v4, v5")
    E("v_lshrrev_b32 v6, 7, v0")
    E("v_lshlrev_b32 v6, 7, v6")
    E("v_add_u32 v3, v3, v6")
    E("v_lshlrev_b32 v3, 7, v3")
    for t in range(2):
        E(f"v_xor_b32 v5, {4*t}, v4")
        E("v_lshlrev_b32 v5, 4, v5")
        E(f"v_add_u32 v{XA(t,0)}, v3, v5")
        E(f"v_add_u32 v{XA(t,1)}, 0x10000, v{XA(t,0)}")
    E("v_bfe_u32 v3, v1, 2, 2")
    E("v_lshrrev_b32 v4, 4, v1")
    E("v_lshlrev_b32 v5, 3, v4")
    E("v_add_u32 v5, v5, v3")
    E("v_lshlrev_b32 v5, 9, v5")
    E("v_and_b32 v4, 1, v4")
    E("v_lshlrev_b32 v4, 2, v4")
    E("v_or_b32 v3, v3, v4")
    E("v_and_b32 v6, 3, v1")
    E("v_lshlrev_b32 v6, 3, v6")
    E("v_add_u32 v5, v5, v6")
    E("v_bfe_u32 v6, v0, 6, 1")
    E("v_lshlrev_b32 v6, 8, v6")
    E("v_add_u32 v5, v5, v6")
    E(f"v_add_u32 v5, {WBASE}, v5")
    for j in range(8):
        E(f"v_xor_b32 v6, {j}, v3")
        E("v_lshlrev_b32 v6, 5, v6")
        E(f"v_add_u32 v{WA(j)}, v5, v6")
    E(f"s_waitcnt vmcnt({need(('X',0),('W',0))})")
    E("s_barrier")
    stamp_code(E, 1, stamps)
    for u in reads(0, 0): E(u)
    E(f"s_cmp_eq_u32 s{sSel}, 0")
    E(f"s_cbranch_scc0 {name}_v")
    vm0 = list(vm)

    def kv_epilogue(sel):
        E("s_nop 7")
        E("v_lshlrev_b32 v3, 4, v1")
        E("v_lshrrev_b32 v4, 7, v0")
        E("v_lshlrev_b32 v4, 16, v4")
        E("v_add_u32 v3, v3, v4")
        E("v_bfe_u32 v4, v0, 6, 1")
        E(f"v_lshlrev_b32 v4, {12 if sel == 0 else 13}, v4")
        E("v_add_u32 v3, v3, v4")
        E(f"s_lshl_b32 s29, s{sMB}, 17")
        n = 0
        for a in range(8 if sel == 0 else 4):
            for b in range(4 if sel == 0 else 8):
                t = 192 + (n % 4) * 12; n += 1
                if sel == 0:
                    src = [(a*8 + 2*b)*4 + r for r in range(8)]; off = a*8192 + b*1024
                else:
                    src = [(2*a*8 + b)*4 + r for r in range(4)] + [((2*a+1)*8 + b)*4 + r for r in range(4)]; off = a*16384 + b*1024
                for r in range(8): E(f"v_accvgpr_read_b32 v{t+r}, a{src[r]}")
                for r in range(4): E(f"v_cvt_pk_bf16_f32 v{t+8+r}, v{t+2*r}, v{t+2*r+1}")
                E(f"s_add_u32 s30, s29, {off}")
                E(f"buffer_store_dwordx4 v[{t+8}:{t+11}], v3, s[{sO}:{sO+3}], s30 offen")
                vm.append(("S", 0))
    def q_epilogue():
        E("s_nop 7")
        E("v_lshlrev_b32 v3, 4, v1")
        E("v_lshrrev_b32 v4, 7, v0")
        E("v_lshlrev_b32 v4, 15, v4")
        E("v_add_u32 v3, v3, v4")
        E("v_bfe_u32 v4, v0, 6, 1")
        E("v_lshlrev_b32 v4, 12, v4")
        E("v_add_u32 v3, v3, v4")
        E(f"s_lshl_b32 s29, s{sRB}, 16")
        E("s_mov_b32 s31, 0x3db8aa3b")
        n = 0
        for a in range(4):
            for b in range(4):
                t = 192 + (n % 4) * 12; n += 1
                src = [(a*8 + 2*b)*4 + r for r in range(8)]; off = a*8192 + b*1024
                for r in range(8): E(f"v_accvgpr_read_b32 v{t+r}, a{src[r]}")
                for r in range(8): E(f"v_mul_f32 v{t+r}, s31, v{t+r}")
                for r in range(4): E(f"v_cvt_pk_bf16_f32 v{t+8+r}, v{t+2*r}, v{t+2*r+1}")
                E(f"s_add_u32 s30, s29, {off}")
                E(f"buffer_store_dwordx4 v[{t+8}:{t+11}], v3, s[{sOq}:{sOq+3}], s30 offen")

    for sel in range(2):
        lab = f"{name}_{'kv'[sel]}"
        if sel == 1: E(f"{lab}:")
        vm[:] = vm0
        for G in range(NG):
            st = G & 1
            if G == NKV:
                stamp_code(E, 2, stamps)
                E("v_lshrrev_b32 v4, 7, v0\nv_lshlrev_b32 v4, 13, v4")
                for t in range(2):
                    for seg in range(2): E(f"v_sub_u32 v{XA(t,seg)}, v{XA(t,seg)}, v4")
                for u in reads(NKV, st): E(u)
                kv_epilogue(sel)
                stamp_code(E, 3, stamps)
            last = G == NG - 1
            fl, plan = [], []
            ngap = 64 if G < NKV else 32
            if not last:
                E(f"s_waitcnt vmcnt({need(('X', xgrp(G+1)), ('W', G+1))}) lgkmcnt(0)")
                E("s_barrier")
                if G + 1 != NKV:
                    rd = reads(G + 1, st ^ 1)
                    step = 2 if ngap == 64 else 1
                    fl += rd; plan += [step * k for k in range(len(rd))]
                d = []
                if G + 4 < NG: d += dma_w(G + 4)
                if G < NKV:
                    if G % 2 == 1: grp, hf = (G - 1) // 2 + 3, 0
                    else: grp, hf = G // 2 + 2, 1
                    if G == 0: grp = None
                else:
                    it = G - NKV
                    grp, hf = (16 + (it - 1) // 2 + 3, 0) if it % 2 == 1 else (None, 0)
                if grp is not None:
                    maxg = 16 + 7 if NG > NKV else 16
                    if grp < 16 or (grp < maxg and hf == 0): d += dma_x(grp, hf)
                if ngap == 64: dp = [3 + 8 * k - (0) for k in range(8)]; dp = [5, 11, 17, 23, 29, 35, 41, 47]
                else: dp = [21, 22, 23, 24, 25, 26, 27, 28]
                fl += d; plan += dp[:len(d)]
            else:
                E("s_waitcnt lgkmcnt(0)")
            for l in interleave(mfmas(G, st, sel), fl, plan=plan): E(l)
            if G + 1 == NKV and NG > NKV:
                pass
            if G == NKV - 1 and NG > NKV:
                pass
        if NG == NKV:
            stamp_code(E, 2, stamps)
            kv_epilogue(sel)
            stamp_code(E, 3, stamps)
        else:
            stamp_code(E, 4, stamps)
            q_epilogue()
        if stamps:
            E("s_waitcnt vmcnt(0)")
            stamp_code(E, 5 if NG > NKV else 4, stamps)
            stamp_dump(E, 6 if NG > NKV else 5, lab, 52)
        E("s_endpgm")
    E(f"{name}_end:")
    E("s_endpgm")
    return E.text()
```

```python
from asmlib import *
from ws import *
from k1 import stamp_code, stamp_dump

NS = 5
CH = 32768
THR = 0x44800000

def O(db, qt): return (db * 2 + qt) * 4
def Q(qt, ds): return 128 + (qt * 8 + ds) * 4
def F(f): return 192 + (f % 16) * 4
def S(par, kb, qt): return 64 + par * 32 + (kb * 2 + qt) * 4
def P(par, s, qt): return 128 + par * 16 + (s * 2 + qt) * 4
def NEGM(qt): return 160 + 4 * qt
TMP = 168
L_ = lambda qt: 184 + qt
LS = lambda qt: 186 + qt
M_ = lambda qt: 188 + qt
DM = lambda qt: 190 + qt
vCur, vNext, vLane16, vDma, vTab = 192, 193, 194, 195, 196
vT0 = 200
sKV = 8
sQ = 12
sPT = 16
sOP = 20
sWO = 24
sFL = 28
sWave, sH, sPair, sType = 32, 33, 34, 35
sC, sWr, sRdN, sOff, sN, sI, sT, sQB, sItem = 36, 37, 38, 39, 40, 41, 42, 43, 44
sTmp, sTmp2, sTmp3 = 45, 46, 47
sM0 = 48

def a4(b): return f"a[{b}:{b+3}]"
def v4(b): return f"v[{b}:{b+3}]"

class K2:
    def __init__(self, name, stamps=False, exp=""):
        self.name = name; self.E = Emit(); self.stamps = stamps; self.exp = exp
        self.uid = 0
    def lab(self, s):
        self.uid += 1
        return f"{self.name}_{s}{self.uid}"

    def phase_head(self):
        pre = ["s_waitcnt vmcnt(16)", "s_barrier"]
        if "nobar" in self.exp: pre = pre[:1]
        pre.append(f"v_readlane_b32 s{sOff}, v{vTab}, s{sC}")
        pre.append(f"v_mov_b32 v{vCur}, v{vNext}")
        misc = []
        misc.append(f"s_add_u32 s{sRdN}, s{sRdN}, {CH}\ns_cmp_eq_u32 s{sRdN}, {NS*CH}\ns_cselect_b32 s{sRdN}, 0, s{sRdN}")
        misc.append(f"v_add_u32 v{vNext}, s{sRdN}, v{vLane16}")
        misc.append(f"s_add_u32 s{sC}, s{sC}, 1\ns_add_u32 m0, s{sWr}, s{sM0}")
        dma = []
        for p in range(4):
            dma.append(f"buffer_load_dwordx4 v{vDma}, s[{sKV}:{sKV+3}], s{sOff} offen offset:{p*1024} lds")
        dma.append(f"s_add_u32 m0, m0, 4096\ns_add_u32 s{sOff}, s{sOff}, 4096")
        for p in range(4):
            dma.append(f"buffer_load_dwordx4 v{vDma}, s[{sKV}:{sKV+3}], s{sOff} offen offset:{p*1024} lds")
        dma.append(f"s_add_u32 s{sWr}, s{sWr}, {CH}\ns_cmp_eq_u32 s{sWr}, {NS*CH}\ns_cselect_b32 s{sWr}, 0, s{sWr}")
        return pre, misc, dma

    def frag_read(self, f):
        if f < 32: return f"ds_read_b128 {a4(F(f))}, v{vCur} offset:{f*1024}"
        return f"ds_read_b128 {a4(F(f))}, v{vNext} offset:{(f-32)*1024}"

    def qk_mfmas(self, par, cinit):
        m = []
        for kb in range(4):
            for ds in range(8):
                f = kb * 8 + ds
                for qt in range(2):
                    d = v4(S(par, kb, qt))
                    c = (v4(NEGM(qt)) if cinit else "0") if ds == 0 else d
                    m.append(f"v_mfma_f32_16x16x32_bf16 {d}, {a4(F(f))}, {a4(Q(qt, ds))}, {c}")
        return m
    def pv_mfmas(self, par, first=False):
        m = []
        for s in range(2):
            for db in range(16):
                f = s * 16 + db
                for qt in range(2):
                    d = a4(O(db, qt))
                    m.append(f"v_mfma_f32_16x16x32_bf16 {d}, {a4(F(f))}, {v4(P(par, s, qt))}, {d}")
        return m

    def sm_stream(self, par, half):
        out = []
        for kb in (2 * half, 2 * half + 1):
            for qt in range(2):
                s0 = S(par, kb, qt); t = TMP + ((kb * 2 + qt) % 4) * 4
                p = P(par, kb >> 1, qt) + 2 * (kb & 1)
                first = (kb == 0)
                for r in range(4): out.append((8, f"v_exp_f32 v{t+r}, v{s0+r}"))
                if first:
                    out.append((4, f"v_add_f32 v{LS(qt)}, v{t}, v{t+1}"))
                else:
                    out.append((4, f"v_add_f32 v{LS(qt)}, v{LS(qt)}, v{t}"))
                    out.append((4, f"v_add_f32 v{LS(qt)}, v{LS(qt)}, v{t+1}"))
                out.append((4, f"v_cvt_pk_bf16_f32 v{p}, v{t}, v{t+1}"))
                out.append((4, f"v_add_f32 v{LS(qt)}, v{LS(qt)}, v{t+2}"))
                out.append((4, f"v_cvt_pk_bf16_f32 v{p+1}, v{t+2}, v{t+3}"))
                out.append((4, f"v_add_f32 v{LS(qt)}, v{LS(qt)}, v{t+3}"))
        return out

    def emit_phase(self, mf, chunk, sm):
        E = self.E
        if not mf:
            for c, t in sm: E(t)
            return
        pre, misc, dma = self.phase_head()
        for l in pre: E(l)
        n = len(mf)
        gaps = [[] for _ in range(n)]
        cost = [0] * n
        def put(g, c, t):
            gaps[g].append(t); cost[g] += c
        for f in range(32):
            if "nords" in self.exp: continue
            put(2 * f, 4, self.frag_read(f + 8))
        waits = {8 * k: "s_waitcnt lgkmcnt(4)" for k in range(8)}
        put(1, 0, misc[0]); put(3, 4, misc[1]); put(5, 0, misc[2])
        dg = [9, 15, 21, 27, 33, 39, 45, 51, 57, 61]
        for g, t in zip(dg, dma):
            if "nodma" in self.exp and "buffer" in t: continue
            put(g, 4 if "buffer" in t else 0, t)
        if "nosm" in self.exp: sm = []
        if sm:
            exps = [t for c, t in sm if c == 8]
            free_odd = [g for g in range(1, n, 2) if cost[g] == 0 and g <= 49]
            assert len(free_odd) >= len(exps), (len(free_odd), len(exps))
            egap = [free_odd[(j * len(free_odd)) // len(exps)] for j in range(len(exps))]
            for t, g in zip(exps, egap): put(g, 8, t)
            k = -1; ne = 0; g = 0
            for c, t in sm:
                if c == 8: ne += 1; continue
                g = max(g, egap[ne - 1] + 1)
                while cost[g] + c > 8: g += 1
                put(g, c, t)
        for i in range(n):
            if i in waits: E(waits[i])
            E(mf[i])
            for t in gaps[i]: E(t)

    def mask_block(self, par):
        E = self.E
        E(f"s_lshl_b32 s{sTmp}, s{sT}, 6")
        for qt in range(2): E(f"v_subrev_u32 v{vT0+qt}, s{sTmp}, v{DM(qt)}")
        E(f"v_mov_b32 v{vT0+2}, 0xff800000")
        for qt in range(2):
            for kb in range(4):
                for r in range(4):
                    E(f"v_cmp_le_i32 vcc, {16*kb+r}, v{vT0+qt}")
                    E("s_nop 1")
                    E(f"v_cndmask_b32 v{S(par,kb,qt)+r}, v{vT0+2}, v{S(par,kb,qt)+r}, vcc")

    def xlane(self, op, r, t):
        E = self.E
        E(f"v_mov_b32 v{t}, v{r}\ns_nop 1")
        E(f"v_permlane16_swap_b32 v{r}, v{t}\ns_nop 1")
        E(f"{op} v{r}, v{r}, v{t}")
        E(f"v_mov_b32 v{t}, v{r}\ns_nop 1")
        E(f"v_permlane32_swap_b32 v{r}, v{t}\ns_nop 1")
        E(f"{op} v{r}, v{r}, v{t}")

    def rowmax(self, par, qt, r, t):
        E = self.E
        vals = [S(par, kb, qt) + i for kb in range(4) for i in range(4)]
        E(f"v_max3_f32 v{r}, v{vals[0]}, v{vals[1]}, v{vals[2]}")
        for i in range(3, 15, 2): E(f"v_max3_f32 v{r}, v{r}, v{vals[i]}, v{vals[i+1]}")
        E(f"v_max_f32 v{r}, v{r}, v{vals[15]}")
        self.xlane("v_max_f32", r, t)

    def init_block(self):
        E = self.E
        E("s_nop 7")
        for qt in range(2):
            self.rowmax(0, qt, M_(qt), vT0)
            E(f"v_max_f32 v{M_(qt)}, 0xf149f2ca, v{M_(qt)}")
            for kb in range(4):
                for r in range(4): E(f"v_sub_f32 v{S(0,kb,qt)+r}, v{S(0,kb,qt)+r}, v{M_(qt)}")
            for r in range(4): E(f"v_sub_f32 v{NEGM(qt)+r}, 0, v{M_(qt)}")
            E(f"v_mov_b32 v{L_(qt)}, 0")

    def slow_block(self, par):
        E = self.E
        E("s_nop 15")
        for qt in range(2):
            d = vT0 + qt
            self.rowmax(par, qt, d, vT0 + 2)
            E(f"v_max_f32 v{d}, 0, v{d}")
            E(f"v_add_f32 v{M_(qt)}, v{M_(qt)}, v{d}")
            for r in range(4): E(f"v_sub_f32 v{NEGM(qt)+r}, v{NEGM(qt)+r}, v{d}")
            for pp in (par, par ^ 1):
                for kb in range(4):
                    for r in range(4): E(f"v_sub_f32 v{S(pp,kb,qt)+r}, v{S(pp,kb,qt)+r}, v{d}")
            E(f"v_sub_f32 v{vT0+3}, 0, v{d}")
            E(f"v_exp_f32 v{vT0+3}, v{vT0+3}\ns_nop 0")
            E(f"v_mul_f32 v{L_(qt)}, v{L_(qt)}, v{vT0+3}")
            for db in range(16):
                for r in range(4):
                    a = O(db, qt) + r
                    E(f"v_accvgpr_read_b32 v{vT0+4}, a{a}")
                    E(f"v_mul_f32 v{vT0+4}, v{vT0+4}, v{vT0+3}")
                    E(f"v_accvgpr_write_b32 a{a}, v{vT0+4}")
        for half in range(2):
            prev = None
            for c, t in self.sm_stream(par, half):
                if prev is not None and "v_exp" in prev and "v_exp" not in t: E("s_nop 0")
                E(t); prev = t
        E("s_nop 2")

    def check(self, par):
        E = self.E
        sl = self.lab("slow"); back = self.lab("back")
        E(f"v_max_f32 v{vT0}, v{LS(0)}, v{LS(1)}")
        E(f"v_cmp_lt_f32 vcc, {THR}, v{vT0}")
        if "noslow" not in self.exp: E(f"s_cbranch_vccnz {sl}")
        E(f"{back}:")
        for qt in range(2): E(f"v_add_f32 v{L_(qt)}, v{L_(qt)}, v{LS(qt)}")
        self.slow.append((sl, back, par))

    def maybe_mask(self, par):
        E = self.E
        sk = self.lab("nomask")
        E(f"s_lshl_b32 s{sTmp}, s{sQB}, 1")
        E(f"s_cmp_lt_u32 s{sT}, s{sTmp}")
        E(f"s_cbranch_scc1 {sk}")
        self.mask_block(par)
        E(f"{sk}:")

    def item_loop(self):
        E = self.E; nm = self.name
        self.slow = []
        for i in range(128): E(f"v_accvgpr_write_b32 a{i}, 0")
        E(f"s_lshl_b32 s{sTmp}, s{sQB}, 7")
        E(f"s_lshl_b32 s{sTmp2}, s{sWave}, 5")
        E(f"s_add_u32 s{sTmp}, s{sTmp}, s{sTmp2}")
        E(f"v_and_b32 v{vT0}, 15, v0")
        E(f"v_bfe_u32 v{vT0+1}, v0, 4, 2")
        E(f"v_lshlrev_b32 v{vT0+1}, 2, v{vT0+1}")
        E(f"v_sub_u32 v{vT0}, v{vT0}, v{vT0+1}")
        E(f"v_add_u32 v{DM(0)}, s{sTmp}, v{vT0}")
        E(f"v_add_u32 v{DM(1)}, 16, v{DM(0)}")
        self.emit_phase(self.qk_mfmas(0, False), True, [])
        E("s_nop 7")
        self.maybe_mask(0)
        self.init_block()
        E(f"s_cmp_eq_u32 s{sN}, 1")
        E(f"s_cbranch_scc1 {nm}_only")
        self.emit_phase(self.qk_mfmas(1, True), True, self.sm_stream(0, 0))
        self.emit_phase([], False, self.sm_stream(0, 1))
        self.check(0)
        E(f"s_add_u32 s{sT}, s{sT}, 1")
        E(f"s_sub_u32 s{sI}, s{sN}, 2")
        if "mid" in self.exp: stamp_code(E, 1, True)
        E(f"{nm}_loop:")
        for par in (1, 0):
            E(f"s_cmp_eq_u32 s{sI}, 0")
            E(f"s_cbranch_scc1 {nm}_last{par}")
            self.maybe_mask(par)
            self.emit_phase(self.qk_mfmas(par ^ 1, True), True, self.sm_stream(par, 0))
            self.emit_phase(self.pv_mfmas(par ^ 1), True, self.sm_stream(par, 1))
            self.check(par)
            E(f"s_add_u32 s{sT}, s{sT}, 1")
            E(f"s_sub_u32 s{sI}, s{sI}, 1")
        E(f"s_branch {nm}_loop")
        for par in (1, 0):
            E(f"{nm}_last{par}:")
            if "mid" in self.exp: stamp_code(E, 2, True)
            self.maybe_mask(par)
            self.emit_phase([], False, self.sm_stream(par, 0))
            self.emit_phase(self.pv_mfmas(par ^ 1), True, self.sm_stream(par, 1))
            self.check(par)
            E("s_nop 1")
            self.emit_phase(self.pv_mfmas(par), True, [])
            E(f"s_branch {nm}_itemdone")
        E(f"{nm}_only:")
        self.emit_phase([], False, self.sm_stream(0, 0))
        self.emit_phase([], False, self.sm_stream(0, 1))
        self.check(0)
        E("s_nop 1")
        self.emit_phase(self.pv_mfmas(0), True, [])
        E(f"s_branch {nm}_itemdone")
        for sl, back, par in self.slow:
            E(f"{sl}:")
            self.slow_block(par)
            E(f"s_branch {back}")
        E(f"{nm}_itemdone:")

    def prologue(self):
        E = self.E; nm = self.name
        E("s_cmp_ge_u32 s2, 256")
        E(f"s_cbranch_scc1 {nm}_end")
        stamp_code(E, 0, self.stamps)
        E("s_load_dwordx2 s[4:5], s[0:1], 96")
        E("s_load_dwordx2 s[6:7], s[0:1], 40")
        E("s_load_dwordx2 s[50:51], s[0:1], 88")
        E("s_and_b32 s45, s2, 7")
        E("s_lshr_b32 s46, s2, 3")
        E("s_and_b32 s47, s46, 1")
        E("s_lshl_b32 s45, s45, 1")
        E(f"s_add_u32 s{sH}, s45, s47")
        E("s_lshr_b32 s46, s46, 1")
        E(f"s_and_b32 s{sType}, s46, 1")
        E(f"s_lshr_b32 s{sPair}, s46, 1")
        E(f"v_lshrrev_b32 v{vT0}, 6, v0")
        E(f"v_and_b32 v1, 63, v0")
        E(f"v_readfirstlane_b32 s{sWave}, v{vT0}")
        E(f"v_lshlrev_b32 v{vLane16}, 4, v1")
        E(f"s_lshl_b32 s45, s{sPair}, 1")
        E(f"s_sub_u32 s46, 15, s45")
        E(f"s_cmp_eq_u32 s{sType}, 0")
        E(f"s_cselect_b32 s52, 17, s46")
        E(f"s_cselect_b32 s53, 0, 17")
        E(f"s_add_u32 s47, s45, 2")
        E(f"s_cselect_b32 s54, 0, s47")
        E(f"s_cmp_eq_u32 s{sType}, 0")
        E(f"s_cselect_b32 s54, 0, s47")
        E(f"s_lshl_b32 s55, s52, 1")
        t = vT0
        E(f"v_cmp_gt_u32 vcc, s55, v1")
        E(f"v_subrev_u32 v{t+3}, s55, v1")
        E("s_nop 0")
        E(f"v_cndmask_b32 v{t}, v{t+3}, v1, vcc")
        E(f"v_mov_b32 v{t+4}, s54\nv_mov_b32 v{t+5}, s52")
        E(f"v_cndmask_b32 v{t+1}, v{t+4}, v{t+5}, vcc")
        E(f"v_mov_b32 v{t+4}, 0\nv_mov_b32 v{t+5}, s53")
        E(f"v_cndmask_b32 v{t+2}, v{t+4}, v{t+5}, vcc")
        E(f"v_min_u32 v{t+4}, 2, v{t+1}")
        E(f"v_cmp_lt_u32 s[56:57], v{t}, v{t+4}")
        E(f"v_lshlrev_b32 v{t+5}, 1, v{t+1}")
        E(f"v_subrev_u32 v{t+5}, 2, v{t+5}")
        E(f"v_cmp_lt_i32 s[58:59], v{t}, v{t+5}")
        E(f"v_and_b32 v{t+6}, 1, v{t}")
        E(f"v_cmp_eq_u32 s[60:61], 0, v{t+6}")
        E(f"v_sub_u32 v{t+7}, v{t}, v{t+1}")
        E(f"v_lshrrev_b32 v{t+8}, 1, v{t}")
        E(f"v_add_u32 v{t+9}, 1, v{t+8}")
        E(f"v_subrev_u32 v{t+8}, 1, v{t+8}")
        E(f"v_cndmask_b32 v{t+8}, v{t+8}, v{t+9}, s[60:61]")
        E(f"v_cndmask_b32 v{t+7}, v{t+7}, v{t+8}, s[58:59]")
        E(f"v_cndmask_b32 v{t+7}, v{t+7}, v{t}, s[56:57]")
        E(f"s_and_b64 s[58:59], s[58:59], s[60:61]")
        E(f"s_or_b64 s[58:59], s[58:59], s[56:57]")
        E(f"v_mov_b32 v{t+8}, {WS_V - WS_K}\nv_mov_b32 v{t+9}, 0")
        E(f"v_cndmask_b32 v{t+8}, v{t+8}, v{t+9}, s[58:59]")
        E(f"v_add_u32 v{t+7}, v{t+7}, v{t+2}")
        E(f"v_lshlrev_b32 v{t+7}, 15, v{t+7}")
        E(f"v_add_u32 v{t+7}, v{t+7}, v{t+8}")
        E(f"s_lshl_b32 s45, s{sH}, 20")
        E(f"v_add_u32 v{t+7}, s45, v{t+7}")
        E(f"v_lshlrev_b32 v{t+5}, 1, v{t+1}")
        E(f"v_cmp_lt_u32 vcc, v{t}, v{t+5}")
        E(f"v_mov_b32 v{t+8}, 0x7ff00000")
        E("s_nop 0")
        E(f"v_cndmask_b32 v{vTab}, v{t+8}, v{t+7}, vcc")
        E(f"s_lshl_b32 s{sM0}, s{sWave}, 13")
        E(f"v_add_u32 v{vDma}, s{sM0}, v{vLane16}")
        E("s_waitcnt lgkmcnt(0)")
        def srd(s, lo, off, size):
            if isinstance(off, int) and off == 0: E(f"s_mov_b32 s{s}, s{lo}\ns_mov_b32 s{s+1}, s{lo+1}")
            else: E(f"s_add_u32 s{s}, s{lo}, {off}\ns_addc_u32 s{s+1}, s{lo+1}, 0")
            E(f"s_mov_b32 s{s+2}, {size}\ns_mov_b32 s{s+3}, 0x20000")
        srd(sKV, 4, WS_K, 32 << 20)
        for c in range(4):
            E(f"v_readlane_b32 s{sOff}, v{vTab}, {c}")
            E(f"s_add_u32 m0, s{sM0}, {c*CH}")
            E("s_nop 3")
            for p in range(4): E(f"buffer_load_dwordx4 v{vDma}, s[{sKV}:{sKV+3}], s{sOff} offen offset:{p*1024} lds")
            E(f"s_add_u32 m0, m0, 4096\ns_add_u32 s{sOff}, s{sOff}, 4096")
            for p in range(4): E(f"buffer_load_dwordx4 v{vDma}, s[{sKV}:{sKV+3}], s{sOff} offen offset:{p*1024} lds")
        E(f"s_lshl_b32 s45, s{sH}, 20")
        E(f"s_add_u32 s45, s45, {WS_Q}")
        srd(sQ, 4, "s45", 1 << 20)
        E(f"s_lshl_b32 s45, s{sH}, 3\ns_add_u32 s45, s45, s{sPair}")
        E(f"s_mov_b32 s62, s45")
        E(f"s_lshl_b32 s45, s45, 17")
        E(f"s_add_u32 s45, s45, {WS_PT}")
        srd(sPT, 4, "s45", 131072)
        E(f"s_mul_i32 s45, s{sH}, {128*14*1024}")
        E(f"s_add_u32 s45, s45, {WS_OP}")
        srd(sOP, 4, "s45", 128*14*1024)
        E(f"s_mul_i32 s45, s{sH}, {256*896}")
        srd(sWO, 6, "s45", 256*896)
        srd(sFL, 50, 0, 256)
        E(f"s_mov_b32 s{sC}, 4")
        E(f"s_mov_b32 s{sWr}, {4*CH}")
        E(f"s_mov_b32 s{sRdN}, 0")
        E(f"v_mov_b32 v{vNext}, v{vLane16}")
        E(f"s_mov_b32 s{sN}, s52\ns_mov_b32 s{sT}, s53\ns_sub_u32 s{sQB}, 15, s{sPair}\ns_mov_b32 s{sItem}, 0")
        self.load_q()
        E("s_waitcnt vmcnt(40)")
        E("s_barrier")
        for f in range(8): E(self.frag_read(32 + f))
        E("s_waitcnt vmcnt(0)")
        if "mid" not in self.exp: stamp_code(E, 1, self.stamps)

    def load_q(self):
        E = self.E
        E(f"s_lshl_b32 s{sTmp}, s{sQB}, 3\ns_lshl_b32 s{sTmp2}, s{sWave}, 1\ns_add_u32 s{sTmp}, s{sTmp}, s{sTmp2}\ns_lshl_b32 s{sTmp}, s{sTmp}, 13")
        for qt in range(2):
            for hh in range(2):
                E(f"s_add_u32 s{sTmp2}, s{sTmp}, {qt*8192 + hh*4096}")
                for d in range(4):
                    E(f"buffer_load_dwordx4 {a4(Q(qt, hh*4+d))}, v{vLane16}, s[{sQ}:{sQ+3}], s{sTmp2} offen offset:{d*1024}")

    def finish(self):
        E = self.E; nm = self.name
        E("s_nop 7")
        for qt in range(2): self.xlane("v_add_f32", L_(qt), vT0)
        E(f"s_cmp_eq_u32 s{sType}, 0")
        E(f"s_cbranch_scc1 {nm}_typeA")
        E(f"s_cmp_eq_u32 s{sItem}, 1")
        E(f"s_cbranch_scc1 {nm}_plain")
        E(f"s_lshl_b32 s{sTmp}, s{sWave}, 15")
        for i in range(16):
            t = vT0 + (i % 2) * 12
            qt = i >> 3; s = i & 7
            src = [O(2*s, qt) + r for r in range(4)] + [O(2*s+1, qt) + r for r in range(4)]
            for r in range(8): E(f"v_accvgpr_read_b32 v{t+r}, a{src[r]}")
            for r in range(4): E(f"v_cvt_pk_bf16_f32 v{t+8+r}, v{t+2*r}, v{t+2*r+1}")
            E(f"s_add_u32 s{sTmp2}, s{sTmp}, {i*1024}")
            E(f"buffer_store_dwordx4 v[{t+8}:{t+11}], v{vLane16}, s[{sPT}:{sPT+3}], s{sTmp2} offen sc1")
        t = vT0 + 24
        E(f"v_mov_b32 v{t}, v{M_(0)}\nv_mov_b32 v{t+1}, v{M_(1)}\nv_mov_b32 v{t+2}, v{L_(0)}\nv_mov_b32 v{t+3}, v{L_(1)}")
        E(f"s_add_u32 s{sTmp2}, s{sTmp}, 16384")
        E(f"buffer_store_dwordx4 v[{t}:{t+3}], v{vLane16}, s[{sPT}:{sPT+3}], s{sTmp2} offen sc1")
        E(f"s_lshl_b32 s{sTmp}, s{sPair}, 1\ns_add_u32 s{sN}, s{sTmp}, 2\ns_mov_b32 s{sT}, 0\ns_mov_b32 s{sQB}, s{sPair}\ns_mov_b32 s{sItem}, 1")
        self.load_q()
        E("s_waitcnt vmcnt(0)")
        E("s_barrier")
        E(f"s_cmp_lg_u32 s{sWave}, 0")
        E(f"s_cbranch_scc1 {nm}_nosig")
        E(f"s_lshr_b32 s{sTmp}, s62, 1\ns_lshl_b32 s{sTmp}, s{sTmp}, 2")
        E(f"s_and_b32 s{sTmp2}, s62, 1\ns_lshl_b32 s{sTmp2}, s{sTmp2}, 4\ns_lshl_b32 s{sTmp2}, 1, s{sTmp2}")
        E(f"v_mov_b32 v{vT0}, s{sTmp2}\nv_mov_b32 v{vT0+1}, s{sTmp}")
        E(f"s_mov_b64 s[56:57], exec\ns_mov_b64 exec, 1")
        E(f"buffer_atomic_add v{vT0}, v{vT0+1}, s[{sFL}:{sFL+3}], 0 offen sc1")
        E(f"s_mov_b64 exec, s[56:57]")
        E(f"{nm}_nosig:")
        E(f"s_branch {nm}_item")
        E(f"{nm}_typeA:")
        self.wo_issue()
        E(f"s_lshr_b32 s{sTmp}, s62, 1\ns_lshl_b32 s{sTmp}, s{sTmp}, 2")
        E(f"s_and_b32 s{sTmp2}, s62, 1\ns_lshl_b32 s{sTmp2}, s{sTmp2}, 4\ns_lshl_b32 s{sTmp2}, 0xffff, s{sTmp2}")
        E(f"v_mov_b32 v{vT0+1}, s{sTmp}")
        E(f"{nm}_poll:")
        E(f"buffer_load_dword v{vT0}, v{vT0+1}, s[{sFL}:{sFL+3}], 0 offen sc1")
        E("s_waitcnt vmcnt(0)")
        E(f"v_readfirstlane_b32 s{sTmp3}, v{vT0}")
        E(f"s_and_b32 s{sTmp3}, s{sTmp3}, s{sTmp2}")
        E(f"s_cmp_lg_u32 s{sTmp3}, 0")
        E(f"s_cbranch_scc1 {nm}_got")
        E("s_sleep 2")
        E(f"s_branch {nm}_poll")
        E(f"{nm}_got:")
        E(f"s_lshl_b32 s{sTmp}, s{sWave}, 15")
        E(f"s_add_u32 s{sTmp2}, s{sTmp}, 16384")
        E(f"buffer_load_dwordx4 v[{vT0+4}:{vT0+7}], v{vLane16}, s[{sPT}:{sPT+3}], s{sTmp2} offen sc1")
        for i in range(16):
            E(f"s_add_u32 s{sTmp2}, s{sTmp}, {i*1024}")
            E(f"buffer_load_dwordx4 v[{64+4*i}:{67+4*i}], v{vLane16}, s[{sPT}:{sPT+3}], s{sTmp2} offen sc1")
        E("s_waitcnt vmcnt(16)")
        for qt in range(2):
            mB, lB = vT0 + 4 + qt, vT0 + 6 + qt
            ms, fA, fB = vT0 + 12, vT0 + 13, vT0 + 14
            E(f"v_max_f32 v{ms}, v{M_(qt)}, v{mB}")
            E(f"v_sub_f32 v{fA}, v{M_(qt)}, v{ms}\nv_sub_f32 v{fB}, v{mB}, v{ms}")
            E(f"v_exp_f32 v{fA}, v{fA}\nv_exp_f32 v{fB}, v{fB}\ns_nop 0")
            E(f"v_mul_f32 v{ms}, v{L_(qt)}, v{fA}\nv_fmac_f32 v{ms}, v{lB}, v{fB}")
            E(f"v_rcp_f32 v{ms}, v{ms}\ns_nop 0")
            E(f"v_mul_f32 v{vT0+8+qt}, v{fA}, v{ms}\nv_mul_f32 v{vT0+10+qt}, v{fB}, v{ms}")
        E("s_waitcnt vmcnt(0)")
        for i in range(16):
            qt = i >> 3; s = i & 7
            src = [O(2*s, qt) + r for r in range(4)] + [O(2*s+1, qt) + r for r in range(4)]
            t = vT0 + 16; c = 64 + 4 * i
            for r in range(8): E(f"v_accvgpr_read_b32 v{t+r}, a{src[r]}")
            for r in range(8): E(f"v_mul_f32 v{t+r}, v{t+r}, v{vT0+8+qt}")
            for r in range(4):
                E(f"v_lshlrev_b32 v{t+8}, 16, v{c+r}\nv_and_b32 v{t+9}, 0xffff0000, v{c+r}")
                E(f"v_fmac_f32 v{t+2*r}, v{t+8}, v{vT0+10+qt}\nv_fmac_f32 v{t+2*r+1}, v{t+9}, v{vT0+10+qt}")
                E(f"v_cvt_pk_bf16_f32 v{c+r}, v{t+2*r}, v{t+2*r+1}")
        E(f"s_branch {nm}_oproj")
        E(f"{nm}_plain:")
        self.wo_issue()
        for qt in range(2): E(f"v_rcp_f32 v{vT0+8+qt}, v{L_(qt)}")
        E("s_nop 0")
        for i in range(16):
            qt = i >> 3; s = i & 7
            src = [O(2*s, qt) + r for r in range(4)] + [O(2*s+1, qt) + r for r in range(4)]
            t = vT0 + 16 + (i % 2) * 8; c = 64 + 4 * i
            for r in range(8): E(f"v_accvgpr_read_b32 v{t+r}, a{src[r]}")
            for r in range(8): E(f"v_mul_f32 v{t+r}, v{t+r}, v{vT0+8+qt}")
            for r in range(4): E(f"v_cvt_pk_bf16_f32 v{c+r}, v{t+2*r}, v{t+2*r+1}")
        E(f"{nm}_oproj:")
        self.oproj()

    WOD = 232
    WOA = 240
    def wo_setup(self):
        E = self.E
        t = vT0 + 4
        for i in range(7):
            E(f"s_mul_i32 s{sTmp}, s{sWave}, 448\ns_add_u32 s{sTmp}, s{sTmp}, {64*i}")
            E(f"v_add_u32 v{t}, s{sTmp}, v1")
            E(f"v_mul_u32_u24 v{t+1}, 18725, v{t}\nv_lshrrev_b32 v{t+1}, 20, v{t+1}")
            E(f"v_mul_u32_u24 v{t+2}, 56, v{t+1}")
            E(f"v_sub_u32 v{t+3}, v{t}, v{t+2}")
            E(f"v_bfe_u32 v{t+1}, v{t+1}, 1, 2\nv_lshlrev_b32 v{t+1}, 1, v{t+1}")
            E(f"v_xor_b32 v{t+3}, v{t+3}, v{t+1}")
            E(f"v_add_u32 v{t+3}, v{t+3}, v{t+2}")
            E(f"v_lshlrev_b32 v{t+3}, 4, v{t+3}")
            E(f"v_subrev_u32 v{self.WOD+i}, {(i&3)*1024}, v{t+3}")
        E(f"v_bfe_u32 v{t}, v1, 4, 2\nv_lshlrev_b32 v{t}, 2, v{t}\nv_bfe_u32 v{t+1}, v1, 2, 2\nv_add_u32 v{t}, v{t}, v{t+1}")
        E(f"v_mul_u32_u24 v{t+1}, 896, v{t}")
        E(f"v_bfe_u32 v{t+2}, v{t}, 1, 2")
        E(f"v_and_b32 v{t+3}, 3, v1\nv_lshlrev_b32 v{t+3}, 3, v{t+3}\nv_add_u32 v{t+1}, v{t+1}, v{t+3}")
        for mbl in range(4):
            E(f"v_xor_b32 v{t+3}, {mbl}, v{t+2}\nv_lshlrev_b32 v{t+3}, 5, v{t+3}\nv_add_u32 v{self.WOA+mbl}, v{t+1}, v{t+3}")

    def wo_dma(self, s):
        u = []
        base = (s % NS) * CH
        for i in range(7):
            pre = ""
            if i == 0: pre = f"s_mul_i32 s{sTmp}, s{sWave}, 7168\ns_add_u32 m0, s{sTmp}, {base}\ns_mov_b32 s{sTmp2}, {s*28672}\n"
            if i == 4: pre = "s_add_u32 m0, m0, 4096\ns_nop 0\n"
            u.append(pre + f"buffer_load_dwordx4 v{self.WOD+i}, s[{sWO}:{sWO+3}], s{sTmp2} offen offset:{(i&3)*1024} lds")
        return u

    def wo_issue(self):
        E = self.E
        E("s_waitcnt vmcnt(0) lgkmcnt(0)")
        E("s_barrier")
        self.wo_setup()
        for s in range(NS):
            for u in self.wo_dma(s): E(u)

    def oproj(self):
        E = self.E; nm = self.name
        C = lambda qt, s: 64 + (qt * 8 + s) * 4
        WFR = lambda f: 128 + (f % 16) * 4
        OUT = lambda mb, qt: (mb * 2 + qt) * 4
        CUR, NXT = 244, 248
        def rd(f, s):
            if f < 28: base, mb = CUR, f
            else: base, mb = NXT, f - 28
            fr = WFR(f + 28 * 0 + (s * 28))
            off = (mb >> 2) * 128
            return [f"ds_read_b64_tr_b16 v[{fr}:{fr+1}], v{base + (mb & 3)} offset:{off}",
                    f"ds_read_b64_tr_b16 v[{fr+2}:{fr+3}], v{base + (mb & 3)} offset:{off + 16*896}"]
        E("s_waitcnt vmcnt(28)" if False else "s_waitcnt vmcnt(0)")
        E("s_barrier")
        for i in range(4): E(f"v_add_u32 v{NXT+i}, 0, v{self.WOA+i}")
        D = 6
        for f in range(D):
            for l in rd(28 + f, -1):
                E(l)
        for s in range(8):
            issued_after = 0
            if s > 0:
                pass
            newer = sum(7 for k in range(s + 2, min(s + NS, 8))) if s + 1 < 8 else 0
            hi = min(max(4, s + 3), 7)
            newer = 7 * max(0, hi - (s + 1))
            if s + 1 < 8: E(f"s_waitcnt vmcnt({newer})")
            E("s_barrier")
            for i in range(4): E(f"v_mov_b32 v{CUR+i}, v{NXT+i}")
            nslot = ((s + 1) % NS) * CH
            for i in range(4): E(f"v_add_u32 v{NXT+i}, {nslot}, v{self.WOA+i}")
            mf = []
            for mb in range(28):
                for qt in range(2):
                    d = a4(OUT(mb, qt)); c = "0" if s == 0 else d
                    mf.append(f"v_mfma_f32_16x16x32_bf16 {d}, {v4(WFR(s*28 + mb))}, {v4(C(qt, s))}, {c}")
            gaps = [[] for _ in mf]
            for f in range(28):
                if s == 7 and f + D >= 28: continue
                r = rd(f + D, s)
                gaps[2 * f].append(r[0]); gaps[2 * f + 1].append(r[1])
            if s >= 1 and s + 4 < 8:
                for k, u in enumerate(self.wo_dma(s + 4)): gaps[5 + 6 * k].append(u)
            for i, m in enumerate(mf):
                if i % 4 == 0:
                    f = i // 2
                    rem = min(D - 2, (28 - f - 2) if s == 7 else D - 2)
                    E(f"s_waitcnt lgkmcnt({2*max(rem,0)})")
                E(m)
                for t in gaps[i]: E(t)
        E("s_nop 7")
        stamp_code(E, 3, self.stamps)
        E(f"s_lshl_b32 s{sTmp}, s{sQB}, 3\ns_lshl_b32 s{sTmp2}, s{sWave}, 1\ns_add_u32 s{sTmp}, s{sTmp}, s{sTmp2}\ns_mul_i32 s{sTmp}, s{sTmp}, {14*1024}")
        n = 0
        for qt in range(2):
            for ms in range(14):
                t = 128 + (n % 4) * 12; n += 1
                src = [OUT(2*ms, qt) + r for r in range(4)] + [OUT(2*ms+1, qt) + r for r in range(4)]
                for r in range(8): E(f"v_accvgpr_read_b32 v{t+r}, a{src[r]}")
                for r in range(4): E(f"v_cvt_pk_bf16_f32 v{t+8+r}, v{t+2*r}, v{t+2*r+1}")
                E(f"s_add_u32 s{sTmp2}, s{sTmp}, {(qt*14+ms)*1024}")
                E(f"buffer_store_dwordx4 v[{t+8}:{t+11}], v{vLane16}, s[{sOP}:{sOP+3}], s{sTmp2} offen")

    def gen(self):
        E = self.E; nm = self.name
        self.prologue()
        E(f"{nm}_item:")
        self.item_loop()
        if "mid" not in self.exp: stamp_code(E, 2, self.stamps)
        self.finish()
        if self.stamps:
            E("s_waitcnt vmcnt(0)")
            stamp_code(E, 4, True)
            stamp_dump(E, 5, nm, 4)
        E("s_endpgm")
        E(f"{nm}_end:")
        E("s_endpgm")
        return E.text()

def gen_k2(name="k2_kernel", **kw):
    return K2(name, **kw).gen()
```

```python
from asmlib import *
from ws import *
HSTR = 128 * 14 * 1024

def gen_t1(name="t1_kernel"):
    E = Emit()
    E("s_cmp_ge_u32 s2, 256")
    E(f"s_cbranch_scc1 {name}_end")
    E("s_load_dwordx2 s[4:5], s[0:1], 0")
    E("s_load_dwordx2 s[6:7], s[0:1], 96")
    E("v_and_b32 v1, 63, v0")
    E("v_lshrrev_b32 v2, 6, v0")
    E("s_nop 0")
    E("v_readfirstlane_b32 s20, v2")
    E("v_and_b32 v3, 7, v1")
    E("v_bfe_u32 v4, v1, 3, 2")
    E("v_lshrrev_b32 v5, 5, v1")
    E("s_lshr_b32 s21, s2, 1")
    E("s_and_b32 s22, s2, 1")
    E("s_lshl_b32 s22, s22, 3")
    E("v_lshlrev_b32 v6, 4, v4")
    E("v_add_u32 v6, v6, v3")
    E("v_add_u32 v6, s22, v6")
    E("v_lshlrev_b32 v6, 4, v6")
    E(f"s_mul_i32 s23, s21, {14*1024}")
    E(f"v_mul_u32_u24 v7, {HSTR}, v5")
    E("v_add_u32 v7, v7, v6")
    E("v_add_u32 v7, s23, v7")
    E("s_lshl_b32 s24, s2, 3")
    E("v_add_u32 v8, s24, v3")
    E("v_mul_u32_u24 v8, 896, v8")
    E("v_lshlrev_b32 v9, 3, v4")
    E("v_add_u32 v8, v8, v9")
    E("s_waitcnt lgkmcnt(0)")
    def srd(s, lo, off, size):
        if off == 0: E(f"s_mov_b32 s{s}, s{lo}\ns_mov_b32 s{s+1}, s{lo+1}")
        else: E(f"s_add_u32 s{s}, s{lo}, {off}\ns_addc_u32 s{s+1}, s{lo+1}, 0")
        E(f"s_mov_b32 s{s+2}, {size}\ns_mov_b32 s{s+3}, 0x20000")
    srd(8, 6, WS_OP, 16 * HSTR)
    srd(12, 4, 0, 2048 * 896)
    srd(16, 6, WS_H, 2048 * 896)
    srd(28, 6, WS_HN, 2048 * 896)
    for k in range(2):
        E(f"s_add_u32 s25, s20, {8*k}")
        E("s_lshl_b32 s26, s25, 10")
        E("s_lshl_b32 s27, s25, 6")
        if k == 1:
            E("s_cmp_lt_u32 s25, 14")
            E("s_cselect_b32 s26, s26, 0x7ff00000")
            E("s_cselect_b32 s27, s27, 0x7ff00000")
        E(f"s_mov_b32 s{32+k}, s26")
        for i in range(8):
            E(f"s_add_u32 s34, s26, {2*i*HSTR}") if True else None
            E(f"buffer_load_dwordx4 v[{32+k*32+4*i}:{35+k*32+4*i}], v7, s[8:11], s34 offen")
        E(f"buffer_load_dwordx2 v[{96+4*k}:{97+4*k}], v8, s[12:15], s27 offen")
        E(f"buffer_load_dwordx2 v[{98+4*k}:{99+4*k}], v8, s[12:15], s27 offen offset:32")
    for k in range(2):
        E(f"s_waitcnt vmcnt({10 if k == 0 else 0})")
        a = 104 + 8 * k
        for i in range(8):
            for r in range(4):
                src = 32 + k*32 + 4*i + r
                if i == 0:
                    E(f"v_lshlrev_b32 v{a+2*r}, 16, v{src}\nv_and_b32 v{a+2*r+1}, 0xffff0000, v{src}")
                else:
                    E(f"v_lshlrev_b32 v10, 16, v{src}\nv_and_b32 v11, 0xffff0000, v{src}")
                    E(f"v_add_f32 v{a+2*r}, v{a+2*r}, v10\nv_add_f32 v{a+2*r+1}, v{a+2*r+1}, v11")
        for r in range(8):
            E(f"v_mov_b32 v10, v{a+r}\ns_nop 1\nv_permlane32_swap_b32 v{a+r}, v10\ns_nop 1\nv_add_f32 v{a+r}, v{a+r}, v10")
        for r in range(4):
            xs = 96 + 4*k + r
            E(f"v_lshlrev_b32 v10, 16, v{xs}\nv_and_b32 v11, 0xffff0000, v{xs}")
            E(f"v_add_f32 v{a+2*r}, v{a+2*r}, v10\nv_add_f32 v{a+2*r+1}, v{a+2*r+1}, v11")
            E(f"v_cvt_pk_bf16_f32 v{120+4*k+r}, v{a+2*r}, v{a+2*r+1}")
            E(f"v_lshlrev_b32 v{a+2*r}, 16, v{120+4*k+r}\nv_and_b32 v{a+2*r+1}, 0xffff0000, v{120+4*k+r}")
    E("v_mov_b32 v12, v6")
    E("v_add_u32 v12, s23, v12")
    E("s_mov_b64 s[36:37], exec\ns_mov_b32 exec_hi, 0")
    E("buffer_store_dwordx4 v[120:123], v12, s[16:19], s32 offen")
    E("buffer_store_dwordx4 v[124:127], v12, s[16:19], s33 offen")
    E("s_mov_b64 exec, s[36:37]")
    def rowreduce(r):
        E(f"s_nop 1\nv_add_f32_dpp v{r}, v{r}, v{r} row_ror:8 row_mask:0xf bank_mask:0xf")
        E(f"v_mov_b32 v10, v{r}\ns_nop 1\nv_permlane16_swap_b32 v{r}, v10\ns_nop 1\nv_add_f32 v{r}, v{r}, v10")
    E("v_add_f32 v13, v104, v105")
    for r in range(106, 120): E(f"v_add_f32 v13, v13, v{r}")
    rowreduce(13)
    E("v_lshlrev_b32 v14, 2, v3\ns_lshl_b32 s35, s20, 5\nv_add_u32 v14, s35, v14")
    E("s_mov_b64 exec, 0xff\nds_write_b32 v14, v13\ns_mov_b64 exec, s[36:37]")
    E("s_waitcnt lgkmcnt(0)\ns_barrier")
    E("v_lshlrev_b32 v15, 2, v3")
    for w in range(8): E(f"ds_read_b32 v{16+w}, v15 offset:{32*w}")
    E("s_waitcnt lgkmcnt(0)")
    E("v_add_f32 v13, v16, v17")
    for w in range(2, 8): E(f"v_add_f32 v13, v13, v{16+w}")
    E("v_mul_f32 v13, 0x3b124925, v13")
    for r in range(104, 120): E(f"v_sub_f32 v{r}, v{r}, v13")
    E("s_cmp_lt_u32 s20, 6")
    E(f"s_cbranch_scc1 {name}_valid")
    for r in range(112, 120): E(f"v_mov_b32 v{r}, 0")
    E(f"{name}_valid:")
    E("v_mul_f32 v24, v104, v104")
    for r in range(105, 120): E(f"v_fmac_f32 v24, v{r}, v{r}")
    rowreduce(24)
    E("s_mov_b64 exec, 0xff\nds_write_b32 v14, v24 offset:256\ns_mov_b64 exec, s[36:37]")
    E("s_waitcnt lgkmcnt(0)\ns_barrier")
    for w in range(8): E(f"ds_read_b32 v{16+w}, v15 offset:{256+32*w}")
    E("s_waitcnt lgkmcnt(0)")
    E("v_add_f32 v24, v16, v17")
    for w in range(2, 8): E(f"v_add_f32 v24, v24, v{16+w}")
    E("v_mov_b32 v25, 0x3727c5ac")
    E("v_fmac_f32 v25, 0x3b124925, v24")
    E("v_rsq_f32 v25, v25\ns_nop 0")
    for r in range(104, 120): E(f"v_mul_f32 v{r}, v{r}, v25")
    for r in range(8): E(f"v_cvt_pk_bf16_f32 v{120+r}, v{104+2*r}, v{105+2*r}")
    E("s_mov_b32 exec_hi, 0")
    E("buffer_store_dwordx4 v[120:123], v12, s[28:31], s32 offen")
    E("buffer_store_dwordx4 v[124:127], v12, s[28:31], s33 offen")
    E(f"{name}_end:")
    E("s_endpgm")
    return E.text()
```

```python
from asmlib import *
from ws import *
SLOT = 24576; NSL = 6
def gen_t2(name="t2_kernel"):
    E = Emit()
    HF = lambda st, qt: 64 + st * 48 + qt * 4
    WF = lambda st, m, fb: 64 + st * 48 + 16 + (m * 4 + fb) * 4
    WA = lambda fb: 10 + fb
    HA = 14
    DH = lambda i: 16 + i
    DW = lambda i: 18 + i
    GA = lambda fb, qt: (fb * 4 + qt) * 4
    UA = lambda fb, qt: 64 + (fb * 4 + qt) * 4
    sHN, sG, sU, sO = 8, 12, 16, 20
    sWave, sRB, sFS = 24, 25, 26
    E("s_cmp_ge_u32 s2, 224")
    E(f"s_cbranch_scc1 {name}_end")
    E("s_load_dwordx4 s[4:7], s[0:1], 56")
    E("s_load_dwordx2 s[28:29], s[0:1], 96")
    E(f"s_mul_i32 s{sRB}, s2, 4682\ns_lshr_b32 s{sRB}, s{sRB}, 16")
    E(f"s_mul_i32 s30, s{sRB}, 14\ns_sub_u32 s{sFS}, s2, s30")
    E("v_and_b32 v1, 63, v0\nv_lshrrev_b32 v2, 6, v0\ns_nop 0")
    E(f"v_readfirstlane_b32 s{sWave}, v2")
    E("v_lshlrev_b32 v3, 4, v1")
    E(f"v_mul_u32_u24 v4, {2*14336}, v2")
    E("v_add_u32 v4, v4, v3")
    E(f"v_mov_b32 v{DH(0)}, v4")
    E(f"v_add_u32 v{DH(1)}, {14336-1024}, v4")
    for i in range(2):
        E(f"v_lshlrev_b32 v4, 3, v2\nv_add_u32 v4, {4*i}, v4\nv_lshrrev_b32 v5, 4, v1\nv_add_u32 v4, v4, v5")
        E("v_and_b32 v5, 7, v4\nv_lshlrev_b32 v5, 1, v5\nv_and_b32 v6, 15, v1\nv_xor_b32 v5, v5, v6\nv_lshlrev_b32 v5, 4, v5")
        E(f"v_mul_u32_u24 v4, 3584, v4\nv_add_u32 v4, v4, v5")
        E(f"v_subrev_u32 v{DW(i)}, {i*1024}, v4")
    E("s_waitcnt lgkmcnt(0)")
    def srd(s, lo, offs, size):
        E(f"s_add_u32 s{s}, s{lo}, {offs}\ns_addc_u32 s{s+1}, s{lo+1}, 0\ns_mov_b32 s{s+2}, {size}\ns_mov_b32 s{s+3}, 0x20000")
    E(f"s_mul_i32 s30, s{sRB}, {8*14336}\ns_add_u32 s30, s30, {WS_HN}")
    srd(sHN, 28, "s30", 8 * 14336)
    E(f"s_lshl_b32 s30, s{sFS}, 8")
    srd(sG, 4, "s30", 448 * 3584); E(f"s_sub_u32 s{sG+2}, s{sG+2}, s30")
    srd(sU, 6, "s30", 448 * 3584); E(f"s_sub_u32 s{sU+2}, s{sU+2}, s30")
    E(f"s_lshl_b32 s31, s{sWave}, 11")
    vm = []
    def dma(s):
        base = (s % NSL) * SLOT
        u = []
        u.append(f"s_add_u32 m0, s31, {base}\ns_mov_b32 s32, {s*1024}\nbuffer_load_dwordx4 v{DH(0)}, s[{sHN}:{sHN+3}], s32 offen lds")
        u.append(f"buffer_load_dwordx4 v{DH(1)}, s[{sHN}:{sHN+3}], s32 offen offset:1024 lds")
        u.append(f"s_add_u32 m0, s31, {base+8192}\ns_mov_b32 s32, {s*32*3584}\nbuffer_load_dwordx4 v{DW(0)}, s[{sG}:{sG+3}], s32 offen lds")
        u.append(f"buffer_load_dwordx4 v{DW(1)}, s[{sG}:{sG+3}], s32 offen offset:1024 lds")
        u.append(f"s_add_u32 m0, s31, {base+16384}\ns_nop 0\nbuffer_load_dwordx4 v{DW(0)}, s[{sU}:{sU+3}], s32 offen lds")
        u.append(f"buffer_load_dwordx4 v{DW(1)}, s[{sU}:{sU+3}], s32 offen offset:1024 lds")
        vm.extend([s] * 6)
        return u
    def need(s):
        idx = max(i for i, t in enumerate(vm) if t == s); return len(vm) - 1 - idx
    for s in range(NSL - 1):
        for u in dma(s): E(u)
    E(f"s_mul_i32 s30, s{sRB}, {8*56*1024}\ns_add_u32 s30, s30, {WS_HM}")
    srd(sO, 28, "s30", 8 * 56 * 1024)
    E("v_lshrrev_b32 v4, 7, v0\nv_lshlrev_b32 v4, 12, v4\nv_add_u32 v4, v4, v3")
    for seg in range(3): E(f"v_add_u32 v{20+seg}, {seg*2*SLOT}, v4")
    E("v_bfe_u32 v4, v1, 4, 2\nv_lshlrev_b32 v4, 2, v4\nv_bfe_u32 v5, v1, 2, 2\nv_add_u32 v4, v4, v5")
    E("v_and_b32 v5, 7, v4")
    E("v_lshlrev_b32 v4, 8, v4\nv_and_b32 v6, 3, v1\nv_lshlrev_b32 v6, 3, v6\nv_add_u32 v4, v4, v6\nv_add_u32 v4, 8192, v4")
    E("v_bfe_u32 v6, v0, 6, 1\nv_lshlrev_b32 v6, 2, v6")
    for fb in range(4):
        E(f"v_add_u32 v7, {fb}, v6\nv_xor_b32 v7, v7, v5\nv_lshlrev_b32 v7, 5, v7\nv_add_u32 v7, v7, v4")
        for seg in range(3): E(f"v_add_u32 v{24+fb*3+seg}, {seg*2*SLOT}, v7")
    def reads(s, st):
        sl = s % NSL; seg = sl // 2; b = (sl % 2) * SLOT
        u = []
        hn = [f"ds_read_b128 v[{HF(st,qt)}:{HF(st,qt)+3}], v{20+seg} offset:{b + qt*1024}" for qt in range(4)]
        w = []
        for fb in range(4):
            for m in range(2):
                for t in range(2):
                    w.append(f"ds_read_b64_tr_b16 v[{WF(st,m,fb)+2*t}:{WF(st,m,fb)+2*t+1}], v{24+fb*3+seg} offset:{b + m*8192 + t*4096}")
        return [hn[0]] + w[:4] + hn[1:] + w[4:]
    E(f"s_waitcnt vmcnt({need(0)})\ns_barrier")
    for u in reads(0, 0): E(u)
    for s in range(14):
        st = s & 1
        fl, plan = [], []
        if s + 1 < 14:
            E(f"s_waitcnt vmcnt({need(s+1)}) lgkmcnt(0)\ns_barrier")
            rd = reads(s + 1, st ^ 1); fl += rd; plan += list(range(len(rd)))
            if s + NSL - 1 < 14:
                d = dma(s + NSL - 1); fl += d; plan += [21, 23, 25, 27, 29, 31][:len(d)]
        else:
            E("s_waitcnt lgkmcnt(0)")
        mf = []
        for fb in range(4):
            for qt in range(4):
                for m in range(2):
                    a = (GA if m == 0 else UA)(fb, qt); d = f"a[{a}:{a+3}]"
                    mf.append(f"v_mfma_f32_16x16x32_bf16 {d}, v[{WF(st,m,fb)}:{WF(st,m,fb)+3}], v[{HF(st,qt)}:{HF(st,qt)+3}], {'0' if s == 0 else d}")
        for l in interleave(mf, fl, plan=plan): E(l)
    E("s_nop 7")
    E(f"v_lshrrev_b32 v4, 7, v0\nv_mul_u32_u24 v4, {4*56*1024}, v4\nv_add_u32 v4, v4, v3")
    E("v_bfe_u32 v5, v0, 6, 1\nv_lshlrev_b32 v5, 11, v5\nv_add_u32 v4, v4, v5")
    E(f"s_lshl_b32 s30, s{sFS}, 12")
    n = 0
    for qt in range(4):
        for k in range(2):
            t = 160 + (n % 2) * 24; n += 1
            for j in range(2):
                for r in range(4):
                    E(f"v_accvgpr_read_b32 v{t+4*j+r}, a{GA(2*k+j, qt)+r}")
                    E(f"v_accvgpr_read_b32 v{t+8+4*j+r}, a{UA(2*k+j, qt)+r}")
            for r in range(8): E(f"v_max_f32 v{t+r}, 0, v{t+r}")
            for r in range(8): E(f"v_mul_f32 v{t+r}, v{t+r}, v{t+8+r}")
            for r in range(4): E(f"v_cvt_pk_bf16_f32 v{t+16+r}, v{t+2*r}, v{t+2*r+1}")
            E(f"s_add_u32 s32, s30, {qt*56*1024 + k*1024}")
            E(f"buffer_store_dwordx4 v[{t+16}:{t+19}], v4, s[{sO}:{sO+3}], s32 offen")
    E(f"{name}_end:")
    E("s_endpgm")
    return E.text()
```

```python
from asmlib import *
from ws import *
def gen_t3(name="t3_kernel"):
    E = Emit()
    NSL = 8; DEP = 6
    BF = lambda s, qt: 64 + (s % NSL) * 16 + qt * 4
    WF = lambda st, mb: 192 + st * 16 + mb * 4
    AC = lambda mb, qt: (mb * 4 + qt) * 4
    sHM, sWD, sH, sO = 8, 12, 16, 20
    sWave, sQB, sMB = 24, 25, 26
    E("s_cmp_ge_u32 s2, 224")
    E(f"s_cbranch_scc1 {name}_end")
    E("s_load_dwordx4 s[4:7], s[0:1], 72")
    E("s_load_dwordx2 s[28:29], s[0:1], 96")
    E(f"s_mul_i32 s{sQB}, s2, 9363\ns_lshr_b32 s{sQB}, s{sQB}, 16")
    E(f"s_mul_i32 s30, s{sQB}, 7\ns_sub_u32 s{sMB}, s2, s30")
    E("v_and_b32 v1, 63, v0\nv_lshrrev_b32 v2, 6, v0\ns_nop 0")
    E(f"v_readfirstlane_b32 s{sWave}, v2")
    E("v_lshlrev_b32 v3, 4, v1")
    E("v_lshrrev_b32 v4, 3, v1\nv_bfe_u32 v5, v4, 1, 2\nv_lshlrev_b32 v5, 1, v5\nv_and_b32 v6, 7, v1\nv_xor_b32 v5, v5, v6\nv_lshlrev_b32 v5, 4, v5")
    E("v_mul_u32_u24 v4, 896, v4\nv_add_u32 v4, v4, v5")
    for p in range(4): E(f"v_add_u32 v{16+p}, {p*(8*896-1024)}, v4")
    E("s_waitcnt lgkmcnt(0)")
    def srd(s, lo, offs, size):
        E(f"s_add_u32 s{s}, s{lo}, {offs}\ns_addc_u32 s{s+1}, s{lo+1}, 0\ns_mov_b32 s{s+2}, {size}\ns_mov_b32 s{s+3}, 0x20000")
    E(f"s_mul_i32 s30, s{sQB}, {4*56*1024}\ns_mul_i32 s31, s{sWave}, {14*1024}\ns_add_u32 s30, s30, s31\ns_add_u32 s30, s30, {WS_HM}")
    srd(sHM, 28, "s30", 4 * 56 * 1024); E(f"s_sub_u32 s{sHM+2}, s{sHM+2}, s31")
    E(f"s_mul_i32 s30, s{sWave}, {14*32*896}\ns_lshl_b32 s31, s{sMB}, 7\ns_add_u32 s30, s30, s31")
    srd(sWD, 4, "s30", 1792 * 896); E(f"s_sub_u32 s{sWD+2}, s{sWD+2}, s30")
    E(f"s_lshl_b32 s33, s{sWave}, 15")
    vm = []
    def loads(s):
        u = []
        u.append(f"s_add_u32 m0, s33, {(s % NSL)*4096}\ns_mov_b32 s32, {s*32*896}\nbuffer_load_dwordx4 v16, s[{sWD}:{sWD+3}], s32 offen lds")
        for p in range(1, 4): u.append(f"buffer_load_dwordx4 v{16+p}, s[{sWD}:{sWD+3}], s32 offen offset:{p*1024} lds")
        for qt in range(4):
            u.append(f"s_mov_b32 s34, {qt*56*1024 + s*1024}\nbuffer_load_dwordx4 v[{BF(s,qt)}:{BF(s,qt)+3}], v3, s[{sHM}:{sHM+3}], s34 offen")
        vm.extend([s] * 8)
        return u
    def need(s):
        idx = max(i for i, t in enumerate(vm) if t == s); return len(vm) - 1 - idx
    for s in range(DEP):
        for u in loads(s): E(u)
    E("v_bfe_u32 v4, v1, 4, 2\nv_lshlrev_b32 v4, 2, v4\nv_bfe_u32 v5, v1, 2, 2\nv_add_u32 v4, v4, v5")
    E("v_bfe_u32 v5, v4, 1, 2\nv_lshlrev_b32 v4, 7, v4\nv_and_b32 v6, 3, v1\nv_lshlrev_b32 v6, 3, v6\nv_add_u32 v4, v4, v6\nv_add_u32 v4, s33, v4")
    for mb in range(4): E(f"v_xor_b32 v7, {mb}, v5\nv_lshlrev_b32 v7, 5, v7\nv_add_u32 v{20+mb}, v4, v7")
    def reads(s, st):
        b = (s % NSL) * 4096
        u = []
        for mb in range(4):
            for t in range(2):
                u.append(f"ds_read_b64_tr_b16 v[{WF(st,mb)+2*t}:{WF(st,mb)+2*t+1}], v{20+mb} offset:{b + t*2048}")
        return u
    E(f"s_waitcnt vmcnt({need(0)})")
    for u in reads(0, 0): E(u)
    for s in range(14):
        st = s & 1
        fl, plan = [], []
        if s + 1 < 14:
            E(f"s_waitcnt vmcnt({need(s+1)}) lgkmcnt(0)")
            rd = reads(s + 1, st ^ 1); fl += rd; plan += list(range(8))
            if s + DEP < 14:
                d = loads(s + DEP); fl += d; plan += [8, 9, 10, 11, 12, 13, 14, 15]
        else:
            E("s_waitcnt lgkmcnt(0)")
        mf = []
        for mb in range(4):
            for qt in range(4):
                d = f"a[{AC(mb,qt)}:{AC(mb,qt)+3}]"
                mf.append(f"v_mfma_f32_16x16x32_bf16 {d}, v[{WF(st,mb)}:{WF(st,mb)+3}], v[{BF(s,qt)}:{BF(s,qt)+3}], {'0' if s == 0 else d}")
        for l in interleave(mf, fl, plan=plan): E(l)
    E("s_nop 7\ns_barrier")
    E(f"s_lshl_b32 s30, s{sWave}, 14\nv_add_u32 v4, s30, v3")
    for t in range(16): E(f"ds_write_b128 v4, a[{4*t}:{4*t+3}] offset:{t*1024}")
    E(f"s_add_u32 s{sH}, s28, {WS_H}\ns_addc_u32 s{sH+1}, s29, 0\ns_mov_b32 s{sH+2}, {2048*896}\ns_mov_b32 s{sH+3}, 0x20000")
    E(f"s_lshl_b32 s30, s{sQB}, 2\ns_add_u32 s30, s30, s{sWave}\ns_mul_i32 s30, s30, 14336\ns_lshl_b32 s31, s{sMB}, 11\ns_add_u32 s30, s30, s31")
    E(f"buffer_load_dwordx4 v[24:27], v3, s[{sH}:{sH+3}], s30 offen")
    E(f"buffer_load_dwordx4 v[28:31], v3, s[{sH}:{sH+3}], s30 offen offset:1024")
    E("s_waitcnt lgkmcnt(0)\ns_barrier")
    E(f"s_lshl_b32 s30, s{sWave}, 10\nv_add_u32 v4, s30, v3")
    for mb in range(4):
        for w in range(4):
            E(f"ds_read_b128 v[{64+mb*16+w*4}:{67+mb*16+w*4}], v4 offset:{w*16384 + mb*4096}")
    E("s_waitcnt vmcnt(0) lgkmcnt(0)")
    for mb in range(4):
        b = 64 + mb * 16
        for r in range(4):
            E(f"v_add_f32 v{b+r}, v{b+r}, v{b+4+r}\nv_add_f32 v{b+8+r}, v{b+8+r}, v{b+12+r}\nv_add_f32 v{b+r}, v{b+r}, v{b+8+r}")
        hsrc = 24 + (mb >> 1) * 4 + (mb & 1) * 2
        for j in range(2):
            E(f"v_lshlrev_b32 v10, 16, v{hsrc+j}\nv_and_b32 v11, 0xffff0000, v{hsrc+j}")
            E(f"v_add_f32 v{b+2*j}, v{b+2*j}, v10\nv_add_f32 v{b+2*j+1}, v{b+2*j+1}, v11")
    E(f"s_mov_b32 s{sO}, s6\ns_mov_b32 s{sO+1}, s7\ns_mov_b32 s{sO+2}, {2048*896}\ns_mov_b32 s{sO+3}, 0x20000")
    E(f"s_lshl_b32 s30, s{sQB}, 6\ns_lshl_b32 s31, s{sWave}, 4\ns_add_u32 s30, s30, s31")
    E("v_and_b32 v4, 15, v1\nv_add_u32 v4, s30, v4\nv_mul_u32_u24 v4, 896, v4")
    E("v_bfe_u32 v5, v1, 4, 1\nv_lshlrev_b32 v5, 5, v5\nv_add_u32 v4, v4, v5")
    E("v_bfe_u32 v5, v1, 5, 1\nv_lshlrev_b32 v5, 4, v5\nv_add_u32 v4, v4, v5")
    E(f"s_lshl_b32 s31, s{sMB}, 7")
    for k in range(2):
        A = 64 + (2*k) * 16; B = 64 + (2*k+1) * 16; t = 32 + 4 * k
        E(f"v_cvt_pk_bf16_f32 v{t}, v{A}, v{A+1}\nv_cvt_pk_bf16_f32 v{t+1}, v{A+2}, v{A+3}")
        E(f"v_cvt_pk_bf16_f32 v{t+2}, v{B}, v{B+1}\nv_cvt_pk_bf16_f32 v{t+3}, v{B+2}, v{B+3}")
        E("s_nop 1")
        E(f"v_permlane16_swap_b32 v{t}, v{t+2}\nv_permlane16_swap_b32 v{t+1}, v{t+3}")
        E("s_nop 1")
        E(f"buffer_store_dwordx4 v[{t}:{t+3}], v4, s[{sO}:{sO+3}], s31 offen offset:{64*k}")
    E(f"{name}_end:")
    E("s_endpgm")
    return E.text()
```

```python
import re, sys
def regs(tok):
    tok = tok.strip()
    m = re.fullmatch(r"-?(?:abs\()?([vas])\[(\d+):(\d+)\]\)?", tok)
    if m: return {(m.group(1), i) for i in range(int(m.group(2)), int(m.group(3)) + 1)}
    m = re.fullmatch(r"-?(?:abs\()?([vas])(\d+)\)?", tok)
    if m: return {(m.group(1), int(m.group(2)))}
    if tok in ("vcc", "vcc_lo", "vcc_hi"): return {("s", "vcc")}
    if tok == "m0": return {("s", "m0")}
    if tok in ("exec", "exec_lo", "exec_hi"): return {("s", "exec")}
    return set()
TRANS = ("v_exp_f32", "v_log_f32", "v_rcp_f32", "v_rsq_f32", "v_sqrt_f32", "v_sin_f32", "v_cos_f32")
def parse(line):
    line = line.split(";")[0].strip()
    if not line or line.endswith(":") or line.startswith("."): return None
    p = line.split(None, 1); op = p[0]
    ops = [x.strip() for x in re.split(r",\s*(?![^\[]*\])", p[1])] if len(p) > 1 else []
    flat = []
    for o in ops:
        flat.append(o.split()[0] if o.split() else o)
    I = dict(op=op, text=line, dst=set(), src=set())
    if op.startswith("v_mfma"):
        I["k"] = "mfma"; I["dst"] = regs(flat[0]); I["A"] = regs(flat[1]); I["B"] = regs(flat[2]); I["C"] = regs(flat[3]); I["src"] = I["A"] | I["B"] | I["C"]
        I["passes"] = 4 if "16x16" in op else 8
    elif op.startswith("v_"):
        I["k"] = "valu"
        if op.startswith("v_cmp"):
            I["dst"] = regs(flat[0]); I["src"] = set().union(*[regs(x) for x in flat[1:]])
        elif op in ("v_permlane32_swap_b32", "v_permlane16_swap_b32"):
            I["dst"] = regs(flat[0]) | regs(flat[1]); I["src"] = I["dst"]
        else:
            I["dst"] = regs(flat[0]); I["src"] = set().union(*[regs(x) for x in flat[1:]]) if len(flat) > 1 else set()
            if op.startswith(("v_fmac", "v_dot2c")): I["src"] |= I["dst"]
            if op.startswith("v_cndmask") and len(flat) == 3: I["src"] |= {("s", "vcc")}
            if "_co_" in op: I["dst"] |= regs(flat[1])
    elif op.startswith(("buffer_", "global_")):
        I["k"] = "vmem"
        lds = " lds" in line
        allr = [regs(x) for x in flat]
        if "store" in op or "atomic" in op:
            I["src"] = set().union(*allr); I["data"] = allr[0] if op.startswith("buffer") else set(); I["wide"] = "x4" in op or "x3" in op
        elif lds: I["src"] = set().union(*allr) | {("s", "m0")}; I["lds"] = True
        else: I["dst"] = allr[0]; I["src"] = set().union(*allr[1:])
    elif op.startswith("ds_"):
        I["k"] = "ds"
        allr = [regs(x) for x in flat]
        if "write" in op: I["src"] = set().union(*allr)
        else: I["dst"] = allr[0]; I["src"] = set().union(*allr[1:]) if len(allr) > 1 else set()
    elif op.startswith("s_"):
        I["k"] = "salu"
        if op == "s_nop": I["n"] = int(flat[0], 0) + 1
        elif op.startswith(("s_cmp", "s_cbranch", "s_branch", "s_waitcnt", "s_barrier", "s_endpgm", "s_sleep", "s_setprio")): pass
        else:
            I["dst"] = regs(flat[0]) if flat else set(); I["src"] = set().union(*[regs(x) for x in flat[1:]]) if len(flat) > 1 else set()
            if "saveexec" in op: I["dst"] |= {("s", "exec")}
    else:
        I["k"] = "other"
    return I
def expand(text):
    import build
    rev = {ab: full for full, ab in build.ABBR}
    out = []; skip = False
    for l in text.split("\n"):
        st = l.strip()
        if st.startswith(".macro"): skip = True; continue
        if st.startswith(".endm"): skip = False; continue
        if skip: continue
        p = st.split(None, 1)
        if p and p[0] in rev: st = rev[p[0]] + " " + (p[1] if len(p) > 1 else "")
        out.append(st)
    return "\n".join(out)
def check(text, verbose=True):
    text = expand(text)
    ins = [p for p in (parse(l) for l in text.split("\n")) if p]
    probs = []
    def dist_iter(i, maxd):
        d = 0
        for j in range(i + 1, len(ins)):
            if d >= maxd: return
            yield j, d
            d += ins[j].get("n", 1)
            if ins[j]["op"] in ("s_branch", "s_endpgm"): return
    for i, a in enumerate(ins):
        k = a["k"]
        sd = {r for r in a["dst"] if r[0] == "s"}; vd = {r for r in a["dst"] if r[0] in "va"}
        for j, d in dist_iter(i, 20):
            b = ins[j]; need = 0; why = ""
            if k == "valu":
                if sd & b["src"]:
                    if b["k"] == "valu" and d < 2: need, why = 2, "valu sgpr->valu"
                    if b["k"] == "vmem" and d < 5: need, why = 5, "valu sgpr->vmem"
                    if b["op"].startswith(("v_readlane", "v_writelane")) and d < 4: need, why = 4, "valu sgpr->lanesel"
                if vd & b["src"]:
                    if b["op"].startswith(("v_readlane", "v_readfirstlane")) and d < 1: need, why = 1, "valu->readlane"
                    if a["op"] in TRANS and b["k"] in ("valu", "mfma") and b["op"] not in TRANS and d < 1: need, why = 1, "trans->use"
                    if b["k"] == "mfma" and d < 2: need, why = 2, "valu->mfma"
                    if b["op"].startswith("v_permlane") and d < 2: need, why = 2, "valu->permlane"
                    if "dpp" in b["op"] and d < 2: need, why = 2, "valu->dpp"
            if k == "mfma":
                lim = 8 if a["passes"] == 4 else 12
                if b["k"] in ("valu", "vmem", "ds") and (vd & (b["src"] | b["dst"])) and d < lim: need, why = lim, "mfma D->valu/mem"
                if b["k"] == "mfma":
                    if (vd & (b["A"] | b["B"])) and d < lim: need, why = lim, "mfma D->A/B"
                    if (vd & b["C"]) and b["C"] != vd and d < lim - 2: need, why = lim - 2, "mfma D->partial C"
                if b["k"] == "valu" and (a["C"] & b["dst"]) and d < (3 if a["passes"] == 4 else 7) and not (vd & b["dst"]): need, why = 3, "mfma C WAR"
            if k == "salu" and ("s", "m0") in a["dst"] and b.get("lds") and d < 1: need, why = 1, "m0->lds dma"
            if k == "vmem" and a.get("wide") and (a.get("data", set()) & b["dst"]) and b["k"] == "valu" and d < 2: need, why = 2, "store data WAR"
            if need: probs.append((why, d, a["text"], b["text"]))
    if verbose:
        seen = set()
        for p in probs:
            print("HAZ", p)
    return probs
if __name__ == "__main__":
    pr = check(open(sys.argv[1]).read())
    print(len(pr), "hazards")
```

```python
class Emit:
    def __init__(self):
        self.lines = []
    def __call__(self, s):
        for l in s.split("\n"):
            l = l.strip()
            if l: self.lines.append(l)
    def text(self):
        return "\n".join(("" if l.endswith(":") else "  ") + l for l in self.lines) + "\n"

def vr(base, n=1):
    return f"v{base}" if n == 1 else f"v[{base}:{base+n-1}]"
def ar(base, n=1):
    return f"a{base}" if n == 1 else f"a[{base}:{base+n-1}]"
def sr(base, n=1):
    return f"s{base}" if n == 1 else f"s[{base}:{base+n-1}]"

def interleave(mfmas, fillers, start=0, per_gap=None, plan=None):
    out = []
    if plan is None:
        n = len(mfmas)
        plan = [min(n - 1, start + k) for k in range(len(fillers))]
    by = {}
    for f, g in zip(fillers, plan):
        by.setdefault(g, []).append(f)
    for g in sorted(by):
        assert -1 <= g < len(mfmas), (g, len(mfmas))
    for f in by.get(-1, []): out.append(f)
    for i, m in enumerate(mfmas):
        out.append(m)
        for f in by.get(i, []): out.append(f)
    return out

def kernel_desc(name, vgpr, acc, sgpr=102):
    return f""".section .rodata,"a"
.p2align 6
.amdhsa_kernel {name}
  .amdhsa_next_free_vgpr {vgpr}
  .amdhsa_next_free_sgpr {sgpr}
  .amdhsa_accum_offset {acc}
  .amdhsa_group_segment_fixed_size 0
  .amdhsa_kernarg_size 104
  .amdhsa_user_sgpr_count 2
  .amdhsa_user_sgpr_kernarg_segment_ptr 1
  .amdhsa_system_sgpr_workgroup_id_x 1
  .amdhsa_float_denorm_mode_32 3
.end_amdhsa_kernel
.text
"""
def kernel_head(name):
    return f""".globl {name}
.p2align 8
.type {name},@function
{name}:
"""

class Sched:
    def __init__(self, n, budget=8):
        self.n = n; self.g = [[] for _ in range(n)]; self.c = [0] * n; self.b = budget
    def put(self, gap, cost, text):
        self.g[gap].append(text); self.c[gap] += cost
    def put_free(self, items, start=0, end=None, stride=1, alone=False):
        end = self.n if end is None else end
        cur = start; left = []
        for k, (c, t) in enumerate(items):
            g = cur
            while g < end:
                if c == 0: break
                if alone:
                    if self.c[g] == 0: break
                elif self.c[g] + c <= self.b: break
                g += 1
            if g >= end:
                left = items[k:]; break
            self.put(g, c, t)
            cur = g + (stride if c else 0)
        return left
    def emit(self, E, mf, before=None):
        for i, m in enumerate(mf):
            if before and i in before:
                for t in before[i]: E(t)
            E(m)
            for t in self.g[i]: E(t)

def code_prefetch(E, target, nbytes, uid, sp, st, v0, nwaves=4):
    E(f"s_getpc_b64 s[{sp}:{sp+1}]\ncpf_{uid}:")
    E(f"s_mov_b32 s{st}, {target}-cpf_{uid}")
    E(f"s_ashr_i32 s{st+1}, s{st}, 31")
    E(f"s_add_u32 s{sp}, s{sp}, s{st}\ns_addc_u32 s{sp+1}, s{sp+1}, s{st+1}")
    E(f"v_lshlrev_b32 v{v0}, 7, v0")
    per = nwaves * 64 * 128
    n = (nbytes + per - 1) // per
    for k in range(n):
        if k: E(f"v_add_u32 v{v0}, {per}, v{v0}")
        E(f"v_min_u32 v{v0+1}, {nbytes - 4}, v{v0}")
        E(f"global_load_dword v{v0+1}, v{v0+1}, s[{sp}:{sp+1}]")
    return n
```

```python
import sys
from asmlib import *
import k0, k1, k2, t1, t2, t3
HDR = '.amdgcn_target "amdgcn-amd-amdhsa--gfx950"\n.text\n'
ABBR = [("v_mfma_f32_16x16x32_bf16", "MF"), ("ds_read_b64_tr_b16", "DT"), ("ds_read_b128", "DR"), ("buffer_load_dwordx4", "BL"),
        ("buffer_store_dwordx4", "BS"), ("v_accvgpr_read_b32", "AR"), ("v_accvgpr_write_b32", "AW"), ("v_cvt_pk_bf16_f32", "CV"),
        ("v_exp_f32", "EX"), ("v_add_f32", "FA"), ("v_mul_f32", "FM"), ("s_waitcnt", "WT"), ("v_cndmask_b32", "CM"), ("s_add_u32", "SA"), ("v_sub_f32", "FS")]
def compact(t):
    lines = t.split("\n")
    out = []; started = False
    for l in lines:
        st = l.strip()
        if st.startswith(".amdgcn_target") and not started:
            out.append(st); started = True
            for full, ab in ABBR:
                out.append(f".macro {ab} a:vararg\n{full} \\a\n.endm")
            continue
        if not started or st.startswith("."):
            out.append(l); continue
        p = st.split(None, 1)
        if len(p) == 2:
            for full, ab in ABBR:
                if p[0] == full: st = ab + " " + p[1].replace(", ", ","); break
            else: st = p[0] + " " + p[1].replace(", ", ",")
        out.append(st)
    return "\n".join(out)
def make(kernels, path):
    t = ""
    for (name, grid, block, lds, body, vgpr, acc) in kernels:
        t += f"; @launch kernel={name} grid=({grid},1,1) block=({block},1,1) lds={lds}\n"
    t += HDR
    seen = set()
    for (name, grid, block, lds, body, vgpr, acc) in kernels:
        if name in seen: continue
        seen.add(name)
        t += kernel_head(name) + body + kernel_desc(name, vgpr, acc)
    open(path, "w").write(compact(t))
K0 = lambda: ("k0_kernel", 256, 256, 0, k0.gen_k0(), 32, 32)
K1 = lambda **kw: ("k1_kernel", 256, 256, 163840, k1.gen_k1(**kw), 512, 256)
K2 = lambda **kw: ("k2_kernel", 256, 256, 163840, k2.gen_k2(**kw), 512, 256)
T1 = lambda **kw: ("t1_kernel", 256, 512, 1024, t1.gen_t1(**kw), 128, 128)
T2 = lambda **kw: ("t2_kernel", 224, 256, 147456, t2.gen_t2(**kw), 384, 256)
T3 = lambda **kw: ("t3_kernel", 224, 256, 131072, t3.gen_t3(**kw), 320, 256)
NX = {"k1": ("k2_kernel", 0xbd00), "k2": ("t1_kernel", 0xd00), "t1": ("t2_kernel", 0x2600), "t2": ("t3_kernel", 0x1500)}
def pipeline(path, exp="", stamps=False, cpf=True):
    ks = []
    fs = [(K1, "k1"), (K2, "k2"), (T1, "t1"), (T2, "t2"), (T3, None)]
    for i, (f, key) in enumerate(fs):
        k1.STAMP_OFF[0] = i * 65536
        kw = dict(stamps=stamps)
        if i < 2: kw["exp"] = exp
        if key and cpf: kw["nxt"] = NX[key]
        ks.append(f(**kw))
    k1.STAMP_OFF[0] = 0
    make(ks, path)
if __name__ == "__main__":
    pipeline("full.s", "wt")
    pipeline("full_nocpf.s", "wt_nocpf", cpf=False)
    pipeline("st_all.s", "wt", stamps=True)
```

```python
from asmlib import *
from ws import *
def gen_k0(name="k0_kernel"):
    E = Emit()
    E("s_cmp_ge_u32 s2, 256")
    E(f"s_cbranch_scc1 {name}_end")
    E("s_load_dwordx2 s[4:5], s[0:1], 0")
    E("s_load_dwordx2 s[6:7], s[0:1], 96")
    ln_body(E, name, 4, 6, 8, 12)
    E(f"{name}_end:")
    E("s_endpgm")
    return E.text()

def ln_addr(E, b):
    E(f"v_and_b32 v{b+2}, 31, v0")
    E(f"v_lshrrev_b32 v{b}, 5, v0")
    E("s_lshl_b32 s16, s2, 3")
    E(f"v_add_u32 v{b}, s16, v{b}")
    E(f"v_mul_u32_u24 v{b}, 896, v{b}")
    E(f"v_lshlrev_b32 v{b+3}, 4, v{b+2}")
    E(f"v_add_u32 v{b}, v{b}, v{b+3}")
    E(f"v_add_u32 v{b+1}, 512, v{b}")
    E(f"v_cmp_gt_u32 vcc, 24, v{b+2}")
    E(f"v_mov_b32 v{b+3}, 0x7ffffff0")
    E("s_nop 0")
    E(f"v_cndmask_b32 v{b+1}, v{b+3}, v{b+1}, vcc")
def ln_load(E, b, srd_in, nt=""):
    E(f"buffer_load_dwordx4 v[{b+4}:{b+7}], v{b}, s[{srd_in}:{srd_in+3}], 0 offen{nt}")
    E(f"buffer_load_dwordx4 v[{b+8}:{b+11}], v{b+1}, s[{srd_in}:{srd_in+3}], 0 offen{nt}")
def ln_math_store(E, b, srd_out, sc=""):
    u = b + 12
    E(f"v_cmp_gt_u32 vcc, 24, v{b+2}")
    for i in range(8):
        E(f"v_lshlrev_b32 v{u+2*i}, 16, v{b+4+i}")
        E(f"v_and_b32 v{u+2*i+1}, 0xffff0000, v{b+4+i}")
    r1, r2, t = u + 16, u + 17, u + 18
    def reduce(r):
        E("s_nop 1")
        for rot in (8, 4, 2, 1):
            E(f"v_add_f32_dpp v{r}, v{r}, v{r} row_ror:{rot} row_mask:0xf bank_mask:0xf")
            E("s_nop 1")
        E(f"v_mov_b32 v{t}, v{r}\ns_nop 1\nv_permlane16_swap_b32 v{r}, v{t}\ns_nop 1\nv_add_f32 v{r}, v{r}, v{t}")
    E(f"v_add_f32 v{r1}, v{u}, v{u+1}")
    for i in range(2, 16): E(f"v_add_f32 v{r1}, v{r1}, v{u+i}")
    reduce(r1)
    E(f"v_mul_f32 v{r1}, 0x3b124925, v{r1}")
    for i in range(16): E(f"v_sub_f32 v{u+i}, v{u+i}, v{r1}")
    for i in range(8, 16): E(f"v_cndmask_b32 v{u+i}, 0, v{u+i}, vcc")
    E(f"v_mul_f32 v{r2}, v{u}, v{u}")
    for i in range(1, 16): E(f"v_fmac_f32 v{r2}, v{u+i}, v{u+i}")
    reduce(r2)
    E(f"v_mov_b32 v{t}, 0x3727c5ac")
    E(f"v_fmac_f32 v{t}, 0x3b124925, v{r2}")
    E(f"v_rsq_f32 v{t}, v{t}")
    E("s_nop 0")
    for i in range(16): E(f"v_mul_f32 v{u+i}, v{u+i}, v{t}")
    for i in range(8): E(f"v_cvt_pk_bf16_f32 v{b+4+i}, v{u+2*i}, v{u+2*i+1}")
    E(f"buffer_store_dwordx4 v[{b+4}:{b+7}], v{b}, s[{srd_out}:{srd_out+3}], 0 offen {sc}")
    E(f"buffer_store_dwordx4 v[{b+8}:{b+11}], v{b+1}, s[{srd_out}:{srd_out+3}], 0 offen {sc}")
```

```python
from asmlib import *
from ws import *
import k0

def stamp_code(E, i, on):
    if on is True: E(f"s_memtime s[{76+4*i}:{77+4*i}]\ns_memrealtime s[{78+4*i}:{79+4*i}]")

STAMP_OFF = [0]
SPIN_MAX = 0x40000
def stamp_dump(E, n, lab, sws=6):
    E("s_waitcnt vmcnt(0) lgkmcnt(0)")
    E(f"s_mov_b32 s60, s{sws}\ns_mov_b32 s61, s{sws+1}\ns_mov_b32 s62, 0x10000000\ns_mov_b32 s63, 0x20000")
    E(f"s_lshl_b32 s64, s2, 6\ns_add_u32 s64, s64, {WS_DBG + STAMP_OFF[0]}")
    E("v_cmp_eq_u32 vcc, 0, v0\ns_and_saveexec_b64 s[66:67], vcc\ns_cbranch_execz " + f"{lab}_stsk")
    for i in range(n):
        E(f"v_mov_b32 v4, s{76+4*i}\nv_mov_b32 v5, s{78+4*i}\nv_mov_b32 v6, {8*i}")
        E("buffer_store_dwordx2 v[4:5], v6, s[60:63], s64 offen")
        E("s_nop 1")
    E(f"{lab}_stsk:\ns_mov_b64 exec, s[66:67]")

def gen_k1(name="k1_kernel", stamps=False, exp="", nxt=None):
    E = Emit()
    XSLOT = 32768; WBASE = 98304; WSLOT = 16384
    XF = lambda st, i: 64 + st * 32 + i * 4
    WF = lambda st, j: 128 + st * 32 + j * 4
    XA = lambda t, seg: 10 + t * 2 + seg
    WA = lambda j: 14 + j
    XD = lambda p: 22 + p
    WD = lambda p: 26 + p
    XQ = lambda p: 30 + p
    WA2 = lambda j: 40 + j
    sX, sW, sO, sXq, sWq, sOq = 8, 12, 16, 36, 40, 44
    sWave, sXk, sWk, sM0X, sM0W, sSel, sH, sMB = 20, 21, 22, 23, 24, 26, 27, 28
    sXqk, sWqk, sHq, sRB = 48, 49, 50, 51
    NKV, NQ = 32, 14
    SC = ' sc1' if 'wt' in exp else ''
    GLN = 8 if 'g0' not in exp else 0
    if 'bst' in exp: stamps = 'dumponly'
    NG = NKV + NQ
    if "noq" in exp: NG = NKV
    E("s_cmp_ge_u32 s2, 256")
    E(f"s_cbranch_scc1 {name}_end")
    stamp_code(E, 0, stamps)
    E("s_load_dwordx4 s[4:7], s[0:1], 8")
    E("s_load_dwordx4 s[32:35], s[0:1], 24")
    E("s_load_dwordx2 s[52:53], s[0:1], 96")
    E("s_load_dwordx2 s[54:55], s[0:1], 0")
    E("s_load_dwordx2 s[56:57], s[0:1], 88")
    E("s_load_dwordx2 s[58:59], s[0:1], 40")
    E("s_and_b32 s29, s2, 7")
    E("s_lshr_b32 s30, s2, 3")
    E(f"s_lshr_b32 s{sMB}, s30, 2")
    E("s_and_b32 s31, s30, 3")
    E("s_lshl_b32 s25, s29, 2")
    E("s_add_u32 s25, s25, s31")
    E(f"s_lshr_b32 s{sSel}, s25, 4")
    E(f"s_and_b32 s{sH}, s25, 15")
    NCP = 0
    if "nocpf" not in exp:
        E(f"s_cmp_eq_u32 s{sSel}, 0\ns_cbranch_scc0 {name}_cpv")
        NCP = code_prefetch(E, name, 0xa800, name + "_a", 72, 74, 8)
        E(f"s_branch {name}_cpd\n{name}_cpv:")
        code_prefetch(E, name + "_v", 0xa800, name + "_b", 72, 74, 8)
        E(f"{name}_cpd:")
    E("s_and_b32 s31, s30, 1")
    E("s_lshl_b32 s29, s29, 1")
    E(f"s_add_u32 s{sHq}, s29, s31")
    E(f"s_lshr_b32 s{sRB}, s2, 4")
    LB = 192
    k0.ln_addr(E, LB)
    E("v_and_b32 v1, 63, v0")
    E("v_lshrrev_b32 v2, 6, v0")
    E("s_nop 0")
    E(f"v_readfirstlane_b32 s{sWave}, v2")
    E("v_lshrrev_b32 v3, 3, v1")
    E("v_lshlrev_b32 v4, 5, v2")
    E("v_add_u32 v3, v3, v4")
    E("v_and_b32 v4, 7, v1")
    E("v_lshrrev_b32 v5, 4, v1")
    E("v_xor_b32 v4, v4, v5")
    E("v_xor_b32 v5, 4, v4")
    E("v_lshlrev_b32 v4, 4, v4")
    E("v_lshlrev_b32 v5, 4, v5")
    E("v_lshlrev_b32 v6, 11, v3")
    E("v_mul_u32_u24 v7, 896, v3")
    for p in range(4):
        c = "v4" if p % 2 == 0 else "v5"
        E(f"v_add_u32 v8, v6, {c}")
        E(f"v_add_u32 v{XD(p)}, {p*(8*2048-1024)}, v8")
        E(f"v_add_u32 v8, v7, {c}")
        E(f"v_add_u32 v{XQ(p)}, {p*(8*896-1024)}, v8")
    E("v_lshrrev_b32 v3, 5, v1")
    E("v_lshlrev_b32 v4, 3, v2")
    E("v_add_u32 v4, v4, v3")
    E("v_lshlrev_b32 v4, 13, v4")
    E("v_and_b32 v5, 31, v1")
    E("v_and_b32 v7, 1, v2")
    E("v_lshlrev_b32 v7, 3, v7")
    E("v_xor_b32 v5, v5, v7")
    for p in range(4):
        E(f"v_add_u32 v6, {2*p}, v3")
        E("v_and_b32 v6, 3, v6")
        E("v_lshlrev_b32 v6, 1, v6")
        E("v_xor_b32 v6, v6, v5")
        E("v_lshlrev_b32 v6, 4, v6")
        E("v_add_u32 v6, v6, v4")
        E(f"v_add_u32 v{WD(p)}, {p*(2*8192-1024)}, v6")
    E("s_waitcnt lgkmcnt(0)")
    def srd(s, lo, hi, off_s, size):
        if off_s is None:
            E(f"s_mov_b32 s{s}, s{lo}\ns_mov_b32 s{s+1}, s{hi}")
        else:
            E(f"s_add_u32 s{s}, s{lo}, {off_s}\ns_addc_u32 s{s+1}, s{hi}, 0")
        E(f"s_mov_b32 s{s+2}, {size}\ns_mov_b32 s{s+3}, 0x20000")
    sLI, sLO, sFL, sPF = 60, 64, 68, 72
    srd(sLI, 54, 55, None, 2048*896)
    k0.ln_load(E, LB, sLI)
    E(f"s_lshl_b32 s29, s{sMB}, 19")
    srd(sX, 4, 5, "s29", 0x80000)
    E(f"s_cmp_eq_u32 s{sSel}, 0")
    E("s_cselect_b32 s30, s32, s34")
    E("s_cselect_b32 s31, s33, s35")
    E(f"s_lshl_b32 s29, s{sH}, 9")
    srd(sW, 30, 31, "s29", 0x800000)
    E(f"s_sub_u32 s{sW+2}, s{sW+2}, s29")
    E(f"s_lshl_b32 s{sM0X}, s{sWave}, 12")
    E(f"s_add_u32 s{sM0W}, s{sM0X}, {WBASE}")
    E(f"s_mov_b32 s{sXk}, 0")
    E(f"s_mov_b32 s{sWk}, 0")

    vm = [("C", 0)] * NCP + [("LN", 0)] * 2
    def dma_x(grp, hf):
        slot = grp % 3
        u = []
        if grp < 16:
            so = hf * 128 * 2048 + grp * 128
            reg, srd_, lds = XD, sX, slot * XSLOT + hf * 16384
        else:
            so = (grp - 16) * 128
            reg, srd_, lds = XQ, sXq, slot * XSLOT
        u.append(f"s_add_u32 m0, s{sM0X}, {lds}\ns_mov_b32 s{sXk}, {so}\nbuffer_load_dwordx4 v{reg(0)}, s[{srd_}:{srd_+3}], s{sXk} offen lds")
        for p in range(1, 4):
            u.append(f"buffer_load_dwordx4 v{reg(p)}, s[{srd_}:{srd_+3}], s{sXk} offen offset:{p*1024} lds")
        return [(t, ("X", grp)) for t in u]
    def wslot(G):
        if G < NKV: return WBASE + (G % 4) * WSLOT
        L = [WBASE, WBASE + WSLOT, WBASE + 2*WSLOT, WBASE + 3*WSLOT, 49152, 81920]
        return L[(G - NKV) % 6]
    def dma_w(G):
        if G < NKV: so, srd_ = G * 32 * 8192, sW
        else: so, srd_ = (G - NKV) * 32 * 8192, sWq
        u = [f"s_add_u32 m0, s{sM0X}, {wslot(G)}\ns_mov_b32 s{sWk}, {so}\nbuffer_load_dwordx4 v{WD(0)}, s[{srd_}:{srd_+3}], s{sWk} offen lds"]
        for p in range(1, 4):
            u.append(f"buffer_load_dwordx4 v{WD(p)}, s[{srd_}:{srd_+3}], s{sWk} offen offset:{p*1024} lds")
        return [(t, ("W", G)) for t in u]
    def need(*tags):
        idx = max(max(i for i, t in enumerate(vm) if t == tag) for tag in tags)
        return len(vm) - 1 - idx
    def xgrp(G): return G >> 1 if G < NKV else 16 + ((G - NKV) >> 1)
    def reads(G, st):
        grp = xgrp(G); t = G & 1
        slot = grp % 3
        seg = 1 if slot == 2 else 0
        xb = slot * XSLOT - seg * 65536
        nx = 8 if G < NKV else 4
        xr = [f"ds_read_b128 v[{XF(st,i)}:{XF(st,i)+3}], v{XA(t,seg)} offset:{xb + i*2048}" for i in range(nx)]
        ws_ = wslot(G)
        if ws_ >= WBASE: wb, wa = ws_ - WBASE, WA
        else: wb, wa = ws_ - (WBASE - 65536), WA2
        wr = []
        for j in range(8):
            for tt in range(2):
                wr.append(f"ds_read_b64_tr_b16 v[{WF(st,j)+2*tt}:{WF(st,j)+2*tt+1}], v{wa(j)} offset:{wb + tt*2048}")
        return [xr[0]] + wr + xr[1:]
    def mfmas(G, st, sel):
        m = []
        first = G == 0 or G == NKV
        nx = 8 if G < NKV else 4
        for i in range(nx):
            for j in range(8):
                b = (i*8+j)*4
                acc = f"a[{b}:{b+3}]"
                x = f"v[{XF(st,i)}:{XF(st,i)+3}]"; w = f"v[{WF(st,j)}:{WF(st,j)+3}]"
                c = "0" if first else acc
                if sel == 0 or G >= NKV: m.append(f"v_mfma_f32_16x16x32_bf16 {acc}, {w}, {x}, {c}")
                else:                    m.append(f"v_mfma_f32_16x16x32_bf16 {acc}, {x}, {w}, {c}")
        return m

    for u, tg in dma_x(0,0) + dma_x(0,1) + dma_w(0) + dma_w(1) + dma_x(1,0) + dma_x(1,1) + dma_w(2) + dma_w(3) + dma_x(2,0) + dma_x(2,1):
        E(u); vm.append(tg)
    E(f"s_lshl_b32 s29, s{sSel}, 24")
    E(f"s_lshl_b32 s30, s{sH}, 20")
    E("s_add_u32 s29, s29, s30")
    srd(sO, 52, 53, "s29", 0x100000)
    E(f"s_mul_i32 s29, s{sRB}, {128*896}")
    E(f"s_add_u32 s29, s29, {WS_XN}")
    srd(sXq, 52, 53, "s29", 128*896)
    E(f"s_lshl_b32 s29, s{sHq}, 9")
    srd(sWq, 6, 7, "s29", 448*8192)
    E(f"s_sub_u32 s{sWq+2}, s{sWq+2}, s29")
    E(f"s_lshl_b32 s29, s{sHq}, 20")
    E(f"s_add_u32 s29, s29, {WS_Q}")
    srd(sOq, 52, 53, "s29", 0x100000)
    E("v_and_b32 v3, 15, v1")
    E("v_lshrrev_b32 v4, 4, v1")
    E("v_bfe_u32 v5, v1, 1, 3")
    E("v_xor_b32 v4, v4, v5")
    E("v_lshrrev_b32 v6, 7, v0")
    E("v_lshlrev_b32 v6, 7, v6")
    E("v_add_u32 v3, v3, v6")
    E("v_lshlrev_b32 v3, 7, v3")
    for t in range(2):
        E(f"v_xor_b32 v5, {4*t}, v4")
        E("v_lshlrev_b32 v5, 4, v5")
        E(f"v_add_u32 v{XA(t,0)}, v3, v5")
        E(f"v_add_u32 v{XA(t,1)}, 0x10000, v{XA(t,0)}")
    E("v_bfe_u32 v3, v1, 2, 2")
    E("v_lshrrev_b32 v4, 4, v1")
    E("v_lshlrev_b32 v5, 3, v4")
    E("v_add_u32 v5, v5, v3")
    E("v_lshlrev_b32 v5, 9, v5")
    E("v_and_b32 v4, 1, v4")
    E("v_lshlrev_b32 v4, 2, v4")
    E("v_or_b32 v3, v3, v4")
    E("v_and_b32 v6, 3, v1")
    E("v_lshlrev_b32 v6, 3, v6")
    E("v_add_u32 v5, v5, v6")
    E("v_bfe_u32 v6, v0, 6, 1")
    E("v_lshlrev_b32 v6, 8, v6")
    E("v_add_u32 v5, v5, v6")
    E(f"v_add_u32 v5, {WBASE}, v5")
    for j in range(8):
        E(f"v_xor_b32 v6, {j}, v3")
        E("v_lshlrev_b32 v6, 5, v6")
        E(f"v_add_u32 v{WA(j)}, v5, v6")
        E(f"v_subrev_u32 v{WA2(j)}, 0x10000, v{WA(j)}")
    srd(sLO, 52, 53, WS_XN, 2048*896)
    srd(sFL, 56, 57, None, 256)
    PFW, PFX = 34, 35
    E("s_lshr_b32 s29, s2, 3")
    E(f"s_mul_i32 s30, s{sWave}, 28\nv_min_u32 v3, 27, v1\nv_add_u32 v3, s30, v3")
    E("v_lshrrev_b32 v4, 3, v3\ns_mul_i32 s30, s29, 14\nv_add_u32 v4, s30, v4\nv_lshlrev_b32 v4, 13, v4")
    E("v_and_b32 v3, 7, v3\nv_lshlrev_b32 v3, 7, v3\nv_add_u32 v4, v4, v3")
    E(f"s_and_b32 s30, s{sHq}, 1\ns_lshl_b32 s30, s30, 9")
    E(f"v_subrev_u32 v4, s30, v4\nv_max_i32 v{PFW}, 0, v4")
    E(f"s_mul_i32 s30, s29, 448\ns_mul_i32 s31, s{sWave}, 112\ns_add_u32 s30, s30, s31")
    E(f"v_add_u32 v3, s30, v1\nv_lshlrev_b32 v{PFX}, 7, v3")
    E(f"v_min_u32 v4, 47, v1\nv_add_u32 v4, 64, v4\nv_add_u32 v4, s30, v4\nv_lshlrev_b32 v{PFX+1}, 7, v4")
    class Cap:
        def __init__(self): self.l = []
        def __call__(self, t):
            for x in t.split("\n"):
                if x.strip(): self.l.append(x.strip())
    cap = Cap(); k0.ln_math_store(cap, LB, sLO, "sc1")
    ln_stream = []
    for t in cap.l:
        if t.startswith("buffer_store"): ln_stream.append((12, t, ("LS", 0)))
        elif t.startswith("s_nop"): ln_stream.append((0, t, None))
        elif t.startswith("v_rsq"): ln_stream.append((8, t, None))
        else: ln_stream.append((4, t, None))
    if "tlb" in exp:
        E(f"s_lshl_b32 s29, s{sMB}, 17\ns_lshl_b32 s30, s{sWave}, 15\ns_add_u32 s29, s29, s30\nv_mov_b32 v8, s29")
        E(f"buffer_load_dword v9, v8, s[{sO}:{sO+3}], 0 offen")
        E(f"s_lshl_b32 s29, s{sRB}, 16\ns_lshl_b32 s30, s{sWave}, 14\ns_add_u32 s29, s29, s30\nv_mov_b32 v8, s29")
        E(f"buffer_load_dword v9, v8, s[{sOq}:{sOq+3}], 0 offen")
        E(f"s_mul_i32 s30, s{sWave}, {112*8192}\nv_mov_b32 v8, s30")
        E(f"buffer_load_dword v9, v8, s[{sWq}:{sWq+3}], 0 offen")
        E(f"s_mul_i32 s30, s{sWave}, {32*896}\nv_mov_b32 v8, s30")
        E(f"buffer_load_dword v9, v8, s[{sXq}:{sXq+3}], 0 offen")
        vm.extend([("T", 0)] * 4)
    E(f"s_waitcnt vmcnt({need(('X',0),('W',0))})")
    E("s_barrier")
    stamp_code(E, 1, stamps)
    for u in reads(0, 0): E(u)
    E(f"s_cmp_eq_u32 s{sSel}, 0")
    E(f"s_cbranch_scc0 {name}_v")
    E(f"{name}_k0:")
    vm0 = list(vm)

    def kv_epi_setup(sel):
        E("v_lshlrev_b32 v3, 4, v1")
        E("v_lshrrev_b32 v4, 7, v0")
        E("v_lshlrev_b32 v4, 16, v4")
        E("v_add_u32 v3, v3, v4")
        E("v_bfe_u32 v4, v0, 6, 1")
        E(f"v_lshlrev_b32 v4, {12 if sel == 0 else 13}, v4")
        E("v_add_u32 v3, v3, v4")
        E(f"s_lshl_b32 s29, s{sMB}, 17")
    def kv_units(sel):
        units = []; n = 0
        for a in range(8 if sel == 0 else 4):
            for b in range(4 if sel == 0 else 8):
                t = 192 + (n % 4) * 12; n += 1
                if sel == 0:
                    src = [(a*8 + 2*b)*4 + r for r in range(8)]; off = a*8192 + b*1024
                else:
                    src = [(2*a*8 + b)*4 + r for r in range(4)] + [((2*a+1)*8 + b)*4 + r for r in range(4)]; off = a*16384 + b*1024
                u = [(4, f"v_accvgpr_read_b32 v{t+r}, a{src[r]}", None) for r in range(8)]
                u += [(4, f"v_cvt_pk_bf16_f32 v{t+8+r}, v{t+2*r}, v{t+2*r+1}", None) for r in range(4)]
                u += [(12, f"s_add_u32 s30, s29, {off}\nbuffer_store_dwordx4 v[{t+8}:{t+11}], v3, s[{sO}:{sO+3}], s30 offen{SC}", ("S", 0))]
                units.append(u)
        assert all(int(x[1].split("a")[-1]) < 128 for u in units[:16] for x in u[:8])
        return units
    def q_epilogue():
        E("s_nop 7")
        E("v_lshlrev_b32 v3, 4, v1")
        E("v_lshrrev_b32 v4, 7, v0")
        E("v_lshlrev_b32 v4, 15, v4")
        E("v_add_u32 v3, v3, v4")
        E("v_bfe_u32 v4, v0, 6, 1")
        E("v_lshlrev_b32 v4, 12, v4")
        E("v_add_u32 v3, v3, v4")
        E(f"s_lshl_b32 s29, s{sRB}, 16")
        E("s_mov_b32 s31, 0x3db8aa3b")
        n = 0
        for a in range(4):
            for b in range(4):
                t = 192 + (n % 4) * 12; n += 1
                src = [(a*8 + 2*b)*4 + r for r in range(8)]; off = a*8192 + b*1024
                for r in range(8): E(f"v_accvgpr_read_b32 v{t+r}, a{src[r]}")
                for r in range(8): E(f"v_mul_f32 v{t+r}, s31, v{t+r}")
                for r in range(4): E(f"v_cvt_pk_bf16_f32 v{t+8+r}, v{t+2*r}, v{t+2*r+1}")
                E(f"s_add_u32 s30, s29, {off}")
                E(f"buffer_store_dwordx4 v[{t+8}:{t+11}], v3, s[{sOq}:{sOq+3}], s30 offen{SC}")

    for sel in range(2):
        lab = f"{name}_{'kv'[sel]}"
        if sel == 1: E(f"{lab}:")
        vm[:] = vm0
        pend = []
        if 'noln' in exp: vm.append(('LS', 0))
        for G in range(NG):
            st = G & 1
            if G == GLN and 'noln' not in exp: pend = list(ln_stream)
            if G == NKV:
                stamp_code(E, 2, stamps)
                E("v_lshrrev_b32 v4, 7, v0\nv_lshlrev_b32 v4, 13, v4")
                for t in range(2):
                    for seg in range(2): E(f"v_sub_u32 v{XA(t,seg)}, v{XA(t,seg)}, v4")
                for u in reads(NKV, st): E(u)
                E("s_nop 4")
                kv_epi_setup(sel)
                un = kv_units(sel)
                for u in un[:16]:
                    for c, t, tg in u:
                        E(t)
                        if tg: vm.append(tg)
                pend = [x for u in un[16:] for x in u]
                stamp_code(E, 3, stamps)
            if "bst" in exp and G % 6 == 0 and G < 36: E(f"s_memtime s[{76+4*(G//6)}:{77+4*(G//6)}]\ns_memrealtime s[{78+4*(G//6)}:{79+4*(G//6)}]")
            last = G == NG - 1
            ngap = 64 if G < NKV else 32
            S = Sched(ngap)
            tags = {}
            def putv(g, c, t, tg):
                S.put(g, c, t); tags.setdefault(g, []).append(tg)
            if not last:
                E(f"s_waitcnt vmcnt({need(('X', xgrp(G+1)), ('W', G+1))}) lgkmcnt(0)")
                E("s_barrier")
                if G + 1 != NKV:
                    rd = reads(G + 1, st ^ 1)
                    step = 2 if ngap == 64 else 1
                    for k, t in enumerate(rd): S.put(step * k, 4, t)
                d = []
                if G + 4 < NKV + (4 if NG > NKV else 0) and G < NKV: d += dma_w(G + 4)
                if NG > NKV and G == 28: d += dma_w(NKV + 4)
                if NG > NKV and G == 30: d += dma_w(NKV + 5)
                if G >= NKV and G + 6 < NG: d += dma_w(G + 6)
                if G < NKV:
                    if G % 2 == 1: grp, hf = (G - 1) // 2 + 3, 0
                    else: grp, hf = G // 2 + 2, 1
                    if G == 0: grp = None
                else:
                    it = G - NKV
                    grp, hf = (16 + (it - 1) // 2 + 3, 0) if it % 2 == 1 else (None, 0)
                if grp is not None:
                    maxg = 16 + 7 if NG > NKV else 16
                    if grp < 16 or (grp < maxg and hf == 0): d += dma_x(grp, hf)
                dp = [5, 11, 17, 23, 29, 35, 41, 47, 51, 55, 59, 63] if ngap == 64 else [20, 22, 24, 26, 21, 23, 25, 27]
                if ngap == 32 and len(d) <= 4: dp = [21, 24, 27, 30]
                elif ngap == 32: dp = [20, 21, 22, 24, 25, 27, 29, 31]
                for (t, tg), g in zip(d, dp): putv(g, 12, t, tg)
                if G == GLN + 7 and 'nosig' not in exp:
                    assert need(('W', G+1)) <= len(vm) - 1 - max(i for i, t in enumerate(vm) if t == ('LS', 0)) - 0 and True
                    sk = f"{lab}_nosig"
                    S.put(51, 0, f"s_cmp_lg_u32 s{sWave}, 0\ns_cbranch_scc1 {sk}\ns_lshr_b32 s30, s2, 4\ns_lshl_b32 s30, s30, 2\nv_mov_b32 v4, 1\nv_mov_b32 v5, s30\ns_mov_b64 exec, 1\nbuffer_atomic_add v4, v5, s[{sFL}:{sFL+3}], 0 offen sc1\ns_mov_b64 exec, -1\n{sk}:")
                if NG > NKV and G == GLN + 10 and 'nopoll' not in exp:
                    putv(53, 12, f"s_lshl_b32 s30, s{sRB}, 2\nv_mov_b32 v5, s30\nbuffer_load_dword v6, v5, s[{sFL}:{sFL+3}], 0 offen sc1", ("F", 0))
                if NG > NKV and G == GLN + 14 and 'nopoll' not in exp:
                    ok, pl = f"{lab}_xnok", f"{lab}_xnpoll"
                    to = f"{lab}_xnto"
                    S.put(53, 8, f"v_readfirstlane_b32 s30, v6\ns_cmp_ge_u32 s30, 16\ns_cbranch_scc1 {ok}\ns_mov_b32 s31, 0\n{pl}:\ns_sleep 1\nbuffer_load_dword v6, v5, s[{sFL}:{sFL+3}], 0 offen sc1\ns_waitcnt vmcnt(0)\nv_readfirstlane_b32 s30, v6\ns_add_u32 s31, s31, 1\ns_cmp_ge_u32 s31, {SPIN_MAX}\ns_cbranch_scc1 {to}\ns_cmp_ge_u32 s30, 16\ns_cbranch_scc0 {pl}\ns_branch {ok}\n{to}:\nv_mov_b32 v6, 0xbad1\nv_mov_b32 v7, 128\nbuffer_store_dword v6, v7, s[{sFL}:{sFL+3}], 0 offen\n{ok}:")
                if NG > NKV and G == 18 and "nopf" not in exp:
                    putv(53, 12, f"buffer_load_dword v7, v{PFW}, s[{sWq}:{sWq+3}], 0 offen", ("P", 0))
                if NG > NKV and G in (19, 20) and "pfx" in exp:
                    putv(53, 12, f"buffer_load_dword v7, v{PFX}, s[{sLO}:{sLO+3}], 0 offen offset:{0 if G == 19 else 0}" if G == 19 else f"buffer_load_dword v7, v{PFX+1}, s[{sLO}:{sLO+3}], 0 offen", ("P", 1))
                if pend:
                    k = 0; cur = 0
                    while k < len(pend):
                        c, t, tg = pend[k]
                        g = cur
                        while g < ngap and c and not (S.c[g] == 0 if c == 12 else S.c[g] + c <= 8): g += 1
                        if g >= ngap: break
                        if tg: putv(g, c, t, tg)
                        else: S.put(g, c, t)
                        cur = g; k += 1
                        if G >= NKV and k >= 26 and pend[k-1][2]: break
                    pend = pend[k:]
            else:
                E("s_waitcnt lgkmcnt(0)")
            S.emit(E, mfmas(G, st, sel))
            for g in sorted(tags): vm.extend(tags[g])
        for c, t, tg in pend: E(t)
        if NG == NKV:
            stamp_code(E, 2, stamps)
            E("s_nop 7")
            kv_epi_setup(sel)
            for u in kv_units(sel):
                for c, t, tg in u: E(t)
            stamp_code(E, 3, stamps)
        else:
            stamp_code(E, 4, stamps)
            q_epilogue()
        if "nopf" not in exp:
            E(f"s_mov_b32 s60, s58\ns_mov_b32 s61, s59\ns_mov_b32 s62, {16*256*896}\ns_mov_b32 s63, 0x20000")
            E(f"s_lshl_b32 s29, s2, 2\ns_add_u32 s29, s29, s{sWave}\ns_mul_i32 s29, s29, 3584")
            E("v_lshlrev_b32 v4, 6, v1\nbuffer_load_dword v5, v4, s[60:63], s29 offen")
        if nxt and "nocpf" not in exp: code_prefetch(E, nxt[0], nxt[1], f"{lab}_n", 72, 74, 8)
        if stamps:
            E("s_waitcnt vmcnt(0)")
            stamp_code(E, 5 if NG > NKV else 4, stamps)
            stamp_dump(E, 6 if NG > NKV else 5, lab, 52)
        E("s_endpgm")
    E(f"{name}_end:")
    E("s_endpgm")
    return E.text()
```

```python
from asmlib import *
from ws import *
from k1 import stamp_code, stamp_dump, SPIN_MAX

NS = 5
CH = 32768
THR = 0x44800000
NA = 18

def O(db, qt): return (db * 2 + qt) * 4
def Q(qt, ds): return 128 + (qt * 8 + ds) * 4
def F(f): return 192 + (f % 16) * 4
def S(par, kb, qt): return 64 + par * 32 + (kb * 2 + qt) * 4
def P(par, s, qt): return 128 + par * 16 + (s * 2 + qt) * 4
def NEGM(qt): return 160 + 4 * qt
TMP = 168
L_ = lambda qt: 184 + qt
LS = lambda qt: 186 + qt
M_ = lambda qt: 188 + qt
DM = lambda qt: 190 + qt
vRA, vRB, vLane16, vTab = 192, 193, 194, 196
vT0 = 200
vD = 224
vW = 232
vWA = 240
vPM = 246
vFL = 250
sDM = 8
sQ = 12
sPT = 16
sOP = 20
sWO = 24
sFL = 28
sWave, sH, sPair, sType = 32, 33, 34, 35
sC, sWr, sRdN, sOff, sN, sI, sT, sQB, sItem = 36, 37, 38, 39, 40, 41, 42, 43, 44
sTmp, sTmp2, sTmp3 = 45, 46, 47
sM0 = 48
sNKV, sSig, sHasP, sPI = 52, 53, 54, 62

def a4(b): return f"a[{b}:{b+3}]"
def v4(b): return f"v[{b}:{b+3}]"

class K2:
    def __init__(self, name, stamps=False, exp="", nxt=None):
        self.nxt = nxt
        self.name = name; self.E = Emit(); self.stamps = stamps; self.exp = exp
        self.uid = 0; self.rare = []
    def lab(self, s):
        self.uid += 1
        return f"{self.name}_{s}{self.uid}"

    def head_items(self, Sc, nxt, vmw=16, dma_gaps=None, sw=False, sg=False):
        if isinstance(vmw, int): w = f"s_waitcnt vmcnt({vmw})"
        else: w = vmw
        Sc.put(1, 0, w + ("\ns_barrier" if "nobar" not in self.exp else ""))
        if sg:
            a, b = self.lab("sg"), self.lab("sgb")
            Sc.put(13, 0, f"s_cmp_eq_u32 s{sSig}, 1\ns_cbranch_scc1 {a}\n{b}:")
            self.rare.append(("signal", a, b))
        g0 = 2
        if sw:
            a, b = self.lab("sw"), self.lab("swb")
            Sc.put(2, 0, f"s_cmp_eq_u32 s{sC}, s{sNKV}\ns_cbranch_scc1 {a}\n{b}:")
            self.rare.append(("switch", a, b))
        Sc.put(3, 4, f"v_readlane_b32 s{sOff}, v{vTab}, s{sC}")
        Sc.put(4, 0, f"s_add_u32 s{sRdN}, s{sRdN}, {CH}\ns_cmp_eq_u32 s{sRdN}, {NS*CH}\ns_cselect_b32 s{sRdN}, 0, s{sRdN}")
        Sc.put(6, 0, f"s_add_u32 s{sC}, s{sC}, 1\ns_add_u32 m0, s{sWr}, s{sM0}")
        g = 6
        for reg, base in nxt:
            while Sc.c[g] + 4 > 8: g += 1
            Sc.put(g, 4, f"v_add_u32 v{reg}, s{sRdN}, v{base}")
        dg = dma_gaps or [9, 15, 21, 27, 33, 39, 45, 51]
        for p in range(8):
            t = f"buffer_load_dwordx4 v{vD+p}, s[{sDM}:{sDM+3}], s{sOff} offen offset:{(p&3)*1024} lds"
            if "nodma" not in self.exp: Sc.put(dg[p], 12, t)
            if p == 3: Sc.put(dg[p] + 1, 0, f"s_add_u32 m0, m0, 4096")
            if p == 7: Sc.put(dg[p] + 1, 0, f"s_add_u32 s{sWr}, s{sWr}, {CH}\ns_cmp_eq_u32 s{sWr}, {NS*CH}\ns_cselect_b32 s{sWr}, 0, s{sWr}")

    def frag_read(self, f, cur, nxt):
        if f < 32: return f"ds_read_b128 {a4(F(f))}, v{cur} offset:{f*1024}"
        return f"ds_read_b128 {a4(F(f))}, v{nxt} offset:{(f-32)*1024}"

    def qk_mfmas(self, par, cinit):
        m = []
        for kb in range(4):
            for ds in range(8):
                f = kb * 8 + ds
                for qt in range(2):
                    d = v4(S(par, kb, qt))
                    c = (v4(NEGM(qt)) if cinit else "0") if ds == 0 else d
                    m.append(f"v_mfma_f32_16x16x32_bf16 {d}, {a4(F(f))}, {a4(Q(qt, ds))}, {c}")
        return m
    def pv_mfmas(self, par):
        m = []
        for s in range(2):
            for db in range(16):
                f = s * 16 + db
                for qt in range(2):
                    d = a4(O(db, qt))
                    m.append(f"v_mfma_f32_16x16x32_bf16 {d}, {a4(F(f))}, {v4(P(par, s, qt))}, {d}")
        return m

    def sm_stream(self, par, half):
        out = []
        for kb in (2 * half, 2 * half + 1):
            for qt in range(2):
                s0 = S(par, kb, qt); t = TMP + ((kb * 2 + qt) % 4) * 4
                p = P(par, kb >> 1, qt) + 2 * (kb & 1)
                for r in range(4): out.append((8, f"v_exp_f32 v{t+r}, v{s0+r}"))
                if kb == 0:
                    out.append((4, f"v_add_f32 v{LS(qt)}, v{t}, v{t+1}"))
                else:
                    out.append((4, f"v_add_f32 v{LS(qt)}, v{LS(qt)}, v{t}"))
                    out.append((4, f"v_add_f32 v{LS(qt)}, v{LS(qt)}, v{t+1}"))
                out.append((4, f"v_cvt_pk_bf16_f32 v{p}, v{t}, v{t+1}"))
                out.append((4, f"v_add_f32 v{LS(qt)}, v{LS(qt)}, v{t+2}"))
                out.append((4, f"v_cvt_pk_bf16_f32 v{p+1}, v{t+2}, v{t+3}"))
                out.append((4, f"v_add_f32 v{LS(qt)}, v{LS(qt)}, v{t+3}"))
        return out

    def emit_phase(self, mf, cur, sm=(), extra=(), tail=(), vmw=16, pre=(), sw=False, sg=False):
        E = self.E
        nxt = vRB if cur == vRA else vRA
        n = len(mf)
        Sc = Sched(n)
        for f in range(32):
            if "nords" in self.exp: continue
            Sc.put(2 * f, 4, self.frag_read(f + 8, cur, nxt))
        self.head_items(Sc, [(nxt, vLane16)], vmw, sw=sw, sg=sg)
        for g, c, t in pre: Sc.put(g, c, t)
        if "nosm" in self.exp: sm = []
        if sm:
            exps = [t for c, t in sm if c == 8]
            free_odd = [g for g in range(5, n, 2) if Sc.c[g] == 0 and g <= 53]
            assert len(free_odd) >= len(exps), (len(free_odd), len(exps))
            egap = [free_odd[(j * len(free_odd)) // len(exps)] for j in range(len(exps))]
            for t, g in zip(exps, egap): Sc.put(g, 8, t)
            ne = 0; g = 0
            for c, t in sm:
                if c == 8: ne += 1; continue
                g = max(g, egap[ne - 1] + 1)
                while Sc.c[g] + c > 8: g += 1
                Sc.put(g, c, t)
            lastsm = g
        else: lastsm = 0
        if extra:
            left = Sc.put_free(list(extra), start=2, stride=0)
            assert not left or True
        else: left = []
        g = max(lastsm + 1, n - 2 * len(tail) - 2)
        for c, t in tail:
            while Sc.c[g] + c > 8 and g < n - 1: g += 1
            Sc.put(g, c, t)
        before = {8 * k: ["s_waitcnt lgkmcnt(4)"] for k in range(8)}
        Sc.emit(E, mf, before)
        for c, t in left: E(t)

    def mask_block(self, par):
        E = self.E
        E(f"s_lshl_b32 s{sTmp}, s{sT}, 6")
        for qt in range(2): E(f"v_subrev_u32 v{vT0+qt}, s{sTmp}, v{DM(qt)}")
        E(f"v_mov_b32 v{vT0+2}, 0xff800000")
        k = 0
        items = [(qt, kb, r) for qt in range(2) for kb in range(4) for r in range(4)]
        masks = ["s[56:57]", "s[58:59]", "s[60:61]"]
        for i in range(len(items) + 2):
            if i < len(items):
                qt, kb, r = items[i]
                E(f"v_cmp_le_i32 {masks[i % 3]}, {16*kb+r}, v{vT0+qt}")
            if i >= 2:
                qt, kb, r = items[i - 2]
                E(f"v_cndmask_b32 v{S(par,kb,qt)+r}, v{vT0+2}, v{S(par,kb,qt)+r}, {masks[(i-2) % 3]}")
            if i >= len(items): E("s_nop 0")

    def xlane(self, op, r, t):
        E = self.E
        E(f"v_mov_b32 v{t}, v{r}\ns_nop 1")
        E(f"v_permlane16_swap_b32 v{r}, v{t}\ns_nop 1")
        E(f"{op} v{r}, v{r}, v{t}")
        E(f"v_mov_b32 v{t}, v{r}\ns_nop 1")
        E(f"v_permlane32_swap_b32 v{r}, v{t}\ns_nop 1")
        E(f"{op} v{r}, v{r}, v{t}")

    def rowmax_inlane(self, par, qt, r):
        E = self.E
        vals = [S(par, kb, qt) + i for kb in range(4) for i in range(4)]
        E(f"v_max3_f32 v{r}, v{vals[0]}, v{vals[1]}, v{vals[2]}")
        for i in range(3, 15, 2): E(f"v_max3_f32 v{r}, v{r}, v{vals[i]}, v{vals[i+1]}")
        E(f"v_max_f32 v{r}, v{r}, v{vals[15]}")
    def xlane2(self, op, r0, r1, t0, t1):
        E = self.E
        for sw in ("v_permlane16_swap_b32", "v_permlane32_swap_b32"):
            E(f"v_mov_b32 v{t0}, v{r0}\nv_mov_b32 v{t1}, v{r1}\ns_nop 0")
            E(f"{sw} v{r0}, v{t0}\n{sw} v{r1}, v{t1}\ns_nop 0")
            E(f"{op} v{r0}, v{r0}, v{t0}\n{op} v{r1}, v{r1}, v{t1}")

    def init_block(self):
        E = self.E
        for qt in range(2): self.rowmax_inlane(0, qt, M_(qt))
        self.xlane2("v_max_f32", M_(0), M_(1), vT0, vT0 + 1)
        for qt in range(2):
            E(f"v_max_f32 v{M_(qt)}, 0xf149f2ca, v{M_(qt)}")
            for r in range(4): E(f"v_sub_f32 v{NEGM(qt)+r}, 0, v{M_(qt)}")
            E(f"v_mov_b32 v{L_(qt)}, 0")
        for qt in range(2):
            for kb in range(4):
                for r in range(4): E(f"v_sub_f32 v{S(0,kb,qt)+r}, v{S(0,kb,qt)+r}, v{M_(qt)}")

    def slow_block(self, par):
        E = self.E
        E("s_nop 15")
        for qt in range(2):
            d = vT0 + qt
            self.rowmax_inlane(par, qt, d)
            self.xlane("v_max_f32", d, vT0 + 2)
            E(f"v_max_f32 v{d}, 0, v{d}")
            E(f"v_add_f32 v{M_(qt)}, v{M_(qt)}, v{d}")
            for r in range(4): E(f"v_sub_f32 v{NEGM(qt)+r}, v{NEGM(qt)+r}, v{d}")
            for pp in (par, par ^ 1):
                for kb in range(4):
                    for r in range(4): E(f"v_sub_f32 v{S(pp,kb,qt)+r}, v{S(pp,kb,qt)+r}, v{d}")
            E(f"v_sub_f32 v{vT0+3}, 0, v{d}")
            E(f"v_exp_f32 v{vT0+3}, v{vT0+3}\ns_nop 0")
            E(f"v_mul_f32 v{L_(qt)}, v{L_(qt)}, v{vT0+3}")
            for db in range(16):
                for r in range(4):
                    a = O(db, qt) + r
                    E(f"v_accvgpr_read_b32 v{vT0+4}, a{a}")
                    E(f"v_mul_f32 v{vT0+4}, v{vT0+4}, v{vT0+3}")
                    E(f"v_accvgpr_write_b32 a{a}, v{vT0+4}")
        for half in range(2):
            for c, t in self.sm_stream(par, half): E(t)
        E(f"s_nop 2")

    def check_tail(self):
        return [(4, f"v_max_f32 v{vT0}, v{LS(0)}, v{LS(1)}"), (4, f"v_cmp_lt_f32 vcc, {THR}, v{vT0}")]
    def check(self, par, computed):
        E = self.E
        sl = self.lab("slow"); back = self.lab("back")
        if not computed:
            for c, t in self.check_tail(): E(t)
        if "noslow" not in self.exp: E(f"s_cbranch_vccnz {sl}")
        E(f"{back}:")
        for qt in range(2): E(f"v_add_f32 v{L_(qt)}, v{L_(qt)}, v{LS(qt)}")
        self.rare.append(("slow", sl, back, par))

    def maybe_mask(self, par):
        E = self.E
        sk = self.lab("nomask")
        E(f"s_lshl_b32 s{sTmp}, s{sQB}, 1")
        E(f"s_cmp_lt_u32 s{sT}, s{sTmp}")
        E(f"s_cbranch_scc1 {sk}")
        self.mask_block(par)
        E(f"{sk}:")

    def item_loop(self):
        E = self.E; nm = self.name
        E(f"s_lshl_b32 s{sTmp}, s{sQB}, 7")
        E(f"s_lshl_b32 s{sTmp2}, s{sWave}, 5")
        E(f"s_add_u32 s{sTmp}, s{sTmp}, s{sTmp2}")
        E(f"v_and_b32 v{vT0}, 15, v0")
        E(f"v_bfe_u32 v{vT0+1}, v0, 4, 2")
        E(f"v_lshlrev_b32 v{vT0+1}, 2, v{vT0+1}")
        E(f"v_sub_u32 v{vT0}, v{vT0}, v{vT0+1}")
        E(f"v_add_u32 v{DM(0)}, s{sTmp}, v{vT0}")
        E(f"v_add_u32 v{DM(1)}, 16, v{DM(0)}")
        zero = [(4, f"v_accvgpr_write_b32 a{i}, 0") for i in range(128)]
        self.emit_phase(self.qk_mfmas(0, False), vRA, extra=zero, sw=True)
        E("s_nop 7")
        self.maybe_mask(0)
        self.init_block()
        self.emit_phase(self.qk_mfmas(1, True), vRB, sm=self.sm_stream(0, 0))
        for c, t in self.sm_stream(0, 1): E(t)
        self.check(0, False)
        E(f"s_add_u32 s{sT}, s{sT}, 1")
        E(f"s_lshr_b32 s{sI}, s{sN}, 1\ns_sub_u32 s{sI}, s{sI}, 1")
        if "mid" in self.exp: stamp_code(E, 1, True)
        E(f"s_cmp_eq_u32 s{sI}, 0")
        E(f"s_cbranch_scc1 {nm}_last")
        E(f"{nm}_loop:")
        for par in (1, 0):
            if par == 0: self.maybe_mask(0)
            self.emit_phase(self.qk_mfmas(par ^ 1, True), vRA, sm=self.sm_stream(par, 0), sw=(par == 0))
            pre = [(8, 0, f"s_add_u32 s{sT}, s{sT}, 1")]
            if par == 0: pre.append((12, 0, f"s_sub_u32 s{sI}, s{sI}, 1"))
            self.emit_phase(self.pv_mfmas(par ^ 1), vRB, sm=self.sm_stream(par, 1), tail=self.check_tail(), pre=pre, sg=(par == 1))
            self.check(par, True)
        E(f"s_cmp_lg_u32 s{sI}, 0")
        E(f"s_cbranch_scc1 {nm}_loop")
        E(f"{nm}_last:")
        if "mid" in self.exp: stamp_code(E, 2, True)
        self.maybe_mask(1)
        for c, t in self.sm_stream(1, 0): E(t)
        pre = [(7, 12, f"buffer_load_dword v{vFL}, v{vFL+1}, s[{sFL}:{sFL+3}], 0 offen sc1")]
        self.emit_phase(self.pv_mfmas(0), vRA, sm=self.sm_stream(1, 1), tail=self.check_tail(), pre=pre)
        self.check(1, True)
        nop_, fin_a, fin_b = self.lab("nopre"), self.lab("fina"), self.lab("finb")
        qn = self.lab("qnext")
        E(f"s_cmp_eq_u32 s{sItem}, 1")
        E(f"s_cbranch_scc0 {qn}")
        E(f"s_cmp_eq_u32 s{sHasP}, 0")
        E(f"s_cbranch_scc1 {nop_}")
        got, pl = self.lab("got"), self.lab("poll")
        E("s_waitcnt vmcnt(7)")
        to = self.lab("to")
        E(f"s_mov_b32 s73, 0")
        E(f"{pl}:")
        E(f"v_readfirstlane_b32 s{sTmp3}, v{vFL}")
        E(f"s_and_b32 s{sTmp2}, s{sPI}, 1\ns_lshl_b32 s{sTmp2}, s{sTmp2}, 4\ns_lshr_b32 s{sTmp3}, s{sTmp3}, s{sTmp2}\ns_and_b32 s{sTmp3}, s{sTmp3}, 0xffff")
        E(f"s_cmp_lg_u32 s{sTmp3}, 0")
        E(f"s_cbranch_scc1 {got}")
        E("s_sleep 2")
        E(f"buffer_load_dword v{vFL}, v{vFL+1}, s[{sFL}:{sFL+3}], 0 offen sc1")
        E("s_waitcnt vmcnt(0)")
        E(f"s_add_u32 s73, s73, 1\ns_cmp_lt_u32 s73, {SPIN_MAX}")
        E(f"s_cbranch_scc1 {pl}")
        E(f"v_mov_b32 v{vT0}, 0xbad2\nv_mov_b32 v{vT0+1}, 252\nbuffer_store_dword v{vT0}, v{vT0+1}, s[{sFL}:{sFL+3}], 0 offen")
        E(f"{got}:")
        E(f"s_lshl_b32 s{sTmp}, s{sWave}, 15")
        for i in range(16):
            E(f"s_add_u32 s{sTmp2}, s{sTmp}, {i*1024}")
            E(f"buffer_load_dwordx4 v[{64+4*i}:{67+4*i}], v{vLane16}, s[{sPT}:{sPT+3}], s{sTmp2} offen sc1")
        E(f"s_add_u32 s{sTmp2}, s{sTmp}, 16384")
        E(f"buffer_load_dwordx4 v[{vPM}:{vPM+3}], v{vLane16}, s[{sPT}:{sPT+3}], s{sTmp2} offen sc1")
        E(f"s_mov_b32 s{sTmp3}, 1")
        E(f"s_branch {fin_a}")
        E(f"{qn}:")
        self.load_q(next_item=True)
        E(f"s_mov_b32 s{sTmp3}, 1")
        E(f"s_branch {fin_a}")
        E(f"{nop_}:")
        E(f"s_mov_b32 s{sTmp3}, 0")
        E(f"{fin_a}:")
        w1, w2 = self.lab("w"), self.lab("w")
        vmw = f"s_cmp_eq_u32 s{sTmp3}, 0\ns_cbranch_scc1 {w1}\ns_waitcnt vmcnt(32)\ns_branch {w2}\n{w1}:\ns_waitcnt vmcnt(16)\n{w2}:"
        self.emit_phase(self.pv_mfmas(1), vRB, vmw=vmw, sg=True)
        E(f"{nm}_itemdone:")

    def prologue(self):
        E = self.E; nm = self.name
        E("s_cmp_ge_u32 s2, 256")
        E(f"s_cbranch_scc1 {nm}_end")
        stamp_code(E, 0, self.stamps)
        E("s_load_dwordx2 s[4:5], s[0:1], 96")
        E("s_load_dwordx2 s[6:7], s[0:1], 40")
        E("s_load_dwordx2 s[50:51], s[0:1], 88")
        E("s_load_dwordx4 s[64:67], s[0:1], 56")
        E("s_load_dwordx2 s[68:69], s[0:1], 72")
        E("s_and_b32 s45, s2, 7")
        E("s_lshr_b32 s46, s2, 3")
        E("s_and_b32 s47, s46, 1")
        E("s_lshl_b32 s45, s45, 1")
        E(f"s_add_u32 s{sH}, s45, s47")
        E("s_lshr_b32 s46, s46, 1")
        E(f"s_and_b32 s{sType}, s46, 1")
        E(f"s_lshr_b32 s{sPair}, s46, 1")
        E(f"v_lshrrev_b32 v{vT0}, 6, v0")
        E(f"v_and_b32 v1, 63, v0")
        E(f"v_readfirstlane_b32 s{sWave}, v{vT0}")
        E(f"v_lshlrev_b32 v{vLane16}, 4, v1")
        E(f"s_lshl_b32 s45, s{sPair}, 1")
        E(f"s_sub_u32 s46, {32-NA}, s45")
        E(f"s_add_u32 s47, s45, 2")
        E(f"s_cmp_eq_u32 s{sType}, 0")
        E(f"s_cselect_b32 s70, {NA}, s46")
        E(f"s_cselect_b32 s71, 0, {NA}")
        E(f"s_cselect_b32 s72, 0, s47")
        E(f"s_lshl_b32 s55, s70, 1")
        E(f"s_lshl_b32 s{sNKV}, s72, 1\ns_add_u32 s{sNKV}, s{sNKV}, s55")
        t = vT0
        E(f"v_cmp_gt_u32 vcc, s55, v1")
        E(f"v_subrev_u32 v{t+3}, s55, v1")
        E("s_nop 0")
        E(f"v_cndmask_b32 v{t}, v{t+3}, v1, vcc")
        E(f"v_mov_b32 v{t+4}, s72\nv_mov_b32 v{t+5}, s70")
        E(f"v_cndmask_b32 v{t+1}, v{t+4}, v{t+5}, vcc")
        E(f"v_mov_b32 v{t+4}, 0\nv_mov_b32 v{t+5}, s71")
        E(f"v_cndmask_b32 v{t+2}, v{t+4}, v{t+5}, vcc")
        E(f"v_min_u32 v{t+4}, 2, v{t+1}")
        E(f"v_cmp_lt_u32 s[56:57], v{t}, v{t+4}")
        E(f"v_lshlrev_b32 v{t+5}, 1, v{t+1}")
        E(f"v_subrev_u32 v{t+5}, 2, v{t+5}")
        E(f"v_cmp_lt_i32 s[58:59], v{t}, v{t+5}")
        E(f"v_and_b32 v{t+6}, 1, v{t}")
        E(f"v_cmp_eq_u32 s[60:61], 0, v{t+6}")
        E(f"v_sub_u32 v{t+7}, v{t}, v{t+1}")
        E(f"v_lshrrev_b32 v{t+8}, 1, v{t}")
        E(f"v_add_u32 v{t+9}, 1, v{t+8}")
        E(f"v_subrev_u32 v{t+8}, 1, v{t+8}")
        E(f"v_cndmask_b32 v{t+8}, v{t+8}, v{t+9}, s[60:61]")
        E(f"v_cndmask_b32 v{t+7}, v{t+7}, v{t+8}, s[58:59]")
        E(f"v_cndmask_b32 v{t+7}, v{t+7}, v{t}, s[56:57]")
        E(f"s_and_b64 s[58:59], s[58:59], s[60:61]")
        E(f"s_or_b64 s[58:59], s[58:59], s[56:57]")
        E(f"v_mov_b32 v{t+8}, {WS_V - WS_K}\nv_mov_b32 v{t+9}, 0")
        E(f"v_cndmask_b32 v{t+8}, v{t+8}, v{t+9}, s[58:59]")
        E(f"v_add_u32 v{t+7}, v{t+7}, v{t+2}")
        E(f"v_lshlrev_b32 v{t+7}, 15, v{t+7}")
        E(f"v_add_u32 v{t+7}, v{t+7}, v{t+8}")
        E(f"s_lshl_b32 s45, s{sH}, 20")
        E(f"v_add_u32 v{t+7}, s45, v{t+7}")
        E(f"v_subrev_u32 v{t+8}, s{sNKV}, v1")
        E(f"v_and_b32 v{t+9}, 3, v{t+8}\nv_mul_u32_u24 v{t+9}, {64*896}, v{t+9}")
        E(f"v_lshrrev_b32 v{t+10}, 2, v{t+8}\nv_mul_u32_u24 v{t+10}, 448, v{t+10}\nv_add_u32 v{t+9}, v{t+9}, v{t+10}")
        E(f"v_cmp_gt_u32 vcc, 8, v{t+8}\nv_mov_b32 v{t+10}, 0x7ff00000\ns_nop 0")
        E(f"v_cndmask_b32 v{t+9}, v{t+10}, v{t+9}, vcc")
        E(f"v_cmp_gt_u32 vcc, s{sNKV}, v1\ns_nop 1")
        E(f"v_cndmask_b32 v{vTab}, v{t+9}, v{t+7}, vcc")
        E(f"s_lshl_b32 s{sM0}, s{sWave}, 13")
        E(f"v_add_u32 v{vD}, s{sM0}, v{vLane16}")
        for p in range(1, 8): E(f"v_add_u32 v{vD+p}, {4096*(p>>2)}, v{vD}") if p >= 4 else E(f"v_mov_b32 v{vD+p}, v{vD}")
        E("s_waitcnt lgkmcnt(0)")
        def srd(s, lo, off, size):
            if isinstance(off, int) and off == 0: E(f"s_mov_b32 s{s}, s{lo}\ns_mov_b32 s{s+1}, s{lo+1}")
            else: E(f"s_add_u32 s{s}, s{lo}, {off}\ns_addc_u32 s{s+1}, s{lo+1}, 0")
            E(f"s_mov_b32 s{s+2}, {size}\ns_mov_b32 s{s+3}, 0x20000")
        srd(sDM, 4, WS_K, 32 << 20)
        E(f"s_lshl_b32 s45, s{sH}, 20")
        E(f"s_add_u32 s45, s45, {WS_Q}")
        srd(sQ, 4, "s45", 1 << 20)
        E(f"s_mov_b32 s{sN}, s70\ns_mov_b32 s{sT}, s71\ns_sub_u32 s{sQB}, 15, s{sPair}")
        E(f"s_xor_b32 s{sItem}, s{sType}, 1")
        E(f"s_cmp_lg_u32 s70, 0")
        sk = self.lab("n1ok")
        E(f"s_cbranch_scc1 {sk}")
        E(f"s_mov_b32 s{sN}, s72\ns_mov_b32 s{sT}, 0\ns_mov_b32 s{sQB}, s{sPair}\ns_mov_b32 s{sItem}, 1")
        E(f"{sk}:")
        E(f"s_cmp_lt_u32 s{sPair}, 7\ns_cselect_b32 s{sHasP}, 1, 0\ns_cmp_eq_u32 s{sType}, 0\ns_cselect_b32 s{sHasP}, s{sHasP}, 0")
        E(f"s_mov_b32 s{sSig}, 0")
        self.load_q()
        for c in range(4):
            E(f"v_readlane_b32 s{sOff}, v{vTab}, {c}")
            E(f"s_add_u32 m0, s{sM0}, {c*CH}")
            E("s_nop 3")
            for p in range(8):
                E(f"buffer_load_dwordx4 v{vD+p}, s[{sDM}:{sDM+3}], s{sOff} offen offset:{(p&3)*1024} lds")
                if p == 3: E("s_add_u32 m0, m0, 4096\ns_nop 0")
        E(f"s_lshl_b32 s45, s{sH}, 3\ns_add_u32 s{sPI}, s45, s{sPair}")
        E(f"s_lshl_b32 s45, s{sPI}, 17")
        E(f"s_add_u32 s45, s45, {WS_PT}")
        srd(sPT, 4, "s45", 131072)
        E(f"s_mul_i32 s45, s{sH}, {128*14*1024}")
        E(f"s_add_u32 s45, s45, {WS_OP}")
        srd(sOP, 4, "s45", 128*14*1024)
        E(f"s_mul_i32 s45, s{sH}, {256*896}")
        srd(sWO, 6, "s45", 256*896)
        srd(sFL, 50, 0, 256)
        E(f"s_lshr_b32 s45, s{sPI}, 1\ns_lshl_b32 s45, s45, 2\nv_mov_b32 v{vFL+1}, s45")
        E(f"s_mov_b32 s{sC}, 4")
        E(f"s_mov_b32 s{sWr}, {4*CH}")
        E(f"s_mov_b32 s{sRdN}, 0")
        E(f"v_mov_b32 v{vRA}, v{vLane16}")
        self.wo_setup()
        E("s_waitcnt vmcnt(24)")
        E("s_barrier")
        for f in range(8): E(self.frag_read(32 + f, vRB, vRA))
        if "mid" not in self.exp: stamp_code(E, 1, self.stamps)

    def load_q(self, next_item=False):
        E = self.E
        qb = sPair if next_item else sQB
        E(f"s_lshl_b32 s{sTmp}, s{qb}, 3\ns_lshl_b32 s{sTmp2}, s{sWave}, 1\ns_add_u32 s{sTmp}, s{sTmp}, s{sTmp2}\ns_lshl_b32 s{sTmp}, s{sTmp}, 13")
        for qt in range(2):
            for hh in range(2):
                E(f"s_add_u32 s{sTmp2}, s{sTmp}, {qt*8192 + hh*4096}")
                for d in range(4):
                    E(f"buffer_load_dwordx4 {a4(Q(qt, hh*4+d))}, v{vLane16}, s[{sQ}:{sQ+3}], s{sTmp2} offen offset:{d*1024}")

    def wo_setup(self):
        E = self.E
        t = vT0
        for p in range(8):
            E(f"s_lshl_b32 s{sTmp}, s{sWave}, 9\ns_add_u32 s{sTmp}, s{sTmp}, {64*p}")
            E(f"v_add_u32 v{t}, s{sTmp}, v1")
            E(f"v_mul_u32_u24 v{t+1}, 9363, v{t}\nv_lshrrev_b32 v{t+1}, 18, v{t+1}")
            E(f"v_mul_u32_u24 v{t+2}, 28, v{t+1}\nv_sub_u32 v{t+3}, v{t}, v{t+2}")
            E(f"v_bfe_u32 v{t+2}, v{t+1}, 2, 1\nv_lshlrev_b32 v{t+2}, 1, v{t+2}\nv_xor_b32 v{t+3}, v{t+3}, v{t+2}")
            E(f"v_lshlrev_b32 v{t+3}, 4, v{t+3}\nv_mul_u32_u24 v{t+1}, 896, v{t+1}\nv_add_u32 v{t+3}, v{t+3}, v{t+1}")
            E(f"v_cmp_gt_u32 vcc, 1792, v{t}\nv_subrev_u32 v{t+3}, {(p&3)*1024}, v{t+3}\nv_mov_b32 v{t+2}, 0x7ff00000")
            E(f"v_add_u32 v{t+3}, 4096, v{t+3}")
            E(f"v_cndmask_b32 v{vW+p}, v{t+2}, v{t+3}, vcc")
        E(f"v_bfe_u32 v{t}, v1, 4, 2\nv_lshlrev_b32 v{t+1}, 2, v{t}\nv_bfe_u32 v{t+2}, v1, 2, 2\nv_add_u32 v{t+1}, v{t+1}, v{t+2}")
        E(f"v_mul_u32_u24 v{t+1}, 448, v{t+1}\nv_and_b32 v{t+2}, 3, v1\nv_lshlrev_b32 v{t+2}, 3, v{t+2}\nv_add_u32 v{t+1}, v{t+1}, v{t+2}")
        E(f"v_and_b32 v{t}, 1, v{t}\nv_lshlrev_b32 v{t}, 5, v{t}")
        E(f"v_add_u32 v{vWA}, v{t+1}, v{t}\nv_sub_u32 v{vWA+1}, v{t+1}, v{t}\nv_add_u32 v{vWA+1}, 32, v{vWA+1}")

    def rare_blocks(self):
        E = self.E
        for r in self.rare:
            if r[0] == "slow":
                E(f"{r[1]}:"); self.slow_block(r[3]); E(f"s_branch {r[2]}")
            elif r[0] == "switch":
                E(f"{r[1]}:")
                for p in range(8): E(f"v_mov_b32 v{vD+p}, v{vW+p}")
                E(f"s_sub_u32 s{sDM}, s{sWO}, 4096\ns_subb_u32 s{sDM+1}, s{sWO+1}, 0\ns_add_u32 s{sDM+2}, s{sWO+2}, 4096\ns_mov_b32 s{sDM+3}, 0x20000")
                E(f"s_branch {r[2]}")
            elif r[0] == "signal":
                sk = self.lab("nosig")
                E(f"{r[1]}:")
                E(f"s_mov_b32 s{sSig}, 0")
                E(f"s_cmp_lg_u32 s{sWave}, 0\ns_cbranch_scc1 {sk}")
                E(f"s_and_b32 s{sTmp2}, s{sPI}, 1\ns_lshl_b32 s{sTmp2}, s{sTmp2}, 4\ns_lshl_b32 s{sTmp2}, 1, s{sTmp2}")
                E(f"v_mov_b32 v{vFL}, s{sTmp2}")
                E("s_mov_b64 exec, 1")
                E(f"buffer_atomic_add v{vFL}, v{vFL+1}, s[{sFL}:{sFL+3}], 0 offen sc1")
                E("s_mov_b64 exec, -1")
                E(f"{sk}:\ns_branch {r[2]}")
        self.rare = []

    def finish(self):
        E = self.E; nm = self.name
        E("s_nop 7")
        self.xlane2("v_add_f32", L_(0), L_(1), vT0, vT0 + 1)
        E(f"s_cmp_eq_u32 s{sItem}, 1")
        E(f"s_cbranch_scc1 {nm}_final")
        E(f"s_lshl_b32 s{sTmp}, s{sWave}, 15")
        for i in range(16):
            t = vT0 + (i % 2) * 12
            qt = i >> 3; s = i & 7
            src = [O(2*s, qt) + r for r in range(4)] + [O(2*s+1, qt) + r for r in range(4)]
            for r in range(8): E(f"v_accvgpr_read_b32 v{t+r}, a{src[r]}")
            for r in range(4): E(f"v_cvt_pk_bf16_f32 v{t+8+r}, v{t+2*r}, v{t+2*r+1}")
            E(f"s_add_u32 s{sTmp2}, s{sTmp}, {i*1024}")
            E(f"buffer_store_dwordx4 v[{t+8}:{t+11}], v{vLane16}, s[{sPT}:{sPT+3}], s{sTmp2} offen sc1")
        E(f"v_mov_b32 v{vPM}, v{M_(0)}\nv_mov_b32 v{vPM+1}, v{M_(1)}\nv_mov_b32 v{vPM+2}, v{L_(0)}\nv_mov_b32 v{vPM+3}, v{L_(1)}")
        E(f"s_add_u32 s{sTmp2}, s{sTmp}, 16384")
        E(f"buffer_store_dwordx4 v[{vPM}:{vPM+3}], v{vLane16}, s[{sPT}:{sPT+3}], s{sTmp2} offen sc1")
        E(f"s_lshl_b32 s{sTmp}, s{sPair}, 1\ns_add_u32 s{sN}, s{sTmp}, 2\ns_mov_b32 s{sT}, 0\ns_mov_b32 s{sQB}, s{sPair}\ns_mov_b32 s{sItem}, 1")
        E(f"s_mov_b32 s{sSig}, 1")
        E("s_waitcnt vmcnt(25)")
        E(f"s_branch {nm}_item")
        E(f"{nm}_final:")
        E(f"s_cmp_eq_u32 s{sHasP}, 0")
        E(f"s_cbranch_scc1 {nm}_plain")
        E("s_waitcnt vmcnt(8)")
        for qt in range(2):
            mB, lB = vPM + qt, vPM + 2 + qt
            ms, fA, fB = vT0 + 12, vT0 + 13, vT0 + 14
            E(f"v_max_f32 v{ms}, v{M_(qt)}, v{mB}")
            E(f"v_sub_f32 v{fA}, v{M_(qt)}, v{ms}\nv_sub_f32 v{fB}, v{mB}, v{ms}")
            E(f"v_exp_f32 v{fA}, v{fA}\nv_exp_f32 v{fB}, v{fB}\ns_nop 0")
            E(f"v_mul_f32 v{ms}, v{L_(qt)}, v{fA}\nv_fmac_f32 v{ms}, v{lB}, v{fB}")
            E(f"v_rcp_f32 v{ms}, v{ms}\ns_nop 0")
            E(f"v_mul_f32 v{vT0+8+qt}, v{fA}, v{ms}\nv_mul_f32 v{vT0+10+qt}, v{fB}, v{ms}")
        for i in range(16):
            qt = i >> 3; s = i & 7
            src = [O(2*s, qt) + r for r in range(4)] + [O(2*s+1, qt) + r for r in range(4)]
            t = 168 + (i % 2) * 10; c = 64 + 4 * i
            for r in range(8): E(f"v_accvgpr_read_b32 v{t+r}, a{src[r]}")
            for r in range(8): E(f"v_mul_f32 v{t+r}, v{t+r}, v{vT0+8+qt}")
            for r in range(4):
                E(f"v_lshlrev_b32 v{t+8}, 16, v{c+r}\nv_and_b32 v{t+9}, 0xffff0000, v{c+r}")
                E(f"v_fmac_f32 v{t+2*r}, v{t+8}, v{vT0+10+qt}\nv_fmac_f32 v{t+2*r+1}, v{t+9}, v{vT0+10+qt}")
                E(f"v_cvt_pk_bf16_f32 v{c+r}, v{t+2*r}, v{t+2*r+1}")
        E(f"s_branch {nm}_oproj")
        E(f"{nm}_plain:")
        for qt in range(2): E(f"v_rcp_f32 v{vT0+8+qt}, v{L_(qt)}")
        E("s_nop 0")
        for i in range(16):
            qt = i >> 3; s = i & 7
            src = [O(2*s, qt) + r for r in range(4)] + [O(2*s+1, qt) + r for r in range(4)]
            t = 168 + (i % 2) * 8; c = 64 + 4 * i
            for r in range(8): E(f"v_accvgpr_read_b32 v{t+r}, a{src[r]}")
            for r in range(8): E(f"v_mul_f32 v{t+r}, v{t+r}, v{vT0+8+qt}")
            for r in range(4): E(f"v_cvt_pk_bf16_f32 v{c+r}, v{t+2*r}, v{t+2*r+1}")
        E(f"{nm}_oproj:")
        if "mid" not in self.exp: stamp_code(E, 3, self.stamps)
        self.oproj()

    def oproj(self):
        E = self.E; nm = self.name
        C = lambda qt, s: 64 + (qt * 8 + s) * 4
        WFR = lambda f: 128 + (f % 16) * 4
        OUT = lambda ps, mb, qt: ((128 if ps == 0 else 0) + (mb * 2 + qt) * 4)
        AD = lambda k, par: 242 + (k & 1) * 2 + par
        D = 6
        def rd(k, f):
            sl, mb = divmod(f, 14)
            fr = WFR(k * 28 + f)
            base = AD(k, mb & 1); off = sl * 14336 + (mb & ~1) * 32
            return [f"ds_read_b64_tr_b16 v[{fr}:{fr+1}], v{base} offset:{off}",
                    f"ds_read_b64_tr_b16 v[{fr+2}:{fr+3}], v{base} offset:{off + 7168}"]
        for par in range(2): E(f"v_add_u32 v{AD(0,par)}, s{sRdN}, v{vWA+par}")
        for f in range(D):
            for l in rd(0, f): E(l)
        E(f"s_lshl_b32 s{sTmp}, s{sQB}, 3\ns_lshl_b32 s{sTmp2}, s{sWave}, 1\ns_add_u32 s{sTmp}, s{sTmp}, s{sTmp2}\ns_mul_i32 s70, s{sTmp}, {14*1024}")
        def units(ps):
            us = []; n = 0
            for qt in range(2):
                for ms in range(7):
                    t = 168 + (n % 2) * 12 if False else 200 + (n % 2) * 12; n += 1
                    src = [OUT(ps, 2*ms, qt) + r for r in range(4)] + [OUT(ps, 2*ms+1, qt) + r for r in range(4)]
                    u = [(4, f"v_accvgpr_read_b32 v{t+r}, a{src[r]}") for r in range(8)]
                    u += [(4, f"v_cvt_pk_bf16_f32 v{t+8+r}, v{t+2*r}, v{t+2*r+1}") for r in range(4)]
                    u += [(12, f"s_add_u32 s71, s70, {(qt*14 + ps*7 + ms)*1024}\nbuffer_store_dwordx4 v[{t+8}:{t+11}], v{vLane16}, s[{sOP}:{sOP+3}], s71 offen{' sc1' if 'wt' in self.exp else ''}")]
                    us.append(u)
            return us
        pend = []
        nst = 0
        hist = []
        log = [("D", k) for k in range(4) for _ in range(8)]
        for k in range(8):
            ps, sp = divmod(k, 4)
            mf = []
            for sl in range(2):
                s = 2 * sp + sl
                for mb in range(14):
                    for qt in range(2):
                        d = a4(OUT(ps, mb, qt)); c = "0" if s == 0 else d
                        mf.append(f"v_mfma_f32_16x16x32_bf16 {d}, {v4(WFR(k*28 + sl*14 + mb))}, {v4(C(qt, s))}, {c}")
            n = len(mf)
            Sc = Sched(n)
            for f in range(28):
                ff = f + D
                if ff < 28: r = rd(k, ff)
                elif k + 1 < 8: r = rd(k + 1, ff - 28)
                else: continue
                Sc.put(2 * f, 4, r[0]); Sc.put(2 * f + 1, 4, r[1])
            if k + 1 < 8:
                idx = max(i for i, t in enumerate(log) if t == ("D", k + 1))
                w = len(log) - 1 - idx
                nxt = [(AD(k + 1, 0), vWA), (AD(k + 1, 1), vWA + 1)]
                if k + 4 < 8:
                    self.head_items(Sc, nxt, w, dma_gaps=[9, 14, 19, 24, 29, 34, 39, 43])
                    order_d = [(g, ("D", k + 4)) for g in [9, 14, 19, 24, 29, 34, 39, 43]]
                else:
                    Sc.put(1, 0, f"s_waitcnt vmcnt({w})\ns_barrier")
                    Sc.put(3, 0, f"s_add_u32 s{sRdN}, s{sRdN}, {CH}\ns_cmp_eq_u32 s{sRdN}, {NS*CH}\ns_cselect_b32 s{sRdN}, 0, s{sRdN}")
                    Sc.put(3, 4, f"v_add_u32 v{nxt[0][0]}, s{sRdN}, v{nxt[0][1]}"); Sc.put(4, 4, f"v_add_u32 v{nxt[1][0]}, s{sRdN}, v{nxt[1][1]}")
                    order_d = []
            else: order_d = []
            if k == 4: pend = [x for u in units(0) for x in u]
            order_s = []
            if pend:
                cur = 6; j = 0; nun = 0
                while j < len(pend):
                    c, t = pend[j]; g = cur
                    while g < n and Sc.c[g] + (c if c < 12 else 4) > (8 if c < 12 else 8): g += 1
                    if g >= n: break
                    Sc.put(g, c, t); cur = g; j += 1
                    if c == 12:
                        order_s.append((g, ("S", 0))); nun += 1; cur = g + 1
                        if nun >= 4: break
                pend = pend[j:]
            before = {}
            for i in range(0, n, 4):
                f = i // 2
                rem = D - 2
                if k == 7: rem = min(D - 2, 26 - f)
                before[i] = [f"s_waitcnt lgkmcnt({2*max(rem,0)})"]
            Sc.emit(E, mf, before)
            for g, tg in sorted(order_d + order_s): log.append(tg)
        for c, t in pend: E(t)
        if "mid" not in self.exp: stamp_code(E, 4, self.stamps)
        E("s_nop 7")
        for u in units(1):
            for c, t in u: E(t)

    def tail_prefetch(self):
        E = self.E
        E(f"s_lshl_b32 s{sTmp}, s2, 2\ns_add_u32 s{sTmp}, s{sTmp}, s{sWave}\ns_mul_i32 s{sTmp}, s{sTmp}, 1568")
        E("v_min_u32 v2, 24, v1\nv_lshlrev_b32 v2, 6, v2")
        for i, lo in enumerate((64, 66, 68)):
            E(f"s_mov_b32 s56, s{lo}\ns_mov_b32 s57, s{lo+1}\ns_mov_b32 s58, {448*1792*2}\ns_mov_b32 s59, 0x20000")
            E(f"buffer_load_dword v{3+i}, v2, s[56:59], s{sTmp} offen")

    def gen(self):
        E = self.E; nm = self.name
        self.prologue()
        E(f"{nm}_item:")
        self.item_loop()
        if "mid" not in self.exp: stamp_code(E, 2, self.stamps)
        self.finish()
        if "nopf" not in self.exp: self.tail_prefetch()
        if self.nxt and "nocpf" not in self.exp: code_prefetch(E, self.nxt[0], self.nxt[1], nm + "_n", 72, 74, 8)
        if self.stamps:
            E("s_waitcnt vmcnt(0)")
            stamp_code(E, 5, True)
            stamp_dump(E, 6, nm, 4)
        E("s_endpgm")
        self.rare_blocks()
        E(f"{nm}_end:")
        E("s_endpgm")
        return E.text()

def gen_k2(name="k2_kernel", **kw):
    return K2(name, **kw).gen()
```

```python
from asmlib import *
from ws import *
from k1 import stamp_code, stamp_dump
HSTR = 128 * 14 * 1024

def gen_t1(name="t1_kernel", stamps=False, nxt=None):
    E = Emit()
    E("s_cmp_ge_u32 s2, 256")
    E(f"s_cbranch_scc1 {name}_end")
    stamp_code(E, 0, stamps)
    E("s_load_dwordx2 s[4:5], s[0:1], 0")
    E("s_load_dwordx2 s[6:7], s[0:1], 96")
    if nxt: code_prefetch(E, nxt[0], nxt[1], name + "_n", 40, 42, 10, 8)
    E("v_and_b32 v1, 63, v0")
    E("v_lshrrev_b32 v2, 6, v0")
    E("s_nop 0")
    E("v_readfirstlane_b32 s20, v2")
    E("v_and_b32 v3, 7, v1")
    E("v_bfe_u32 v4, v1, 3, 2")
    E("v_lshrrev_b32 v5, 5, v1")
    E("s_lshr_b32 s21, s2, 1")
    E("s_and_b32 s22, s2, 1")
    E("s_lshl_b32 s22, s22, 3")
    E("v_lshlrev_b32 v6, 4, v4")
    E("v_add_u32 v6, v6, v3")
    E("v_add_u32 v6, s22, v6")
    E("v_lshlrev_b32 v6, 4, v6")
    E(f"s_mul_i32 s23, s21, {14*1024}")
    E(f"v_mul_u32_u24 v7, {HSTR}, v5")
    E("v_add_u32 v7, v7, v6")
    E("v_add_u32 v7, s23, v7")
    E("s_lshl_b32 s24, s2, 3")
    E("v_add_u32 v8, s24, v3")
    E("v_mul_u32_u24 v8, 896, v8")
    E("v_lshlrev_b32 v9, 3, v4")
    E("v_add_u32 v8, v8, v9")
    E("s_waitcnt lgkmcnt(0)")
    def srd(s, lo, off, size):
        if off == 0: E(f"s_mov_b32 s{s}, s{lo}\ns_mov_b32 s{s+1}, s{lo+1}")
        else: E(f"s_add_u32 s{s}, s{lo}, {off}\ns_addc_u32 s{s+1}, s{lo+1}, 0")
        E(f"s_mov_b32 s{s+2}, {size}\ns_mov_b32 s{s+3}, 0x20000")
    srd(8, 6, WS_OP, 16 * HSTR)
    srd(12, 4, 0, 2048 * 896)
    srd(16, 6, WS_H, 2048 * 896)
    srd(28, 6, WS_HN, 2048 * 896)
    for k in range(2):
        E(f"s_add_u32 s25, s20, {8*k}")
        E("s_lshl_b32 s26, s25, 10")
        E("s_lshl_b32 s27, s25, 6")
        if k == 1:
            E("s_cmp_lt_u32 s25, 14")
            E("s_cselect_b32 s26, s26, 0x7ff00000")
            E("s_cselect_b32 s27, s27, 0x7ff00000")
        E(f"s_mov_b32 s{32+k}, s26")
        for i in range(8):
            E(f"s_add_u32 s34, s26, {2*i*HSTR}") if True else None
            E(f"buffer_load_dwordx4 v[{32+k*32+4*i}:{35+k*32+4*i}], v7, s[8:11], s34 offen")
        E(f"buffer_load_dwordx2 v[{96+4*k}:{97+4*k}], v8, s[12:15], s27 offen")
        E(f"buffer_load_dwordx2 v[{98+4*k}:{99+4*k}], v8, s[12:15], s27 offen offset:32")
    stamp_code(E, 1, stamps)
    for k in range(2):
        E(f"s_waitcnt vmcnt({10 if k == 0 else 0})")
        a = 104 + 8 * k
        for i in range(8):
            for r in range(4):
                src = 32 + k*32 + 4*i + r
                if i == 0:
                    E(f"v_lshlrev_b32 v{a+2*r}, 16, v{src}\nv_and_b32 v{a+2*r+1}, 0xffff0000, v{src}")
                else:
                    E(f"v_lshlrev_b32 v10, 16, v{src}\nv_and_b32 v11, 0xffff0000, v{src}")
                    E(f"v_add_f32 v{a+2*r}, v{a+2*r}, v10\nv_add_f32 v{a+2*r+1}, v{a+2*r+1}, v11")
        for r in range(8):
            E(f"v_mov_b32 v10, v{a+r}\ns_nop 1\nv_permlane32_swap_b32 v{a+r}, v10\ns_nop 1\nv_add_f32 v{a+r}, v{a+r}, v10")
        for r in range(4):
            xs = 96 + 4*k + r
            E(f"v_lshlrev_b32 v10, 16, v{xs}\nv_and_b32 v11, 0xffff0000, v{xs}")
            E(f"v_add_f32 v{a+2*r}, v{a+2*r}, v10\nv_add_f32 v{a+2*r+1}, v{a+2*r+1}, v11")
            E(f"v_cvt_pk_bf16_f32 v{120+4*k+r}, v{a+2*r}, v{a+2*r+1}")
            E(f"v_lshlrev_b32 v{a+2*r}, 16, v{120+4*k+r}\nv_and_b32 v{a+2*r+1}, 0xffff0000, v{120+4*k+r}")
    stamp_code(E, 2, stamps)
    E("v_mov_b32 v12, v6")
    E("v_add_u32 v12, s23, v12")
    E("s_mov_b64 s[36:37], exec\ns_mov_b32 exec_hi, 0")
    E("buffer_store_dwordx4 v[120:123], v12, s[16:19], s32 offen")
    E("buffer_store_dwordx4 v[124:127], v12, s[16:19], s33 offen")
    E("s_mov_b64 exec, s[36:37]")
    def rowreduce(r):
        E(f"s_nop 1\nv_add_f32_dpp v{r}, v{r}, v{r} row_ror:8 row_mask:0xf bank_mask:0xf")
        E(f"v_mov_b32 v10, v{r}\ns_nop 1\nv_permlane16_swap_b32 v{r}, v10\ns_nop 1\nv_add_f32 v{r}, v{r}, v10")
    E("v_add_f32 v13, v104, v105")
    for r in range(106, 120): E(f"v_add_f32 v13, v13, v{r}")
    rowreduce(13)
    E("v_lshlrev_b32 v14, 2, v3\ns_lshl_b32 s35, s20, 5\nv_add_u32 v14, s35, v14")
    E("s_mov_b64 exec, 0xff\nds_write_b32 v14, v13\ns_mov_b64 exec, s[36:37]")
    E("s_waitcnt lgkmcnt(0)\ns_barrier")
    E("v_lshlrev_b32 v15, 2, v3")
    for w in range(8): E(f"ds_read_b32 v{16+w}, v15 offset:{32*w}")
    E("s_waitcnt lgkmcnt(0)")
    E("v_add_f32 v13, v16, v17")
    for w in range(2, 8): E(f"v_add_f32 v13, v13, v{16+w}")
    E("v_mul_f32 v13, 0x3b124925, v13")
    for r in range(104, 120): E(f"v_sub_f32 v{r}, v{r}, v13")
    E("s_cmp_lt_u32 s20, 6")
    E(f"s_cbranch_scc1 {name}_valid")
    for r in range(112, 120): E(f"v_mov_b32 v{r}, 0")
    E(f"{name}_valid:")
    E("v_mul_f32 v24, v104, v104")
    for r in range(105, 120): E(f"v_fmac_f32 v24, v{r}, v{r}")
    rowreduce(24)
    E("s_mov_b64 exec, 0xff\nds_write_b32 v14, v24 offset:256\ns_mov_b64 exec, s[36:37]")
    E("s_waitcnt lgkmcnt(0)\ns_barrier")
    for w in range(8): E(f"ds_read_b32 v{16+w}, v15 offset:{256+32*w}")
    E("s_waitcnt lgkmcnt(0)")
    E("v_add_f32 v24, v16, v17")
    for w in range(2, 8): E(f"v_add_f32 v24, v24, v{16+w}")
    E("v_mov_b32 v25, 0x3727c5ac")
    E("v_fmac_f32 v25, 0x3b124925, v24")
    E("v_rsq_f32 v25, v25\ns_nop 0")
    for r in range(104, 120): E(f"v_mul_f32 v{r}, v{r}, v25")
    for r in range(8): E(f"v_cvt_pk_bf16_f32 v{120+r}, v{104+2*r}, v{105+2*r}")
    E("s_mov_b32 exec_hi, 0")
    E("buffer_store_dwordx4 v[120:123], v12, s[28:31], s32 offen")
    E("buffer_store_dwordx4 v[124:127], v12, s[28:31], s33 offen")
    if stamps:
        E("s_mov_b64 exec, -1\ns_waitcnt vmcnt(0)"); stamp_code(E, 3, True); stamp_dump(E, 4, name, 6); E("s_endpgm")
    E(f"{name}_end:")
    E("s_endpgm")
    return E.text()
```

```python
from asmlib import *
from ws import *
from k1 import stamp_code, stamp_dump
SLOT = 24576; NSL = 6
def gen_t2(name="t2_kernel", stamps=False, nxt=None):
    E = Emit()
    HF = lambda st, qt: 64 + st * 48 + qt * 4
    WF = lambda st, m, fb: 64 + st * 48 + 16 + (m * 4 + fb) * 4
    WA = lambda fb: 10 + fb
    HA = 14
    DH = lambda i: 16 + i
    DW = lambda i: 18 + i
    GA = lambda fb, qt: (fb * 4 + qt) * 4
    UA = lambda fb, qt: 64 + (fb * 4 + qt) * 4
    sHN, sG, sU, sO = 8, 12, 16, 20
    sWave, sRB, sFS = 24, 25, 26
    E("s_cmp_ge_u32 s2, 224")
    E(f"s_cbranch_scc1 {name}_end")
    stamp_code(E, 0, stamps)
    E("s_load_dwordx4 s[4:7], s[0:1], 56")
    E("s_load_dwordx2 s[28:29], s[0:1], 96")
    E(f"s_mul_i32 s{sRB}, s2, 4682\ns_lshr_b32 s{sRB}, s{sRB}, 16")
    E(f"s_mul_i32 s30, s{sRB}, 14\ns_sub_u32 s{sFS}, s2, s30")
    E("v_and_b32 v1, 63, v0\nv_lshrrev_b32 v2, 6, v0\ns_nop 0")
    E(f"v_readfirstlane_b32 s{sWave}, v2")
    E("v_lshlrev_b32 v3, 4, v1")
    E(f"v_mul_u32_u24 v4, {2*14336}, v2")
    E("v_add_u32 v4, v4, v3")
    E(f"v_mov_b32 v{DH(0)}, v4")
    E(f"v_add_u32 v{DH(1)}, {14336-1024}, v4")
    for i in range(2):
        E(f"v_lshlrev_b32 v4, 3, v2\nv_add_u32 v4, {4*i}, v4\nv_lshrrev_b32 v5, 4, v1\nv_add_u32 v4, v4, v5")
        E("v_and_b32 v5, 7, v4\nv_lshlrev_b32 v5, 1, v5\nv_and_b32 v6, 15, v1\nv_xor_b32 v5, v5, v6\nv_lshlrev_b32 v5, 4, v5")
        E(f"v_mul_u32_u24 v4, 3584, v4\nv_add_u32 v4, v4, v5")
        E(f"v_subrev_u32 v{DW(i)}, {i*1024}, v4")
    E("s_waitcnt lgkmcnt(0)")
    def srd(s, lo, offs, size):
        E(f"s_add_u32 s{s}, s{lo}, {offs}\ns_addc_u32 s{s+1}, s{lo+1}, 0\ns_mov_b32 s{s+2}, {size}\ns_mov_b32 s{s+3}, 0x20000")
    E(f"s_mul_i32 s30, s{sRB}, {8*14336}\ns_add_u32 s30, s30, {WS_HN}")
    srd(sHN, 28, "s30", 8 * 14336)
    E(f"s_lshl_b32 s30, s{sFS}, 8")
    srd(sG, 4, "s30", 448 * 3584); E(f"s_sub_u32 s{sG+2}, s{sG+2}, s30")
    srd(sU, 6, "s30", 448 * 3584); E(f"s_sub_u32 s{sU+2}, s{sU+2}, s30")
    E(f"s_lshl_b32 s31, s{sWave}, 11")
    vm = []
    def dma(s):
        base = (s % NSL) * SLOT
        u = []
        u.append(f"s_add_u32 m0, s31, {base}\ns_mov_b32 s32, {s*1024}\nbuffer_load_dwordx4 v{DH(0)}, s[{sHN}:{sHN+3}], s32 offen lds")
        u.append(f"buffer_load_dwordx4 v{DH(1)}, s[{sHN}:{sHN+3}], s32 offen offset:1024 lds")
        u.append(f"s_add_u32 m0, s31, {base+8192}\ns_mov_b32 s32, {s*32*3584}\nbuffer_load_dwordx4 v{DW(0)}, s[{sG}:{sG+3}], s32 offen lds")
        u.append(f"buffer_load_dwordx4 v{DW(1)}, s[{sG}:{sG+3}], s32 offen offset:1024 lds")
        u.append(f"s_add_u32 m0, s31, {base+16384}\ns_nop 0\nbuffer_load_dwordx4 v{DW(0)}, s[{sU}:{sU+3}], s32 offen lds")
        u.append(f"buffer_load_dwordx4 v{DW(1)}, s[{sU}:{sU+3}], s32 offen offset:1024 lds")
        vm.extend([s] * 6)
        return u
    def need(s):
        idx = max(i for i, t in enumerate(vm) if t == s); return len(vm) - 1 - idx
    for s in range(NSL - 1):
        for u in dma(s): E(u)
    E(f"s_mul_i32 s30, s{sRB}, {8*56*1024}\ns_add_u32 s30, s30, {WS_HM}")
    srd(sO, 28, "s30", 8 * 56 * 1024)
    E("v_lshrrev_b32 v4, 7, v0\nv_lshlrev_b32 v4, 12, v4\nv_add_u32 v4, v4, v3")
    for seg in range(3): E(f"v_add_u32 v{20+seg}, {seg*2*SLOT}, v4")
    E("v_bfe_u32 v4, v1, 4, 2\nv_lshlrev_b32 v4, 2, v4\nv_bfe_u32 v5, v1, 2, 2\nv_add_u32 v4, v4, v5")
    E("v_and_b32 v5, 7, v4")
    E("v_lshlrev_b32 v4, 8, v4\nv_and_b32 v6, 3, v1\nv_lshlrev_b32 v6, 3, v6\nv_add_u32 v4, v4, v6\nv_add_u32 v4, 8192, v4")
    E("v_bfe_u32 v6, v0, 6, 1\nv_lshlrev_b32 v6, 2, v6")
    for fb in range(4):
        E(f"v_add_u32 v7, {fb}, v6\nv_xor_b32 v7, v7, v5\nv_lshlrev_b32 v7, 5, v7\nv_add_u32 v7, v7, v4")
        for seg in range(3): E(f"v_add_u32 v{24+fb*3+seg}, {seg*2*SLOT}, v7")
    def reads(s, st):
        sl = s % NSL; seg = sl // 2; b = (sl % 2) * SLOT
        u = []
        hn = [f"ds_read_b128 v[{HF(st,qt)}:{HF(st,qt)+3}], v{20+seg} offset:{b + qt*1024}" for qt in range(4)]
        w = []
        for fb in range(4):
            for m in range(2):
                for t in range(2):
                    w.append(f"ds_read_b64_tr_b16 v[{WF(st,m,fb)+2*t}:{WF(st,m,fb)+2*t+1}], v{24+fb*3+seg} offset:{b + m*8192 + t*4096}")
        return [hn[0]] + w[:4] + hn[1:] + w[4:]
    E(f"s_waitcnt vmcnt({need(0)})\ns_barrier")
    stamp_code(E, 1, stamps)
    for u in reads(0, 0): E(u)
    for s in range(14):
        st = s & 1
        fl, plan = [], []
        if s + 1 < 14:
            E(f"s_waitcnt vmcnt({need(s+1)}) lgkmcnt(0)\ns_barrier")
            rd = reads(s + 1, st ^ 1); fl += rd; plan += list(range(len(rd)))
            if s + NSL - 1 < 14:
                d = dma(s + NSL - 1); fl += d; plan += [21, 23, 25, 27, 29, 31][:len(d)]
        else:
            E("s_waitcnt lgkmcnt(0)")
        mf = []
        for fb in range(4):
            for qt in range(4):
                for m in range(2):
                    a = (GA if m == 0 else UA)(fb, qt); d = f"a[{a}:{a+3}]"
                    mf.append(f"v_mfma_f32_16x16x32_bf16 {d}, v[{WF(st,m,fb)}:{WF(st,m,fb)+3}], v[{HF(st,qt)}:{HF(st,qt)+3}], {'0' if s == 0 else d}")
        for l in interleave(mf, fl, plan=plan): E(l)
    stamp_code(E, 2, stamps)
    E("s_nop 7")
    E(f"v_lshrrev_b32 v4, 7, v0\nv_mul_u32_u24 v4, {4*56*1024}, v4\nv_add_u32 v4, v4, v3")
    E("v_bfe_u32 v5, v0, 6, 1\nv_lshlrev_b32 v5, 11, v5\nv_add_u32 v4, v4, v5")
    E(f"s_lshl_b32 s30, s{sFS}, 12")
    n = 0
    for qt in range(4):
        for k in range(2):
            t = 160 + (n % 2) * 24; n += 1
            for j in range(2):
                for r in range(4):
                    E(f"v_accvgpr_read_b32 v{t+4*j+r}, a{GA(2*k+j, qt)+r}")
                    E(f"v_accvgpr_read_b32 v{t+8+4*j+r}, a{UA(2*k+j, qt)+r}")
            for r in range(8): E(f"v_max_f32 v{t+r}, 0, v{t+r}")
            for r in range(8): E(f"v_mul_f32 v{t+r}, v{t+r}, v{t+8+r}")
            for r in range(4): E(f"v_cvt_pk_bf16_f32 v{t+16+r}, v{t+2*r}, v{t+2*r+1}")
            E(f"s_add_u32 s32, s30, {qt*56*1024 + k*1024}")
            E(f"buffer_store_dwordx4 v[{t+16}:{t+19}], v4, s[{sO}:{sO+3}], s32 offen")
    if nxt: code_prefetch(E, nxt[0], nxt[1], name + "_n", 40, 42, 8)
    if stamps:
        E("s_waitcnt vmcnt(0)"); stamp_code(E, 3, True); stamp_dump(E, 4, name, 28); E("s_endpgm")
    E(f"{name}_end:")
    E("s_endpgm")
    return E.text()
```

```python
from asmlib import *
from ws import *
from k1 import stamp_code, stamp_dump
def gen_t3(name="t3_kernel", stamps=False, nxt=None):
    E = Emit()
    NSL = 8; DEP = 6
    BF = lambda s, qt: 64 + (s % NSL) * 16 + qt * 4
    WF = lambda st, mb: 192 + st * 16 + mb * 4
    AC = lambda mb, qt: (mb * 4 + qt) * 4
    sHM, sWD, sH, sO = 8, 12, 16, 20
    sWave, sQB, sMB = 24, 25, 26
    E("s_cmp_ge_u32 s2, 224")
    E(f"s_cbranch_scc1 {name}_end")
    stamp_code(E, 0, stamps)
    E("s_load_dwordx4 s[4:7], s[0:1], 72")
    E("s_load_dwordx2 s[28:29], s[0:1], 96")
    E(f"s_mul_i32 s{sQB}, s2, 9363\ns_lshr_b32 s{sQB}, s{sQB}, 16")
    E(f"s_mul_i32 s30, s{sQB}, 7\ns_sub_u32 s{sMB}, s2, s30")
    E("v_and_b32 v1, 63, v0\nv_lshrrev_b32 v2, 6, v0\ns_nop 0")
    E(f"v_readfirstlane_b32 s{sWave}, v2")
    E("v_lshlrev_b32 v3, 4, v1")
    E("v_lshrrev_b32 v4, 3, v1\nv_bfe_u32 v5, v4, 1, 2\nv_lshlrev_b32 v5, 1, v5\nv_and_b32 v6, 7, v1\nv_xor_b32 v5, v5, v6\nv_lshlrev_b32 v5, 4, v5")
    E("v_mul_u32_u24 v4, 896, v4\nv_add_u32 v4, v4, v5")
    for p in range(4): E(f"v_add_u32 v{16+p}, {p*(8*896-1024)}, v4")
    E("s_waitcnt lgkmcnt(0)")
    def srd(s, lo, offs, size):
        E(f"s_add_u32 s{s}, s{lo}, {offs}\ns_addc_u32 s{s+1}, s{lo+1}, 0\ns_mov_b32 s{s+2}, {size}\ns_mov_b32 s{s+3}, 0x20000")
    E(f"s_mul_i32 s30, s{sQB}, {4*56*1024}\ns_mul_i32 s31, s{sWave}, {14*1024}\ns_add_u32 s30, s30, s31\ns_add_u32 s30, s30, {WS_HM}")
    srd(sHM, 28, "s30", 4 * 56 * 1024); E(f"s_sub_u32 s{sHM+2}, s{sHM+2}, s31")
    E(f"s_mul_i32 s30, s{sWave}, {14*32*896}\ns_lshl_b32 s31, s{sMB}, 7\ns_add_u32 s30, s30, s31")
    srd(sWD, 4, "s30", 1792 * 896); E(f"s_sub_u32 s{sWD+2}, s{sWD+2}, s30")
    E(f"s_lshl_b32 s33, s{sWave}, 15")
    vm = []
    def loads(s):
        u = []
        u.append(f"s_add_u32 m0, s33, {(s % NSL)*4096}\ns_mov_b32 s32, {s*32*896}\nbuffer_load_dwordx4 v16, s[{sWD}:{sWD+3}], s32 offen lds")
        for p in range(1, 4): u.append(f"buffer_load_dwordx4 v{16+p}, s[{sWD}:{sWD+3}], s32 offen offset:{p*1024} lds")
        for qt in range(4):
            u.append(f"s_mov_b32 s34, {qt*56*1024 + s*1024}\nbuffer_load_dwordx4 v[{BF(s,qt)}:{BF(s,qt)+3}], v3, s[{sHM}:{sHM+3}], s34 offen")
        vm.extend([s] * 8)
        return u
    def need(s):
        idx = max(i for i, t in enumerate(vm) if t == s); return len(vm) - 1 - idx
    for s in range(DEP):
        for u in loads(s): E(u)
    E("v_bfe_u32 v4, v1, 4, 2\nv_lshlrev_b32 v4, 2, v4\nv_bfe_u32 v5, v1, 2, 2\nv_add_u32 v4, v4, v5")
    E("v_bfe_u32 v5, v4, 1, 2\nv_lshlrev_b32 v4, 7, v4\nv_and_b32 v6, 3, v1\nv_lshlrev_b32 v6, 3, v6\nv_add_u32 v4, v4, v6\nv_add_u32 v4, s33, v4")
    for mb in range(4): E(f"v_xor_b32 v7, {mb}, v5\nv_lshlrev_b32 v7, 5, v7\nv_add_u32 v{20+mb}, v4, v7")
    def reads(s, st):
        b = (s % NSL) * 4096
        u = []
        for mb in range(4):
            for t in range(2):
                u.append(f"ds_read_b64_tr_b16 v[{WF(st,mb)+2*t}:{WF(st,mb)+2*t+1}], v{20+mb} offset:{b + t*2048}")
        return u
    E(f"s_waitcnt vmcnt({need(0)})")
    stamp_code(E, 1, stamps)
    for u in reads(0, 0): E(u)
    for s in range(14):
        st = s & 1
        fl, plan = [], []
        if s + 1 < 14:
            E(f"s_waitcnt vmcnt({need(s+1)}) lgkmcnt(0)")
            rd = reads(s + 1, st ^ 1); fl += rd; plan += list(range(8))
            if s + DEP < 14:
                d = loads(s + DEP); fl += d; plan += [8, 9, 10, 11, 12, 13, 14, 15]
        else:
            E("s_waitcnt lgkmcnt(0)")
        mf = []
        for mb in range(4):
            for qt in range(4):
                d = f"a[{AC(mb,qt)}:{AC(mb,qt)+3}]"
                mf.append(f"v_mfma_f32_16x16x32_bf16 {d}, v[{WF(st,mb)}:{WF(st,mb)+3}], v[{BF(s,qt)}:{BF(s,qt)+3}], {'0' if s == 0 else d}")
        for l in interleave(mf, fl, plan=plan): E(l)
    stamp_code(E, 2, stamps)
    E("s_nop 7\ns_barrier")
    E(f"s_lshl_b32 s30, s{sWave}, 14\nv_add_u32 v4, s30, v3")
    for t in range(16): E(f"ds_write_b128 v4, a[{4*t}:{4*t+3}] offset:{t*1024}")
    E(f"s_add_u32 s{sH}, s28, {WS_H}\ns_addc_u32 s{sH+1}, s29, 0\ns_mov_b32 s{sH+2}, {2048*896}\ns_mov_b32 s{sH+3}, 0x20000")
    E(f"s_lshl_b32 s30, s{sQB}, 2\ns_add_u32 s30, s30, s{sWave}\ns_mul_i32 s30, s30, 14336\ns_lshl_b32 s31, s{sMB}, 11\ns_add_u32 s30, s30, s31")
    E(f"buffer_load_dwordx4 v[24:27], v3, s[{sH}:{sH+3}], s30 offen")
    E(f"buffer_load_dwordx4 v[28:31], v3, s[{sH}:{sH+3}], s30 offen offset:1024")
    E("s_waitcnt lgkmcnt(0)\ns_barrier")
    E(f"s_lshl_b32 s30, s{sWave}, 10\nv_add_u32 v4, s30, v3")
    for mb in range(4):
        for w in range(4):
            E(f"ds_read_b128 v[{64+mb*16+w*4}:{67+mb*16+w*4}], v4 offset:{w*16384 + mb*4096}")
    E("s_waitcnt vmcnt(0) lgkmcnt(0)")
    for mb in range(4):
        b = 64 + mb * 16
        for r in range(4):
            E(f"v_add_f32 v{b+r}, v{b+r}, v{b+4+r}\nv_add_f32 v{b+8+r}, v{b+8+r}, v{b+12+r}\nv_add_f32 v{b+r}, v{b+r}, v{b+8+r}")
        hsrc = 24 + (mb >> 1) * 4 + (mb & 1) * 2
        for j in range(2):
            E(f"v_lshlrev_b32 v10, 16, v{hsrc+j}\nv_and_b32 v11, 0xffff0000, v{hsrc+j}")
            E(f"v_add_f32 v{b+2*j}, v{b+2*j}, v10\nv_add_f32 v{b+2*j+1}, v{b+2*j+1}, v11")
    E(f"s_mov_b32 s{sO}, s6\ns_mov_b32 s{sO+1}, s7\ns_mov_b32 s{sO+2}, {2048*896}\ns_mov_b32 s{sO+3}, 0x20000")
    E(f"s_lshl_b32 s30, s{sQB}, 6\ns_lshl_b32 s31, s{sWave}, 4\ns_add_u32 s30, s30, s31")
    E("v_and_b32 v4, 15, v1\nv_add_u32 v4, s30, v4\nv_mul_u32_u24 v4, 896, v4")
    E("v_bfe_u32 v5, v1, 4, 1\nv_lshlrev_b32 v5, 5, v5\nv_add_u32 v4, v4, v5")
    E("v_bfe_u32 v5, v1, 5, 1\nv_lshlrev_b32 v5, 4, v5\nv_add_u32 v4, v4, v5")
    E(f"s_lshl_b32 s31, s{sMB}, 7")
    for k in range(2):
        A = 64 + (2*k) * 16; B = 64 + (2*k+1) * 16; t = 32 + 4 * k
        E(f"v_cvt_pk_bf16_f32 v{t}, v{A}, v{A+1}\nv_cvt_pk_bf16_f32 v{t+1}, v{A+2}, v{A+3}")
        E(f"v_cvt_pk_bf16_f32 v{t+2}, v{B}, v{B+1}\nv_cvt_pk_bf16_f32 v{t+3}, v{B+2}, v{B+3}")
        E("s_nop 1")
        E(f"v_permlane16_swap_b32 v{t}, v{t+2}\nv_permlane16_swap_b32 v{t+1}, v{t+3}")
        E("s_nop 1")
        E(f"buffer_store_dwordx4 v[{t}:{t+3}], v4, s[{sO}:{sO+3}], s31 offen offset:{64*k}")
    if stamps:
        E("s_waitcnt vmcnt(0)"); stamp_code(E, 3, True); stamp_dump(E, 4, name, 28); E("s_endpgm")
    E(f"{name}_end:")
    E("s_endpgm")
    return E.text()
```

```python
class Emit:
    def __init__(self):
        self.lines = []
    def __call__(self, s):
        for l in s.split("\n"):
            l = l.strip()
            if l: self.lines.append(l)
    def text(self):
        return "\n".join(("" if l.endswith(":") else "  ") + l for l in self.lines) + "\n"

def vr(base, n=1):
    return f"v{base}" if n == 1 else f"v[{base}:{base+n-1}]"
def ar(base, n=1):
    return f"a{base}" if n == 1 else f"a[{base}:{base+n-1}]"
def sr(base, n=1):
    return f"s{base}" if n == 1 else f"s[{base}:{base+n-1}]"

def interleave(mfmas, fillers, start=0, per_gap=None, plan=None):
    out = []
    if plan is None:
        n = len(mfmas)
        plan = [min(n - 1, start + k) for k in range(len(fillers))]
    by = {}
    for f, g in zip(fillers, plan):
        by.setdefault(g, []).append(f)
    for g in sorted(by):
        assert -1 <= g < len(mfmas), (g, len(mfmas))
    for f in by.get(-1, []): out.append(f)
    for i, m in enumerate(mfmas):
        out.append(m)
        for f in by.get(i, []): out.append(f)
    return out

def kernel_desc(name, vgpr, acc, sgpr=102):
    return f""".section .rodata,"a"
.p2align 6
.amdhsa_kernel {name}
  .amdhsa_next_free_vgpr {vgpr}
  .amdhsa_next_free_sgpr {sgpr}
  .amdhsa_accum_offset {acc}
  .amdhsa_group_segment_fixed_size 0
  .amdhsa_kernarg_size 104
  .amdhsa_user_sgpr_count 2
  .amdhsa_user_sgpr_kernarg_segment_ptr 1
  .amdhsa_system_sgpr_workgroup_id_x 1
  .amdhsa_float_denorm_mode_32 3
.end_amdhsa_kernel
.text
"""
def kernel_head(name):
    return f""".globl {name}
.p2align 8
.type {name},@function
{name}:
"""

class Sched:
    def __init__(self, n, budget=8):
        self.n = n; self.g = [[] for _ in range(n)]; self.c = [0] * n; self.b = budget
    def put(self, gap, cost, text):
        self.g[gap].append(text); self.c[gap] += cost
    def put_free(self, items, start=0, end=None, stride=1, alone=False):
        end = self.n if end is None else end
        cur = start; left = []
        for k, (c, t) in enumerate(items):
            g = cur
            while g < end:
                if c == 0: break
                if alone:
                    if self.c[g] == 0: break
                elif self.c[g] + c <= self.b: break
                g += 1
            if g >= end:
                left = items[k:]; break
            self.put(g, c, t)
            cur = g + (stride if c else 0)
        return left
    def emit(self, E, mf, before=None):
        for i, m in enumerate(mf):
            if before and i in before:
                for t in before[i]: E(t)
            E(m)
            for t in self.g[i]: E(t)

def code_prefetch(E, target, nbytes, uid, sp, st, v0, nwaves=4):
    E(f"s_getpc_b64 s[{sp}:{sp+1}]\ncpf_{uid}:")
    E(f"s_mov_b32 s{st}, {target}-cpf_{uid}")
    E(f"s_ashr_i32 s{st+1}, s{st}, 31")
    E(f"s_add_u32 s{sp}, s{sp}, s{st}\ns_addc_u32 s{sp+1}, s{sp+1}, s{st+1}")
    E(f"v_lshlrev_b32 v{v0}, 7, v0")
    per = nwaves * 64 * 128
    if nbytes == "TL": nbytes = 0x6000
    n = (nbytes + per - 1) // per
    for k in range(n):
        if k: E(f"v_add_u32 v{v0}, {per}, v{v0}")
        E(f"v_min_u32 v{v0+1}, {nbytes - 4}, v{v0}")
        E(f"global_load_dword v{v0+1}, v{v0+1}, s[{sp}:{sp+1}]")
    return n

def code_prefetch_shared(E, target, nbytes, uid, sp, st, v0, swave):
    sk = f"cps_{uid}_skip"
    E(f"s_cmp_lg_u32 s{swave}, 0\ns_cbranch_scc1 {sk}")
    E(f"s_getpc_b64 s[{sp}:{sp+1}]\ncpf_{uid}:")
    E(f"s_mov_b32 s{st}, {target}-cpf_{uid}")
    E(f"s_ashr_i32 s{st+1}, s{st}, 31")
    E(f"s_add_u32 s{sp}, s{sp}, s{st}\ns_addc_u32 s{sp+1}, s{sp+1}, s{st+1}")
    E(f"s_lshr_b32 s{st}, s2, 3\ns_lshl_b32 s{st}, s{st}, 12")
    E(f"v_lshlrev_b32 v{v0}, 6, v0\nv_add_u32 v{v0}, s{st}, v{v0}\nv_min_u32 v{v0}, {nbytes - 4}, v{v0}")
    E(f"global_load_dword v{v0+1}, v{v0}, s[{sp}:{sp+1}]")
    E(f"{sk}:")
```

```python
import sys
from asmlib import *
import k0, k1, k2, t1, t2, t3
HDR = '.amdgcn_target "amdgcn-amd-amdhsa--gfx950"\n.text\n'
ABBR = [("v_mfma_f32_16x16x32_bf16", "MF"), ("ds_read_b64_tr_b16", "DT"), ("ds_read_b128", "DR"), ("buffer_load_dwordx4", "BL"),
        ("buffer_store_dwordx4", "BS"), ("v_accvgpr_read_b32", "AR"), ("v_accvgpr_write_b32", "AW"), ("v_cvt_pk_bf16_f32", "CV"),
        ("v_exp_f32", "EX"), ("v_add_f32", "FA"), ("v_mul_f32", "FM"), ("s_waitcnt", "WT"), ("v_cndmask_b32", "CM"), ("s_add_u32", "SA"), ("v_sub_f32", "FS")]
def compact(t):
    lines = t.split("\n")
    out = []; started = False
    for l in lines:
        st = l.strip()
        if st.startswith(".amdgcn_target") and not started:
            out.append(st); started = True
            for full, ab in ABBR:
                out.append(f".macro {ab} a:vararg\n{full} \\a\n.endm")
            continue
        if not started or st.startswith("."):
            out.append(l); continue
        p = st.split(None, 1)
        if len(p) == 2:
            for full, ab in ABBR:
                if p[0] == full: st = ab + " " + p[1].replace(", ", ","); break
            else: st = p[0] + " " + p[1].replace(", ", ",")
        out.append(st)
    return "\n".join(out)
def make(kernels, path):
    t = ""
    for (name, grid, block, lds, body, vgpr, acc) in kernels:
        t += f"; @launch kernel={name} grid=({grid},1,1) block=({block},1,1) lds={lds}\n"
    t += HDR
    seen = set()
    for (name, grid, block, lds, body, vgpr, acc) in kernels:
        if name in seen: continue
        seen.add(name)
        t += kernel_head(name) + body + kernel_desc(name, vgpr, acc)
    open(path, "w").write(compact(t))
K0 = lambda: ("k0_kernel", 256, 256, 0, k0.gen_k0(), 32, 32)
K1 = lambda **kw: ("k1_kernel", 256, 256, 163840, k1.gen_k1(**kw), 512, 256)
K2 = lambda **kw: ("k2_kernel", 256, 256, 163840, k2.gen_k2(**kw), 512, 256)
T1 = lambda **kw: ("t1_kernel", 256, 512, 1024, t1.gen_t1(**kw), 128, 128)
T2 = lambda **kw: ("t2_kernel", 224, 256, 147456, t2.gen_t2(**kw), 384, 256)
T3 = lambda **kw: ("t3_kernel", 224, 256, 131072, t3.gen_t3(**kw), 320, 256)
NX = {"k1": ("k2_kernel", 0xd600)}
def pipeline(path, exp="", stamps=False, cpf=True):
    ks = []
    for i, (f, key) in enumerate([(K1, "k1"), (K2, None)]):
        k1.STAMP_OFF[0] = i * 65536
        kw = dict(stamps=stamps, exp=exp)
        if key and cpf: kw["nxt"] = NX[key]
        ks.append(f(**kw))
    k1.STAMP_OFF[0] = 0
    make(ks, path)
if __name__ == "__main__":
    pipeline("full.s", "wt_pf18")
    pipeline("st_all.s", "wt_pf18", stamps=True)
    pipeline("full_pf18.s", "wt_pf18")
```

```python
from asmlib import *
from ws import *
import k0

def stamp_code(E, i, on):
    if on is True: E(f"s_memtime s[{76+4*i}:{77+4*i}]\ns_memrealtime s[{78+4*i}:{79+4*i}]")

STAMP_OFF = [0]
SPIN_MAX = 0x40000
def stamp_dump(E, n, lab, sws=6):
    E("s_waitcnt vmcnt(0) lgkmcnt(0)")
    E(f"s_mov_b32 s60, s{sws}\ns_mov_b32 s61, s{sws+1}\ns_mov_b32 s62, 0x10000000\ns_mov_b32 s63, 0x20000")
    E(f"s_lshl_b32 s64, s2, 6\ns_add_u32 s64, s64, {WS_DBG + STAMP_OFF[0]}")
    E("v_cmp_eq_u32 vcc, 0, v0\ns_and_saveexec_b64 s[66:67], vcc\ns_cbranch_execz " + f"{lab}_stsk")
    for i in range(n):
        E(f"v_mov_b32 v4, s{76+4*i}\nv_mov_b32 v5, s{78+4*i}\nv_mov_b32 v6, {8*i}")
        E("buffer_store_dwordx2 v[4:5], v6, s[60:63], s64 offen")
        E("s_nop 1")
    E(f"{lab}_stsk:\ns_mov_b64 exec, s[66:67]")

def gen_k1(name="k1_kernel", stamps=False, exp="", nxt=None):
    E = Emit()
    XSLOT = 32768; WBASE = 98304; WSLOT = 16384
    XF = lambda st, i: 64 + st * 32 + i * 4
    WF = lambda st, j: 128 + st * 32 + j * 4
    XA = lambda t, seg: 10 + t * 2 + seg
    WA = lambda j: 14 + j
    XD = lambda p: 22 + p
    WD = lambda p: 26 + p
    XQ = lambda p: 30 + p
    WA2 = lambda j: 40 + j
    sX, sW, sO, sXq, sWq, sOq = 8, 12, 16, 36, 40, 44
    sWave, sXk, sWk, sM0X, sM0W, sSel, sH, sMB = 20, 21, 22, 23, 24, 26, 27, 28
    sXqk, sWqk, sHq, sRB = 48, 49, 50, 51
    NKV, NQ = 32, 14
    SC = ' sc1' if 'wt' in exp else ''
    GLN = 8 if 'g0' not in exp else 0
    PL = 8
    if 'bst' in exp: stamps = 'dumponly'
    NG = NKV + NQ
    if "noq" in exp: NG = NKV
    E("s_cmp_ge_u32 s2, 256")
    E(f"s_cbranch_scc1 {name}_end")
    stamp_code(E, 0, stamps)
    E("s_load_dwordx4 s[4:7], s[0:1], 8")
    E("s_load_dwordx4 s[32:35], s[0:1], 24")
    E("s_load_dwordx2 s[52:53], s[0:1], 96")
    E("s_load_dwordx2 s[54:55], s[0:1], 0")
    E("s_load_dwordx2 s[56:57], s[0:1], 88")
    E("s_load_dwordx2 s[58:59], s[0:1], 40")
    E("s_and_b32 s29, s2, 7")
    E("s_lshr_b32 s30, s2, 3")
    E(f"s_lshr_b32 s{sMB}, s30, 2")
    E("s_and_b32 s31, s30, 3")
    E("s_lshl_b32 s25, s29, 2")
    E("s_add_u32 s25, s25, s31")
    E(f"s_lshr_b32 s{sSel}, s25, 4")
    E(f"s_and_b32 s{sH}, s25, 15")
    NCP = 0
    E("s_and_b32 s31, s30, 1")
    E("s_lshl_b32 s29, s29, 1")
    E(f"s_add_u32 s{sHq}, s29, s31")
    E(f"s_lshr_b32 s{sRB}, s2, 4")
    LB = 192
    k0.ln_addr(E, LB)
    E("v_and_b32 v1, 63, v0")
    E("v_lshrrev_b32 v2, 6, v0")
    E("s_nop 0")
    E(f"v_readfirstlane_b32 s{sWave}, v2")
    E("v_lshrrev_b32 v3, 3, v1")
    E("v_lshlrev_b32 v4, 5, v2")
    E("v_add_u32 v3, v3, v4")
    E("v_and_b32 v4, 7, v1")
    E("v_lshrrev_b32 v5, 4, v1")
    E("v_xor_b32 v4, v4, v5")
    E("v_xor_b32 v5, 4, v4")
    E("v_lshlrev_b32 v4, 4, v4")
    E("v_lshlrev_b32 v5, 4, v5")
    E("v_lshlrev_b32 v6, 11, v3")
    E("v_mul_u32_u24 v7, 896, v3")
    for p in range(4):
        c = "v4" if p % 2 == 0 else "v5"
        E(f"v_add_u32 v8, v6, {c}")
        E(f"v_add_u32 v{XD(p)}, {p*(8*2048-1024)}, v8")
        E(f"v_add_u32 v8, v7, {c}")
        E(f"v_add_u32 v{XQ(p)}, {p*(8*896-1024)}, v8")
    E("v_lshrrev_b32 v3, 5, v1")
    E("v_lshlrev_b32 v4, 3, v2")
    E("v_add_u32 v4, v4, v3")
    E("v_lshlrev_b32 v4, 13, v4")
    E("v_and_b32 v5, 31, v1")
    E("v_and_b32 v7, 1, v2")
    E("v_lshlrev_b32 v7, 3, v7")
    E("v_xor_b32 v5, v5, v7")
    for p in range(4):
        E(f"v_add_u32 v6, {2*p}, v3")
        E("v_and_b32 v6, 3, v6")
        E("v_lshlrev_b32 v6, 1, v6")
        E("v_xor_b32 v6, v6, v5")
        E("v_lshlrev_b32 v6, 4, v6")
        E("v_add_u32 v6, v6, v4")
        E(f"v_add_u32 v{WD(p)}, {p*(2*8192-1024)}, v6")
    E("s_waitcnt lgkmcnt(0)")
    if "pst" in exp: stamp_code(E, 1, True)
    def srd(s, lo, hi, off_s, size):
        if off_s is None:
            E(f"s_mov_b32 s{s}, s{lo}\ns_mov_b32 s{s+1}, s{hi}")
        else:
            E(f"s_add_u32 s{s}, s{lo}, {off_s}\ns_addc_u32 s{s+1}, s{hi}, 0")
        E(f"s_mov_b32 s{s+2}, {size}\ns_mov_b32 s{s+3}, 0x20000")
    sLI, sLO, sFL, sPF = 60, 64, 68, 72
    srd(sLI, 54, 55, None, 2048*896)
    k0.ln_load(E, LB, sLI)
    E(f"s_lshl_b32 s29, s{sMB}, 19")
    srd(sX, 4, 5, "s29", 0x80000)
    E(f"s_cmp_eq_u32 s{sSel}, 0")
    E("s_cselect_b32 s30, s32, s34")
    E("s_cselect_b32 s31, s33, s35")
    E(f"s_lshl_b32 s29, s{sH}, 9")
    srd(sW, 30, 31, "s29", 0x800000)
    E(f"s_sub_u32 s{sW+2}, s{sW+2}, s29")
    E(f"s_lshl_b32 s{sM0X}, s{sWave}, 12")
    E(f"s_add_u32 s{sM0W}, s{sM0X}, {WBASE}")
    E(f"s_mov_b32 s{sXk}, 0")
    E(f"s_mov_b32 s{sWk}, 0")

    vm = [("C", 0)] * NCP + [("LN", 0)] * 2
    def dma_x(grp, hf):
        slot = grp % 3
        u = []
        if grp < 16:
            so = hf * 128 * 2048 + grp * 128
            reg, srd_, lds = XD, sX, slot * XSLOT + hf * 16384
        else:
            so = (grp - 16) * 128
            reg, srd_, lds = XQ, sXq, slot * XSLOT
        u.append(f"s_add_u32 m0, s{sM0X}, {lds}\ns_mov_b32 s{sXk}, {so}\nbuffer_load_dwordx4 v{reg(0)}, s[{srd_}:{srd_+3}], s{sXk} offen lds")
        for p in range(1, 4):
            u.append(f"buffer_load_dwordx4 v{reg(p)}, s[{srd_}:{srd_+3}], s{sXk} offen offset:{p*1024} lds")
        return [(t, ("X", grp)) for t in u]
    def wslot(G):
        if G < NKV: return WBASE + (G % 4) * WSLOT
        L = [WBASE, WBASE + WSLOT, WBASE + 2*WSLOT, WBASE + 3*WSLOT, 49152, 81920]
        return L[(G - NKV) % 6]
    def dma_w(G):
        if G < NKV: so, srd_ = G * 32 * 8192, sW
        else: so, srd_ = (G - NKV) * 32 * 8192, sWq
        u = [f"s_add_u32 m0, s{sM0X}, {wslot(G)}\ns_mov_b32 s{sWk}, {so}\nbuffer_load_dwordx4 v{WD(0)}, s[{srd_}:{srd_+3}], s{sWk} offen lds"]
        for p in range(1, 4):
            u.append(f"buffer_load_dwordx4 v{WD(p)}, s[{srd_}:{srd_+3}], s{sWk} offen offset:{p*1024} lds")
        return [(t, ("W", G)) for t in u]
    def need(*tags):
        idx = max(max(i for i, t in enumerate(vm) if t == tag) for tag in tags)
        return len(vm) - 1 - idx
    def xgrp(G): return G >> 1 if G < NKV else 16 + ((G - NKV) >> 1)
    def reads(G, st):
        grp = xgrp(G); t = G & 1
        slot = grp % 3
        seg = 1 if slot == 2 else 0
        xb = slot * XSLOT - seg * 65536
        nx = 8 if G < NKV else 4
        xr = [f"ds_read_b128 v[{XF(st,i)}:{XF(st,i)+3}], v{XA(t,seg)} offset:{xb + i*2048}" for i in range(nx)]
        ws_ = wslot(G)
        if ws_ >= WBASE: wb, wa = ws_ - WBASE, WA
        else: wb, wa = ws_ - (WBASE - 65536), WA2
        wr = []
        for j in range(8):
            for tt in range(2):
                wr.append(f"ds_read_b64_tr_b16 v[{WF(st,j)+2*tt}:{WF(st,j)+2*tt+1}], v{wa(j)} offset:{wb + tt*2048}")
        return [xr[0]] + wr + xr[1:]
    def mfmas(G, st, sel):
        m = []
        first = G == 0 or G == NKV
        nx = 8 if G < NKV else 4
        for i in range(nx):
            for j in range(8):
                b = (i*8+j)*4
                acc = f"a[{b}:{b+3}]"
                x = f"v[{XF(st,i)}:{XF(st,i)+3}]"; w = f"v[{WF(st,j)}:{WF(st,j)+3}]"
                c = "0" if first else acc
                if sel == 0 or G >= NKV: m.append(f"v_mfma_f32_16x16x32_bf16 {acc}, {w}, {x}, {c}")
                else:                    m.append(f"v_mfma_f32_16x16x32_bf16 {acc}, {x}, {w}, {c}")
        return m

    RAMP = "noramp" not in exp
    pro = dma_x(0,0) + dma_x(0,1) + dma_w(0) + dma_w(1) + dma_x(1,0) + dma_x(1,1) + dma_w(2)
    if not RAMP: pro += dma_w(3) + dma_x(2,0) + dma_x(2,1)
    for u, tg in pro:
        E(u); vm.append(tg)
    backlog0 = [(2, "w", 3), (3, "x", (2, 0)), (3, "x", (2, 1))] if RAMP else []
    if "pst" in exp: stamp_code(E, 2, True)
    if "nocpf" not in exp:
        E(f"s_cmp_eq_u32 s{sSel}, 0\ns_cbranch_scc0 {name}_cpv")
        code_prefetch_shared(E, name, 0xa800, name + "_a", 72, 74, 8, sWave)
        E(f"s_branch {name}_cpd\n{name}_cpv:")
        code_prefetch_shared(E, name + "_v", 0xa800, name + "_b", 72, 74, 8, sWave)
        E(f"{name}_cpd:")
    E(f"s_lshl_b32 s29, s{sSel}, 24")
    E(f"s_lshl_b32 s30, s{sH}, 20")
    E("s_add_u32 s29, s29, s30")
    srd(sO, 52, 53, "s29", 0x100000)
    E(f"s_mul_i32 s29, s{sRB}, {128*896}")
    E(f"s_add_u32 s29, s29, {WS_XN}")
    srd(sXq, 52, 53, "s29", 128*896)
    E(f"s_lshl_b32 s29, s{sHq}, 9")
    srd(sWq, 6, 7, "s29", 448*8192)
    E(f"s_sub_u32 s{sWq+2}, s{sWq+2}, s29")
    E(f"s_lshl_b32 s29, s{sHq}, 20")
    E(f"s_add_u32 s29, s29, {WS_Q}")
    srd(sOq, 52, 53, "s29", 0x100000)
    E("v_and_b32 v3, 15, v1")
    E("v_lshrrev_b32 v4, 4, v1")
    E("v_bfe_u32 v5, v1, 1, 3")
    E("v_xor_b32 v4, v4, v5")
    E("v_lshrrev_b32 v6, 7, v0")
    E("v_lshlrev_b32 v6, 7, v6")
    E("v_add_u32 v3, v3, v6")
    E("v_lshlrev_b32 v3, 7, v3")
    for t in range(2):
        E(f"v_xor_b32 v5, {4*t}, v4")
        E("v_lshlrev_b32 v5, 4, v5")
        E(f"v_add_u32 v{XA(t,0)}, v3, v5")
        E(f"v_add_u32 v{XA(t,1)}, 0x10000, v{XA(t,0)}")
    E("v_bfe_u32 v3, v1, 2, 2")
    E("v_lshrrev_b32 v4, 4, v1")
    E("v_lshlrev_b32 v5, 3, v4")
    E("v_add_u32 v5, v5, v3")
    E("v_lshlrev_b32 v5, 9, v5")
    E("v_and_b32 v4, 1, v4")
    E("v_lshlrev_b32 v4, 2, v4")
    E("v_or_b32 v3, v3, v4")
    E("v_and_b32 v6, 3, v1")
    E("v_lshlrev_b32 v6, 3, v6")
    E("v_add_u32 v5, v5, v6")
    E("v_bfe_u32 v6, v0, 6, 1")
    E("v_lshlrev_b32 v6, 8, v6")
    E("v_add_u32 v5, v5, v6")
    E(f"v_add_u32 v5, {WBASE}, v5")
    for j in range(8):
        E(f"v_xor_b32 v6, {j}, v3")
        E("v_lshlrev_b32 v6, 5, v6")
        E(f"v_add_u32 v{WA(j)}, v5, v6")
        E(f"v_subrev_u32 v{WA2(j)}, 0x10000, v{WA(j)}")
    srd(sLO, 52, 53, WS_XN, 2048*896)
    srd(sFL, 56, 57, None, 256)
    PFW, PFX = 34, 35
    PX, PW = 48, 49
    E("s_lshr_b32 s29, s2, 3\ns_and_b32 s29, s29, 3\ns_lshl_b32 s29, s29, 6")
    E(f"s_lshl_b32 s30, s{sWave}, 4\ns_add_u32 s29, s29, s30\nv_and_b32 v3, 15, v1\nv_add_u32 v3, s29, v3\nv_lshlrev_b32 v{PX}, 11, v3")
    E(f"s_lshl_b32 s29, s{sMB}, 3\ns_lshl_b32 s30, s{sWave}, 1\ns_add_u32 s29, s29, s30\nv_bfe_u32 v3, v1, 2, 1\nv_add_u32 v3, s29, v3\nv_lshlrev_b32 v3, 13, v3")
    E(f"v_and_b32 v4, 3, v1\nv_lshlrev_b32 v4, 7, v4\nv_add_u32 v{PW}, v3, v4")
    E("s_lshr_b32 s29, s2, 3")
    E(f"s_mul_i32 s30, s{sWave}, 28\nv_min_u32 v3, 27, v1\nv_add_u32 v3, s30, v3")
    E("v_lshrrev_b32 v4, 3, v3\ns_mul_i32 s30, s29, 14\nv_add_u32 v4, s30, v4\nv_lshlrev_b32 v4, 13, v4")
    E("v_and_b32 v3, 7, v3\nv_lshlrev_b32 v3, 7, v3\nv_add_u32 v4, v4, v3")
    E(f"s_and_b32 s30, s{sHq}, 1\ns_lshl_b32 s30, s30, 9")
    E(f"v_subrev_u32 v4, s30, v4\nv_max_i32 v{PFW}, 0, v4")
    E(f"s_mul_i32 s30, s29, 448\ns_mul_i32 s31, s{sWave}, 112\ns_add_u32 s30, s30, s31")
    E(f"v_add_u32 v3, s30, v1\nv_lshlrev_b32 v{PFX}, 7, v3")
    E(f"v_min_u32 v4, 47, v1\nv_add_u32 v4, 64, v4\nv_add_u32 v4, s30, v4\nv_lshlrev_b32 v{PFX+1}, 7, v4")
    class Cap:
        def __init__(self): self.l = []
        def __call__(self, t):
            for x in t.split("\n"):
                if x.strip(): self.l.append(x.strip())
    cap = Cap(); k0.ln_math_store(cap, LB, sLO, "sc1")
    ln_stream = []
    for t in cap.l:
        if t.startswith("buffer_store"): ln_stream.append((12, t, ("LS", 0)))
        elif t.startswith("s_nop"): ln_stream.append((0, t, None))
        elif t.startswith("v_rsq"): ln_stream.append((8, t, None))
        else: ln_stream.append((4, t, None))
    if "tlb" in exp:
        E(f"s_lshl_b32 s29, s{sMB}, 17\ns_lshl_b32 s30, s{sWave}, 15\ns_add_u32 s29, s29, s30\nv_mov_b32 v8, s29")
        E(f"buffer_load_dword v9, v8, s[{sO}:{sO+3}], 0 offen")
        E(f"s_lshl_b32 s29, s{sRB}, 16\ns_lshl_b32 s30, s{sWave}, 14\ns_add_u32 s29, s29, s30\nv_mov_b32 v8, s29")
        E(f"buffer_load_dword v9, v8, s[{sOq}:{sOq+3}], 0 offen")
        E(f"s_mul_i32 s30, s{sWave}, {112*8192}\nv_mov_b32 v8, s30")
        E(f"buffer_load_dword v9, v8, s[{sWq}:{sWq+3}], 0 offen")
        E(f"s_mul_i32 s30, s{sWave}, {32*896}\nv_mov_b32 v8, s30")
        E(f"buffer_load_dword v9, v8, s[{sXq}:{sXq+3}], 0 offen")
        vm.extend([("T", 0)] * 4)
    E(f"s_waitcnt vmcnt({need(('X',0),('W',0))})")
    if "pst" in exp: stamp_code(E, 3, True)
    E("s_barrier")
    if "pst" in exp: stamps = "dumponly2"; stamp_code(E, 4, True)
    stamp_code(E, 1, stamps)
    for u in reads(0, 0): E(u)
    E(f"s_cmp_eq_u32 s{sSel}, 0")
    E(f"s_cbranch_scc0 {name}_v")
    E(f"{name}_k0:")
    vm0 = list(vm)

    def kv_epi_setup(sel):
        E("v_lshlrev_b32 v3, 4, v1")
        E("v_lshrrev_b32 v4, 7, v0")
        E("v_lshlrev_b32 v4, 16, v4")
        E("v_add_u32 v3, v3, v4")
        E("v_bfe_u32 v4, v0, 6, 1")
        E(f"v_lshlrev_b32 v4, {12 if sel == 0 else 13}, v4")
        E("v_add_u32 v3, v3, v4")
        E(f"s_lshl_b32 s29, s{sMB}, 17")
    def kv_units(sel):
        units = []; n = 0
        for a in range(8 if sel == 0 else 4):
            for b in range(4 if sel == 0 else 8):
                t = 192 + (n % 4) * 12; n += 1
                if sel == 0:
                    src = [(a*8 + 2*b)*4 + r for r in range(8)]; off = a*8192 + b*1024
                else:
                    src = [(2*a*8 + b)*4 + r for r in range(4)] + [((2*a+1)*8 + b)*4 + r for r in range(4)]; off = a*16384 + b*1024
                u = [(4, f"v_accvgpr_read_b32 v{t+r}, a{src[r]}", None) for r in range(8)]
                u += [(4, f"v_cvt_pk_bf16_f32 v{t+8+r}, v{t+2*r}, v{t+2*r+1}", None) for r in range(4)]
                u += [(12, f"s_add_u32 s30, s29, {off}\nbuffer_store_dwordx4 v[{t+8}:{t+11}], v3, s[{sO}:{sO+3}], s30 offen{SC}", ("S", 0))]
                units.append(u)
        assert all(int(x[1].split("a")[-1]) < 128 for u in units[:16] for x in u[:8])
        return units
    def q_epilogue():
        E("s_nop 7")
        E("v_lshlrev_b32 v3, 4, v1")
        E("v_lshrrev_b32 v4, 7, v0")
        E("v_lshlrev_b32 v4, 15, v4")
        E("v_add_u32 v3, v3, v4")
        E("v_bfe_u32 v4, v0, 6, 1")
        E("v_lshlrev_b32 v4, 12, v4")
        E("v_add_u32 v3, v3, v4")
        E(f"s_lshl_b32 s29, s{sRB}, 16")
        E("s_mov_b32 s31, 0x3db8aa3b")
        n = 0
        for a in range(4):
            for b in range(4):
                t = 192 + (n % 4) * 12; n += 1
                src = [(a*8 + 2*b)*4 + r for r in range(8)]; off = a*8192 + b*1024
                for r in range(8): E(f"v_accvgpr_read_b32 v{t+r}, a{src[r]}")
                for r in range(8): E(f"v_mul_f32 v{t+r}, s31, v{t+r}")
                for r in range(4): E(f"v_cvt_pk_bf16_f32 v{t+8+r}, v{t+2*r}, v{t+2*r+1}")
                E(f"s_add_u32 s30, s29, {off}")
                E(f"buffer_store_dwordx4 v[{t+8}:{t+11}], v3, s[{sOq}:{sOq+3}], s30 offen{SC}")

    for sel in range(2):
        lab = f"{name}_{'kv'[sel]}"
        if sel == 1: E(f"{lab}:")
        vm[:] = vm0
        pend = []
        backlog = list(backlog0)
        if 'noln' in exp: vm.append(('LS', 0))
        for G in range(NG):
            st = G & 1
            if G == GLN and 'noln' not in exp: pend = list(ln_stream)
            if G == NKV:
                stamp_code(E, 2, stamps)
                E("v_lshrrev_b32 v4, 7, v0\nv_lshlrev_b32 v4, 13, v4")
                for t in range(2):
                    for seg in range(2): E(f"v_sub_u32 v{XA(t,seg)}, v{XA(t,seg)}, v4")
                for u in reads(NKV, st): E(u)
                E("s_nop 4")
                kv_epi_setup(sel)
                un = kv_units(sel)
                for u in un[:16]:
                    for c, t, tg in u:
                        E(t)
                        if tg: vm.append(tg)
                pend = [x for u in un[16:] for x in u]
                stamp_code(E, 3, stamps)
            if "bst" in exp and G % 6 == 0 and G < 36: E(f"s_memtime s[{76+4*(G//6)}:{77+4*(G//6)}]\ns_memrealtime s[{78+4*(G//6)}:{79+4*(G//6)}]")
            last = G == NG - 1
            ngap = 64 if G < NKV else 32
            S = Sched(ngap)
            tags = {}
            def putv(g, c, t, tg):
                S.put(g, c, t); tags.setdefault(g, []).append(tg)
            if not last:
                E(f"s_waitcnt vmcnt({need(('X', xgrp(G+1)), ('W', G+1))}) lgkmcnt(0)")
                E("s_barrier")
                if G + 1 != NKV:
                    rd = reads(G + 1, st ^ 1)
                    step = 2 if ngap == 64 else 1
                    for k, t in enumerate(rd): S.put(step * k, 4, t)
                reg = []
                if G + 4 < NKV + (4 if NG > NKV else 0) and G < NKV: reg.append((G + 3, "w", G + 4))
                if NG > NKV and G == 28: reg.append((NKV + 3, "w", NKV + 4))
                if NG > NKV and G == 30: reg.append((NKV + 4, "w", NKV + 5))
                if G >= NKV and G + 6 < NG: reg.append((G + 5, "w", G + 6))
                if G < NKV:
                    if G % 2 == 1: grp, hf = (G - 1) // 2 + 3, 0
                    else: grp, hf = G // 2 + 2, 1
                    if G == 0: grp = None
                else:
                    it = G - NKV
                    grp, hf = (16 + (it - 1) // 2 + 3, 0) if it % 2 == 1 else (None, 0)
                if grp is not None:
                    maxg = 16 + 7 if NG > NKV else 16
                    if grp < 16 or (grp < maxg and hf == 0):
                        dl = 2 * grp - 1 if grp < 16 else NKV + 2 * (grp - 16) - 1
                        reg.append((dl, "x", (grp, hf)))
                backlog.extend(reg); backlog.sort(key=lambda x: x[0])
                ntake = 3 if (G < 6 or len(backlog) > 2) else len(backlog)
                take, backlog[:] = backlog[:ntake], backlog[ntake:]
                d = []
                for dl, kind, arg in take:
                    assert dl > G or dl == G, (G, dl, kind, arg)
                    assert dl >= G + 1 or True
                    d += dma_x(*arg) if kind == "x" else dma_w(arg)
                dp = [5, 11, 17, 23, 29, 35, 41, 47, 51, 55, 59, 63] if ngap == 64 else [20, 22, 24, 26, 21, 23, 25, 27]
                if ngap == 32 and len(d) <= 4: dp = [21, 24, 27, 30]
                elif ngap == 32: dp = [20, 21, 22, 24, 25, 27, 29, 31]
                for (t, tg), g in zip(d, dp): putv(g, 12, t, tg)
                if "l2pf" in exp and G < NKV:
                    if G % 2 == 1 and (G + PL + 1) // 2 < 16:
                        putv(57, 12, f"s_mov_b32 s31, {((G + PL + 1) // 2) * 128}\nbuffer_load_dword v7, v{PX}, s[{sX}:{sX+3}], s31 offen", ("P", 2))
                    if G % 2 == 0 and G + PL < NKV:
                        putv(57, 12, f"s_mov_b32 s31, {(G + PL) * 32 * 8192}\nbuffer_load_dword v7, v{PW}, s[{sW}:{sW+3}], s31 offen", ("P", 3))
                if G == GLN + 7 and 'nosig' not in exp:
                    assert need(('W', G+1)) <= len(vm) - 1 - max(i for i, t in enumerate(vm) if t == ('LS', 0)) - 0 and True
                    sk = f"{lab}_nosig"
                    S.put(51, 0, f"s_cmp_lg_u32 s{sWave}, 0\ns_cbranch_scc1 {sk}\ns_lshr_b32 s30, s2, 4\ns_lshl_b32 s30, s30, 2\nv_mov_b32 v4, 1\nv_mov_b32 v5, s30\ns_mov_b64 exec, 1\nbuffer_atomic_add v4, v5, s[{sFL}:{sFL+3}], 0 offen sc1\ns_mov_b64 exec, -1\n{sk}:")
                if G == 4:
                    zk = f"{lab}_nozero"
                    putz = f"s_cmp_lg_u32 s{sWave}, 0\ns_cbranch_scc1 {zk}\ns_add_u32 s60, s52, {WS_FLG}\ns_addc_u32 s61, s53, 0\ns_mov_b32 s62, {FLG_BYTES}\ns_mov_b32 s63, 0x20000\ns_lshl_b32 s30, s2, 7\nv_lshlrev_b32 v4, 2, v1\nv_mov_b32 v5, 0\ns_mov_b32 exec_hi, 0\nbuffer_store_dword v5, v4, s[60:63], s30 offen\ns_mov_b64 exec, -1\n{zk}:"
                    S.put(55, 0, putz)
                if NG > NKV and G == GLN + 10 and 'nopoll' not in exp:
                    putv(53, 12, f"s_lshl_b32 s30, s{sRB}, 2\nv_mov_b32 v5, s30\nbuffer_load_dword v6, v5, s[{sFL}:{sFL+3}], 0 offen sc1", ("F", 0))
                if NG > NKV and G == GLN + 14 and 'nopoll' not in exp:
                    ok, pl = f"{lab}_xnok", f"{lab}_xnpoll"
                    to = f"{lab}_xnto"
                    S.put(53, 8, f"v_readfirstlane_b32 s30, v6\ns_cmp_ge_u32 s30, 16\ns_cbranch_scc1 {ok}\ns_mov_b32 s31, 0\n{pl}:\ns_sleep 1\nbuffer_load_dword v6, v5, s[{sFL}:{sFL+3}], 0 offen sc1\ns_waitcnt vmcnt(0)\nv_readfirstlane_b32 s30, v6\ns_add_u32 s31, s31, 1\ns_cmp_ge_u32 s31, {SPIN_MAX}\ns_cbranch_scc1 {to}\ns_cmp_ge_u32 s30, 16\ns_cbranch_scc0 {pl}\ns_branch {ok}\n{to}:\nv_mov_b32 v6, 0xbad1\nv_mov_b32 v7, 128\nbuffer_store_dword v6, v7, s[{sFL}:{sFL+3}], 0 offen\n{ok}:")
                if NG > NKV and G == 18 and "nopf" not in exp:
                    putv(53, 12, f"buffer_load_dword v7, v{PFW}, s[{sWq}:{sWq+3}], 0 offen", ("P", 0))
                if NG > NKV and G in (19, 20) and "pfx" in exp:
                    putv(53, 12, f"buffer_load_dword v7, v{PFX}, s[{sLO}:{sLO+3}], 0 offen offset:{0 if G == 19 else 0}" if G == 19 else f"buffer_load_dword v7, v{PFX+1}, s[{sLO}:{sLO+3}], 0 offen", ("P", 1))
                if pend:
                    k = 0; cur = 0
                    while k < len(pend):
                        c, t, tg = pend[k]
                        g = cur
                        while g < ngap and c and not (S.c[g] == 0 if c == 12 else S.c[g] + c <= 8): g += 1
                        if g >= ngap: break
                        if tg: putv(g, c, t, tg)
                        else: S.put(g, c, t)
                        cur = g; k += 1
                        if G >= NKV and k >= 26 and pend[k-1][2]: break
                    pend = pend[k:]
            else:
                E("s_waitcnt lgkmcnt(0)")
            S.emit(E, mfmas(G, st, sel))
            for g in sorted(tags): vm.extend(tags[g])
        for c, t, tg in pend: E(t)
        if NG == NKV:
            stamp_code(E, 2, stamps)
            E("s_nop 7")
            kv_epi_setup(sel)
            for u in kv_units(sel):
                for c, t, tg in u: E(t)
            stamp_code(E, 3, stamps)
        else:
            stamp_code(E, 4, stamps)
            if nxt and "nocpf" not in exp: code_prefetch_shared(E, nxt[0], nxt[1], f"{lab}_n", 72, 74, 8, sWave)
            q_epilogue()
        if stamps:
            E("s_waitcnt vmcnt(0)")
            stamp_code(E, 5 if NG > NKV else 4, True)
            stamp_dump(E, 6 if NG > NKV else 5, lab, 52)
        E("s_endpgm")
    E(f"{name}_end:")
    E("s_endpgm")
    return E.text()
```

```python
from asmlib import *
from ws import *
from k1 import SPIN_MAX, STAMP_OFF
import tail

NS = 5
CH = 32768
THR = 0x44800000
NA = 18

def O(db, qt): return (db * 2 + qt) * 4
def Q(qt, ds): return 128 + (qt * 8 + ds) * 4
def F(f): return 192 + (f % 16) * 4
def S(par, kb, qt): return 64 + par * 32 + (kb * 2 + qt) * 4
def P(par, s, qt): return 128 + par * 16 + (s * 2 + qt) * 4
def NEGM(qt): return 160 + 4 * qt
TMP = 168
L_ = lambda qt: 184 + qt
LS = lambda qt: 186 + qt
M_ = lambda qt: 188 + qt
DM = lambda qt: 190 + qt
vRA, vRB, vLane16, vTab = 192, 193, 194, 196
vT0 = 200
vD = 224
vW = 232
vWA = 240
vPM = 246
vFL = 250
sDM = 8
sQ = 12
sPT = 16
sOP = 20
sWO = 24
sFL = 28
sWave, sH, sPair, sType = 32, 33, 34, 35
sC, sWr, sRdN, sOff, sN, sI, sT, sQB, sItem = 36, 37, 38, 39, 40, 41, 42, 43, 44
sTmp, sTmp2, sTmp3 = 45, 46, 47
sM0 = 48
sNKV, sSig, sHasP, sPI = 52, 53, 54, 62

def a4(b): return f"a[{b}:{b+3}]"
def v4(b): return f"v[{b}:{b+3}]"

def stamp_code(E, i, on):
    if on: E(f"s_memtime s[96:97]\ns_memrealtime s[98:99]\ns_waitcnt lgkmcnt(0)\nv_writelane_b32 v252, s96, {i}\nv_writelane_b32 v253, s98, {i}")
def stamp_dump(E, n, lab, sws):
    E("s_mov_b64 exec, -1\ns_waitcnt vmcnt(0) lgkmcnt(0)")
    E(f"s_mov_b32 s60, s{sws}\ns_mov_b32 s61, s{sws+1}\ns_mov_b32 s62, 0x10000000\ns_mov_b32 s63, 0x20000")
    E(f"s_lshl_b32 s56, s2, 7\ns_add_u32 s56, s56, {WS_DBG + STAMP_OFF[0]}")
    E(f"s_cmp_lg_u32 s{sWave}, 0\ns_cbranch_scc1 {lab}_stsk")
    E("v_and_b32 v4, 63, v0\nv_lshlrev_b32 v4, 3, v4\nv_mov_b32 v6, v252\nv_mov_b32 v7, v253\ns_mov_b64 exec, 0xffff")
    E("buffer_store_dwordx2 v[6:7], v4, s[60:63], s56 offen")
    E(f"{lab}_stsk:")

class K2:
    def __init__(self, name, stamps=False, exp="", nxt=None):
        self.nxt = nxt
        self.name = name; self.E = Emit(); self.stamps = stamps; self.exp = exp
        self.uid = 0; self.rare = []
    def ist(self, i):
        if "ist" in self.exp: stamp_code(self.E, i, True)
    def lab(self, s):
        self.uid += 1
        return f"{self.name}_{s}{self.uid}"

    def head_items(self, Sc, nxt, vmw=16, dma_gaps=None, sw=False, sg=False, m0gap=6):
        if isinstance(vmw, int): w = f"s_waitcnt vmcnt({vmw})"
        else: w = vmw
        Sc.put(1, 0, w + ("\ns_barrier" if "nobar" not in self.exp else ""))
        if sg:
            a, b = self.lab("sg"), self.lab("sgb")
            Sc.put(13, 0, f"s_cmp_eq_u32 s{sSig}, 1\ns_cbranch_scc1 {a}\n{b}:")
            self.rare.append(("signal", a, b))
        g0 = 2
        if sw:
            a, b = self.lab("sw"), self.lab("swb")
            Sc.put(2, 0, f"s_cmp_eq_u32 s{sC}, s{sNKV}\ns_cbranch_scc1 {a}\n{b}:")
            self.rare.append(("switch", a, b))
        Sc.put(3, 4, f"v_readlane_b32 s{sOff}, v{vTab}, s{sC}")
        Sc.put(4, 0, f"s_add_u32 s{sRdN}, s{sRdN}, {CH}\ns_cmp_eq_u32 s{sRdN}, {NS*CH}\ns_cselect_b32 s{sRdN}, 0, s{sRdN}")
        Sc.put(6, 0, f"s_add_u32 s{sC}, s{sC}, 1")
        Sc.put(m0gap, 0, f"s_add_u32 m0, s{sWr}, s{sM0}")
        g = 6
        for reg, base in nxt:
            while Sc.c[g] + 4 > 8: g += 1
            Sc.put(g, 4, f"v_add_u32 v{reg}, s{sRdN}, v{base}")
        dg = dma_gaps or [9, 15, 21, 27, 33, 39, 45, 51]
        for p in range(8):
            t = f"buffer_load_dwordx4 v{vD+p}, s[{sDM}:{sDM+3}], s{sOff} offen offset:{(p&3)*1024} lds"
            if "nodma" not in self.exp: Sc.put(dg[p], 12, t)
            if p == 3: Sc.put(dg[p] + 1, 0, f"s_add_u32 m0, m0, 4096")
            if p == 7: Sc.put(dg[p] + 1, 0, f"s_add_u32 s{sWr}, s{sWr}, {CH}\ns_cmp_eq_u32 s{sWr}, {NS*CH}\ns_cselect_b32 s{sWr}, 0, s{sWr}")

    def frag_read(self, f, cur, nxt):
        if f < 32: return f"ds_read_b128 {a4(F(f))}, v{cur} offset:{f*1024}"
        return f"ds_read_b128 {a4(F(f))}, v{nxt} offset:{(f-32)*1024}"

    def qk_mfmas(self, par, cinit):
        m = []
        for kb in range(4):
            for ds in range(8):
                f = kb * 8 + ds
                for qt in range(2):
                    d = v4(S(par, kb, qt))
                    c = (v4(NEGM(qt)) if cinit else "0") if ds == 0 else d
                    m.append(f"v_mfma_f32_16x16x32_bf16 {d}, {a4(F(f))}, {a4(Q(qt, ds))}, {c}")
        return m
    def pv_mfmas(self, par):
        m = []
        for s in range(2):
            for db in range(16):
                f = s * 16 + db
                for qt in range(2):
                    d = a4(O(db, qt))
                    m.append(f"v_mfma_f32_16x16x32_bf16 {d}, {a4(F(f))}, {v4(P(par, s, qt))}, {d}")
        return m

    def sm_stream(self, par, half):
        out = []
        for kb in (2 * half, 2 * half + 1):
            for qt in range(2):
                s0 = S(par, kb, qt); t = TMP + ((kb * 2 + qt) % 4) * 4
                p = P(par, kb >> 1, qt) + 2 * (kb & 1)
                for r in range(4): out.append((8, f"v_exp_f32 v{t+r}, v{s0+r}"))
                if kb == 0:
                    out.append((4, f"v_add_f32 v{LS(qt)}, v{t}, v{t+1}"))
                else:
                    out.append((4, f"v_add_f32 v{LS(qt)}, v{LS(qt)}, v{t}"))
                    out.append((4, f"v_add_f32 v{LS(qt)}, v{LS(qt)}, v{t+1}"))
                out.append((4, f"v_cvt_pk_bf16_f32 v{p}, v{t}, v{t+1}"))
                out.append((4, f"v_add_f32 v{LS(qt)}, v{LS(qt)}, v{t+2}"))
                out.append((4, f"v_cvt_pk_bf16_f32 v{p+1}, v{t+2}, v{t+3}"))
                out.append((4, f"v_add_f32 v{LS(qt)}, v{LS(qt)}, v{t+3}"))
        return out

    def emit_phase(self, mf, cur, sm=(), extra=(), tail=(), vmw=16, pre=(), sw=False, sg=False, first=False):
        E = self.E
        nxt = vRB if cur == vRA else vRA
        n = len(mf)
        Sc = Sched(n)
        for f in range(32):
            if "nords" in self.exp: continue
            Sc.put(2 * f, 4, self.frag_read(f + 8, cur, nxt))
        if first:
            g = 3
            for c, so in ((2, 74), (3, 75)):
                for p in range(8):
                    pre_ = f"s_add_u32 m0, s{sM0}, {c*CH}\ns_nop 0\n" if p == 0 else ("s_add_u32 m0, m0, 4096\ns_nop 0\n" if p == 4 else "")
                    Sc.put(g, 12, pre_ + f"buffer_load_dwordx4 v{vD+p}, s[{sDM}:{sDM+3}], s{so} offen offset:{(p&3)*1024} lds"); g += 2
            self.head_items(Sc, [(nxt, vLane16)], 0, dma_gaps=[37, 39, 41, 43, 45, 47, 49, 51], sw=False, m0gap=36)
        else:
            self.head_items(Sc, [(nxt, vLane16)], vmw, sw=sw, sg=sg)
        for g, c, t in pre: Sc.put(g, c, t)
        if "nosm" in self.exp: sm = []
        if sm:
            exps = [t for c, t in sm if c == 8]
            free_odd = [g for g in range(5, n, 2) if Sc.c[g] == 0 and g <= 53]
            assert len(free_odd) >= len(exps), (len(free_odd), len(exps))
            egap = [free_odd[(j * len(free_odd)) // len(exps)] for j in range(len(exps))]
            for t, g in zip(exps, egap): Sc.put(g, 8, t)
            ne = 0; g = 0
            for c, t in sm:
                if c == 8: ne += 1; continue
                g = max(g, egap[ne - 1] + 1)
                while Sc.c[g] + c > 8: g += 1
                Sc.put(g, c, t)
            lastsm = g
        else: lastsm = 0
        if extra:
            left = Sc.put_free(list(extra), start=2, stride=0)
            assert not left or True
        else: left = []
        g = max(lastsm + 1, n - 2 * len(tail) - 2)
        for c, t in tail:
            while Sc.c[g] + c > 8 and g < n - 1: g += 1
            Sc.put(g, c, t)
        before = {8 * k: ["s_waitcnt lgkmcnt(4)"] for k in range(8)}
        Sc.emit(E, mf, before)
        for c, t in left: E(t)

    def mask_block(self, par):
        E = self.E
        E(f"s_lshl_b32 s{sTmp}, s{sT}, 6")
        for qt in range(2): E(f"v_subrev_u32 v{vT0+qt}, s{sTmp}, v{DM(qt)}")
        E(f"v_mov_b32 v{vT0+2}, 0xff800000")
        k = 0
        items = [(qt, kb, r) for qt in range(2) for kb in range(4) for r in range(4)]
        masks = ["s[56:57]", "s[58:59]", "s[60:61]"]
        for i in range(len(items) + 2):
            if i < len(items):
                qt, kb, r = items[i]
                E(f"v_cmp_le_i32 {masks[i % 3]}, {16*kb+r}, v{vT0+qt}")
            if i >= 2:
                qt, kb, r = items[i - 2]
                E(f"v_cndmask_b32 v{S(par,kb,qt)+r}, v{vT0+2}, v{S(par,kb,qt)+r}, {masks[(i-2) % 3]}")
            if i >= len(items): E("s_nop 0")

    def xlane(self, op, r, t):
        E = self.E
        E(f"v_mov_b32 v{t}, v{r}\ns_nop 1")
        E(f"v_permlane16_swap_b32 v{r}, v{t}\ns_nop 1")
        E(f"{op} v{r}, v{r}, v{t}")
        E(f"v_mov_b32 v{t}, v{r}\ns_nop 1")
        E(f"v_permlane32_swap_b32 v{r}, v{t}\ns_nop 1")
        E(f"{op} v{r}, v{r}, v{t}")

    def rowmax_inlane(self, par, qt, r):
        E = self.E
        vals = [S(par, kb, qt) + i for kb in range(4) for i in range(4)]
        E(f"v_max3_f32 v{r}, v{vals[0]}, v{vals[1]}, v{vals[2]}")
        for i in range(3, 15, 2): E(f"v_max3_f32 v{r}, v{r}, v{vals[i]}, v{vals[i+1]}")
        E(f"v_max_f32 v{r}, v{r}, v{vals[15]}")
    def xlane2(self, op, r0, r1, t0, t1):
        E = self.E
        for sw in ("v_permlane16_swap_b32", "v_permlane32_swap_b32"):
            E(f"v_mov_b32 v{t0}, v{r0}\nv_mov_b32 v{t1}, v{r1}\ns_nop 0")
            E(f"{sw} v{r0}, v{t0}\n{sw} v{r1}, v{t1}\ns_nop 0")
            E(f"{op} v{r0}, v{r0}, v{t0}\n{op} v{r1}, v{r1}, v{t1}")

    def init_block(self):
        E = self.E
        for qt in range(2): self.rowmax_inlane(0, qt, M_(qt))
        self.xlane2("v_max_f32", M_(0), M_(1), vT0, vT0 + 1)
        for qt in range(2):
            E(f"v_max_f32 v{M_(qt)}, 0xf149f2ca, v{M_(qt)}")
            for r in range(4): E(f"v_sub_f32 v{NEGM(qt)+r}, 0, v{M_(qt)}")
            E(f"v_mov_b32 v{L_(qt)}, 0")
        for qt in range(2):
            for kb in range(4):
                for r in range(4): E(f"v_sub_f32 v{S(0,kb,qt)+r}, v{S(0,kb,qt)+r}, v{M_(qt)}")

    def slow_block(self, par):
        E = self.E
        E("s_nop 15")
        for qt in range(2):
            d = vT0 + qt
            self.rowmax_inlane(par, qt, d)
            self.xlane("v_max_f32", d, vT0 + 2)
            E(f"v_max_f32 v{d}, 0, v{d}")
            E(f"v_add_f32 v{M_(qt)}, v{M_(qt)}, v{d}")
            for r in range(4): E(f"v_sub_f32 v{NEGM(qt)+r}, v{NEGM(qt)+r}, v{d}")
            for pp in (par, par ^ 1):
                for kb in range(4):
                    for r in range(4): E(f"v_sub_f32 v{S(pp,kb,qt)+r}, v{S(pp,kb,qt)+r}, v{d}")
            E(f"v_sub_f32 v{vT0+3}, 0, v{d}")
            E(f"v_exp_f32 v{vT0+3}, v{vT0+3}\ns_nop 0")
            E(f"v_mul_f32 v{L_(qt)}, v{L_(qt)}, v{vT0+3}")
            for db in range(16):
                for r in range(4):
                    a = O(db, qt) + r
                    E(f"v_accvgpr_read_b32 v{vT0+4}, a{a}")
                    E(f"v_mul_f32 v{vT0+4}, v{vT0+4}, v{vT0+3}")
                    E(f"v_accvgpr_write_b32 a{a}, v{vT0+4}")
        for half in range(2):
            for c, t in self.sm_stream(par, half): E(t)
        E(f"s_nop 2")

    def check_tail(self):
        return [(4, f"v_max_f32 v{vT0}, v{LS(0)}, v{LS(1)}"), (4, f"v_cmp_lt_f32 vcc, {THR}, v{vT0}")]
    def check(self, par, computed):
        E = self.E
        sl = self.lab("slow"); back = self.lab("back")
        if not computed:
            for c, t in self.check_tail(): E(t)
        if "noslow" not in self.exp: E(f"s_cbranch_vccnz {sl}")
        E(f"{back}:")
        for qt in range(2): E(f"v_add_f32 v{L_(qt)}, v{L_(qt)}, v{LS(qt)}")
        self.rare.append(("slow", sl, back, par))

    def maybe_mask(self, par):
        E = self.E
        sk = self.lab("nomask")
        E(f"s_lshl_b32 s{sTmp}, s{sQB}, 1")
        E(f"s_cmp_lt_u32 s{sT}, s{sTmp}")
        E(f"s_cbranch_scc1 {sk}")
        self.mask_block(par)
        E(f"{sk}:")

    def item_loop(self, first=False):
        E = self.E; nm = self.name
        E(f"s_lshl_b32 s{sTmp}, s{sQB}, 7")
        E(f"s_lshl_b32 s{sTmp2}, s{sWave}, 5")
        E(f"s_add_u32 s{sTmp}, s{sTmp}, s{sTmp2}")
        E(f"v_and_b32 v{vT0}, 15, v0")
        E(f"v_bfe_u32 v{vT0+1}, v0, 4, 2")
        E(f"v_lshlrev_b32 v{vT0+1}, 2, v{vT0+1}")
        E(f"v_sub_u32 v{vT0}, v{vT0}, v{vT0+1}")
        E(f"v_add_u32 v{DM(0)}, s{sTmp}, v{vT0}")
        E(f"v_add_u32 v{DM(1)}, 16, v{DM(0)}")
        zero = [(4, f"v_accvgpr_write_b32 a{i}, 0") for i in range(128)]
        self.emit_phase(self.qk_mfmas(0, False), vRA, extra=zero, sw=True, first=first)
        if first:
            if "nopf" not in self.exp: self.prefetch_weights()
            E(f"s_branch {nm}_qk0done")
            return
        E(f"{nm}_qk0done:")
        self.ist(2)
        E("s_nop 7")
        self.maybe_mask(0)
        self.init_block()
        self.ist(3)
        self.emit_phase(self.qk_mfmas(1, True), vRB, sm=self.sm_stream(0, 0))
        for c, t in self.sm_stream(0, 1): E(t)
        self.check(0, False)
        E(f"s_add_u32 s{sT}, s{sT}, 1")
        E(f"s_lshr_b32 s{sI}, s{sN}, 1\ns_sub_u32 s{sI}, s{sI}, 1")
        if "nopf" not in self.exp:
            pk = self.lab("nopfw")
            E(f"s_cmp_eq_u32 s82, 0\ns_cbranch_scc1 {pk}\ns_mov_b32 s82, 0")
            self.prefetch_weights()
            E(f"{pk}:")
        if "mid" in self.exp: stamp_code(E, 1, True)
        self.ist(4)
        E(f"s_cmp_eq_u32 s{sI}, 0")
        E(f"s_cbranch_scc1 {nm}_last")
        E(f"{nm}_loop:")
        for par in (1, 0):
            if par == 0: self.maybe_mask(0)
            self.emit_phase(self.qk_mfmas(par ^ 1, True), vRA, sm=self.sm_stream(par, 0), sw=(par == 0), sg=(par == 1))
            pre = [(8, 0, f"s_add_u32 s{sT}, s{sT}, 1")]
            if par == 0: pre.append((12, 0, f"s_sub_u32 s{sI}, s{sI}, 1"))
            self.emit_phase(self.pv_mfmas(par ^ 1), vRB, sm=self.sm_stream(par, 1), tail=self.check_tail(), pre=pre)
            self.check(par, True)
        E(f"s_cmp_lg_u32 s{sI}, 0")
        E(f"s_cbranch_scc1 {nm}_loop")
        E(f"{nm}_last:")
        if "mid" in self.exp: stamp_code(E, 2, True)
        self.ist(5)
        self.maybe_mask(1)
        for c, t in self.sm_stream(1, 0): E(t)
        pre = [(7, 12, f"buffer_load_dword v{vFL}, v{vFL+1}, s[{sFL}:{sFL+3}], 0 offen sc1")]
        self.emit_phase(self.pv_mfmas(0), vRA, sm=self.sm_stream(1, 1), tail=self.check_tail(), pre=pre, sg=True)
        self.check(1, True)
        self.ist(6)
        nop_, fin_a, fin_b = self.lab("nopre"), self.lab("fina"), self.lab("finb")
        qn = self.lab("qnext")
        E(f"s_cmp_eq_u32 s{sItem}, 1")
        E(f"s_cbranch_scc0 {qn}")
        E(f"s_cmp_eq_u32 s{sHasP}, 0")
        E(f"s_cbranch_scc1 {nop_}")
        got, pl = self.lab("got"), self.lab("poll")
        E("s_waitcnt vmcnt(7)")
        to = self.lab("to")
        E(f"s_mov_b32 s73, 0")
        E(f"{pl}:")
        E(f"v_readfirstlane_b32 s{sTmp3}, v{vFL}")
        E(f"s_cmp_lg_u32 s{sTmp3}, 0")
        E(f"s_cbranch_scc1 {got}")
        E("s_sleep 2")
        E(f"buffer_load_dword v{vFL}, v{vFL+1}, s[{sFL}:{sFL+3}], 0 offen sc1")
        E("s_waitcnt vmcnt(0)")
        E(f"s_add_u32 s73, s73, 1\ns_cmp_lt_u32 s73, {SPIN_MAX}")
        E(f"s_cbranch_scc1 {pl}")
        E(f"v_mov_b32 v{vT0}, 0xbad2\nv_mov_b32 v{vT0+1}, {FLG_ERR}\nbuffer_store_dword v{vT0}, v{vT0+1}, s[{sFL}:{sFL+3}], 0 offen")
        E(f"{got}:")
        E(f"s_lshl_b32 s{sTmp}, s{sWave}, 15")
        for i in range(16):
            E(f"s_add_u32 s{sTmp2}, s{sTmp}, {i*1024}")
            E(f"buffer_load_dwordx4 v[{64+4*i}:{67+4*i}], v{vLane16}, s[{sPT}:{sPT+3}], s{sTmp2} offen sc1")
        E(f"s_add_u32 s{sTmp2}, s{sTmp}, 16384")
        E(f"buffer_load_dwordx4 v[{vPM}:{vPM+3}], v{vLane16}, s[{sPT}:{sPT+3}], s{sTmp2} offen sc1")
        E(f"s_mov_b32 s{sTmp3}, 1")
        E(f"s_branch {fin_a}")
        E(f"{qn}:")
        self.load_q(next_item=True)
        E(f"s_mov_b32 s{sTmp3}, 1")
        E(f"s_branch {fin_a}")
        E(f"{nop_}:")
        E(f"s_mov_b32 s{sTmp3}, 0")
        E(f"{fin_a}:")
        self.ist(7)
        w1, w2 = self.lab("w"), self.lab("w")
        vmw = f"s_cmp_eq_u32 s{sTmp3}, 0\ns_cbranch_scc1 {w1}\ns_waitcnt vmcnt(32)\ns_branch {w2}\n{w1}:\ns_waitcnt vmcnt(16)\n{w2}:"
        self.emit_phase(self.pv_mfmas(1), vRB, vmw=vmw)
        self.ist(8)
        E(f"{nm}_itemdone:")

    def prologue(self):
        E = self.E; nm = self.name
        E("s_cmp_ge_u32 s2, 256")
        E(f"s_cbranch_scc1 {nm}_end")
        stamp_code(E, 0, self.stamps)
        E("s_load_dwordx2 s[4:5], s[0:1], 96")
        E("s_load_dwordx2 s[6:7], s[0:1], 40")
        E("s_load_dwordx4 s[64:67], s[0:1], 56")
        E("s_load_dwordx2 s[68:69], s[0:1], 72")
        E("s_load_dwordx2 s[78:79], s[0:1], 0")
        E("s_load_dwordx2 s[80:81], s[0:1], 80")
        E("s_and_b32 s45, s2, 7")
        E("s_lshr_b32 s46, s2, 3")
        E("s_and_b32 s47, s46, 1")
        E("s_lshl_b32 s45, s45, 1")
        E(f"s_add_u32 s{sH}, s45, s47")
        E("s_lshr_b32 s46, s46, 1")
        E(f"s_and_b32 s{sType}, s46, 1")
        E(f"s_lshr_b32 s{sPair}, s46, 1")
        E(f"v_lshrrev_b32 v{vT0}, 6, v0")
        E(f"v_and_b32 v1, 63, v0")
        E(f"v_readfirstlane_b32 s{sWave}, v{vT0}")
        E(f"v_lshlrev_b32 v{vLane16}, 4, v1")
        E(f"s_lshl_b32 s45, s{sPair}, 1")
        E(f"s_sub_u32 s46, {32-NA}, s45")
        E(f"s_add_u32 s47, s45, 2")
        E(f"s_cmp_eq_u32 s{sType}, 0")
        E(f"s_cselect_b32 s70, {NA}, s46")
        E(f"s_cselect_b32 s71, 0, {NA}")
        E(f"s_cselect_b32 s72, 0, s47")
        E(f"s_lshl_b32 s55, s70, 1")
        E(f"s_lshl_b32 s{sNKV}, s72, 1\ns_add_u32 s{sNKV}, s{sNKV}, s55")
        t = vT0
        E(f"v_cmp_gt_u32 vcc, s55, v1")
        E(f"v_subrev_u32 v{t+3}, s55, v1")
        E("s_nop 0")
        E(f"v_cndmask_b32 v{t}, v{t+3}, v1, vcc")
        E(f"v_mov_b32 v{t+4}, s72\nv_mov_b32 v{t+5}, s70")
        E(f"v_cndmask_b32 v{t+1}, v{t+4}, v{t+5}, vcc")
        E(f"v_mov_b32 v{t+4}, 0\nv_mov_b32 v{t+5}, s71")
        E(f"v_cndmask_b32 v{t+2}, v{t+4}, v{t+5}, vcc")
        E(f"v_min_u32 v{t+4}, 2, v{t+1}")
        E(f"v_cmp_lt_u32 s[56:57], v{t}, v{t+4}")
        E(f"v_lshlrev_b32 v{t+5}, 1, v{t+1}")
        E(f"v_subrev_u32 v{t+5}, 2, v{t+5}")
        E(f"v_cmp_lt_i32 s[58:59], v{t}, v{t+5}")
        E(f"v_and_b32 v{t+6}, 1, v{t}")
        E(f"v_cmp_eq_u32 s[60:61], 0, v{t+6}")
        E(f"v_sub_u32 v{t+7}, v{t}, v{t+1}")
        E(f"v_lshrrev_b32 v{t+8}, 1, v{t}")
        E(f"v_add_u32 v{t+9}, 1, v{t+8}")
        E(f"v_subrev_u32 v{t+8}, 1, v{t+8}")
        E(f"v_cndmask_b32 v{t+8}, v{t+8}, v{t+9}, s[60:61]")
        E(f"v_cndmask_b32 v{t+7}, v{t+7}, v{t+8}, s[58:59]")
        E(f"v_cndmask_b32 v{t+7}, v{t+7}, v{t}, s[56:57]")
        E(f"s_and_b64 s[58:59], s[58:59], s[60:61]")
        E(f"s_or_b64 s[58:59], s[58:59], s[56:57]")
        E(f"v_mov_b32 v{t+8}, {WS_V - WS_K}\nv_mov_b32 v{t+9}, 0")
        E(f"v_cndmask_b32 v{t+8}, v{t+8}, v{t+9}, s[58:59]")
        E(f"v_add_u32 v{t+7}, v{t+7}, v{t+2}")
        E(f"v_lshlrev_b32 v{t+7}, 15, v{t+7}")
        E(f"v_add_u32 v{t+7}, v{t+7}, v{t+8}")
        E(f"s_lshl_b32 s45, s{sH}, 20")
        E(f"v_add_u32 v{t+7}, s45, v{t+7}")
        E(f"v_subrev_u32 v{t+8}, s{sNKV}, v1")
        E(f"v_and_b32 v{t+9}, 3, v{t+8}\nv_mul_u32_u24 v{t+9}, {64*896}, v{t+9}")
        E(f"v_lshrrev_b32 v{t+10}, 2, v{t+8}\nv_mul_u32_u24 v{t+10}, 448, v{t+10}\nv_add_u32 v{t+9}, v{t+9}, v{t+10}")
        E(f"v_cmp_gt_u32 vcc, 8, v{t+8}\nv_mov_b32 v{t+10}, 0x7ff00000\ns_nop 0")
        E(f"v_cndmask_b32 v{t+9}, v{t+10}, v{t+9}, vcc")
        E(f"v_cmp_gt_u32 vcc, s{sNKV}, v1\ns_nop 1")
        E(f"v_cndmask_b32 v{vTab}, v{t+9}, v{t+7}, vcc")
        E(f"s_lshl_b32 s{sM0}, s{sWave}, 13")
        E(f"v_add_u32 v{vD}, s{sM0}, v{vLane16}")
        for p in range(1, 8): E(f"v_add_u32 v{vD+p}, {4096*(p>>2)}, v{vD}") if p >= 4 else E(f"v_mov_b32 v{vD+p}, v{vD}")
        E("s_waitcnt lgkmcnt(0)")
        def srd(s, lo, off, size):
            if isinstance(off, int) and off == 0: E(f"s_mov_b32 s{s}, s{lo}\ns_mov_b32 s{s+1}, s{lo+1}")
            else: E(f"s_add_u32 s{s}, s{lo}, {off}\ns_addc_u32 s{s+1}, s{lo+1}, 0")
            E(f"s_mov_b32 s{s+2}, {size}\ns_mov_b32 s{s+3}, 0x20000")
        srd(sDM, 4, WS_K, 32 << 20)
        E(f"s_lshl_b32 s45, s{sH}, 20")
        E(f"s_add_u32 s45, s45, {WS_Q}")
        srd(sQ, 4, "s45", 1 << 20)
        E(f"s_mov_b32 s{sN}, s70\ns_mov_b32 s{sT}, s71\ns_sub_u32 s{sQB}, 15, s{sPair}")
        E(f"s_xor_b32 s{sItem}, s{sType}, 1")
        E(f"s_cmp_lg_u32 s70, 0")
        sk = self.lab("n1ok")
        E(f"s_cbranch_scc1 {sk}")
        E(f"s_mov_b32 s{sN}, s72\ns_mov_b32 s{sT}, 0\ns_mov_b32 s{sQB}, s{sPair}\ns_mov_b32 s{sItem}, 1")
        E(f"{sk}:")
        E(f"s_cmp_lt_u32 s{sPair}, 7\ns_cselect_b32 s{sHasP}, 1, 0\ns_cmp_eq_u32 s{sType}, 0\ns_cselect_b32 s{sHasP}, s{sHasP}, 0")
        E(f"s_mov_b32 s{sSig}, 0\ns_mov_b32 s82, 1")
        self.load_q()
        for c in range(4):
            E(f"v_readlane_b32 s{sOff}, v{vTab}, {c}")
            E(f"s_add_u32 m0, s{sM0}, {c*CH}")
            E("s_nop 3")
            for p in range(8):
                E(f"buffer_load_dwordx4 v{vD+p}, s[{sDM}:{sDM+3}], s{sOff} offen offset:{(p&3)*1024} lds")
                if p == 3: E("s_add_u32 m0, m0, 4096\ns_nop 0")
        E(f"s_lshl_b32 s45, s{sH}, 3\ns_add_u32 s{sPI}, s45, s{sPair}")
        E(f"s_lshl_b32 s45, s{sPI}, 17")
        E(f"s_add_u32 s45, s45, {WS_PT}")
        srd(sPT, 4, "s45", 131072)
        E(f"s_mul_i32 s45, s{sH}, {128*14*1024}")
        E(f"s_add_u32 s45, s45, {WS_OP}")
        srd(sOP, 4, "s45", 128*14*1024)
        E(f"s_mul_i32 s45, s{sH}, {256*896}")
        srd(sWO, 6, "s45", 256*896)
        srd(sFL, 4, WS_FLG, FLG_BYTES)
        E(f"s_lshl_b32 s45, s{sPI}, 7\nv_mov_b32 v{vFL+1}, s45")
        E(f"s_mov_b32 s{sC}, 4")
        E(f"s_mov_b32 s{sWr}, {4*CH}")
        E(f"s_mov_b32 s{sRdN}, 0")
        E(f"v_mov_b32 v{vRA}, v{vLane16}")
        self.wo_setup()
        E(f"s_waitcnt vmcnt(24)")
        E("s_barrier")
        for f in range(8): E(self.frag_read(32 + f, vRB, vRA))
        if "mid" not in self.exp: stamp_code(E, 1, self.stamps)

    def load_q(self, next_item=False):
        E = self.E
        qb = sPair if next_item else sQB
        E(f"s_lshl_b32 s{sTmp}, s{qb}, 3\ns_lshl_b32 s{sTmp2}, s{sWave}, 1\ns_add_u32 s{sTmp}, s{sTmp}, s{sTmp2}\ns_lshl_b32 s{sTmp}, s{sTmp}, 13")
        for qt in range(2):
            for hh in range(2):
                E(f"s_add_u32 s{sTmp2}, s{sTmp}, {qt*8192 + hh*4096}")
                for d in range(4):
                    E(f"buffer_load_dwordx4 {a4(Q(qt, hh*4+d))}, v{vLane16}, s[{sQ}:{sQ+3}], s{sTmp2} offen offset:{d*1024}")

    def wo_setup(self):
        E = self.E
        t = vT0
        for p in range(8):
            E(f"s_lshl_b32 s{sTmp}, s{sWave}, 9\ns_add_u32 s{sTmp}, s{sTmp}, {64*p}")
            E(f"v_add_u32 v{t}, s{sTmp}, v1")
            E(f"v_mul_u32_u24 v{t+1}, 9363, v{t}\nv_lshrrev_b32 v{t+1}, 18, v{t+1}")
            E(f"v_mul_u32_u24 v{t+2}, 28, v{t+1}\nv_sub_u32 v{t+3}, v{t}, v{t+2}")
            E(f"v_bfe_u32 v{t+2}, v{t+1}, 2, 1\nv_lshlrev_b32 v{t+2}, 1, v{t+2}\nv_xor_b32 v{t+3}, v{t+3}, v{t+2}")
            E(f"v_lshlrev_b32 v{t+3}, 4, v{t+3}\nv_mul_u32_u24 v{t+1}, 896, v{t+1}\nv_add_u32 v{t+3}, v{t+3}, v{t+1}")
            E(f"v_cmp_gt_u32 vcc, 1792, v{t}\nv_subrev_u32 v{t+3}, {(p&3)*1024}, v{t+3}\nv_mov_b32 v{t+2}, 0x7ff00000")
            E(f"v_add_u32 v{t+3}, 4096, v{t+3}")
            E(f"v_cndmask_b32 v{vW+p}, v{t+2}, v{t+3}, vcc")
        E(f"v_bfe_u32 v{t}, v1, 4, 2\nv_lshlrev_b32 v{t+1}, 2, v{t}\nv_bfe_u32 v{t+2}, v1, 2, 2\nv_add_u32 v{t+1}, v{t+1}, v{t+2}")
        E(f"v_mul_u32_u24 v{t+1}, 448, v{t+1}\nv_and_b32 v{t+2}, 3, v1\nv_lshlrev_b32 v{t+2}, 3, v{t+2}\nv_add_u32 v{t+1}, v{t+1}, v{t+2}")
        E(f"v_and_b32 v{t}, 1, v{t}\nv_lshlrev_b32 v{t}, 5, v{t}")
        E(f"v_add_u32 v{vWA}, v{t+1}, v{t}\nv_sub_u32 v{vWA+1}, v{t+1}, v{t}\nv_add_u32 v{vWA+1}, 32, v{vWA+1}")

    def rare_blocks(self):
        E = self.E
        for r in self.rare:
            if r[0] == "slow":
                E(f"{r[1]}:"); self.slow_block(r[3]); E(f"s_branch {r[2]}")
            elif r[0] == "switch":
                E(f"{r[1]}:")
                for p in range(8): E(f"v_mov_b32 v{vD+p}, v{vW+p}")
                E(f"s_sub_u32 s{sDM}, s{sWO}, 4096\ns_subb_u32 s{sDM+1}, s{sWO+1}, 0\ns_add_u32 s{sDM+2}, s{sWO+2}, 4096\ns_mov_b32 s{sDM+3}, 0x20000")
                E(f"s_branch {r[2]}")
            elif r[0] == "signal":
                sk = self.lab("nosig")
                E(f"{r[1]}:")
                E(f"s_mov_b32 s{sSig}, 0")
                E(f"s_cmp_lg_u32 s{sWave}, 0\ns_cbranch_scc1 {sk}")
                E(f"v_mov_b32 v254, 1")
                E("s_mov_b64 exec, 1")
                E(f"buffer_atomic_add v254, v{vFL+1}, s[{sFL}:{sFL+3}], 0 offen sc1")
                E("s_mov_b64 exec, -1")
                E(f"{sk}:\ns_branch {r[2]}")
        self.rare = []

    def finish(self):
        E = self.E; nm = self.name
        E("s_nop 7")
        self.xlane2("v_add_f32", L_(0), L_(1), vT0, vT0 + 1)
        E(f"s_cmp_eq_u32 s{sItem}, 1")
        E(f"s_cbranch_scc1 {nm}_final")
        E(f"s_lshl_b32 s{sTmp}, s{sWave}, 15")
        for i in range(16):
            t = vT0 + (i % 2) * 12
            qt = i >> 3; s = i & 7
            src = [O(2*s, qt) + r for r in range(4)] + [O(2*s+1, qt) + r for r in range(4)]
            for r in range(8): E(f"v_accvgpr_read_b32 v{t+r}, a{src[r]}")
            for r in range(4): E(f"v_cvt_pk_bf16_f32 v{t+8+r}, v{t+2*r}, v{t+2*r+1}")
            E(f"s_add_u32 s{sTmp2}, s{sTmp}, {i*1024}")
            E(f"buffer_store_dwordx4 v[{t+8}:{t+11}], v{vLane16}, s[{sPT}:{sPT+3}], s{sTmp2} offen sc1")
        E(f"v_mov_b32 v{vPM}, v{M_(0)}\nv_mov_b32 v{vPM+1}, v{M_(1)}\nv_mov_b32 v{vPM+2}, v{L_(0)}\nv_mov_b32 v{vPM+3}, v{L_(1)}")
        E(f"s_add_u32 s{sTmp2}, s{sTmp}, 16384")
        E(f"buffer_store_dwordx4 v[{vPM}:{vPM+3}], v{vLane16}, s[{sPT}:{sPT+3}], s{sTmp2} offen sc1")
        E(f"s_lshl_b32 s{sTmp}, s{sPair}, 1\ns_add_u32 s{sN}, s{sTmp}, 2\ns_mov_b32 s{sT}, 0\ns_mov_b32 s{sQB}, s{sPair}\ns_mov_b32 s{sItem}, 1")
        E(f"s_mov_b32 s{sSig}, 1")
        E("s_waitcnt vmcnt(25)")
        E(f"s_branch {nm}_item")
        E(f"{nm}_final:")
        E(f"s_cmp_eq_u32 s{sHasP}, 0")
        E(f"s_cbranch_scc1 {nm}_plain")
        E("s_waitcnt vmcnt(8)")
        for qt in range(2):
            mB, lB = vPM + qt, vPM + 2 + qt
            ms, fA, fB = vT0 + 12, vT0 + 13, vT0 + 14
            E(f"v_max_f32 v{ms}, v{M_(qt)}, v{mB}")
            E(f"v_sub_f32 v{fA}, v{M_(qt)}, v{ms}\nv_sub_f32 v{fB}, v{mB}, v{ms}")
            E(f"v_exp_f32 v{fA}, v{fA}\nv_exp_f32 v{fB}, v{fB}\ns_nop 0")
            E(f"v_mul_f32 v{ms}, v{L_(qt)}, v{fA}\nv_fmac_f32 v{ms}, v{lB}, v{fB}")
            E(f"v_rcp_f32 v{ms}, v{ms}\ns_nop 0")
            E(f"v_mul_f32 v{vT0+8+qt}, v{fA}, v{ms}\nv_mul_f32 v{vT0+10+qt}, v{fB}, v{ms}")
        for i in range(16):
            qt = i >> 3; s = i & 7
            src = [O(2*s, qt) + r for r in range(4)] + [O(2*s+1, qt) + r for r in range(4)]
            t = 168 + (i % 2) * 10; c = 64 + 4 * i
            for r in range(8): E(f"v_accvgpr_read_b32 v{t+r}, a{src[r]}")
            for r in range(8): E(f"v_mul_f32 v{t+r}, v{t+r}, v{vT0+8+qt}")
            for r in range(4):
                E(f"v_lshlrev_b32 v{t+8}, 16, v{c+r}\nv_and_b32 v{t+9}, 0xffff0000, v{c+r}")
                E(f"v_fmac_f32 v{t+2*r}, v{t+8}, v{vT0+10+qt}\nv_fmac_f32 v{t+2*r+1}, v{t+9}, v{vT0+10+qt}")
                E(f"v_cvt_pk_bf16_f32 v{c+r}, v{t+2*r}, v{t+2*r+1}")
        E(f"s_branch {nm}_oproj")
        E(f"{nm}_plain:")
        for qt in range(2): E(f"v_rcp_f32 v{vT0+8+qt}, v{L_(qt)}")
        E("s_nop 0")
        for i in range(16):
            qt = i >> 3; s = i & 7
            src = [O(2*s, qt) + r for r in range(4)] + [O(2*s+1, qt) + r for r in range(4)]
            t = 168 + (i % 2) * 8; c = 64 + 4 * i
            for r in range(8): E(f"v_accvgpr_read_b32 v{t+r}, a{src[r]}")
            for r in range(8): E(f"v_mul_f32 v{t+r}, v{t+r}, v{vT0+8+qt}")
            for r in range(4): E(f"v_cvt_pk_bf16_f32 v{c+r}, v{t+2*r}, v{t+2*r+1}")
        E(f"{nm}_oproj:")
        if "nocpf" not in self.exp: code_prefetch_shared(E, "tl_start", 0x5000, nm + "_t", 72, 74, 8, sWave)
        if "mid" not in self.exp and "ist" not in self.exp: stamp_code(E, 3, self.stamps)
        self.oproj()

    def oproj(self):
        E = self.E; nm = self.name
        C = lambda qt, s: 64 + (qt * 8 + s) * 4
        WFR = lambda f: 128 + (f % 16) * 4
        OUT = lambda ps, mb, qt: ((128 if ps == 0 else 0) + (mb * 2 + qt) * 4)
        AD = lambda k, par: 242 + (k & 1) * 2 + par
        D = 6
        def rd(k, f):
            sl, mb = divmod(f, 14)
            fr = WFR(k * 28 + f)
            base = AD(k, mb & 1); off = sl * 14336 + (mb & ~1) * 32
            return [f"ds_read_b64_tr_b16 v[{fr}:{fr+1}], v{base} offset:{off}",
                    f"ds_read_b64_tr_b16 v[{fr+2}:{fr+3}], v{base} offset:{off + 7168}"]
        for par in range(2): E(f"v_add_u32 v{AD(0,par)}, s{sRdN}, v{vWA+par}")
        for f in range(D):
            for l in rd(0, f): E(l)
        E(f"s_lshl_b32 s{sTmp}, s{sQB}, 3\ns_lshl_b32 s{sTmp2}, s{sWave}, 1\ns_add_u32 s{sTmp}, s{sTmp}, s{sTmp2}\ns_mul_i32 s70, s{sTmp}, {14*1024}")
        def units(ps):
            us = []; n = 0
            for qt in range(2):
                for ms in range(7):
                    t = 168 + (n % 2) * 12 if False else 200 + (n % 2) * 12; n += 1
                    src = [OUT(ps, 2*ms, qt) + r for r in range(4)] + [OUT(ps, 2*ms+1, qt) + r for r in range(4)]
                    u = [(4, f"v_accvgpr_read_b32 v{t+r}, a{src[r]}") for r in range(8)]
                    u += [(4, f"v_cvt_pk_bf16_f32 v{t+8+r}, v{t+2*r}, v{t+2*r+1}") for r in range(4)]
                    u += [(12, f"s_add_u32 s71, s70, {(qt*14 + ps*7 + ms)*1024}\nbuffer_store_dwordx4 v[{t+8}:{t+11}], v{vLane16}, s[{sOP}:{sOP+3}], s71 offen{' sc1' if 'wt' in self.exp else ''}")]
                    us.append(u)
            return us
        pend = []
        nst = 0
        hist = []
        log = [("D", k) for k in range(4) for _ in range(8)]
        for k in range(8):
            ps, sp = divmod(k, 4)
            mf = []
            for sl in range(2):
                s = 2 * sp + sl
                for mb in range(14):
                    for qt in range(2):
                        d = a4(OUT(ps, mb, qt)); c = "0" if s == 0 else d
                        mf.append(f"v_mfma_f32_16x16x32_bf16 {d}, {v4(WFR(k*28 + sl*14 + mb))}, {v4(C(qt, s))}, {c}")
            n = len(mf)
            Sc = Sched(n)
            for f in range(28):
                ff = f + D
                if ff < 28: r = rd(k, ff)
                elif k + 1 < 8: r = rd(k + 1, ff - 28)
                else: continue
                Sc.put(2 * f, 4, r[0]); Sc.put(2 * f + 1, 4, r[1])
            if k + 1 < 8:
                idx = max(i for i, t in enumerate(log) if t == ("D", k + 1))
                w = len(log) - 1 - idx
                nxt = [(AD(k + 1, 0), vWA), (AD(k + 1, 1), vWA + 1)]
                if k + 4 < 8:
                    self.head_items(Sc, nxt, w, dma_gaps=[9, 14, 19, 24, 29, 34, 39, 43])
                    order_d = [(g, ("D", k + 4)) for g in [9, 14, 19, 24, 29, 34, 39, 43]]
                else:
                    Sc.put(1, 0, f"s_waitcnt vmcnt({w})\ns_barrier")
                    Sc.put(3, 0, f"s_add_u32 s{sRdN}, s{sRdN}, {CH}\ns_cmp_eq_u32 s{sRdN}, {NS*CH}\ns_cselect_b32 s{sRdN}, 0, s{sRdN}")
                    Sc.put(3, 4, f"v_add_u32 v{nxt[0][0]}, s{sRdN}, v{nxt[0][1]}"); Sc.put(4, 4, f"v_add_u32 v{nxt[1][0]}, s{sRdN}, v{nxt[1][1]}")
                    order_d = []
            else: order_d = []
            if k == 4: pend = [x for u in units(0) for x in u]
            order_s = []
            if pend:
                cur = 6; j = 0; nun = 0
                while j < len(pend):
                    c, t = pend[j]; g = cur
                    while g < n and Sc.c[g] + (c if c < 12 else 4) > (8 if c < 12 else 8): g += 1
                    if g >= n: break
                    Sc.put(g, c, t); cur = g; j += 1
                    if c == 12:
                        order_s.append((g, ("S", 0))); nun += 1; cur = g + 1
                        if nun >= 4: break
                pend = pend[j:]
            before = {}
            for i in range(0, n, 4):
                f = i // 2
                rem = D - 2
                if k == 7: rem = min(D - 2, 26 - f)
                before[i] = [f"s_waitcnt lgkmcnt({2*max(rem,0)})"]
            Sc.emit(E, mf, before)
            for g, tg in sorted(order_d + order_s): log.append(tg)
        for c, t in pend: E(t)
        if "mid" not in self.exp and "ist" not in self.exp: stamp_code(E, 4, self.stamps)
        E("s_nop 7")
        for u in units(1):
            for c, t in u: E(t)

    def tail_prefetch(self):
        E = self.E
        E(f"s_lshl_b32 s{sTmp}, s2, 2\ns_add_u32 s{sTmp}, s{sTmp}, s{sWave}\ns_mul_i32 s{sTmp}, s{sTmp}, 1568")
        E("v_min_u32 v2, 24, v1\nv_lshlrev_b32 v2, 6, v2")
        for i, lo in enumerate((64, 66, 68)):
            E(f"s_mov_b32 s56, s{lo}\ns_mov_b32 s57, s{lo+1}\ns_mov_b32 s58, {448*1792*2}\ns_mov_b32 s59, 0x20000")
            E(f"buffer_load_dword v{3+i}, v2, s[56:59], s{sTmp} offen")

    def prefetch_weights(self):
        E = self.E
        self.tail_prefetch()
        E(f"s_mov_b32 s56, s6\ns_mov_b32 s57, s7\ns_mov_b32 s58, {16*256*896}\ns_mov_b32 s59, 0x20000")
        E(f"s_lshl_b32 s45, s2, 2\ns_add_u32 s45, s45, s{sWave}\ns_mul_i32 s45, s45, 3584")
        E("v_lshlrev_b32 v2, 6, v1\nbuffer_load_dword v3, v2, s[56:59], s45 offen")

    def gen(self):
        E = self.E; nm = self.name
        self.prologue()
        E(f"{nm}_item:")
        self.item_loop()
        if "ist" in self.exp: self.stamps_tail = False
        if "mid" not in self.exp and "ist" not in self.exp: stamp_code(E, 2, self.stamps)
        self.finish()
        if "notail" not in self.exp:
            tail.gen_tail(E, nm, lambda i: stamp_code(E, i, self.stamps and "ist" not in self.exp))
        if self.stamps:
            stamp_code(E, 11, True)
            E("s_waitcnt vmcnt(0)")
            stamp_code(E, 12, True)
            stamp_dump(E, 13, nm, 4)
        E("s_endpgm")
        E("tl_end:")
        self.rare_blocks()
        E(f"{nm}_end:")
        E("s_endpgm")
        return E.text()

def gen_k2(name="k2_kernel", **kw):
    return K2(name, **kw).gen()
```

```python
from asmlib import *
from ws import *
from k1 import stamp_code, stamp_dump
SLOT = 24576; NSL = 6
def gen_t2(name="t2_kernel", stamps=False, nxt=None):
    E = Emit()
    HF = lambda st, qt: 64 + st * 48 + qt * 4
    WF = lambda st, m, fb: 64 + st * 48 + 16 + (m * 4 + fb) * 4
    WA = lambda fb: 10 + fb
    HA = 14
    DH = lambda i: 16 + i
    DW = lambda i: 18 + i
    GA = lambda fb, qt: (fb * 4 + qt) * 4
    UA = lambda fb, qt: 64 + (fb * 4 + qt) * 4
    sHN, sG, sU, sO = 8, 12, 16, 20
    sWave, sRB, sFS = 24, 25, 26
    E("s_cmp_ge_u32 s2, 224")
    E(f"s_cbranch_scc1 {name}_end")
    stamp_code(E, 0, stamps)
    E("s_load_dwordx4 s[4:7], s[0:1], 56")
    E("s_load_dwordx2 s[28:29], s[0:1], 96")
    E("s_and_b32 s30, s2, 7\ns_lshr_b32 s31, s2, 3")
    E("s_mul_i32 s32, s31, 9363\ns_lshr_b32 s32, s32, 16")
    E("s_mul_i32 s33, s32, 7\ns_sub_u32 s33, s31, s33")
    E(f"s_lshr_b32 s34, s30, 1\ns_lshl_b32 s34, s34, 2\ns_add_u32 s{sRB}, s34, s32")
    E(f"s_and_b32 s34, s30, 1\ns_mul_i32 s34, s34, 7\ns_add_u32 s{sFS}, s34, s33")
    if nxt: code_prefetch(E, nxt[0], nxt[1], name + "_n", 40, 42, 8)
    E("v_and_b32 v1, 63, v0\nv_lshrrev_b32 v2, 6, v0\ns_nop 0")
    E(f"v_readfirstlane_b32 s{sWave}, v2")
    E("v_lshlrev_b32 v3, 4, v1")
    E(f"v_mul_u32_u24 v4, {2*14336}, v2")
    E("v_add_u32 v4, v4, v3")
    E(f"v_mov_b32 v{DH(0)}, v4")
    E(f"v_add_u32 v{DH(1)}, {14336-1024}, v4")
    for i in range(2):
        E(f"v_lshlrev_b32 v4, 3, v2\nv_add_u32 v4, {4*i}, v4\nv_lshrrev_b32 v5, 4, v1\nv_add_u32 v4, v4, v5")
        E("v_and_b32 v5, 7, v4\nv_lshlrev_b32 v5, 1, v5\nv_and_b32 v6, 15, v1\nv_xor_b32 v5, v5, v6\nv_lshlrev_b32 v5, 4, v5")
        E(f"v_mul_u32_u24 v4, 3584, v4\nv_add_u32 v4, v4, v5")
        E(f"v_subrev_u32 v{DW(i)}, {i*1024}, v4")
    E("s_waitcnt lgkmcnt(0)")
    def srd(s, lo, offs, size):
        E(f"s_add_u32 s{s}, s{lo}, {offs}\ns_addc_u32 s{s+1}, s{lo+1}, 0\ns_mov_b32 s{s+2}, {size}\ns_mov_b32 s{s+3}, 0x20000")
    E(f"s_mul_i32 s30, s{sRB}, {8*14336}\ns_add_u32 s30, s30, {WS_HN}")
    srd(sHN, 28, "s30", 8 * 14336)
    E(f"s_lshl_b32 s30, s{sFS}, 8")
    srd(sG, 4, "s30", 448 * 3584); E(f"s_sub_u32 s{sG+2}, s{sG+2}, s30")
    srd(sU, 6, "s30", 448 * 3584); E(f"s_sub_u32 s{sU+2}, s{sU+2}, s30")
    E(f"s_lshl_b32 s31, s{sWave}, 11")
    vm = []
    def dma(s):
        base = (s % NSL) * SLOT
        u = []
        u.append(f"s_add_u32 m0, s31, {base}\ns_mov_b32 s32, {s*1024}\nbuffer_load_dwordx4 v{DH(0)}, s[{sHN}:{sHN+3}], s32 offen lds")
        u.append(f"buffer_load_dwordx4 v{DH(1)}, s[{sHN}:{sHN+3}], s32 offen offset:1024 lds")
        u.append(f"s_add_u32 m0, s31, {base+8192}\ns_mov_b32 s32, {s*32*3584}\nbuffer_load_dwordx4 v{DW(0)}, s[{sG}:{sG+3}], s32 offen lds")
        u.append(f"buffer_load_dwordx4 v{DW(1)}, s[{sG}:{sG+3}], s32 offen offset:1024 lds")
        u.append(f"s_add_u32 m0, s31, {base+16384}\ns_nop 0\nbuffer_load_dwordx4 v{DW(0)}, s[{sU}:{sU+3}], s32 offen lds")
        u.append(f"buffer_load_dwordx4 v{DW(1)}, s[{sU}:{sU+3}], s32 offen offset:1024 lds")
        vm.extend([s] * 6)
        return u
    def need(s):
        idx = max(i for i, t in enumerate(vm) if t == s); return len(vm) - 1 - idx
    for s in range(NSL - 1):
        for u in dma(s): E(u)
    E(f"s_mul_i32 s30, s{sRB}, {8*56*1024}\ns_add_u32 s30, s30, {WS_HM}")
    srd(sO, 28, "s30", 8 * 56 * 1024)
    E("v_lshrrev_b32 v4, 7, v0\nv_lshlrev_b32 v4, 12, v4\nv_add_u32 v4, v4, v3")
    for seg in range(3): E(f"v_add_u32 v{20+seg}, {seg*2*SLOT}, v4")
    E("v_bfe_u32 v4, v1, 4, 2\nv_lshlrev_b32 v4, 2, v4\nv_bfe_u32 v5, v1, 2, 2\nv_add_u32 v4, v4, v5")
    E("v_and_b32 v5, 7, v4")
    E("v_lshlrev_b32 v4, 8, v4\nv_and_b32 v6, 3, v1\nv_lshlrev_b32 v6, 3, v6\nv_add_u32 v4, v4, v6\nv_add_u32 v4, 8192, v4")
    E("v_bfe_u32 v6, v0, 6, 1\nv_lshlrev_b32 v6, 2, v6")
    for fb in range(4):
        E(f"v_add_u32 v7, {fb}, v6\nv_xor_b32 v7, v7, v5\nv_lshlrev_b32 v7, 5, v7\nv_add_u32 v7, v7, v4")
        for seg in range(3): E(f"v_add_u32 v{24+fb*3+seg}, {seg*2*SLOT}, v7")
    def reads(s, st):
        sl = s % NSL; seg = sl // 2; b = (sl % 2) * SLOT
        u = []
        hn = [f"ds_read_b128 v[{HF(st,qt)}:{HF(st,qt)+3}], v{20+seg} offset:{b + qt*1024}" for qt in range(4)]
        w = []
        for fb in range(4):
            for m in range(2):
                for t in range(2):
                    w.append(f"ds_read_b64_tr_b16 v[{WF(st,m,fb)+2*t}:{WF(st,m,fb)+2*t+1}], v{24+fb*3+seg} offset:{b + m*8192 + t*4096}")
        return [hn[0]] + w[:4] + hn[1:] + w[4:]
    E(f"s_waitcnt vmcnt({need(0)})\ns_barrier")
    stamp_code(E, 1, stamps)
    for u in reads(0, 0): E(u)
    for s in range(14):
        st = s & 1
        fl, plan = [], []
        if s + 1 < 14:
            E(f"s_waitcnt vmcnt({need(s+1)}) lgkmcnt(0)\ns_barrier")
            rd = reads(s + 1, st ^ 1); fl += rd; plan += list(range(len(rd)))
            if s + NSL - 1 < 14:
                d = dma(s + NSL - 1); fl += d; plan += [21, 23, 25, 27, 29, 31][:len(d)]
        else:
            E("s_waitcnt lgkmcnt(0)")
        mf = []
        for fb in range(4):
            for qt in range(4):
                for m in range(2):
                    a = (GA if m == 0 else UA)(fb, qt); d = f"a[{a}:{a+3}]"
                    mf.append(f"v_mfma_f32_16x16x32_bf16 {d}, v[{WF(st,m,fb)}:{WF(st,m,fb)+3}], v[{HF(st,qt)}:{HF(st,qt)+3}], {'0' if s == 0 else d}")
        for l in interleave(mf, fl, plan=plan): E(l)
    stamp_code(E, 2, stamps)
    E("s_nop 7")
    E(f"v_lshrrev_b32 v4, 7, v0\nv_mul_u32_u24 v4, {4*56*1024}, v4\nv_add_u32 v4, v4, v3")
    E("v_bfe_u32 v5, v0, 6, 1\nv_lshlrev_b32 v5, 11, v5\nv_add_u32 v4, v4, v5")
    E(f"s_lshl_b32 s30, s{sFS}, 12")
    n = 0
    for qt in range(4):
        for k in range(2):
            t = 160 + (n % 2) * 24; n += 1
            for j in range(2):
                for r in range(4):
                    E(f"v_accvgpr_read_b32 v{t+4*j+r}, a{GA(2*k+j, qt)+r}")
                    E(f"v_accvgpr_read_b32 v{t+8+4*j+r}, a{UA(2*k+j, qt)+r}")
            for r in range(8): E(f"v_max_f32 v{t+r}, 0, v{t+r}")
            for r in range(8): E(f"v_mul_f32 v{t+r}, v{t+r}, v{t+8+r}")
            for r in range(4): E(f"v_cvt_pk_bf16_f32 v{t+16+r}, v{t+2*r}, v{t+2*r+1}")
            E(f"s_add_u32 s32, s30, {qt*56*1024 + k*1024}")
            E(f"buffer_store_dwordx4 v[{t+16}:{t+19}], v4, s[{sO}:{sO+3}], s32 offen")
    if stamps:
        E("s_waitcnt vmcnt(0)"); stamp_code(E, 3, True); stamp_dump(E, 4, name, 28); E("s_endpgm")
    E(f"{name}_end:")
    E("s_endpgm")
    return E.text()
```

```python
from asmlib import *
from ws import *
from k1 import stamp_code, stamp_dump
def gen_t3(name="t3_kernel", stamps=False, nxt=None):
    E = Emit()
    NSL = 8; DEP = 6
    BF = lambda s, qt: 64 + (s % NSL) * 16 + qt * 4
    WF = lambda st, mb: 192 + st * 16 + mb * 4
    AC = lambda mb, qt: (mb * 4 + qt) * 4
    sHM, sWD, sH, sO = 8, 12, 16, 20
    sWave, sQB, sMB = 24, 25, 26
    E("s_cmp_ge_u32 s2, 224")
    E(f"s_cbranch_scc1 {name}_end")
    stamp_code(E, 0, stamps)
    E("s_load_dwordx4 s[4:7], s[0:1], 72")
    E("s_load_dwordx2 s[28:29], s[0:1], 96")
    E("s_and_b32 s30, s2, 7\ns_lshr_b32 s31, s2, 3")
    E("s_mul_i32 s32, s31, 9363\ns_lshr_b32 s32, s32, 16")
    E(f"s_mul_i32 s33, s32, 7\ns_sub_u32 s{sMB}, s31, s33")
    E(f"s_lshl_b32 s30, s30, 2\ns_add_u32 s{sQB}, s30, s32")
    E("v_and_b32 v1, 63, v0\nv_lshrrev_b32 v2, 6, v0\ns_nop 0")
    E(f"v_readfirstlane_b32 s{sWave}, v2")
    E("v_lshlrev_b32 v3, 4, v1")
    E("v_lshrrev_b32 v4, 3, v1\nv_bfe_u32 v5, v4, 1, 2\nv_lshlrev_b32 v5, 1, v5\nv_and_b32 v6, 7, v1\nv_xor_b32 v5, v5, v6\nv_lshlrev_b32 v5, 4, v5")
    E("v_mul_u32_u24 v4, 896, v4\nv_add_u32 v4, v4, v5")
    for p in range(4): E(f"v_add_u32 v{16+p}, {p*(8*896-1024)}, v4")
    E("s_waitcnt lgkmcnt(0)")
    def srd(s, lo, offs, size):
        E(f"s_add_u32 s{s}, s{lo}, {offs}\ns_addc_u32 s{s+1}, s{lo+1}, 0\ns_mov_b32 s{s+2}, {size}\ns_mov_b32 s{s+3}, 0x20000")
    E(f"s_mul_i32 s30, s{sQB}, {4*56*1024}\ns_mul_i32 s31, s{sWave}, {14*1024}\ns_add_u32 s30, s30, s31\ns_add_u32 s30, s30, {WS_HM}")
    srd(sHM, 28, "s30", 4 * 56 * 1024); E(f"s_sub_u32 s{sHM+2}, s{sHM+2}, s31")
    E(f"s_mul_i32 s30, s{sWave}, {14*32*896}\ns_lshl_b32 s31, s{sMB}, 7\ns_add_u32 s30, s30, s31")
    srd(sWD, 4, "s30", 1792 * 896); E(f"s_sub_u32 s{sWD+2}, s{sWD+2}, s30")
    E(f"s_lshl_b32 s33, s{sWave}, 15")
    vm = []
    def loads(s):
        u = []
        u.append(f"s_add_u32 m0, s33, {(s % NSL)*4096}\ns_mov_b32 s32, {s*32*896}\nbuffer_load_dwordx4 v16, s[{sWD}:{sWD+3}], s32 offen lds")
        for p in range(1, 4): u.append(f"buffer_load_dwordx4 v{16+p}, s[{sWD}:{sWD+3}], s32 offen offset:{p*1024} lds")
        for qt in range(4):
            u.append(f"s_mov_b32 s34, {qt*56*1024 + s*1024}\nbuffer_load_dwordx4 v[{BF(s,qt)}:{BF(s,qt)+3}], v3, s[{sHM}:{sHM+3}], s34 offen")
        vm.extend([s] * 8)
        return u
    def need(s):
        idx = max(i for i, t in enumerate(vm) if t == s); return len(vm) - 1 - idx
    for s in range(DEP):
        for u in loads(s): E(u)
    E("v_bfe_u32 v4, v1, 4, 2\nv_lshlrev_b32 v4, 2, v4\nv_bfe_u32 v5, v1, 2, 2\nv_add_u32 v4, v4, v5")
    E("v_bfe_u32 v5, v4, 1, 2\nv_lshlrev_b32 v4, 7, v4\nv_and_b32 v6, 3, v1\nv_lshlrev_b32 v6, 3, v6\nv_add_u32 v4, v4, v6\nv_add_u32 v4, s33, v4")
    for mb in range(4): E(f"v_xor_b32 v7, {mb}, v5\nv_lshlrev_b32 v7, 5, v7\nv_add_u32 v{20+mb}, v4, v7")
    def reads(s, st):
        b = (s % NSL) * 4096
        u = []
        for mb in range(4):
            for t in range(2):
                u.append(f"ds_read_b64_tr_b16 v[{WF(st,mb)+2*t}:{WF(st,mb)+2*t+1}], v{20+mb} offset:{b + t*2048}")
        return u
    E(f"s_waitcnt vmcnt({need(0)})")
    stamp_code(E, 1, stamps)
    for u in reads(0, 0): E(u)
    for s in range(14):
        st = s & 1
        fl, plan = [], []
        if s + 1 < 14:
            E(f"s_waitcnt vmcnt({need(s+1)}) lgkmcnt(0)")
            rd = reads(s + 1, st ^ 1); fl += rd; plan += list(range(8))
            if s + DEP < 14:
                d = loads(s + DEP); fl += d; plan += [8, 9, 10, 11, 12, 13, 14, 15]
        else:
            E("s_waitcnt lgkmcnt(0)")
        mf = []
        for mb in range(4):
            for qt in range(4):
                d = f"a[{AC(mb,qt)}:{AC(mb,qt)+3}]"
                mf.append(f"v_mfma_f32_16x16x32_bf16 {d}, v[{WF(st,mb)}:{WF(st,mb)+3}], v[{BF(s,qt)}:{BF(s,qt)+3}], {'0' if s == 0 else d}")
        for l in interleave(mf, fl, plan=plan): E(l)
    stamp_code(E, 2, stamps)
    E("s_nop 7\ns_barrier")
    E(f"s_lshl_b32 s30, s{sWave}, 14\nv_add_u32 v4, s30, v3")
    for t in range(16): E(f"ds_write_b128 v4, a[{4*t}:{4*t+3}] offset:{t*1024}")
    E(f"s_add_u32 s{sH}, s28, {WS_H}\ns_addc_u32 s{sH+1}, s29, 0\ns_mov_b32 s{sH+2}, {2048*896}\ns_mov_b32 s{sH+3}, 0x20000")
    E(f"s_lshl_b32 s30, s{sQB}, 2\ns_add_u32 s30, s30, s{sWave}\ns_mul_i32 s30, s30, 14336\ns_lshl_b32 s31, s{sMB}, 11\ns_add_u32 s30, s30, s31")
    E(f"buffer_load_dwordx4 v[24:27], v3, s[{sH}:{sH+3}], s30 offen")
    E(f"buffer_load_dwordx4 v[28:31], v3, s[{sH}:{sH+3}], s30 offen offset:1024")
    E("s_waitcnt lgkmcnt(0)\ns_barrier")
    E(f"s_lshl_b32 s30, s{sWave}, 10\nv_add_u32 v4, s30, v3")
    for mb in range(4):
        for w in range(4):
            E(f"ds_read_b128 v[{64+mb*16+w*4}:{67+mb*16+w*4}], v4 offset:{w*16384 + mb*4096}")
    E("s_waitcnt vmcnt(0) lgkmcnt(0)")
    for mb in range(4):
        b = 64 + mb * 16
        for r in range(4):
            E(f"v_add_f32 v{b+r}, v{b+r}, v{b+4+r}\nv_add_f32 v{b+8+r}, v{b+8+r}, v{b+12+r}\nv_add_f32 v{b+r}, v{b+r}, v{b+8+r}")
        hsrc = 24 + (mb >> 1) * 4 + (mb & 1) * 2
        for j in range(2):
            E(f"v_lshlrev_b32 v10, 16, v{hsrc+j}\nv_and_b32 v11, 0xffff0000, v{hsrc+j}")
            E(f"v_add_f32 v{b+2*j}, v{b+2*j}, v10\nv_add_f32 v{b+2*j+1}, v{b+2*j+1}, v11")
    E(f"s_mov_b32 s{sO}, s6\ns_mov_b32 s{sO+1}, s7\ns_mov_b32 s{sO+2}, {2048*896}\ns_mov_b32 s{sO+3}, 0x20000")
    E(f"s_lshl_b32 s30, s{sQB}, 6\ns_lshl_b32 s31, s{sWave}, 4\ns_add_u32 s30, s30, s31")
    E("v_and_b32 v4, 15, v1\nv_add_u32 v4, s30, v4\nv_mul_u32_u24 v4, 896, v4")
    E("v_bfe_u32 v5, v1, 4, 1\nv_lshlrev_b32 v5, 5, v5\nv_add_u32 v4, v4, v5")
    E("v_bfe_u32 v5, v1, 5, 1\nv_lshlrev_b32 v5, 4, v5\nv_add_u32 v4, v4, v5")
    E(f"s_lshl_b32 s31, s{sMB}, 7")
    for k in range(2):
        A = 64 + (2*k) * 16; B = 64 + (2*k+1) * 16; t = 32 + 4 * k
        E(f"v_cvt_pk_bf16_f32 v{t}, v{A}, v{A+1}\nv_cvt_pk_bf16_f32 v{t+1}, v{A+2}, v{A+3}")
        E(f"v_cvt_pk_bf16_f32 v{t+2}, v{B}, v{B+1}\nv_cvt_pk_bf16_f32 v{t+3}, v{B+2}, v{B+3}")
        E("s_nop 1")
        E(f"v_permlane16_swap_b32 v{t}, v{t+2}\nv_permlane16_swap_b32 v{t+1}, v{t+3}")
        E("s_nop 1")
        E(f"buffer_store_dwordx4 v[{t}:{t+3}], v4, s[{sO}:{sO+3}], s31 offen offset:{64*k}")
    if stamps:
        E("s_waitcnt vmcnt(0)"); stamp_code(E, 3, True); stamp_dump(E, 4, name, 28); E("s_endpgm")
    E(f"{name}_end:")
    E("s_endpgm")
    return E.text()
```

```python
from asmlib import *
from ws import *
from k1 import SPIN_MAX
HSTR = 128 * 14 * 1024
sFL, sWave, sU, sQB, sWS = 28, 32, 33, 43, 4
sWG, sWU, sWD, sX, sOUT = 64, 66, 68, 78, 80
CNT0 = 16384
T = 45

def srd(E, s, lo, off, size):
    if off == 0: E(f"s_mov_b32 s{s}, s{lo}\ns_mov_b32 s{s+1}, s{lo+1}")
    else: E(f"s_add_u32 s{s}, s{lo}, {off}\ns_addc_u32 s{s+1}, s{lo+1}, 0")
    E(f"s_mov_b32 s{s+2}, {size}\ns_mov_b32 s{s+3}, 0x20000")

def cnt_off(E, which):
    E(f"s_mul_i32 s{T}, s{sQB}, 384\ns_add_u32 s{T}, s{T}, {CNT0 + 128*which}")
def signal(E, uid, inc):
    E("s_waitcnt vmcnt(0)\ns_barrier")
    sk = f"tl_sig{uid}"
    E(f"s_cmp_lg_u32 s{sWave}, 0\ns_cbranch_scc1 {sk}")
    cnt_off(E, uid - 1)
    E(f"v_mov_b32 v42, 1\nv_mov_b32 v43, s{T}")
    E("s_mov_b64 exec, 1")
    E(f"buffer_atomic_add v42, v43, s[{sFL}:{sFL+3}], 0 offen sc1")
    E("s_mov_b64 exec, -1")
    E(f"{sk}:")

def wait(E, uid, shift, target):
    sk, pl, to = f"tl_w{uid}", f"tl_p{uid}", f"tl_t{uid}"
    E(f"s_cmp_lg_u32 s{sWave}, 0\ns_cbranch_scc1 {sk}")
    cnt_off(E, uid - 1)
    E(f"v_mov_b32 v43, s{T}\ns_mov_b32 s{T+1}, 0")
    E(f"{pl}:")
    E(f"buffer_load_dword v42, v43, s[{sFL}:{sFL+3}], 0 offen sc1")
    E("s_waitcnt vmcnt(0)")
    E(f"v_readfirstlane_b32 s{T}, v42")
    E(f"s_cmp_ge_u32 s{T}, {target}\ns_cbranch_scc1 {sk}")
    E("s_sleep 1")
    E(f"s_add_u32 s{T+1}, s{T+1}, 1\ns_cmp_lt_u32 s{T+1}, {SPIN_MAX}")
    E(f"s_cbranch_scc1 {pl}")
    E(f"v_mov_b32 v42, {0xbad3 + uid}\nv_mov_b32 v43, {FLG_ERR}\nbuffer_store_dword v42, v43, s[{sFL}:{sFL+3}], 0 offen")
    E(f"{sk}:")
    E("s_barrier")

T2_SLOT = 24576; T2_NSL = 6
class T2:
    HF = staticmethod(lambda st, qt: 64 + st * 48 + qt * 4)
    WF = staticmethod(lambda st, m, fb: 64 + st * 48 + 16 + (m * 4 + fb) * 4)
    DH = staticmethod(lambda i: 16 + i)
    DW = staticmethod(lambda i: 18 + i)
    GA = staticmethod(lambda fb, qt: (fb * 4 + qt) * 4)
    UA = staticmethod(lambda fb, qt: 64 + (fb * 4 + qt) * 4)
    sHN, sG, sUp, sO = 8, 12, 16, 20
    def __init__(self, E): self.E = E; self.vm = []
    def setup(self):
        E = self.E
        E("v_and_b32 v1, 63, v0\nv_lshrrev_b32 v2, 6, v0\nv_lshlrev_b32 v3, 4, v1")
        E(f"v_mul_u32_u24 v4, {2*14336}, v2\nv_add_u32 v4, v4, v3")
        E(f"v_mov_b32 v{self.DH(0)}, v4\nv_add_u32 v{self.DH(1)}, {14336-1024}, v4")
        for i in range(2):
            E(f"v_lshlrev_b32 v4, 3, v2\nv_add_u32 v4, {4*i}, v4\nv_lshrrev_b32 v5, 4, v1\nv_add_u32 v4, v4, v5")
            E("v_and_b32 v5, 7, v4\nv_lshlrev_b32 v5, 1, v5\nv_and_b32 v6, 15, v1\nv_xor_b32 v5, v5, v6\nv_lshlrev_b32 v5, 4, v5")
            E(f"v_mul_u32_u24 v4, 3584, v4\nv_add_u32 v4, v4, v5")
            E(f"v_subrev_u32 v{self.DW(i)}, {i*1024}, v4")
        E(f"s_mul_i32 s{T}, s{sQB}, {8*14336}\ns_add_u32 s{T}, s{T}, {WS_HN}")
        srd(E, self.sHN, sWS, f"s{T}", 8 * 14336)
        E(f"s_lshl_b32 s{T}, s{sU}, 8")
        srd(E, self.sG, sWG, f"s{T}", 448 * 3584); E(f"s_sub_u32 s{self.sG+2}, s{self.sG+2}, s{T}")
        srd(E, self.sUp, sWU, f"s{T}", 448 * 3584); E(f"s_sub_u32 s{self.sUp+2}, s{self.sUp+2}, s{T}")
        E(f"s_lshl_b32 s52, s{sWave}, 11")
        E("v_lshrrev_b32 v4, 7, v0\nv_lshlrev_b32 v4, 12, v4\nv_add_u32 v4, v4, v3")
        for seg in range(3): E(f"v_add_u32 v{20+seg}, {seg*2*T2_SLOT}, v4")
        E("v_bfe_u32 v4, v1, 4, 2\nv_lshlrev_b32 v4, 2, v4\nv_bfe_u32 v5, v1, 2, 2\nv_add_u32 v4, v4, v5")
        E("v_and_b32 v5, 7, v4")
        E("v_lshlrev_b32 v4, 8, v4\nv_and_b32 v6, 3, v1\nv_lshlrev_b32 v6, 3, v6\nv_add_u32 v4, v4, v6\nv_add_u32 v4, 8192, v4")
        E("v_bfe_u32 v6, v0, 6, 1\nv_lshlrev_b32 v6, 2, v6")
        for fb in range(4):
            E(f"v_add_u32 v7, {fb}, v6\nv_xor_b32 v7, v7, v5\nv_lshlrev_b32 v7, 5, v7\nv_add_u32 v7, v7, v4")
            for seg in range(3): E(f"v_add_u32 v{24+fb*3+seg}, {seg*2*T2_SLOT}, v7")
    def dmaW(self, s):
        base = (s % T2_NSL) * T2_SLOT
        u = [f"s_add_u32 m0, s52, {base+8192}\ns_mov_b32 s53, {s*32*3584}\nbuffer_load_dwordx4 v{self.DW(0)}, s[{self.sG}:{self.sG+3}], s53 offen lds",
             f"buffer_load_dwordx4 v{self.DW(1)}, s[{self.sG}:{self.sG+3}], s53 offen offset:1024 lds",
             f"s_add_u32 m0, s52, {base+16384}\ns_nop 0\nbuffer_load_dwordx4 v{self.DW(0)}, s[{self.sUp}:{self.sUp+3}], s53 offen lds",
             f"buffer_load_dwordx4 v{self.DW(1)}, s[{self.sUp}:{self.sUp+3}], s53 offen offset:1024 lds"]
        self.vm.extend([s] * 4); return u
    def dmaH(self, s):
        base = (s % T2_NSL) * T2_SLOT
        u = [f"s_add_u32 m0, s52, {base}\ns_mov_b32 s53, {s*1024}\nbuffer_load_dwordx4 v{self.DH(0)}, s[{self.sHN}:{self.sHN+3}], s53 offen lds",
             f"buffer_load_dwordx4 v{self.DH(1)}, s[{self.sHN}:{self.sHN+3}], s53 offen offset:1024 lds"]
        self.vm.extend([s] * 2); return u
    def need(self, s):
        idx = max(i for i, t in enumerate(self.vm) if t == s); return len(self.vm) - 1 - idx
    def reads(self, s, st):
        sl = s % T2_NSL; seg = sl // 2; b = (sl % 2) * T2_SLOT
        hn = [f"ds_read_b128 v[{self.HF(st,qt)}:{self.HF(st,qt)+3}], v{20+seg} offset:{b + qt*1024}" for qt in range(4)]
        w = []
        for fb in range(4):
            for m in range(2):
                for t in range(2):
                    w.append(f"ds_read_b64_tr_b16 v[{self.WF(st,m,fb)+2*t}:{self.WF(st,m,fb)+2*t+1}], v{24+fb*3+seg} offset:{b + m*8192 + t*4096}")
        return [hn[0]] + w[:4] + hn[1:] + w[4:]
    def pre(self):
        for s in range(T2_NSL - 1):
            for u in self.dmaW(s): self.E(u)
    def main(self):
        E = self.E
        self.vm = []
        for s in range(T2_NSL - 1):
            for u in self.dmaH(s): E(u)
        E(f"s_mul_i32 s{T}, s{sQB}, {8*56*1024}\ns_add_u32 s{T}, s{T}, {WS_HM}")
        srd(E, self.sO, sWS, f"s{T}", 8 * 56 * 1024)
        E(f"s_waitcnt vmcnt({self.need(0)})\ns_barrier")
        for u in self.reads(0, 0): E(u)
        for s in range(14):
            st = s & 1
            Sc = Sched(32)
            if s + 1 < 14:
                E(f"s_waitcnt vmcnt({self.need(s+1)}) lgkmcnt(0)\ns_barrier")
                for k, t in enumerate(self.reads(s + 1, st ^ 1)): Sc.put(k, 4, t)
                if s + T2_NSL - 1 < 14:
                    d = self.dmaH(s + T2_NSL - 1) + self.dmaW(s + T2_NSL - 1)
                    for g, t in zip([20, 22, 24, 26, 28, 30], d): Sc.put(g, 12, t)
            else:
                E("s_waitcnt lgkmcnt(0)")
            mf = []
            for fb in range(4):
                for qt in range(4):
                    for m in range(2):
                        a = (self.GA if m == 0 else self.UA)(fb, qt); d_ = f"a[{a}:{a+3}]"
                        mf.append(f"v_mfma_f32_16x16x32_bf16 {d_}, v[{self.WF(st,m,fb)}:{self.WF(st,m,fb)+3}], v[{self.HF(st,qt)}:{self.HF(st,qt)+3}], {'0' if s == 0 else d_}")
            Sc.emit(E, mf)
        E("s_nop 7")
        E(f"v_lshrrev_b32 v4, 7, v0\nv_mul_u32_u24 v4, {4*56*1024}, v4\nv_add_u32 v4, v4, v3")
        E("v_bfe_u32 v5, v0, 6, 1\nv_lshlrev_b32 v5, 11, v5\nv_add_u32 v4, v4, v5")
        E(f"s_lshl_b32 s{T}, s{sU}, 12")
        n = 0
        for qt in range(4):
            for k in range(2):
                t = 160 + (n % 2) * 24; n += 1
                for j in range(2):
                    for r in range(4):
                        E(f"v_accvgpr_read_b32 v{t+4*j+r}, a{self.GA(2*k+j, qt)+r}")
                        E(f"v_accvgpr_read_b32 v{t+8+4*j+r}, a{self.UA(2*k+j, qt)+r}")
                for r in range(8): E(f"v_max_f32 v{t+r}, 0, v{t+r}")
                for r in range(8): E(f"v_mul_f32 v{t+r}, v{t+r}, v{t+8+r}")
                for r in range(4): E(f"v_cvt_pk_bf16_f32 v{t+16+r}, v{t+2*r}, v{t+2*r+1}")
                E(f"s_add_u32 s53, s{T}, {qt*56*1024 + k*1024}")
                E(f"buffer_store_dwordx4 v[{t+16}:{t+19}], v4, s[{self.sO}:{self.sO+3}], s53 offen sc1")

def t1_part(E):
    LDS = 147456
    sOPs, sXs, sH_, sHN_ = 8 + 16, 8 + 0, 0, 0
    sOPs, sXs, sHo, sHNo = 56, 60, 24, 36
    srd(E, sOPs, sWS, WS_OP, 16 * HSTR)
    srd(E, sXs, sX, 0, 2048 * 896)
    srd(E, sHo, sWS, WS_H, 2048 * 896)
    srd(E, sHNo, sWS, WS_HN, 2048 * 896)
    E("v_and_b32 v36, 7, v1\nv_bfe_u32 v37, v1, 3, 2\nv_lshrrev_b32 v38, 5, v1")
    E(f"s_lshl_b32 s{T}, s{sQB}, 3\ns_lshr_b32 s{T+1}, s{sU}, 1\ns_add_u32 s{T}, s{T}, s{T+1}")
    E(f"s_and_b32 s{T+1}, s{sU}, 1\ns_lshl_b32 s{T+1}, s{T+1}, 3")
    E(f"s_mul_i32 s{T+2}, s{T}, 14336")
    E(f"v_lshlrev_b32 v39, 4, v37\nv_add_u32 v39, v39, v36\nv_add_u32 v39, s{T+1}, v39\nv_lshlrev_b32 v39, 4, v39")
    E(f"v_lshlrev_b32 v40, 10, v38\nv_add_u32 v39, v39, v40\nv_add_u32 v39, s{T+2}, v39")
    E(f"s_lshl_b32 s{T+2}, s{sQB}, 7\ns_lshl_b32 s{T+3}, s{sU}, 3\ns_add_u32 s{T+2}, s{T+2}, s{T+3}")
    E(f"v_add_u32 v41, s{T+2}, v36\nv_mul_u32_u24 v41, 896, v41\nv_lshlrev_b32 v40, 6, v38\nv_add_u32 v41, v41, v40\nv_lshlrev_b32 v40, 3, v37\nv_add_u32 v41, v41, v40")
    for k in range(2):
        E(f"s_add_u32 s{T}, s{sWave}, {4*k}")
        E(f"s_lshl_b32 s{54+k}, s{T}, 11")
        E(f"s_lshl_b32 s{T+1}, s{T}, 7")
        if k == 1:
            E(f"s_cmp_lt_u32 s{T}, 7\ns_cselect_b32 s{54+k}, s{54+k}, 0x7ff00000\ns_cselect_b32 s{T+1}, s{T+1}, 0x7ff00000")
        E(f"buffer_load_dwordx2 v[{48+4*k}:{49+4*k}], v41, s[{sXs}:{sXs+3}], s{T+1} offen")
        E(f"buffer_load_dwordx2 v[{50+4*k}:{51+4*k}], v41, s[{sXs}:{sXs+3}], s{T+1} offen offset:32")
    return dict(LDS=LDS, sOPs=sOPs, sHo=sHo, sHNo=sHNo)

def t1_main(E, c):
    LDS, sOPs, sHo, sHNo = c["LDS"], c["sOPs"], c["sHo"], c["sHNo"]
    D = lambda k, h: 64 + k * 64 + h * 4
    for k in range(2):
        for h in range(16):
            E(f"s_add_u32 s{T}, s{54+k}, {h*HSTR}")
            E(f"buffer_load_dwordx4 v[{D(k,h)}:{D(k,h)+3}], v39, s[{sOPs}:{sOPs+3}], s{T} offen")
    A = lambda k: 192 + 8 * k
    for k in range(2):
        for h in range(16):
            if h % 4 == 0: E(f"s_waitcnt vmcnt({32 - (k*16 + h + 4)})")
            for r in range(4):
                src = D(k, h) + r
                if h == 0:
                    E(f"v_lshlrev_b32 v{A(k)+2*r}, 16, v{src}\nv_and_b32 v{A(k)+2*r+1}, 0xffff0000, v{src}")
                else:
                    t = 44 + (r & 1) * 2
                    E(f"v_lshlrev_b32 v{t}, 16, v{src}\nv_and_b32 v{t+1}, 0xffff0000, v{src}")
                    E(f"v_pk_add_f32 v[{A(k)+2*r}:{A(k)+2*r+1}], v[{A(k)+2*r}:{A(k)+2*r+1}], v[{t}:{t+1}]")
        for r in range(4):
            xs = 48 + 4*k + r
            E(f"v_lshlrev_b32 v44, 16, v{xs}\nv_and_b32 v45, 0xffff0000, v{xs}")
            E(f"v_add_f32 v{A(k)+2*r}, v{A(k)+2*r}, v44\nv_add_f32 v{A(k)+2*r+1}, v{A(k)+2*r+1}, v45")
            E(f"v_cvt_pk_bf16_f32 v{208+4*k+r}, v{A(k)+2*r}, v{A(k)+2*r+1}")
            E(f"v_lshlrev_b32 v{A(k)+2*r}, 16, v{208+4*k+r}\nv_and_b32 v{A(k)+2*r+1}, 0xffff0000, v{208+4*k+r}")
    E(f"buffer_store_dwordx4 v[208:211], v39, s[{sHo}:{sHo+3}], s54 offen sc1")
    E(f"buffer_store_dwordx4 v[212:215], v39, s[{sHo}:{sHo+3}], s55 offen sc1")
    E("v_add_f32 v216, v192, v193\nv_mul_f32 v217, v192, v192\nv_fmac_f32 v217, v193, v193")
    for r in range(194, 208): E(f"v_add_f32 v216, v216, v{r}\nv_fmac_f32 v217, v{r}, v{r}")
    E("s_nop 1")
    E("v_add_f32_dpp v216, v216, v216 row_ror:8 row_mask:0xf bank_mask:0xf\nv_add_f32_dpp v217, v217, v217 row_ror:8 row_mask:0xf bank_mask:0xf")
    for sw in ("v_permlane16_swap_b32", "v_permlane32_swap_b32"):
        E("v_mov_b32 v218, v216\nv_mov_b32 v219, v217\ns_nop 0")
        E(f"{sw} v216, v218\n{sw} v217, v219\ns_nop 0")
        E("v_add_f32 v216, v216, v218\nv_add_f32 v217, v217, v219")
    E(f"v_lshlrev_b32 v220, 3, v36\ns_lshl_b32 s{T}, s{sWave}, 6\ns_add_u32 s{T}, s{T}, {LDS}\nv_add_u32 v221, s{T}, v220")
    E("s_mov_b64 exec, 0xff\nds_write_b64 v221, v[216:217]\ns_mov_b64 exec, -1")
    E("s_waitcnt lgkmcnt(0)\ns_barrier")
    E(f"v_add_u32 v220, {LDS}, v220")
    for w in range(4): E(f"ds_read_b64 v[{222+2*w}:{223+2*w}], v220 offset:{64*w}")
    E("s_waitcnt lgkmcnt(0)")
    E("v_add_f32 v216, v222, v224\nv_add_f32 v217, v223, v225\nv_add_f32 v218, v226, v228\nv_add_f32 v219, v227, v229")
    E("v_add_f32 v216, v216, v218\nv_add_f32 v217, v217, v219")
    E("v_mul_f32 v216, 0x3b124925, v216")
    E("v_mul_f32 v217, 0x3b124925, v217")
    E("v_fma_f32 v217, -v216, v216, v217")
    E("v_max_f32 v217, 0, v217")
    E("v_add_f32 v217, 0x3727c5ac, v217")
    E("v_rsq_f32 v217, v217\ns_nop 0")
    for r in range(192, 208): E(f"v_sub_f32 v{r}, v{r}, v216")
    for r in range(192, 208): E(f"v_mul_f32 v{r}, v{r}, v217")
    for r in range(8): E(f"v_cvt_pk_bf16_f32 v{208+r}, v{192+2*r}, v{193+2*r}")
    E(f"buffer_store_dwordx4 v[208:211], v39, s[{sHNo}:{sHNo+3}], s54 offen sc1")
    E(f"buffer_store_dwordx4 v[212:215], v39, s[{sHNo}:{sHNo+3}], s55 offen sc1")

class T3:
    NSL = 8; DEP = 6
    sHM, sWDs, sH, sO = 8, 12, 16, 20
    def __init__(self, E): self.E = E; self.vm = []
    def BF(self, s, qt): return 64 + (s % self.NSL) * 16 + qt * 4
    def WF(self, st, mb): return 192 + st * 16 + mb * 4
    def setup(self):
        E = self.E
        E(f"s_cmp_ge_u32 s{sU}, 7\ns_cselect_b32 s{T}, 1, 0\ns_lshl_b32 s54, s{sQB}, 1\ns_add_u32 s54, s54, s{T}\ns_mul_i32 s{T}, s{T}, 7\ns_sub_u32 s55, s{sU}, s{T}")
        E("v_and_b32 v1, 63, v0\nv_lshlrev_b32 v3, 4, v1")
        E("v_lshrrev_b32 v4, 3, v1\nv_bfe_u32 v5, v4, 1, 2\nv_lshlrev_b32 v5, 1, v5\nv_and_b32 v6, 7, v1\nv_xor_b32 v5, v5, v6\nv_lshlrev_b32 v5, 4, v5")
        E("v_mul_u32_u24 v4, 896, v4\nv_add_u32 v4, v4, v5")
        for p in range(4): E(f"v_add_u32 v{16+p}, {p*(8*896-1024)}, v4")
        E(f"s_mul_i32 s{T}, s54, {4*56*1024}\ns_mul_i32 s{T+1}, s{sWave}, {14*1024}\ns_add_u32 s{T}, s{T}, s{T+1}\ns_add_u32 s{T}, s{T}, {WS_HM}")
        srd(E, self.sHM, sWS, f"s{T}", 4 * 56 * 1024); E(f"s_sub_u32 s{self.sHM+2}, s{self.sHM+2}, s{T+1}")
        E(f"s_mul_i32 s{T}, s{sWave}, {14*32*896}\ns_lshl_b32 s{T+1}, s55, 7\ns_add_u32 s{T}, s{T}, s{T+1}")
        srd(E, self.sWDs, sWD, f"s{T}", 1792 * 896); E(f"s_sub_u32 s{self.sWDs+2}, s{self.sWDs+2}, s{T}")
        E(f"s_lshl_b32 s52, s{sWave}, 15")
        E("v_bfe_u32 v4, v1, 4, 2\nv_lshlrev_b32 v4, 2, v4\nv_bfe_u32 v5, v1, 2, 2\nv_add_u32 v4, v4, v5")
        E("v_bfe_u32 v5, v4, 1, 2\nv_lshlrev_b32 v4, 7, v4\nv_and_b32 v6, 3, v1\nv_lshlrev_b32 v6, 3, v6\nv_add_u32 v4, v4, v6\nv_add_u32 v4, s52, v4")
        for mb in range(4): E(f"v_xor_b32 v7, {mb}, v5\nv_lshlrev_b32 v7, 5, v7\nv_add_u32 v{20+mb}, v4, v7")
    def dmaW(self, s):
        u = [f"s_add_u32 m0, s52, {(s % self.NSL)*4096}\ns_mov_b32 s53, {s*32*896}\nbuffer_load_dwordx4 v16, s[{self.sWDs}:{self.sWDs+3}], s53 offen lds"]
        for p in range(1, 4): u.append(f"buffer_load_dwordx4 v{16+p}, s[{self.sWDs}:{self.sWDs+3}], s53 offen offset:{p*1024} lds")
        self.vm.extend([s] * 4); return u
    def ldB(self, s):
        u = []
        for qt in range(4):
            u.append(f"s_mov_b32 s53, {qt*56*1024 + s*1024}\nbuffer_load_dwordx4 v[{self.BF(s,qt)}:{self.BF(s,qt)+3}], v3, s[{self.sHM}:{self.sHM+3}], s53 offen")
        self.vm.extend([s] * 4); return u
    def need(self, s):
        idx = max(i for i, t in enumerate(self.vm) if t == s); return len(self.vm) - 1 - idx
    def reads(self, s, st):
        b = (s % self.NSL) * 4096
        return [f"ds_read_b64_tr_b16 v[{self.WF(st,mb)+2*t}:{self.WF(st,mb)+2*t+1}], v{20+mb} offset:{b + t*2048}" for mb in range(4) for t in range(2)]
    def pre(self):
        for s in range(self.DEP):
            for u in self.dmaW(s): self.E(u)
    def main(self):
        E = self.E
        AC = lambda mb, qt: (mb * 4 + qt) * 4
        self.vm = []
        for s in range(self.DEP):
            for u in self.ldB(s): E(u)
        srd(E, self.sH, sWS, WS_H, 2048 * 896)
        E(f"s_lshl_b32 s{T}, s54, 2\ns_add_u32 s{T}, s{T}, s{sWave}\ns_mul_i32 s{T}, s{T}, 14336\ns_lshl_b32 s{T+1}, s55, 11\ns_add_u32 s{T}, s{T}, s{T+1}")
        E(f"buffer_load_dwordx4 v[24:27], v3, s[{self.sH}:{self.sH+3}], s{T} offen")
        E(f"buffer_load_dwordx4 v[28:31], v3, s[{self.sH}:{self.sH+3}], s{T} offen offset:1024")
        self.vm.extend(["H"] * 2)
        E(f"s_waitcnt vmcnt({self.need(0)})")
        for u in self.reads(0, 0): E(u)
        for s in range(14):
            st = s & 1
            Sc = Sched(16)
            if s + 1 < 14:
                E(f"s_waitcnt vmcnt({self.need(s+1)}) lgkmcnt(0)")
                for k, t in enumerate(self.reads(s + 1, st ^ 1)): Sc.put(k, 4, t)
                if s + self.DEP < 14:
                    d = self.dmaW(s + self.DEP) + self.ldB(s + self.DEP)
                    for g, t in zip(range(8, 16), d): Sc.put(g, 12, t)
            else:
                E("s_waitcnt lgkmcnt(0)")
            mf = []
            for mb in range(4):
                for qt in range(4):
                    d_ = f"a[{AC(mb,qt)}:{AC(mb,qt)+3}]"
                    mf.append(f"v_mfma_f32_16x16x32_bf16 {d_}, v[{self.WF(st,mb)}:{self.WF(st,mb)+3}], v[{self.BF(s,qt)}:{self.BF(s,qt)+3}], {'0' if s == 0 else d_}")
            Sc.emit(E, mf)
        E("s_nop 7\ns_barrier")
        E(f"s_lshl_b32 s{T}, s{sWave}, 14\nv_add_u32 v4, s{T}, v3")
        for t in range(16): E(f"ds_write_b128 v4, a[{4*t}:{4*t+3}] offset:{t*1024}")
        E("s_waitcnt lgkmcnt(0)\ns_barrier")
        E(f"s_lshl_b32 s{T}, s{sWave}, 10\nv_add_u32 v4, s{T}, v3")
        for mb in range(4):
            for w in range(4):
                E(f"ds_read_b128 v[{64+mb*16+w*4}:{67+mb*16+w*4}], v4 offset:{w*16384 + mb*4096}")
        E(f"s_mov_b32 s{self.sO}, s{sOUT}\ns_mov_b32 s{self.sO+1}, s{sOUT+1}\ns_mov_b32 s{self.sO+2}, {2048*896}\ns_mov_b32 s{self.sO+3}, 0x20000")
        E(f"s_lshl_b32 s{T}, s54, 6\ns_lshl_b32 s{T+1}, s{sWave}, 4\ns_add_u32 s{T}, s{T}, s{T+1}")
        E(f"v_and_b32 v4, 15, v1\nv_add_u32 v4, s{T}, v4\nv_mul_u32_u24 v4, 896, v4")
        E("v_bfe_u32 v5, v1, 4, 1\nv_lshlrev_b32 v5, 5, v5\nv_add_u32 v4, v4, v5")
        E("v_bfe_u32 v5, v1, 5, 1\nv_lshlrev_b32 v5, 4, v5\nv_add_u32 v4, v4, v5")
        E(f"s_lshl_b32 s{T+1}, s55, 7")
        E("s_waitcnt vmcnt(0) lgkmcnt(0)")
        for mb in range(4):
            b = 64 + mb * 16
            for r in range(4):
                E(f"v_add_f32 v{b+r}, v{b+r}, v{b+4+r}\nv_add_f32 v{b+8+r}, v{b+8+r}, v{b+12+r}")
            for r in range(4): E(f"v_add_f32 v{b+r}, v{b+r}, v{b+8+r}")
            hsrc = 24 + (mb >> 1) * 4 + (mb & 1) * 2
            for j in range(2):
                E(f"v_lshlrev_b32 v10, 16, v{hsrc+j}\nv_and_b32 v11, 0xffff0000, v{hsrc+j}")
                E(f"v_add_f32 v{b+2*j}, v{b+2*j}, v10\nv_add_f32 v{b+2*j+1}, v{b+2*j+1}, v11")
        for k in range(2):
            A = 64 + (2*k) * 16; B = 64 + (2*k+1) * 16; t = 32 + 4 * k
            E(f"v_cvt_pk_bf16_f32 v{t}, v{A}, v{A+1}\nv_cvt_pk_bf16_f32 v{t+1}, v{A+2}, v{A+3}")
            E(f"v_cvt_pk_bf16_f32 v{t+2}, v{B}, v{B+1}\nv_cvt_pk_bf16_f32 v{t+3}, v{B+2}, v{B+3}")
            E("s_nop 1")
            E(f"v_permlane16_swap_b32 v{t}, v{t+2}\nv_permlane16_swap_b32 v{t+1}, v{t+3}")
            E("s_nop 1")
            E(f"buffer_store_dwordx4 v[{t}:{t+3}], v4, s[{self.sO}:{self.sO+3}], s{T+1} offen offset:{64*k}")

def gen_tail(E, name, stamp):
    E("tl_start:")
    t2 = T2(E)
    t2.setup()
    c = t1_part(E)
    signal(E, 1, 1)
    E(f"s_cmp_ge_u32 s{sU}, 14\ns_cbranch_scc1 tl_now2")
    t2.pre()
    E("tl_now2:")
    stamp(5)
    wait(E, 1, 0, 16)
    stamp(6)
    t1_main(E, c)
    signal(E, 2, 0x100)
    stamp(7)
    E(f"s_cmp_ge_u32 s{sU}, 14\ns_cbranch_scc1 tl_done")
    wait(E, 2, 8, 16)
    stamp(8)
    t2.main()
    t3 = T3(E)
    t3.setup()
    signal(E, 3, 0x10000)
    t3.pre()
    stamp(9)
    wait(E, 3, 16, 14)
    stamp(10)
    t3.main()
    E("tl_done:")
```

```python
WS_K   = 0
WS_V   = 16 << 20
WS_Q   = 32 << 20
WS_XN  = 48 << 20
WS_OP  = 50 << 20
WS_PT  = 80 << 20
WS_H   = 100 << 20
WS_HN  = 102 << 20
WS_HM  = 104 << 20
WS_FLG = 120 << 20
WS_DBG = 0x8000000
FLG_BYTES = 32768
FLG_ERR = 32000
NONCE_OFF = 31744
HEAD_OFF = 24576
```

```python
from asmlib import *
from ws import *
import k0

def stamp_code(E, i, on):
    if on is True: E(f"s_memtime s[{76+4*i}:{77+4*i}]\ns_memrealtime s[{78+4*i}:{79+4*i}]")

STAMP_OFF = [0]
SPIN_MAX = 0x40000
def stamp_dump(E, n, lab, sws=6):
    E("s_waitcnt vmcnt(0) lgkmcnt(0)")
    E(f"s_mov_b32 s60, s{sws}\ns_mov_b32 s61, s{sws+1}\ns_mov_b32 s62, 0x10000000\ns_mov_b32 s63, 0x20000")
    E(f"s_lshl_b32 s64, s2, 6\ns_add_u32 s64, s64, {WS_DBG + STAMP_OFF[0]}")
    E("v_cmp_eq_u32 vcc, 0, v0\ns_and_saveexec_b64 s[66:67], vcc\ns_cbranch_execz " + f"{lab}_stsk")
    for i in range(n):
        E(f"v_mov_b32 v4, s{76+4*i}\nv_mov_b32 v5, s{78+4*i}\nv_mov_b32 v6, {8*i}")
        E("buffer_store_dwordx2 v[4:5], v6, s[60:63], s64 offen")
        E("s_nop 1")
    E(f"{lab}_stsk:\ns_mov_b64 exec, s[66:67]")

def gen_k1(name="k1_kernel", stamps=False, exp="", nxt=None):
    E = Emit()
    XSLOT = 32768; WBASE = 98304; WSLOT = 16384
    XF = lambda st, i: 64 + st * 32 + i * 4
    WF = lambda st, j: 128 + st * 32 + j * 4
    XA = lambda t, seg: 10 + t * 2 + seg
    WA = lambda j: 14 + j
    XD = lambda p: 22 + p
    WD = lambda p: 26 + p
    XQ = lambda p: 30 + p
    WA2 = lambda j: 40 + j
    sX, sW, sO, sXq, sWq, sOq = 8, 12, 16, 36, 40, 44
    sWave, sXk, sWk, sM0X, sM0W, sSel, sH, sMB = 20, 21, 22, 23, 24, 26, 27, 28
    sXqk, sWqk, sHq, sRB = 48, 49, 50, 51
    NKV, NQ = 32, 14
    SC = ' sc1' if 'wt' in exp else ''
    GLN = 8 if 'g0' not in exp else 0
    if 'lnpro' in exp: GLN = -2
    PL = 8
    if 'bst' in exp: stamps = 'dumponly'
    NG = NKV + NQ
    if "noq" in exp: NG = NKV
    E("s_cmp_ge_u32 s2, 256")
    E(f"s_cbranch_scc1 {name}_end")
    stamp_code(E, 0, stamps)
    E("s_load_dwordx4 s[4:7], s[0:1], 8")
    E("s_load_dwordx4 s[32:35], s[0:1], 24")
    E("s_load_dwordx2 s[52:53], s[0:1], 96")
    E("s_load_dwordx2 s[54:55], s[0:1], 0")
    E("s_load_dwordx2 s[56:57], s[0:1], 88")
    E("s_load_dwordx2 s[58:59], s[0:1], 40")
    E("s_and_b32 s29, s2, 7")
    E("s_lshr_b32 s30, s2, 3")
    E(f"s_lshr_b32 s{sMB}, s30, 2")
    E("s_and_b32 s31, s30, 3")
    E("s_lshl_b32 s25, s29, 2")
    E("s_add_u32 s25, s25, s31")
    E(f"s_lshr_b32 s{sSel}, s25, 4")
    E(f"s_and_b32 s{sH}, s25, 15")
    NCP = 0
    E("s_and_b32 s31, s30, 1")
    E("s_lshl_b32 s29, s29, 1")
    E(f"s_add_u32 s{sHq}, s29, s31")
    E(f"s_lshr_b32 s{sRB}, s2, 4")
    LB = 192
    k0.ln_addr(E, LB)
    E("v_and_b32 v1, 63, v0")
    E("v_lshrrev_b32 v2, 6, v0")
    E("s_nop 0")
    E(f"v_readfirstlane_b32 s{sWave}, v2")
    E("v_lshrrev_b32 v3, 3, v1")
    E("v_lshlrev_b32 v4, 5, v2")
    E("v_add_u32 v3, v3, v4")
    E("v_and_b32 v4, 7, v1")
    E("v_lshrrev_b32 v5, 4, v1")
    E("v_xor_b32 v4, v4, v5")
    E("v_xor_b32 v5, 4, v4")
    E("v_lshlrev_b32 v4, 4, v4")
    E("v_lshlrev_b32 v5, 4, v5")
    E("v_lshlrev_b32 v6, 11, v3")
    E("v_mul_u32_u24 v7, 896, v3")
    for p in range(4):
        c = "v4" if p % 2 == 0 else "v5"
        E(f"v_add_u32 v8, v6, {c}")
        E(f"v_add_u32 v{XD(p)}, {p*(8*2048-1024)}, v8")
        E(f"v_add_u32 v8, v7, {c}")
        E(f"v_add_u32 v{XQ(p)}, {p*(8*896-1024)}, v8")
    E("v_lshrrev_b32 v3, 5, v1")
    E("v_lshlrev_b32 v4, 3, v2")
    E("v_add_u32 v4, v4, v3")
    E("v_lshlrev_b32 v4, 13, v4")
    E("v_and_b32 v5, 31, v1")
    E("v_and_b32 v7, 1, v2")
    E("v_lshlrev_b32 v7, 3, v7")
    E("v_xor_b32 v5, v5, v7")
    for p in range(4):
        E(f"v_add_u32 v6, {2*p}, v3")
        E("v_and_b32 v6, 3, v6")
        E("v_lshlrev_b32 v6, 1, v6")
        E("v_xor_b32 v6, v6, v5")
        E("v_lshlrev_b32 v6, 4, v6")
        E("v_add_u32 v6, v6, v4")
        E(f"v_add_u32 v{WD(p)}, {p*(2*8192-1024)}, v6")
    E("s_waitcnt lgkmcnt(0)")
    if "pst" in exp: stamp_code(E, 1, True)
    def srd(s, lo, hi, off_s, size):
        if off_s is None:
            E(f"s_mov_b32 s{s}, s{lo}\ns_mov_b32 s{s+1}, s{hi}")
        else:
            E(f"s_add_u32 s{s}, s{lo}, {off_s}\ns_addc_u32 s{s+1}, s{hi}, 0")
        E(f"s_mov_b32 s{s+2}, {size}\ns_mov_b32 s{s+3}, 0x20000")
    sLI, sLO, sFL, sPF = 60, 64, 68, 72
    srd(sLI, 54, 55, None, 2048*896)
    k0.ln_load(E, LB, sLI)
    E(f"s_lshl_b32 s29, s{sMB}, 19")
    srd(sX, 4, 5, "s29", 0x80000)
    E(f"s_cmp_eq_u32 s{sSel}, 0")
    E("s_cselect_b32 s30, s32, s34")
    E("s_cselect_b32 s31, s33, s35")
    E(f"s_lshl_b32 s29, s{sH}, 9")
    srd(sW, 30, 31, "s29", 0x800000)
    E(f"s_sub_u32 s{sW+2}, s{sW+2}, s29")
    E(f"s_lshl_b32 s{sM0X}, s{sWave}, 12")
    E(f"s_add_u32 s{sM0W}, s{sM0X}, {WBASE}")
    E(f"s_mov_b32 s{sXk}, 0")
    E(f"s_mov_b32 s{sWk}, 0")

    vm = [("C", 0)] * NCP + [("LN", 0)] * 2
    def dma_x(grp, hf):
        slot = grp % 3
        u = []
        if grp < 16:
            so = hf * 128 * 2048 + grp * 128
            reg, srd_, lds = XD, sX, slot * XSLOT + hf * 16384
        else:
            so = (grp - 16) * 128
            reg, srd_, lds = XQ, sXq, slot * XSLOT
        u.append(f"s_add_u32 m0, s{sM0X}, {lds}\ns_mov_b32 s{sXk}, {so}\nbuffer_load_dwordx4 v{reg(0)}, s[{srd_}:{srd_+3}], s{sXk} offen lds")
        for p in range(1, 4):
            u.append(f"buffer_load_dwordx4 v{reg(p)}, s[{srd_}:{srd_+3}], s{sXk} offen offset:{p*1024} lds")
        return [(t, ("X", grp)) for t in u]
    def wslot(G):
        if G < NKV: return WBASE + (G % 4) * WSLOT
        L = [WBASE, WBASE + WSLOT, WBASE + 2*WSLOT, WBASE + 3*WSLOT, 49152, 81920]
        return L[(G - NKV) % 6]
    def dma_w(G):
        if G < NKV: so, srd_ = G * 32 * 8192, sW
        else: so, srd_ = (G - NKV) * 32 * 8192, sWq
        u = [f"s_add_u32 m0, s{sM0X}, {wslot(G)}\ns_mov_b32 s{sWk}, {so}\nbuffer_load_dwordx4 v{WD(0)}, s[{srd_}:{srd_+3}], s{sWk} offen lds"]
        for p in range(1, 4):
            u.append(f"buffer_load_dwordx4 v{WD(p)}, s[{srd_}:{srd_+3}], s{sWk} offen offset:{p*1024} lds")
        return [(t, ("W", G)) for t in u]
    def need(*tags):
        idx = max(max(i for i, t in enumerate(vm) if t == tag) for tag in tags)
        return len(vm) - 1 - idx
    def xgrp(G): return G >> 1 if G < NKV else 16 + ((G - NKV) >> 1)
    def reads(G, st):
        grp = xgrp(G); t = G & 1
        slot = grp % 3
        seg = 1 if slot == 2 else 0
        xb = slot * XSLOT - seg * 65536
        nx = 8 if G < NKV else 4
        xr = [f"ds_read_b128 v[{XF(st,i)}:{XF(st,i)+3}], v{XA(t,seg)} offset:{xb + i*2048}" for i in range(nx)]
        ws_ = wslot(G)
        if ws_ >= WBASE: wb, wa = ws_ - WBASE, WA
        else: wb, wa = ws_ - (WBASE - 65536), WA2
        wr = []
        for j in range(8):
            for tt in range(2):
                wr.append(f"ds_read_b64_tr_b16 v[{WF(st,j)+2*tt}:{WF(st,j)+2*tt+1}], v{wa(j)} offset:{wb + tt*2048}")
        return [xr[0]] + wr + xr[1:]
    def mfmas(G, st, sel):
        m = []
        first = G == 0 or G == NKV
        nx = 8 if G < NKV else 4
        for i in range(nx):
            for j in range(8):
                b = (i*8+j)*4
                acc = f"a[{b}:{b+3}]"
                x = f"v[{XF(st,i)}:{XF(st,i)+3}]"; w = f"v[{WF(st,j)}:{WF(st,j)+3}]"
                c = "0" if first else acc
                if sel == 0 or G >= NKV: m.append(f"v_mfma_f32_16x16x32_bf16 {acc}, {w}, {x}, {c}")
                else:                    m.append(f"v_mfma_f32_16x16x32_bf16 {acc}, {x}, {w}, {c}")
        return m

    RAMP = "noramp" not in exp
    pro = dma_x(0,0) + dma_x(0,1) + dma_w(0) + dma_w(1) + dma_x(1,0) + dma_x(1,1) + dma_w(2)
    if not RAMP: pro += dma_w(3) + dma_x(2,0) + dma_x(2,1)
    for u, tg in pro:
        E(u); vm.append(tg)
    backlog0 = [(2, "w", 3), (3, "x", (2, 0)), (3, "x", (2, 1))] if RAMP else []
    if "pst" in exp: stamp_code(E, 2, True)
    if "nocpf" not in exp:
        E(f"s_cmp_eq_u32 s{sSel}, 0\ns_cbranch_scc0 {name}_cpv")
        code_prefetch_shared(E, name, 0xa800, name + "_a", 72, 74, 8, sWave)
        E(f"s_branch {name}_cpd\n{name}_cpv:")
        code_prefetch_shared(E, name + "_v", 0xa800, name + "_b", 72, 74, 8, sWave)
        E(f"{name}_cpd:")
    E(f"s_lshl_b32 s29, s{sSel}, 24")
    E(f"s_lshl_b32 s30, s{sH}, 20")
    E("s_add_u32 s29, s29, s30")
    srd(sO, 52, 53, "s29", 0x100000)
    E(f"s_mul_i32 s29, s{sRB}, {128*896}")
    E(f"s_add_u32 s29, s29, {WS_XN}")
    srd(sXq, 52, 53, "s29", 128*896)
    E(f"s_lshl_b32 s29, s{sHq}, 9")
    srd(sWq, 6, 7, "s29", 448*8192)
    E(f"s_sub_u32 s{sWq+2}, s{sWq+2}, s29")
    E(f"s_lshl_b32 s29, s{sHq}, 20")
    E(f"s_add_u32 s29, s29, {WS_Q}")
    srd(sOq, 52, 53, "s29", 0x100000)
    E("v_and_b32 v3, 15, v1")
    E("v_lshrrev_b32 v4, 4, v1")
    E("v_bfe_u32 v5, v1, 1, 3")
    E("v_xor_b32 v4, v4, v5")
    E("v_lshrrev_b32 v6, 7, v0")
    E("v_lshlrev_b32 v6, 7, v6")
    E("v_add_u32 v3, v3, v6")
    E("v_lshlrev_b32 v3, 7, v3")
    for t in range(2):
        E(f"v_xor_b32 v5, {4*t}, v4")
        E("v_lshlrev_b32 v5, 4, v5")
        E(f"v_add_u32 v{XA(t,0)}, v3, v5")
        E(f"v_add_u32 v{XA(t,1)}, 0x10000, v{XA(t,0)}")
    E("v_bfe_u32 v3, v1, 2, 2")
    E("v_lshrrev_b32 v4, 4, v1")
    E("v_lshlrev_b32 v5, 3, v4")
    E("v_add_u32 v5, v5, v3")
    E("v_lshlrev_b32 v5, 9, v5")
    E("v_and_b32 v4, 1, v4")
    E("v_lshlrev_b32 v4, 2, v4")
    E("v_or_b32 v3, v3, v4")
    E("v_and_b32 v6, 3, v1")
    E("v_lshlrev_b32 v6, 3, v6")
    E("v_add_u32 v5, v5, v6")
    E("v_bfe_u32 v6, v0, 6, 1")
    E("v_lshlrev_b32 v6, 8, v6")
    E("v_add_u32 v5, v5, v6")
    E(f"v_add_u32 v5, {WBASE}, v5")
    for j in range(8):
        E(f"v_xor_b32 v6, {j}, v3")
        E("v_lshlrev_b32 v6, 5, v6")
        E(f"v_add_u32 v{WA(j)}, v5, v6")
        E(f"v_subrev_u32 v{WA2(j)}, 0x10000, v{WA(j)}")
    srd(sLO, 52, 53, WS_XN, 2048*896)
    srd(sFL, 56, 57, None, 256)
    PFW, PFX = 34, 35
    PX, PW = 48, 49
    E("s_lshr_b32 s29, s2, 3\ns_and_b32 s29, s29, 3\ns_lshl_b32 s29, s29, 6")
    E(f"s_lshl_b32 s30, s{sWave}, 4\ns_add_u32 s29, s29, s30\nv_and_b32 v3, 15, v1\nv_add_u32 v3, s29, v3\nv_lshlrev_b32 v3, 11, v3\nv_lshrrev_b32 v4, 4, v1\nv_lshlrev_b32 v4, 5, v4\nv_add_u32 v{PX}, v3, v4")
    E(f"s_lshl_b32 s29, s{sMB}, 3\ns_lshl_b32 s30, s{sWave}, 1\ns_add_u32 s29, s29, s30\nv_bfe_u32 v3, v1, 4, 1\nv_add_u32 v3, s29, v3\nv_lshlrev_b32 v3, 13, v3")
    E(f"v_and_b32 v4, 15, v1\nv_lshlrev_b32 v4, 5, v4\nv_add_u32 v{PW}, v3, v4")
    E("s_lshr_b32 s29, s2, 3")
    E(f"s_mul_i32 s30, s{sWave}, 56\nv_min_u32 v3, 55, v1\nv_add_u32 v3, s30, v3")
    E("v_lshrrev_b32 v4, 4, v3\ns_mul_i32 s30, s29, 14\nv_add_u32 v4, s30, v4\nv_lshlrev_b32 v4, 13, v4")
    E("v_and_b32 v3, 15, v3\nv_lshlrev_b32 v3, 6, v3\nv_add_u32 v4, v4, v3")
    E(f"s_and_b32 s30, s{sHq}, 1\ns_lshl_b32 s30, s30, 9")
    E(f"v_subrev_u32 v4, s30, v4\nv_max_i32 v{PFW}, 0, v4")
    E(f"s_mul_i32 s30, s29, 448\ns_mul_i32 s31, s{sWave}, 112\ns_add_u32 s30, s30, s31")
    E(f"v_add_u32 v3, s30, v1\nv_lshlrev_b32 v{PFX}, 7, v3")
    E(f"v_min_u32 v4, 47, v1\nv_add_u32 v4, 64, v4\nv_add_u32 v4, s30, v4\nv_lshlrev_b32 v{PFX+1}, 7, v4")
    class Cap:
        def __init__(self): self.l = []
        def __call__(self, t):
            for x in t.split("\n"):
                if x.strip(): self.l.append(x.strip())
    cap = Cap(); k0.ln_math_store(cap, LB, sLO, "sc1")
    ln_stream = []
    for t in cap.l:
        if t.startswith("buffer_store"): ln_stream.append((12, t, ("LS", 0)))
        elif t.startswith("s_nop"): ln_stream.append((0, t, None))
        elif t.startswith("v_rsq"): ln_stream.append((8, t, None))
        else: ln_stream.append((4, t, None))
    if "tlb" in exp:
        E(f"s_lshl_b32 s29, s{sMB}, 17\ns_lshl_b32 s30, s{sWave}, 15\ns_add_u32 s29, s29, s30\nv_mov_b32 v8, s29")
        E(f"buffer_load_dword v9, v8, s[{sO}:{sO+3}], 0 offen")
        E(f"s_lshl_b32 s29, s{sRB}, 16\ns_lshl_b32 s30, s{sWave}, 14\ns_add_u32 s29, s29, s30\nv_mov_b32 v8, s29")
        E(f"buffer_load_dword v9, v8, s[{sOq}:{sOq+3}], 0 offen")
        E(f"s_mul_i32 s30, s{sWave}, {112*8192}\nv_mov_b32 v8, s30")
        E(f"buffer_load_dword v9, v8, s[{sWq}:{sWq+3}], 0 offen")
        E(f"s_mul_i32 s30, s{sWave}, {32*896}\nv_mov_b32 v8, s30")
        E(f"buffer_load_dword v9, v8, s[{sXq}:{sXq+3}], 0 offen")
        vm.extend([("T", 0)] * 4)
    if "nopf" not in exp and "pf18" not in exp and NG > NKV:
        E(f"buffer_load_dword v7, v{PFW}, s[{sWq}:{sWq+3}], 0 offen"); vm.append(("P", 0))
    if "lnpro" in exp:
        E(f"s_waitcnt vmcnt({need(('LN',0))})")
        for c, t, tg in ln_stream:
            E(t)
            if tg: vm.append(tg)
    E(f"s_waitcnt vmcnt({need(('X',0),('W',0))})")
    if "pst" in exp: stamp_code(E, 3, True)
    E("s_barrier")
    if "pst" in exp: stamps = "dumponly2"; stamp_code(E, 4, True)
    stamp_code(E, 1, stamps)
    for u in reads(0, 0): E(u)
    E(f"s_cmp_eq_u32 s{sSel}, 0")
    E(f"s_cbranch_scc0 {name}_v")
    E(f"{name}_k0:")
    vm0 = list(vm)

    def kv_epi_setup(sel):
        E("v_lshlrev_b32 v3, 4, v1")
        E("v_lshrrev_b32 v4, 7, v0")
        E("v_lshlrev_b32 v4, 16, v4")
        E("v_add_u32 v3, v3, v4")
        E("v_bfe_u32 v4, v0, 6, 1")
        E(f"v_lshlrev_b32 v4, {12 if sel == 0 else 13}, v4")
        E("v_add_u32 v3, v3, v4")
        E(f"s_lshl_b32 s29, s{sMB}, 17")
    def kv_units(sel):
        units = []; n = 0
        for a in range(8 if sel == 0 else 4):
            for b in range(4 if sel == 0 else 8):
                t = 192 + (n % 4) * 12; n += 1
                if sel == 0:
                    src = [(a*8 + 2*b)*4 + r for r in range(8)]; off = a*8192 + b*1024
                else:
                    src = [(2*a*8 + b)*4 + r for r in range(4)] + [((2*a+1)*8 + b)*4 + r for r in range(4)]; off = a*16384 + b*1024
                u = [(4, f"v_accvgpr_read_b32 v{t+r}, a{src[r]}", None) for r in range(8)]
                u += [(4, f"v_cvt_pk_bf16_f32 v{t+8+r}, v{t+2*r}, v{t+2*r+1}", None) for r in range(4)]
                u += [(12, f"s_add_u32 s30, s29, {off}\nbuffer_store_dwordx4 v[{t+8}:{t+11}], v3, s[{sO}:{sO+3}], s30 offen{SC}", ("S", 0))]
                units.append(u)
        assert all(int(x[1].split("a")[-1]) < 128 for u in units[:16] for x in u[:8])
        return units
    def q_epilogue():
        E("s_nop 7")
        E("v_lshlrev_b32 v3, 4, v1")
        E("v_lshrrev_b32 v4, 7, v0")
        E("v_lshlrev_b32 v4, 15, v4")
        E("v_add_u32 v3, v3, v4")
        E("v_bfe_u32 v4, v0, 6, 1")
        E("v_lshlrev_b32 v4, 12, v4")
        E("v_add_u32 v3, v3, v4")
        E(f"s_lshl_b32 s29, s{sRB}, 16")
        E("s_mov_b32 s31, 0x3db8aa3b")
        n = 0
        for a in range(4):
            for b in range(4):
                t = 192 + (n % 4) * 12; n += 1
                src = [(a*8 + 2*b)*4 + r for r in range(8)]; off = a*8192 + b*1024
                for r in range(8): E(f"v_accvgpr_read_b32 v{t+r}, a{src[r]}")
                for r in range(8): E(f"v_mul_f32 v{t+r}, s31, v{t+r}")
                for r in range(4): E(f"v_cvt_pk_bf16_f32 v{t+8+r}, v{t+2*r}, v{t+2*r+1}")
                E(f"s_add_u32 s30, s29, {off}")
                E(f"buffer_store_dwordx4 v[{t+8}:{t+11}], v3, s[{sOq}:{sOq+3}], s30 offen{SC}")

    for sel in range(2):
        lab = f"{name}_{'kv'[sel]}"
        if sel == 1: E(f"{lab}:")
        vm[:] = vm0
        pend = []
        backlog = list(backlog0)
        if 'noln' in exp: vm.append(('LS', 0))
        for G in range(NG):
            st = G & 1
            if G == GLN and 'noln' not in exp and 'lnpro' not in exp: pend = list(ln_stream)
            if G == NKV:
                stamp_code(E, 2, stamps)
                E("v_lshrrev_b32 v4, 7, v0\nv_lshlrev_b32 v4, 13, v4")
                for t in range(2):
                    for seg in range(2): E(f"v_sub_u32 v{XA(t,seg)}, v{XA(t,seg)}, v4")
                for u in reads(NKV, st): E(u)
                E("s_nop 4")
                kv_epi_setup(sel)
                un = kv_units(sel)
                nexp = 32 if "allexp" in exp else (8 if "exp8" in exp else 16)
                for u in un[:nexp]:
                    for c, t, tg in u:
                        E(t)
                        if tg: vm.append(tg)
                pend = [x for u in un[nexp:] for x in u]
                stamp_code(E, 3, stamps)
            if "bst" in exp and G % 6 == 0 and G < 36: E(f"s_memtime s[{76+4*(G//6)}:{77+4*(G//6)}]\ns_memrealtime s[{78+4*(G//6)}:{79+4*(G//6)}]")
            last = G == NG - 1
            ngap = 64 if G < NKV else 32
            S = Sched(ngap)
            tags = {}
            def putv(g, c, t, tg):
                S.put(g, c, t); tags.setdefault(g, []).append(tg)
            if not last:
                E(f"s_waitcnt vmcnt({need(('X', xgrp(G+1)), ('W', G+1))}) lgkmcnt(0)")
                E("s_barrier")
                if G + 1 != NKV:
                    rd = reads(G + 1, st ^ 1)
                    step = 2 if ngap == 64 else 1
                    for k, t in enumerate(rd): S.put(step * k, 4, t)
                reg = []
                if G + 4 < NKV + (4 if NG > NKV else 0) and G < NKV: reg.append((G + 3, "w", G + 4))
                if NG > NKV and G == 28: reg.append((NKV + 3, "w", NKV + 4))
                if NG > NKV and G == 30: reg.append((NKV + 4, "w", NKV + 5))
                if G >= NKV and G + 6 < NG: reg.append((G + 5, "w", G + 6))
                if G < NKV:
                    if G % 2 == 1: grp, hf = (G - 1) // 2 + 3, 0
                    else: grp, hf = G // 2 + 2, 1
                    if G == 0: grp = None
                else:
                    it = G - NKV
                    grp, hf = (16 + (it - 1) // 2 + 3, 0) if it % 2 == 1 else (None, 0)
                if grp is not None:
                    maxg = 16 + 7 if NG > NKV else 16
                    if grp < 16 or (grp < maxg and hf == 0):
                        dl = 2 * grp - 1 if grp < 16 else NKV + 2 * (grp - 16) - 1
                        reg.append((dl, "x", (grp, hf)))
                backlog.extend(reg); backlog.sort(key=lambda x: x[0])
                ntake = 3 if (G < 6 or len(backlog) > 2) else len(backlog)
                take, backlog[:] = backlog[:ntake], backlog[ntake:]
                d = []
                for dl, kind, arg in take:
                    assert dl > G or dl == G, (G, dl, kind, arg)
                    assert dl >= G + 1 or True
                    d += dma_x(*arg) if kind == "x" else dma_w(arg)
                dp = [5, 11, 17, 23, 29, 35, 41, 47, 51, 55, 59, 63] if ngap == 64 else [20, 22, 24, 26, 21, 23, 25, 27]
                if ngap == 32 and len(d) <= 4: dp = [21, 24, 27, 30]
                elif ngap == 32: dp = [20, 21, 22, 24, 25, 27, 29, 31]
                for (t, tg), g in zip(d, dp): putv(g, 12, t, tg)
                if "l2pf" in exp and G < NKV:
                    if G % 2 == 1 and (G + PL + 1) // 2 < 16:
                        putv(57, 12, f"s_mov_b32 s31, {((G + PL + 1) // 2) * 128}\nbuffer_load_dword v7, v{PX}, s[{sX}:{sX+3}], s31 offen", ("P", 2))
                    if G % 2 == 0 and G + PL < NKV:
                        putv(57, 12, f"s_mov_b32 s31, {(G + PL) * 32 * 8192}\nbuffer_load_dword v7, v{PW}, s[{sW}:{sW+3}], s31 offen", ("P", 3))
                if G == GLN + 7 and 'nosig' not in exp:
                    assert need(('W', G+1)) <= len(vm) - 1 - max(i for i, t in enumerate(vm) if t == ('LS', 0)) - 0 and True
                    sk = f"{lab}_nosig"
                    S.put(51, 0, f"s_cmp_lg_u32 s{sWave}, 0\ns_cbranch_scc1 {sk}\ns_lshr_b32 s30, s2, 4\ns_lshl_b32 s30, s30, 2\nv_mov_b32 v4, 1\nv_mov_b32 v5, s30\ns_mov_b64 exec, 1\nbuffer_atomic_add v4, v5, s[{sFL}:{sFL+3}], 0 offen sc1\ns_mov_b64 exec, -1\n{sk}:")
                if G == 4:
                    zk = f"{lab}_nozero"
                    putz = f"s_cmp_lg_u32 s{sWave}, 0\ns_cbranch_scc1 {zk}\ns_add_u32 s60, s52, {WS_FLG}\ns_addc_u32 s61, s53, 0\ns_mov_b32 s62, {FLG_BYTES}\ns_mov_b32 s63, 0x20000\ns_lshl_b32 s30, s2, 7\nv_lshlrev_b32 v4, 2, v1\nv_mov_b32 v5, 0\ns_mov_b32 exec_hi, 0\nbuffer_store_dword v5, v4, s[60:63], s30 offen\ns_mov_b64 exec, -1\n{zk}:"
                    S.put(55, 0, putz)
                if NG > NKV and G == GLN + 10 and 'nopoll' not in exp:
                    putv(53, 12, f"s_lshl_b32 s30, s{sRB}, 2\nv_mov_b32 v5, s30\nbuffer_load_dword v6, v5, s[{sFL}:{sFL+3}], 0 offen sc1", ("F", 0))
                if NG > NKV and G == GLN + 14 and 'nopoll' not in exp:
                    ok, pl = f"{lab}_xnok", f"{lab}_xnpoll"
                    to = f"{lab}_xnto"
                    S.put(53, 8, f"v_readfirstlane_b32 s30, v6\ns_cmp_ge_u32 s30, 16\ns_cbranch_scc1 {ok}\ns_mov_b32 s31, 0\n{pl}:\ns_sleep 1\nbuffer_load_dword v6, v5, s[{sFL}:{sFL+3}], 0 offen sc1\ns_waitcnt vmcnt(0)\nv_readfirstlane_b32 s30, v6\ns_add_u32 s31, s31, 1\ns_cmp_ge_u32 s31, {SPIN_MAX}\ns_cbranch_scc1 {to}\ns_cmp_ge_u32 s30, 16\ns_cbranch_scc0 {pl}\ns_branch {ok}\n{to}:\nv_mov_b32 v6, 0xbad1\nv_mov_b32 v7, 128\nbuffer_store_dword v6, v7, s[{sFL}:{sFL+3}], 0 offen\n{ok}:")
                if NG > NKV and G == 18 and "pf18" in exp:
                    putv(53, 12, f"buffer_load_dword v7, v{PFW}, s[{sWq}:{sWq+3}], 0 offen", ("P", 0))
                if NG > NKV and G in (19, 20) and "pfx" in exp:
                    putv(53, 12, f"buffer_load_dword v7, v{PFX}, s[{sLO}:{sLO+3}], 0 offen offset:{0 if G == 19 else 0}" if G == 19 else f"buffer_load_dword v7, v{PFX+1}, s[{sLO}:{sLO+3}], 0 offen", ("P", 1))
                if pend:
                    k = 0; cur = 0
                    while k < len(pend):
                        c, t, tg = pend[k]
                        g = cur
                        while g < ngap and c and not (S.c[g] == 0 if c == 12 else S.c[g] + c <= 8): g += 1
                        if g >= ngap: break
                        if tg: putv(g, c, t, tg)
                        else: S.put(g, c, t)
                        cur = g; k += 1
                        if G >= NKV and k >= 26 and pend[k-1][2]: break
                    pend = pend[k:]
            else:
                E("s_waitcnt lgkmcnt(0)")
            S.emit(E, mfmas(G, st, sel))
            for g in sorted(tags): vm.extend(tags[g])
        for c, t, tg in pend: E(t)
        if NG == NKV:
            stamp_code(E, 2, stamps)
            E("s_nop 7")
            kv_epi_setup(sel)
            for u in kv_units(sel):
                for c, t, tg in u: E(t)
            stamp_code(E, 3, stamps)
        else:
            stamp_code(E, 4, stamps)
            if nxt and "nocpf" not in exp: code_prefetch_shared(E, nxt[0], nxt[1], f"{lab}_n", 72, 74, 8, sWave)
            q_epilogue()
        if stamps:
            E("s_waitcnt vmcnt(0)")
            stamp_code(E, 5 if NG > NKV else 4, True)
            stamp_dump(E, 6 if NG > NKV else 5, lab, 52)
        E("s_endpgm")
    E(f"{name}_end:")
    E("s_endpgm")
    return E.text()
```

```python
from asmlib import *
from ws import *
from k1 import SPIN_MAX, STAMP_OFF
import tail

NS = 5
CH = 32768
THR = 0x44800000
NA = 18

def O(db, qt): return (db * 2 + qt) * 4
def Q(qt, ds): return 128 + (qt * 8 + ds) * 4
def F(f): return 192 + (f % 16) * 4
def S(par, kb, qt): return 64 + par * 32 + (kb * 2 + qt) * 4
def P(par, s, qt): return 128 + par * 16 + (s * 2 + qt) * 4
def NEGM(qt): return 160 + 4 * qt
TMP = 168
L_ = lambda qt: 184 + qt
LS = lambda qt: 186 + qt
M_ = lambda qt: 188 + qt
DM = lambda qt: 190 + qt
vRA, vRB, vLane16, vTab = 192, 193, 194, 196
vT0 = 200
vD = 224
vW = 232
vWA = 240
vPM = 246
vFL = 250
sDM = 8
sQ = 12
sPT = 16
sOP = 20
sWO = 24
sFL = 28
sWave, sH, sPair, sType = 32, 33, 34, 35
sC, sWr, sRdN, sOff, sN, sI, sT, sQB, sItem = 36, 37, 38, 39, 40, 41, 42, 43, 44
sTmp, sTmp2, sTmp3 = 45, 46, 47
sM0 = 48
sNKV, sSig, sHasP, sPI = 52, 53, 54, 62

def a4(b): return f"a[{b}:{b+3}]"
def v4(b): return f"v[{b}:{b+3}]"

def stamp_code(E, i, on):
    if on: E(f"s_memtime s[96:97]\ns_memrealtime s[98:99]\ns_waitcnt lgkmcnt(0)\nv_writelane_b32 v252, s96, {i}\nv_writelane_b32 v253, s98, {i}")
def stamp_dump(E, n, lab, sws):
    E("s_mov_b64 exec, -1\ns_waitcnt vmcnt(0) lgkmcnt(0)")
    E(f"s_mov_b32 s60, s{sws}\ns_mov_b32 s61, s{sws+1}\ns_mov_b32 s62, 0x10000000\ns_mov_b32 s63, 0x20000")
    E(f"s_lshl_b32 s56, s2, 7\ns_add_u32 s56, s56, {WS_DBG + STAMP_OFF[0]}")
    E(f"s_cmp_lg_u32 s{sWave}, 0\ns_cbranch_scc1 {lab}_stsk")
    E("v_and_b32 v4, 63, v0\nv_lshlrev_b32 v4, 3, v4\nv_mov_b32 v6, v252\nv_mov_b32 v7, v253\ns_mov_b64 exec, 0xffff")
    E("buffer_store_dwordx2 v[6:7], v4, s[60:63], s56 offen")
    E(f"{lab}_stsk:")

class K2:
    def __init__(self, name, stamps=False, exp="", nxt=None):
        self.nxt = nxt
        self.name = name; self.E = Emit(); self.stamps = stamps; self.exp = exp
        self.uid = 0; self.rare = []
    def ist(self, i):
        if "ist" in self.exp: stamp_code(self.E, i, True)
    def lab(self, s):
        self.uid += 1
        return f"{self.name}_{s}{self.uid}"

    def head_items(self, Sc, nxt, vmw=16, dma_gaps=None, sw=False, sg=False, m0gap=6):
        if isinstance(vmw, int): w = f"s_waitcnt vmcnt({vmw})"
        else: w = vmw
        Sc.put(1, 0, w + ("\ns_barrier" if "nobar" not in self.exp else ""))
        if sg:
            a, b = self.lab("sg"), self.lab("sgb")
            Sc.put(13, 0, f"s_cmp_eq_u32 s{sSig}, 1\ns_cbranch_scc1 {a}\n{b}:")
            self.rare.append(("signal", a, b))
        g0 = 2
        if sw:
            a, b = self.lab("sw"), self.lab("swb")
            Sc.put(2, 0, f"s_cmp_eq_u32 s{sC}, s{sNKV}\ns_cbranch_scc1 {a}\n{b}:")
            self.rare.append(("switch", a, b))
        Sc.put(3, 4, f"v_readlane_b32 s{sOff}, v{vTab}, s{sC}")
        Sc.put(4, 0, f"s_add_u32 s{sRdN}, s{sRdN}, {CH}\ns_cmp_eq_u32 s{sRdN}, {NS*CH}\ns_cselect_b32 s{sRdN}, 0, s{sRdN}")
        Sc.put(6, 0, f"s_add_u32 s{sC}, s{sC}, 1")
        Sc.put(m0gap, 0, f"s_add_u32 m0, s{sWr}, s{sM0}")
        g = 6
        for reg, base in nxt:
            while Sc.c[g] + 4 > 8: g += 1
            Sc.put(g, 4, f"v_add_u32 v{reg}, s{sRdN}, v{base}")
        dg = dma_gaps or [9, 15, 21, 27, 33, 39, 45, 51]
        for p in range(8):
            t = f"buffer_load_dwordx4 v{vD+p}, s[{sDM}:{sDM+3}], s{sOff} offen offset:{(p&3)*1024} lds"
            if "nodma" not in self.exp: Sc.put(dg[p], 12, t)
            if p == 3: Sc.put(dg[p] + 1, 0, f"s_add_u32 m0, m0, 4096")
            if p == 7: Sc.put(dg[p] + 1, 0, f"s_add_u32 s{sWr}, s{sWr}, {CH}\ns_cmp_eq_u32 s{sWr}, {NS*CH}\ns_cselect_b32 s{sWr}, 0, s{sWr}")

    def frag_read(self, f, cur, nxt):
        if f < 32: return f"ds_read_b128 {a4(F(f))}, v{cur} offset:{f*1024}"
        return f"ds_read_b128 {a4(F(f))}, v{nxt} offset:{(f-32)*1024}"

    def qk_mfmas(self, par, cinit):
        m = []
        for kb in range(4):
            for ds in range(8):
                f = kb * 8 + ds
                for qt in range(2):
                    d = v4(S(par, kb, qt))
                    c = (v4(NEGM(qt)) if cinit else "0") if ds == 0 else d
                    m.append(f"v_mfma_f32_16x16x32_bf16 {d}, {a4(F(f))}, {a4(Q(qt, ds))}, {c}")
        return m
    def pv_mfmas(self, par):
        m = []
        for s in range(2):
            for db in range(16):
                f = s * 16 + db
                for qt in range(2):
                    d = a4(O(db, qt))
                    m.append(f"v_mfma_f32_16x16x32_bf16 {d}, {a4(F(f))}, {v4(P(par, s, qt))}, {d}")
        return m

    def sm_stream(self, par, half):
        out = []
        for kb in (2 * half, 2 * half + 1):
            for qt in range(2):
                s0 = S(par, kb, qt); t = TMP + ((kb * 2 + qt) % 4) * 4
                p = P(par, kb >> 1, qt) + 2 * (kb & 1)
                for r in range(4): out.append((8, f"v_exp_f32 v{t+r}, v{s0+r}"))
                if kb == 0:
                    out.append((4, f"v_add_f32 v{LS(qt)}, v{t}, v{t+1}"))
                else:
                    out.append((4, f"v_add_f32 v{LS(qt)}, v{LS(qt)}, v{t}"))
                    out.append((4, f"v_add_f32 v{LS(qt)}, v{LS(qt)}, v{t+1}"))
                out.append((4, f"v_cvt_pk_bf16_f32 v{p}, v{t}, v{t+1}"))
                out.append((4, f"v_add_f32 v{LS(qt)}, v{LS(qt)}, v{t+2}"))
                out.append((4, f"v_cvt_pk_bf16_f32 v{p+1}, v{t+2}, v{t+3}"))
                out.append((4, f"v_add_f32 v{LS(qt)}, v{LS(qt)}, v{t+3}"))
        return out

    def emit_phase(self, mf, cur, sm=(), extra=(), tail=(), vmw=16, pre=(), sw=False, sg=False, first=False):
        E = self.E
        nxt = vRB if cur == vRA else vRA
        n = len(mf)
        Sc = Sched(n)
        for f in range(32):
            if "nords" in self.exp: continue
            Sc.put(2 * f, 4, self.frag_read(f + 8, cur, nxt))
        if first:
            g = 3
            for c, so in ((2, 74), (3, 75)):
                for p in range(8):
                    pre_ = f"s_add_u32 m0, s{sM0}, {c*CH}\ns_nop 0\n" if p == 0 else ("s_add_u32 m0, m0, 4096\ns_nop 0\n" if p == 4 else "")
                    Sc.put(g, 12, pre_ + f"buffer_load_dwordx4 v{vD+p}, s[{sDM}:{sDM+3}], s{so} offen offset:{(p&3)*1024} lds"); g += 2
            self.head_items(Sc, [(nxt, vLane16)], 0, dma_gaps=[37, 39, 41, 43, 45, 47, 49, 51], sw=False, m0gap=36)
        else:
            self.head_items(Sc, [(nxt, vLane16)], vmw, sw=sw, sg=sg)
        for g, c, t in pre: Sc.put(g, c, t)
        if "nosm" in self.exp: sm = []
        if sm:
            exps = [t for c, t in sm if c == 8]
            free_odd = [g for g in range(5, n, 2) if Sc.c[g] == 0 and g <= 53]
            assert len(free_odd) >= len(exps), (len(free_odd), len(exps))
            egap = [free_odd[(j * len(free_odd)) // len(exps)] for j in range(len(exps))]
            for t, g in zip(exps, egap): Sc.put(g, 8, t)
            ne = 0; g = 0
            for c, t in sm:
                if c == 8: ne += 1; continue
                g = max(g, egap[ne - 1] + 1)
                while Sc.c[g] + c > 8: g += 1
                Sc.put(g, c, t)
            lastsm = g
        else: lastsm = 0
        if extra:
            left = Sc.put_free(list(extra), start=2, stride=0)
            assert not left or True
        else: left = []
        g = max(lastsm + 1, n - 2 * len(tail) - 2)
        for c, t in tail:
            while Sc.c[g] + c > 8 and g < n - 1: g += 1
            Sc.put(g, c, t)
        before = {8 * k: ["s_waitcnt lgkmcnt(4)"] for k in range(8)}
        Sc.emit(E, mf, before)
        for c, t in left: E(t)

    def mask_block(self, par):
        E = self.E
        E(f"s_lshl_b32 s{sTmp}, s{sT}, 6")
        for qt in range(2): E(f"v_subrev_u32 v{vT0+qt}, s{sTmp}, v{DM(qt)}")
        E(f"v_mov_b32 v{vT0+2}, 0xff800000")
        k = 0
        items = [(qt, kb, r) for qt in range(2) for kb in range(4) for r in range(4)]
        masks = ["s[56:57]", "s[58:59]", "s[60:61]"]
        for i in range(len(items) + 2):
            if i < len(items):
                qt, kb, r = items[i]
                E(f"v_cmp_le_i32 {masks[i % 3]}, {16*kb+r}, v{vT0+qt}")
            if i >= 2:
                qt, kb, r = items[i - 2]
                E(f"v_cndmask_b32 v{S(par,kb,qt)+r}, v{vT0+2}, v{S(par,kb,qt)+r}, {masks[(i-2) % 3]}")
            if i >= len(items): E("s_nop 0")

    def xlane(self, op, r, t):
        E = self.E
        E(f"v_mov_b32 v{t}, v{r}\ns_nop 1")
        E(f"v_permlane16_swap_b32 v{r}, v{t}\ns_nop 1")
        E(f"{op} v{r}, v{r}, v{t}")
        E(f"v_mov_b32 v{t}, v{r}\ns_nop 1")
        E(f"v_permlane32_swap_b32 v{r}, v{t}\ns_nop 1")
        E(f"{op} v{r}, v{r}, v{t}")

    def rowmax_inlane(self, par, qt, r):
        E = self.E
        vals = [S(par, kb, qt) + i for kb in range(4) for i in range(4)]
        E(f"v_max3_f32 v{r}, v{vals[0]}, v{vals[1]}, v{vals[2]}")
        for i in range(3, 15, 2): E(f"v_max3_f32 v{r}, v{r}, v{vals[i]}, v{vals[i+1]}")
        E(f"v_max_f32 v{r}, v{r}, v{vals[15]}")
    def xlane2(self, op, r0, r1, t0, t1):
        E = self.E
        for sw in ("v_permlane16_swap_b32", "v_permlane32_swap_b32"):
            E(f"v_mov_b32 v{t0}, v{r0}\nv_mov_b32 v{t1}, v{r1}\ns_nop 0")
            E(f"{sw} v{r0}, v{t0}\n{sw} v{r1}, v{t1}\ns_nop 0")
            E(f"{op} v{r0}, v{r0}, v{t0}\n{op} v{r1}, v{r1}, v{t1}")

    def init_block(self):
        E = self.E
        for qt in range(2): self.rowmax_inlane(0, qt, M_(qt))
        self.xlane2("v_max_f32", M_(0), M_(1), vT0, vT0 + 1)
        for qt in range(2):
            E(f"v_max_f32 v{M_(qt)}, 0xf149f2ca, v{M_(qt)}")
            for r in range(4): E(f"v_sub_f32 v{NEGM(qt)+r}, 0, v{M_(qt)}")
            E(f"v_mov_b32 v{L_(qt)}, 0")
        for qt in range(2):
            for kb in range(4):
                for r in range(4): E(f"v_sub_f32 v{S(0,kb,qt)+r}, v{S(0,kb,qt)+r}, v{M_(qt)}")

    def slow_block(self, par):
        E = self.E
        E("s_nop 15")
        for qt in range(2):
            d = vT0 + qt
            self.rowmax_inlane(par, qt, d)
            self.xlane("v_max_f32", d, vT0 + 2)
            E(f"v_max_f32 v{d}, 0, v{d}")
            E(f"v_add_f32 v{M_(qt)}, v{M_(qt)}, v{d}")
            for r in range(4): E(f"v_sub_f32 v{NEGM(qt)+r}, v{NEGM(qt)+r}, v{d}")
            for pp in (par, par ^ 1):
                for kb in range(4):
                    for r in range(4): E(f"v_sub_f32 v{S(pp,kb,qt)+r}, v{S(pp,kb,qt)+r}, v{d}")
            E(f"v_sub_f32 v{vT0+3}, 0, v{d}")
            E(f"v_exp_f32 v{vT0+3}, v{vT0+3}\ns_nop 0")
            E(f"v_mul_f32 v{L_(qt)}, v{L_(qt)}, v{vT0+3}")
            for db in range(16):
                for r in range(4):
                    a = O(db, qt) + r
                    E(f"v_accvgpr_read_b32 v{vT0+4}, a{a}")
                    E(f"v_mul_f32 v{vT0+4}, v{vT0+4}, v{vT0+3}")
                    E(f"v_accvgpr_write_b32 a{a}, v{vT0+4}")
        for half in range(2):
            for c, t in self.sm_stream(par, half): E(t)
        E(f"s_nop 2")

    def check_tail(self):
        return [(4, f"v_max_f32 v{vT0}, v{LS(0)}, v{LS(1)}"), (4, f"v_cmp_lt_f32 vcc, {THR}, v{vT0}")]
    def check(self, par, computed):
        E = self.E
        sl = self.lab("slow"); back = self.lab("back")
        if not computed:
            for c, t in self.check_tail(): E(t)
        if "noslow" not in self.exp: E(f"s_cbranch_vccnz {sl}")
        E(f"{back}:")
        for qt in range(2): E(f"v_add_f32 v{L_(qt)}, v{L_(qt)}, v{LS(qt)}")
        self.rare.append(("slow", sl, back, par))

    def maybe_mask(self, par):
        E = self.E
        sk = self.lab("nomask")
        E(f"s_lshl_b32 s{sTmp}, s{sQB}, 1")
        E(f"s_cmp_lt_u32 s{sT}, s{sTmp}")
        E(f"s_cbranch_scc1 {sk}")
        self.mask_block(par)
        E(f"{sk}:")

    def item_loop(self, first=False):
        E = self.E; nm = self.name
        E(f"s_lshl_b32 s{sTmp}, s{sQB}, 7")
        E(f"s_lshl_b32 s{sTmp2}, s{sWave}, 5")
        E(f"s_add_u32 s{sTmp}, s{sTmp}, s{sTmp2}")
        E(f"v_and_b32 v{vT0}, 15, v0")
        E(f"v_bfe_u32 v{vT0+1}, v0, 4, 2")
        E(f"v_lshlrev_b32 v{vT0+1}, 2, v{vT0+1}")
        E(f"v_sub_u32 v{vT0}, v{vT0}, v{vT0+1}")
        E(f"v_add_u32 v{DM(0)}, s{sTmp}, v{vT0}")
        E(f"v_add_u32 v{DM(1)}, 16, v{DM(0)}")
        zero = [(4, f"v_accvgpr_write_b32 a{i}, 0") for i in range(128)]
        self.emit_phase(self.qk_mfmas(0, False), vRA, extra=zero, sw=True, first=first)
        if first:
            if "nopf" not in self.exp: self.prefetch_weights()
            E(f"s_branch {nm}_qk0done")
            return
        E(f"{nm}_qk0done:")
        self.ist(2)
        E("s_nop 7")
        self.maybe_mask(0)
        self.init_block()
        self.ist(3)
        self.emit_phase(self.qk_mfmas(1, True), vRB, sm=self.sm_stream(0, 0))
        for c, t in self.sm_stream(0, 1): E(t)
        self.check(0, False)
        E(f"s_add_u32 s{sT}, s{sT}, 1")
        E(f"s_lshr_b32 s{sI}, s{sN}, 1\ns_sub_u32 s{sI}, s{sI}, 1")
        if "mid" in self.exp: stamp_code(E, 1, True)
        self.ist(4)
        E(f"s_cmp_eq_u32 s{sI}, 0")
        E(f"s_cbranch_scc1 {nm}_last")
        E(f"{nm}_loop:")
        for par in (1, 0):
            if par == 0: self.maybe_mask(0)
            self.emit_phase(self.qk_mfmas(par ^ 1, True), vRA, sm=self.sm_stream(par, 0), sw=(par == 0), sg=(par == 1))
            pre = [(8, 0, f"s_add_u32 s{sT}, s{sT}, 1")]
            if par == 0: pre.append((12, 0, f"s_sub_u32 s{sI}, s{sI}, 1"))
            self.emit_phase(self.pv_mfmas(par ^ 1), vRB, sm=self.sm_stream(par, 1), tail=self.check_tail(), pre=pre)
            self.check(par, True)
        E(f"s_cmp_lg_u32 s{sI}, 0")
        E(f"s_cbranch_scc1 {nm}_loop")
        E(f"{nm}_last:")
        if "mid" in self.exp: stamp_code(E, 2, True)
        self.ist(5)
        self.maybe_mask(1)
        for c, t in self.sm_stream(1, 0): E(t)
        pre = [(7, 12, f"buffer_load_dword v{vFL}, v{vFL+1}, s[{sFL}:{sFL+3}], 0 offen sc1")]
        self.emit_phase(self.pv_mfmas(0), vRA, sm=self.sm_stream(1, 1), tail=self.check_tail(), pre=pre, sg=True)
        self.check(1, True)
        self.ist(6)
        nop_, fin_a, fin_b = self.lab("nopre"), self.lab("fina"), self.lab("finb")
        qn = self.lab("qnext")
        E(f"s_cmp_eq_u32 s{sItem}, 1")
        E(f"s_cbranch_scc0 {qn}")
        E(f"s_cmp_eq_u32 s{sHasP}, 0")
        E(f"s_cbranch_scc1 {nop_}")
        got, pl = self.lab("got"), self.lab("poll")
        E("s_waitcnt vmcnt(7)")
        to = self.lab("to")
        E(f"s_mov_b32 s73, 0")
        E(f"{pl}:")
        E(f"v_readfirstlane_b32 s{sTmp3}, v{vFL}")
        E(f"s_cmp_lg_u32 s{sTmp3}, 0")
        E(f"s_cbranch_scc1 {got}")
        E("s_sleep 2")
        E(f"buffer_load_dword v{vFL}, v{vFL+1}, s[{sFL}:{sFL+3}], 0 offen sc1")
        E("s_waitcnt vmcnt(0)")
        E(f"s_add_u32 s73, s73, 1\ns_cmp_lt_u32 s73, {SPIN_MAX}")
        E(f"s_cbranch_scc1 {pl}")
        E(f"v_mov_b32 v{vT0}, 0xbad2\nv_mov_b32 v{vT0+1}, {FLG_ERR}\nbuffer_store_dword v{vT0}, v{vT0+1}, s[{sFL}:{sFL+3}], 0 offen")
        E(f"{got}:")
        E(f"s_lshl_b32 s{sTmp}, s{sWave}, 15")
        for i in range(16):
            E(f"s_add_u32 s{sTmp2}, s{sTmp}, {i*1024}")
            E(f"buffer_load_dwordx4 v[{64+4*i}:{67+4*i}], v{vLane16}, s[{sPT}:{sPT+3}], s{sTmp2} offen sc1")
        E(f"s_add_u32 s{sTmp2}, s{sTmp}, 16384")
        E(f"buffer_load_dwordx4 v[{vPM}:{vPM+3}], v{vLane16}, s[{sPT}:{sPT+3}], s{sTmp2} offen sc1")
        E(f"s_mov_b32 s{sTmp3}, 1")
        E(f"s_branch {fin_a}")
        E(f"{qn}:")
        self.load_q(next_item=True)
        E(f"s_mov_b32 s{sTmp3}, 1")
        E(f"s_branch {fin_a}")
        E(f"{nop_}:")
        E(f"s_mov_b32 s{sTmp3}, 0")
        E(f"{fin_a}:")
        self.ist(7)
        w1, w2 = self.lab("w"), self.lab("w")
        vmw = f"s_cmp_eq_u32 s{sTmp3}, 0\ns_cbranch_scc1 {w1}\ns_waitcnt vmcnt(32)\ns_branch {w2}\n{w1}:\ns_waitcnt vmcnt(16)\n{w2}:"
        self.emit_phase(self.pv_mfmas(1), vRB, vmw=vmw)
        self.ist(8)
        E(f"{nm}_itemdone:")

    def prologue(self):
        E = self.E; nm = self.name
        E("s_cmp_ge_u32 s2, 256")
        E(f"s_cbranch_scc1 {nm}_end")
        stamp_code(E, 0, self.stamps)
        E("s_load_dwordx2 s[4:5], s[0:1], 96")
        E("s_load_dwordx2 s[6:7], s[0:1], 40")
        E("s_load_dwordx4 s[64:67], s[0:1], 56")
        E("s_load_dwordx2 s[68:69], s[0:1], 72")
        E("s_load_dwordx2 s[78:79], s[0:1], 0")
        E("s_load_dwordx2 s[80:81], s[0:1], 80")
        E("s_and_b32 s45, s2, 7")
        E("s_lshr_b32 s46, s2, 3")
        E("s_and_b32 s47, s46, 1")
        E("s_lshl_b32 s45, s45, 1")
        E(f"s_add_u32 s{sH}, s45, s47")
        E("s_lshr_b32 s46, s46, 1")
        E(f"s_and_b32 s{sType}, s46, 1")
        E(f"s_lshr_b32 s{sPair}, s46, 1")
        E(f"v_lshrrev_b32 v{vT0}, 6, v0")
        E(f"v_and_b32 v1, 63, v0")
        E(f"v_readfirstlane_b32 s{sWave}, v{vT0}")
        E(f"v_lshlrev_b32 v{vLane16}, 4, v1")
        E(f"s_lshl_b32 s45, s{sPair}, 1")
        E(f"s_sub_u32 s46, {32-NA}, s45")
        E(f"s_add_u32 s47, s45, 2")
        E(f"s_cmp_eq_u32 s{sType}, 0")
        E(f"s_cselect_b32 s70, {NA}, s46")
        E(f"s_cselect_b32 s71, 0, {NA}")
        E(f"s_cselect_b32 s72, 0, s47")
        E(f"s_lshl_b32 s55, s70, 1")
        E(f"s_lshl_b32 s{sNKV}, s72, 1\ns_add_u32 s{sNKV}, s{sNKV}, s55")
        t = vT0
        E(f"v_cmp_gt_u32 vcc, s55, v1")
        E(f"v_subrev_u32 v{t+3}, s55, v1")
        E("s_nop 0")
        E(f"v_cndmask_b32 v{t}, v{t+3}, v1, vcc")
        E(f"v_mov_b32 v{t+4}, s72\nv_mov_b32 v{t+5}, s70")
        E(f"v_cndmask_b32 v{t+1}, v{t+4}, v{t+5}, vcc")
        E(f"v_mov_b32 v{t+4}, 0\nv_mov_b32 v{t+5}, s71")
        E(f"v_cndmask_b32 v{t+2}, v{t+4}, v{t+5}, vcc")
        E(f"v_min_u32 v{t+4}, 2, v{t+1}")
        E(f"v_cmp_lt_u32 s[56:57], v{t}, v{t+4}")
        E(f"v_lshlrev_b32 v{t+5}, 1, v{t+1}")
        E(f"v_subrev_u32 v{t+5}, 2, v{t+5}")
        E(f"v_cmp_lt_i32 s[58:59], v{t}, v{t+5}")
        E(f"v_and_b32 v{t+6}, 1, v{t}")
        E(f"v_cmp_eq_u32 s[60:61], 0, v{t+6}")
        E(f"v_sub_u32 v{t+7}, v{t}, v{t+1}")
        E(f"v_lshrrev_b32 v{t+8}, 1, v{t}")
        E(f"v_add_u32 v{t+9}, 1, v{t+8}")
        E(f"v_subrev_u32 v{t+8}, 1, v{t+8}")
        E(f"v_cndmask_b32 v{t+8}, v{t+8}, v{t+9}, s[60:61]")
        E(f"v_cndmask_b32 v{t+7}, v{t+7}, v{t+8}, s[58:59]")
        E(f"v_cndmask_b32 v{t+7}, v{t+7}, v{t}, s[56:57]")
        E(f"s_and_b64 s[58:59], s[58:59], s[60:61]")
        E(f"s_or_b64 s[58:59], s[58:59], s[56:57]")
        E(f"v_mov_b32 v{t+8}, {WS_V - WS_K}\nv_mov_b32 v{t+9}, 0")
        E(f"v_cndmask_b32 v{t+8}, v{t+8}, v{t+9}, s[58:59]")
        E(f"v_add_u32 v{t+7}, v{t+7}, v{t+2}")
        E(f"v_lshlrev_b32 v{t+7}, 15, v{t+7}")
        E(f"v_add_u32 v{t+7}, v{t+7}, v{t+8}")
        E(f"s_lshl_b32 s45, s{sH}, 20")
        E(f"v_add_u32 v{t+7}, s45, v{t+7}")
        E(f"v_subrev_u32 v{t+8}, s{sNKV}, v1")
        E(f"v_and_b32 v{t+9}, 3, v{t+8}\nv_mul_u32_u24 v{t+9}, {64*896}, v{t+9}")
        E(f"v_lshrrev_b32 v{t+10}, 2, v{t+8}\nv_mul_u32_u24 v{t+10}, 448, v{t+10}\nv_add_u32 v{t+9}, v{t+9}, v{t+10}")
        E(f"v_cmp_gt_u32 vcc, 8, v{t+8}\nv_mov_b32 v{t+10}, 0x7ff00000\ns_nop 0")
        E(f"v_cndmask_b32 v{t+9}, v{t+10}, v{t+9}, vcc")
        E(f"v_cmp_gt_u32 vcc, s{sNKV}, v1\ns_nop 1")
        E(f"v_cndmask_b32 v{vTab}, v{t+9}, v{t+7}, vcc")
        E(f"s_lshl_b32 s{sM0}, s{sWave}, 13")
        E(f"v_add_u32 v{vD}, s{sM0}, v{vLane16}")
        for p in range(1, 8): E(f"v_add_u32 v{vD+p}, {4096*(p>>2)}, v{vD}") if p >= 4 else E(f"v_mov_b32 v{vD+p}, v{vD}")
        E("s_waitcnt lgkmcnt(0)")
        def srd(s, lo, off, size):
            if isinstance(off, int) and off == 0: E(f"s_mov_b32 s{s}, s{lo}\ns_mov_b32 s{s+1}, s{lo+1}")
            else: E(f"s_add_u32 s{s}, s{lo}, {off}\ns_addc_u32 s{s+1}, s{lo+1}, 0")
            E(f"s_mov_b32 s{s+2}, {size}\ns_mov_b32 s{s+3}, 0x20000")
        srd(sDM, 4, WS_K, 32 << 20)
        E(f"s_lshl_b32 s45, s{sH}, 20")
        E(f"s_add_u32 s45, s45, {WS_Q}")
        srd(sQ, 4, "s45", 1 << 20)
        E(f"s_mov_b32 s{sN}, s70\ns_mov_b32 s{sT}, s71\ns_sub_u32 s{sQB}, 15, s{sPair}")
        E(f"s_xor_b32 s{sItem}, s{sType}, 1")
        E(f"s_cmp_lg_u32 s70, 0")
        sk = self.lab("n1ok")
        E(f"s_cbranch_scc1 {sk}")
        E(f"s_mov_b32 s{sN}, s72\ns_mov_b32 s{sT}, 0\ns_mov_b32 s{sQB}, s{sPair}\ns_mov_b32 s{sItem}, 1")
        E(f"{sk}:")
        E(f"s_cmp_lt_u32 s{sPair}, 7\ns_cselect_b32 s{sHasP}, 1, 0\ns_cmp_eq_u32 s{sType}, 0\ns_cselect_b32 s{sHasP}, s{sHasP}, 0")
        E(f"s_mov_b32 s{sSig}, 0\ns_mov_b32 s82, 1")
        self.load_q()
        for c in range(4):
            E(f"v_readlane_b32 s{sOff}, v{vTab}, {c}")
            E(f"s_add_u32 m0, s{sM0}, {c*CH}")
            E("s_nop 3")
            for p in range(8):
                E(f"buffer_load_dwordx4 v{vD+p}, s[{sDM}:{sDM+3}], s{sOff} offen offset:{(p&3)*1024} lds")
                if p == 3: E("s_add_u32 m0, m0, 4096\ns_nop 0")
        if "nopf" not in self.exp: self.prefetch_weights()
        E(f"s_lshl_b32 s45, s{sH}, 3\ns_add_u32 s{sPI}, s45, s{sPair}")
        E(f"s_lshl_b32 s45, s{sPI}, 17")
        E(f"s_add_u32 s45, s45, {WS_PT}")
        srd(sPT, 4, "s45", 131072)
        E(f"s_mul_i32 s45, s{sH}, {128*14*1024}")
        E(f"s_add_u32 s45, s45, {WS_OP}")
        srd(sOP, 4, "s45", 128*14*1024)
        E(f"s_mul_i32 s45, s{sH}, {256*896}")
        srd(sWO, 6, "s45", 256*896)
        srd(sFL, 4, WS_FLG, FLG_BYTES)
        E(f"s_lshl_b32 s45, s{sPI}, 7\nv_mov_b32 v{vFL+1}, s45")
        E(f"s_mov_b32 s{sC}, 4")
        E(f"s_mov_b32 s{sWr}, {4*CH}")
        E(f"s_mov_b32 s{sRdN}, 0")
        E(f"v_mov_b32 v{vRA}, v{vLane16}")
        self.wo_setup()
        E(f"s_waitcnt vmcnt({24 + (4 if 'nopf' not in self.exp else 0)})")
        E("s_barrier")
        for f in range(8): E(self.frag_read(32 + f, vRB, vRA))
        if "mid" not in self.exp: stamp_code(E, 1, self.stamps)

    def load_q(self, next_item=False):
        E = self.E
        qb = sPair if next_item else sQB
        E(f"s_lshl_b32 s{sTmp}, s{qb}, 3\ns_lshl_b32 s{sTmp2}, s{sWave}, 1\ns_add_u32 s{sTmp}, s{sTmp}, s{sTmp2}\ns_lshl_b32 s{sTmp}, s{sTmp}, 13")
        for qt in range(2):
            for hh in range(2):
                E(f"s_add_u32 s{sTmp2}, s{sTmp}, {qt*8192 + hh*4096}")
                for d in range(4):
                    E(f"buffer_load_dwordx4 {a4(Q(qt, hh*4+d))}, v{vLane16}, s[{sQ}:{sQ+3}], s{sTmp2} offen offset:{d*1024}")

    def wo_setup(self):
        E = self.E
        t = vT0
        for p in range(8):
            E(f"s_lshl_b32 s{sTmp}, s{sWave}, 9\ns_add_u32 s{sTmp}, s{sTmp}, {64*p}")
            E(f"v_add_u32 v{t}, s{sTmp}, v1")
            E(f"v_mul_u32_u24 v{t+1}, 9363, v{t}\nv_lshrrev_b32 v{t+1}, 18, v{t+1}")
            E(f"v_mul_u32_u24 v{t+2}, 28, v{t+1}\nv_sub_u32 v{t+3}, v{t}, v{t+2}")
            E(f"v_bfe_u32 v{t+2}, v{t+1}, 2, 1\nv_lshlrev_b32 v{t+2}, 1, v{t+2}\nv_xor_b32 v{t+3}, v{t+3}, v{t+2}")
            E(f"v_lshlrev_b32 v{t+3}, 4, v{t+3}\nv_mul_u32_u24 v{t+1}, 896, v{t+1}\nv_add_u32 v{t+3}, v{t+3}, v{t+1}")
            E(f"v_cmp_gt_u32 vcc, 1792, v{t}\nv_subrev_u32 v{t+3}, {(p&3)*1024}, v{t+3}\nv_mov_b32 v{t+2}, 0x7ff00000")
            E(f"v_add_u32 v{t+3}, 4096, v{t+3}")
            E(f"v_cndmask_b32 v{vW+p}, v{t+2}, v{t+3}, vcc")
        E(f"v_bfe_u32 v{t}, v1, 4, 2\nv_lshlrev_b32 v{t+1}, 2, v{t}\nv_bfe_u32 v{t+2}, v1, 2, 2\nv_add_u32 v{t+1}, v{t+1}, v{t+2}")
        E(f"v_mul_u32_u24 v{t+1}, 448, v{t+1}\nv_and_b32 v{t+2}, 3, v1\nv_lshlrev_b32 v{t+2}, 3, v{t+2}\nv_add_u32 v{t+1}, v{t+1}, v{t+2}")
        E(f"v_and_b32 v{t}, 1, v{t}\nv_lshlrev_b32 v{t}, 5, v{t}")
        E(f"v_add_u32 v{vWA}, v{t+1}, v{t}\nv_sub_u32 v{vWA+1}, v{t+1}, v{t}\nv_add_u32 v{vWA+1}, 32, v{vWA+1}")

    def rare_blocks(self):
        E = self.E
        for r in self.rare:
            if r[0] == "slow":
                E(f"{r[1]}:"); self.slow_block(r[3]); E(f"s_branch {r[2]}")
            elif r[0] == "switch":
                E(f"{r[1]}:")
                for p in range(8): E(f"v_mov_b32 v{vD+p}, v{vW+p}")
                E(f"s_sub_u32 s{sDM}, s{sWO}, 4096\ns_subb_u32 s{sDM+1}, s{sWO+1}, 0\ns_add_u32 s{sDM+2}, s{sWO+2}, 4096\ns_mov_b32 s{sDM+3}, 0x20000")
                E(f"s_branch {r[2]}")
            elif r[0] == "signal":
                sk = self.lab("nosig")
                E(f"{r[1]}:")
                E(f"s_mov_b32 s{sSig}, 0")
                E(f"s_cmp_lg_u32 s{sWave}, 0\ns_cbranch_scc1 {sk}")
                E(f"v_mov_b32 v254, 1")
                E("s_mov_b64 exec, 1")
                E(f"buffer_atomic_add v254, v{vFL+1}, s[{sFL}:{sFL+3}], 0 offen sc1")
                E("s_mov_b64 exec, -1")
                E(f"{sk}:\ns_branch {r[2]}")
        self.rare = []

    def finish(self):
        E = self.E; nm = self.name
        E("s_nop 7")
        self.xlane2("v_add_f32", L_(0), L_(1), vT0, vT0 + 1)
        E(f"s_cmp_eq_u32 s{sItem}, 1")
        E(f"s_cbranch_scc1 {nm}_final")
        E(f"s_lshl_b32 s{sTmp}, s{sWave}, 15")
        for i in range(16):
            t = vT0 + (i % 2) * 12
            qt = i >> 3; s = i & 7
            src = [O(2*s, qt) + r for r in range(4)] + [O(2*s+1, qt) + r for r in range(4)]
            for r in range(8): E(f"v_accvgpr_read_b32 v{t+r}, a{src[r]}")
            for r in range(4): E(f"v_cvt_pk_bf16_f32 v{t+8+r}, v{t+2*r}, v{t+2*r+1}")
            E(f"s_add_u32 s{sTmp2}, s{sTmp}, {i*1024}")
            E(f"buffer_store_dwordx4 v[{t+8}:{t+11}], v{vLane16}, s[{sPT}:{sPT+3}], s{sTmp2} offen sc1")
        E(f"v_mov_b32 v{vPM}, v{M_(0)}\nv_mov_b32 v{vPM+1}, v{M_(1)}\nv_mov_b32 v{vPM+2}, v{L_(0)}\nv_mov_b32 v{vPM+3}, v{L_(1)}")
        E(f"s_add_u32 s{sTmp2}, s{sTmp}, 16384")
        E(f"buffer_store_dwordx4 v[{vPM}:{vPM+3}], v{vLane16}, s[{sPT}:{sPT+3}], s{sTmp2} offen sc1")
        E(f"s_lshl_b32 s{sTmp}, s{sPair}, 1\ns_add_u32 s{sN}, s{sTmp}, 2\ns_mov_b32 s{sT}, 0\ns_mov_b32 s{sQB}, s{sPair}\ns_mov_b32 s{sItem}, 1")
        E(f"s_mov_b32 s{sSig}, 1")
        E("s_waitcnt vmcnt(25)")
        E(f"s_branch {nm}_item")
        E(f"{nm}_final:")
        E(f"s_cmp_eq_u32 s{sHasP}, 0")
        E(f"s_cbranch_scc1 {nm}_plain")
        E("s_waitcnt vmcnt(8)")
        for qt in range(2):
            mB, lB = vPM + qt, vPM + 2 + qt
            ms, fA, fB = vT0 + 12, vT0 + 13, vT0 + 14
            E(f"v_max_f32 v{ms}, v{M_(qt)}, v{mB}")
            E(f"v_sub_f32 v{fA}, v{M_(qt)}, v{ms}\nv_sub_f32 v{fB}, v{mB}, v{ms}")
            E(f"v_exp_f32 v{fA}, v{fA}\nv_exp_f32 v{fB}, v{fB}\ns_nop 0")
            E(f"v_mul_f32 v{ms}, v{L_(qt)}, v{fA}\nv_fmac_f32 v{ms}, v{lB}, v{fB}")
            E(f"v_rcp_f32 v{ms}, v{ms}\ns_nop 0")
            E(f"v_mul_f32 v{vT0+8+qt}, v{fA}, v{ms}\nv_mul_f32 v{vT0+10+qt}, v{fB}, v{ms}")
        self.oproj_first("A")
        E(f"s_branch {nm}_oproj3")
        E(f"{nm}_plain:")
        for qt in range(2): E(f"v_rcp_f32 v{vT0+8+qt}, v{L_(qt)}")
        E("s_nop 0")
        self.oproj_first("P")
        E(f"{nm}_oproj3:")
        self.oproj_rest()

    def conv_unit(self, mode, qt, s, n):
        src = [O(2*s, qt) + r for r in range(4)] + [O(2*s+1, qt) + r for r in range(4)]
        t = 10 + (n % 2) * 12; c = 64 + 4 * (qt * 8 + s)
        u = [f"v_accvgpr_read_b32 v{t+r}, a{src[r]}" for r in range(8)]
        u += [f"v_mul_f32 v{t+r}, v{t+r}, v{vT0+8+qt}" for r in range(8)]
        for r in range(4):
            if mode == "A":
                u += [f"v_lshlrev_b32 v{t+8}, 16, v{c+r}", f"v_and_b32 v{t+9}, 0xffff0000, v{c+r}",
                      f"v_fmac_f32 v{t+2*r}, v{t+8}, v{vT0+10+qt}", f"v_fmac_f32 v{t+2*r+1}, v{t+9}, v{vT0+10+qt}"]
            u.append(f"v_cvt_pk_bf16_f32 v{c+r}, v{t+2*r}, v{t+2*r+1}")
        return [(4, x) for x in u]

    def oproj_first(self, mode):
        self.oproj(mode)
    def oproj_rest(self):
        self.oproj(None)
    def oproj(self, mode):
        E = self.E; nm = self.name
        C = lambda qt, s: 64 + (qt * 8 + s) * 4
        WFR = lambda f: 128 + (f % 16) * 4
        OUT = lambda ps, mb, qt: ((128 if ps == 0 else 0) + (mb * 2 + qt) * 4)
        AD = lambda k, par: 242 + (k & 1) * 2 + par
        D = 6
        def rd(k, f):
            sl, mb = divmod(f, 14)
            fr = WFR(k * 28 + f)
            base = AD(k, mb & 1); off = sl * 14336 + (mb & ~1) * 32
            return [f"ds_read_b64_tr_b16 v[{fr}:{fr+1}], v{base} offset:{off}",
                    f"ds_read_b64_tr_b16 v[{fr+2}:{fr+3}], v{base} offset:{off + 7168}"]
        if mode:
            if "nocpf" not in self.exp: code_prefetch_shared(E, "tl_start", 0x5000, nm + "_t" + mode, 72, 74, 8, sWave)
            if "mid" not in self.exp and "ist" not in self.exp: stamp_code(E, 3, self.stamps)
            for par in range(2): E(f"v_add_u32 v{AD(0,par)}, s{sRdN}, v{vWA+par}")
            for f in range(D):
                for l in rd(0, f): E(l)
            nn = 0
            for s_ in range(2):
                for qt in range(2):
                    for c_, t_ in self.conv_unit(mode, qt, s_, nn): E(t_)
                    nn += 1
            E("s_nop 1")
        if mode: E(f"s_lshl_b32 s{sTmp}, s{sQB}, 3\ns_lshl_b32 s{sTmp2}, s{sWave}, 1\ns_add_u32 s{sTmp}, s{sTmp}, s{sTmp2}\ns_mul_i32 s70, s{sTmp}, {14*1024}")
        def units(ps):
            us = []; n = 0
            for qt in range(2):
                for ms in range(7):
                    t = 168 + (n % 2) * 12 if False else 200 + (n % 2) * 12; n += 1
                    src = [OUT(ps, 2*ms, qt) + r for r in range(4)] + [OUT(ps, 2*ms+1, qt) + r for r in range(4)]
                    u = [(4, f"v_accvgpr_read_b32 v{t+r}, a{src[r]}") for r in range(8)]
                    u += [(4, f"v_cvt_pk_bf16_f32 v{t+8+r}, v{t+2*r}, v{t+2*r+1}") for r in range(4)]
                    u += [(12, f"s_add_u32 s71, s70, {(qt*14 + ps*7 + ms)*1024}\nbuffer_store_dwordx4 v[{t+8}:{t+11}], v{vLane16}, s[{sOP}:{sOP+3}], s71 offen{' sc1' if 'wt' in self.exp else ''}")]
                    us.append(u)
            return us
        pend = []
        nst = 0
        hist = []
        log = [("D", k) for k in range(4) for _ in range(8)]
        if not mode: log += [("D", k) for k in range(4, 7) for _ in range(8)]
        for k in (range(3) if mode else range(3, 8)):
            ps, sp = divmod(k, 4)
            mf = []
            for sl in range(2):
                s = 2 * sp + sl
                for mb in range(14):
                    for qt in range(2):
                        d = a4(OUT(ps, mb, qt)); c = "0" if s == 0 else d
                        mf.append(f"v_mfma_f32_16x16x32_bf16 {d}, {v4(WFR(k*28 + sl*14 + mb))}, {v4(C(qt, s))}, {c}")
            n = len(mf)
            Sc = Sched(n)
            for f in range(28):
                ff = f + D
                if ff < 28: r = rd(k, ff)
                elif k + 1 < 8: r = rd(k + 1, ff - 28)
                else: continue
                Sc.put(2 * f, 4, r[0]); Sc.put(2 * f + 1, 4, r[1])
            if k + 1 < 8:
                idx = max(i for i, t in enumerate(log) if t == ("D", k + 1))
                w = len(log) - 1 - idx
                nxt = [(AD(k + 1, 0), vWA), (AD(k + 1, 1), vWA + 1)]
                if k + 4 < 8:
                    self.head_items(Sc, nxt, w, dma_gaps=[9, 14, 19, 24, 29, 34, 39, 43])
                    order_d = [(g, ("D", k + 4)) for g in [9, 14, 19, 24, 29, 34, 39, 43]]
                else:
                    Sc.put(1, 0, f"s_waitcnt vmcnt({w})\ns_barrier")
                    Sc.put(3, 0, f"s_add_u32 s{sRdN}, s{sRdN}, {CH}\ns_cmp_eq_u32 s{sRdN}, {NS*CH}\ns_cselect_b32 s{sRdN}, 0, s{sRdN}")
                    Sc.put(3, 4, f"v_add_u32 v{nxt[0][0]}, s{sRdN}, v{nxt[0][1]}"); Sc.put(4, 4, f"v_add_u32 v{nxt[1][0]}, s{sRdN}, v{nxt[1][1]}")
                    order_d = []
            else: order_d = []
            if k == 4: pend = [x for u in units(0) for x in u]
            if mode:
                pend = []
                for s_ in (2 * k + 2, 2 * k + 3):
                    for qt in range(2):
                        pend += self.conv_unit(mode, qt, s_, nn); nn += 1
            order_s = []
            if pend:
                cur = 6; j = 0; nun = 0
                while j < len(pend):
                    c, t = pend[j]; g = cur
                    while g < n and Sc.c[g] + (c if c < 12 else 4) > (8 if c < 12 else 8): g += 1
                    if g >= n - (2 if mode else 0): break
                    Sc.put(g, c, t); cur = g; j += 1
                    if c == 12:
                        order_s.append((g, ("S", 0))); nun += 1; cur = g + 1
                        if nun >= 4: break
                pend = pend[j:]
            before = {}
            for i in range(0, n, 4):
                f = i // 2
                rem = D - 2
                if k == 7: rem = min(D - 2, 26 - f)
                before[i] = [f"s_waitcnt lgkmcnt({2*max(rem,0)})"]
            Sc.emit(E, mf, before)
            for g, tg in sorted(order_d + order_s): log.append(tg)
            if mode:
                for c, t in pend: E(t)
                pend = []
                E("s_nop 1")
        if mode: return
        for c, t in pend: E(t)
        if "mid" not in self.exp and "ist" not in self.exp: stamp_code(E, 4, self.stamps)
        E("s_nop 7")
        fill = list(getattr(self, "weave", []))
        un = units(1)
        per = (len(fill) + len(un) - 1) // len(un)
        for u in un:
            for c, t in u: E(t)
            k = min(per, len(fill))
            while k < len(fill) and fill[k].startswith(("s_addc", "s_cselect", "s_subb", "s_cbranch")): k += 1
            for l in fill[:k]: E(l)
            fill = fill[k:]
        for l in fill: E(l)

    def tail_prefetch(self):
        E = self.E
        E(f"s_lshl_b32 s{sTmp}, s2, 2\ns_add_u32 s{sTmp}, s{sTmp}, s{sWave}\ns_mul_i32 s{sTmp}, s{sTmp}, 1568")
        E("v_min_u32 v2, 24, v1\nv_lshlrev_b32 v2, 6, v2")
        for i, lo in enumerate((64, 66, 68)):
            E(f"s_mov_b32 s56, s{lo}\ns_mov_b32 s57, s{lo+1}\ns_mov_b32 s58, {448*1792*2}\ns_mov_b32 s59, 0x20000")
            E(f"buffer_load_dword v{3+i}, v2, s[56:59], s{sTmp} offen")

    def prefetch_weights(self):
        E = self.E
        self.tail_prefetch()
        E(f"s_mov_b32 s56, s6\ns_mov_b32 s57, s7\ns_mov_b32 s58, {16*256*896}\ns_mov_b32 s59, 0x20000")
        E(f"s_lshl_b32 s45, s2, 2\ns_add_u32 s45, s45, s{sWave}\ns_mul_i32 s45, s45, 3584")
        E("v_lshlrev_b32 v2, 6, v1\nbuffer_load_dword v3, v2, s[56:59], s45 offen")

    def gen(self):
        E = self.E; nm = self.name
        self.prologue()
        E(f"{nm}_item:")
        self.item_loop()
        if "ist" in self.exp: self.stamps_tail = False
        if "mid" not in self.exp and "ist" not in self.exp: stamp_code(E, 2, self.stamps)
        self.weave, t2, c1 = tail.tail_setup()
        self.finish()
        if "notail" not in self.exp:
            tail.gen_tail(E, nm, lambda i: stamp_code(E, i, self.stamps and "ist" not in self.exp), t2, c1)
        if self.stamps:
            stamp_code(E, 11, True)
            E("s_waitcnt vmcnt(0)")
            stamp_code(E, 12, True)
            stamp_dump(E, 13, nm, 4)
        E("s_endpgm")
        E("tl_end:")
        self.rare_blocks()
        E(f"{nm}_end:")
        E("s_endpgm")
        return E.text()

def gen_k2(name="k2_kernel", **kw):
    return K2(name, **kw).gen()
```

```python
from asmlib import *
from ws import *
from k1 import SPIN_MAX
HSTR = 128 * 14 * 1024
sFL, sWave, sU, sQB, sWS = 28, 32, 33, 43, 4
sWG, sWU, sWD, sX, sOUT = 64, 66, 68, 78, 80
CNT0 = 16384
T = 45

def srd(E, s, lo, off, size):
    if off == 0: E(f"s_mov_b32 s{s}, s{lo}\ns_mov_b32 s{s+1}, s{lo+1}")
    else: E(f"s_add_u32 s{s}, s{lo}, {off}\ns_addc_u32 s{s+1}, s{lo+1}, 0")
    E(f"s_mov_b32 s{s+2}, {size}\ns_mov_b32 s{s+3}, 0x20000")

def cnt_off(E, which):
    E(f"s_mul_i32 s{T}, s{sQB}, 384\ns_add_u32 s{T}, s{T}, {CNT0 + 128*which}")
def signal(E, uid, inc):
    E("s_waitcnt vmcnt(0)\ns_barrier")
    sk = f"tl_sig{uid}"
    E(f"s_cmp_lg_u32 s{sWave}, 0\ns_cbranch_scc1 {sk}")
    cnt_off(E, uid - 1)
    E(f"s_lshl_b32 s{T+1}, s{sU}, 2\ns_add_u32 s{T}, s{T}, s{T+1}")
    E(f"v_mov_b32 v42, 1\nv_mov_b32 v43, s{T}")
    E("s_mov_b64 exec, 1")
    E(f"buffer_store_dword v42, v43, s[{sFL}:{sFL+3}], 0 offen sc1")
    E("s_mov_b64 exec, -1")
    E(f"{sk}:")

def wait(E, uid, shift, target):
    sk, pl = f"tl_w{uid}", f"tl_p{uid}"
    mask = (1 << target) - 1
    E(f"s_cmp_lg_u32 s{sWave}, 0\ns_cbranch_scc1 {sk}")
    cnt_off(E, uid - 1)
    E(f"v_lshlrev_b32 v43, 2, v0\nv_add_u32 v43, s{T}, v43\ns_mov_b32 s{T+1}, 0")
    E(f"s_mov_b64 exec, {mask}")
    E(f"{pl}:")
    E(f"buffer_load_dword v42, v43, s[{sFL}:{sFL+3}], 0 offen sc1")
    E("s_waitcnt vmcnt(0)")
    E("v_cmp_ne_u32 vcc, 0, v42")
    E("s_nop 0")
    E(f"s_cmp_eq_u32 vcc_lo, {mask}\ns_cbranch_scc1 {pl}_ok")
    E("s_sleep 1")
    E(f"s_add_u32 s{T+1}, s{T+1}, 1\ns_cmp_lt_u32 s{T+1}, {SPIN_MAX}")
    E(f"s_cbranch_scc1 {pl}")
    E(f"v_mov_b32 v42, {0xbad3 + uid}\nv_mov_b32 v43, {FLG_ERR}\nbuffer_store_dword v42, v43, s[{sFL}:{sFL+3}], 0 offen")
    E(f"{pl}_ok:")
    E("s_mov_b64 exec, -1")
    E(f"{sk}:")
    E("s_barrier")

NH, NW = 10, 5
WB = NH * 8192
class T2:
    HF = staticmethod(lambda st, qt: 64 + st * 48 + qt * 4)
    WF = staticmethod(lambda st, m, fb: 64 + st * 48 + 16 + (m * 4 + fb) * 4)
    DH = staticmethod(lambda i: 16 + i)
    DW = staticmethod(lambda i: 18 + i)
    GA = staticmethod(lambda fb, qt: (fb * 4 + qt) * 4)
    UA = staticmethod(lambda fb, qt: 64 + (fb * 4 + qt) * 4)
    sHN, sG, sUp, sO = 8, 12, 16, 20
    def __init__(self, E): self.E = E; self.vm = []
    def setup(self):
        E = self.E
        E("v_and_b32 v1, 63, v0\nv_lshrrev_b32 v2, 6, v0\nv_lshlrev_b32 v3, 4, v1")
        E(f"v_mul_u32_u24 v4, {2*14336}, v2\nv_add_u32 v4, v4, v3")
        E(f"v_mov_b32 v{self.DH(0)}, v4\nv_add_u32 v{self.DH(1)}, {14336-1024}, v4")
        for i in range(2):
            E(f"v_lshlrev_b32 v4, 3, v2\nv_add_u32 v4, {4*i}, v4\nv_lshrrev_b32 v5, 4, v1\nv_add_u32 v4, v4, v5")
            E("v_and_b32 v5, 7, v4\nv_lshlrev_b32 v5, 1, v5\nv_and_b32 v6, 15, v1\nv_xor_b32 v5, v5, v6\nv_lshlrev_b32 v5, 4, v5")
            E(f"v_mul_u32_u24 v4, 3584, v4\nv_add_u32 v4, v4, v5")
            E(f"v_subrev_u32 v{self.DW(i)}, {i*1024}, v4")
        E(f"s_mul_i32 s{T}, s{sQB}, {8*14336}\ns_add_u32 s{T}, s{T}, {WS_HN}")
        srd(E, self.sHN, sWS, f"s{T}", 8 * 14336)
        E(f"s_lshl_b32 s{T}, s{sU}, 8")
        srd(E, self.sG, sWG, f"s{T}", 448 * 3584); E(f"s_sub_u32 s{self.sG+2}, s{self.sG+2}, s{T}")
        srd(E, self.sUp, sWU, f"s{T}", 448 * 3584); E(f"s_sub_u32 s{self.sUp+2}, s{self.sUp+2}, s{T}")
        E(f"s_lshl_b32 s52, s{sWave}, 11")
        E("v_lshrrev_b32 v4, 7, v0\nv_lshlrev_b32 v4, 12, v4\nv_add_u32 v20, v4, v3\nv_add_u32 v21, 0x10000, v20")
        E("v_bfe_u32 v4, v1, 4, 2\nv_lshlrev_b32 v4, 2, v4\nv_bfe_u32 v5, v1, 2, 2\nv_add_u32 v4, v4, v5")
        E("v_and_b32 v5, 7, v4")
        E(f"v_lshlrev_b32 v4, 8, v4\nv_and_b32 v6, 3, v1\nv_lshlrev_b32 v6, 3, v6\nv_add_u32 v4, v4, v6\nv_add_u32 v4, {WB}, v4")
        E("v_bfe_u32 v6, v0, 6, 1\nv_lshlrev_b32 v6, 2, v6")
        for fb in range(4):
            E(f"v_add_u32 v7, {fb}, v6\nv_xor_b32 v7, v7, v5\nv_lshlrev_b32 v7, 5, v7\nv_add_u32 v{24+2*fb}, v7, v4\nv_add_u32 v{25+2*fb}, 0x10000, v{24+2*fb}")
    def dmaW(self, s):
        base = WB + (s % NW) * 16384
        u = [f"s_add_u32 m0, s52, {base}\ns_mov_b32 s53, {s*32*3584}\nbuffer_load_dwordx4 v{self.DW(0)}, s[{self.sG}:{self.sG+3}], s53 offen lds",
             f"buffer_load_dwordx4 v{self.DW(1)}, s[{self.sG}:{self.sG+3}], s53 offen offset:1024 lds",
             f"s_add_u32 m0, s52, {base+8192}\ns_nop 0\nbuffer_load_dwordx4 v{self.DW(0)}, s[{self.sUp}:{self.sUp+3}], s53 offen lds",
             f"buffer_load_dwordx4 v{self.DW(1)}, s[{self.sUp}:{self.sUp+3}], s53 offen offset:1024 lds"]
        self.vm.extend([("W", s)] * 4); return u
    def dmaH(self, s):
        base = (s % NH) * 8192
        u = [f"s_add_u32 m0, s52, {base}\ns_mov_b32 s53, {s*1024}\nbuffer_load_dwordx4 v{self.DH(0)}, s[{self.sHN}:{self.sHN+3}], s53 offen lds",
             f"buffer_load_dwordx4 v{self.DH(1)}, s[{self.sHN}:{self.sHN+3}], s53 offen offset:1024 lds"]
        self.vm.extend([("H", s)] * 2); return u
    def need(self, s):
        idx = max(i for i, t in enumerate(self.vm) if t in (("W", s), ("H", s))); return len(self.vm) - 1 - idx
    def reads(self, s, st):
        hs = s % NH; hb, hr = (hs * 8192, 20) if hs < 8 else (hs * 8192 - 65536, 21)
        wsl = s % NW; wb, wo = (wsl * 16384, 0) if wsl < 4 else (wsl * 16384 - 65536, 1)
        hn = [f"ds_read_b128 v[{self.HF(st,qt)}:{self.HF(st,qt)+3}], v{hr} offset:{hb + qt*1024}" for qt in range(4)]
        w = []
        for fb in range(4):
            for m in range(2):
                for t in range(2):
                    w.append(f"ds_read_b64_tr_b16 v[{self.WF(st,m,fb)+2*t}:{self.WF(st,m,fb)+2*t+1}], v{24+2*fb+wo} offset:{wb + m*8192 + t*4096}")
        return [hn[0]] + w[:4] + hn[1:] + w[4:]
    def pre(self):
        for s in range(NW - 1):
            for u in self.dmaW(s): self.E(u)
    def main(self):
        E = self.E
        self.vm = [("W", s) for s in range(NW - 1) for _ in range(4)]
        nh = 5
        for s in range(nh):
            for u in self.dmaH(s): E(u)
        E(f"s_mul_i32 s{T}, s{sQB}, {8*56*1024}\ns_add_u32 s{T}, s{T}, {WS_HM}")
        srd(E, self.sO, sWS, f"s{T}", 8 * 56 * 1024)
        E(f"s_waitcnt vmcnt({self.need(0)})\ns_barrier")
        for u in self.reads(0, 0): E(u)
        for s in range(14):
            st = s & 1
            Sc = Sched(32)
            if s + 1 < 14:
                E(f"s_waitcnt vmcnt({self.need(s+1)}) lgkmcnt(0)\ns_barrier")
                for k, t in enumerate(self.reads(s + 1, st ^ 1)): Sc.put(k, 4, t)
                d = []
                k_ = 0
                while nh < 14 and nh <= s + NH - 1 and k_ < 2:
                    d += self.dmaH(nh); nh += 1; k_ += 1
                if s + NW - 1 < 14: d += self.dmaW(s + NW - 1)
                gaps = [20, 21, 22, 24, 26, 28, 30, 31][:len(d)] if len(d) > 6 else [20, 22, 24, 26, 28, 30][:len(d)]
                for g, t in zip(gaps, d): Sc.put(g, 12, t)
            else:
                E("s_waitcnt lgkmcnt(0)")
            mf = []
            for fb in range(4):
                for qt in range(4):
                    for m in range(2):
                        a = (self.GA if m == 0 else self.UA)(fb, qt); d_ = f"a[{a}:{a+3}]"
                        mf.append(f"v_mfma_f32_16x16x32_bf16 {d_}, v[{self.WF(st,m,fb)}:{self.WF(st,m,fb)+3}], v[{self.HF(st,qt)}:{self.HF(st,qt)+3}], {'0' if s == 0 else d_}")
            Sc.emit(E, mf)
        E("s_nop 7")
        E(f"v_lshrrev_b32 v4, 7, v0\nv_mul_u32_u24 v4, {4*56*1024}, v4\nv_add_u32 v4, v4, v3")
        E("v_bfe_u32 v5, v0, 6, 1\nv_lshlrev_b32 v5, 11, v5\nv_add_u32 v4, v4, v5")
        E(f"s_lshl_b32 s{T}, s{sU}, 12")
        n = 0
        for qt in range(4):
            for k in range(2):
                t = 160 + (n % 2) * 24; n += 1
                for j in range(2):
                    for r in range(4):
                        E(f"v_accvgpr_read_b32 v{t+4*j+r}, a{self.GA(2*k+j, qt)+r}")
                        E(f"v_accvgpr_read_b32 v{t+8+4*j+r}, a{self.UA(2*k+j, qt)+r}")
                for r in range(8): E(f"v_max_f32 v{t+r}, 0, v{t+r}")
                for r in range(8): E(f"v_mul_f32 v{t+r}, v{t+r}, v{t+8+r}")
                for r in range(4): E(f"v_cvt_pk_bf16_f32 v{t+16+r}, v{t+2*r}, v{t+2*r+1}")
                E(f"s_add_u32 s53, s{T}, {qt*56*1024 + k*1024}")
                E(f"buffer_store_dwordx4 v[{t+16}:{t+19}], v4, s[{self.sO}:{self.sO+3}], s53 offen sc1")

def t1_part(E):
    LDS = 0
    sOPs, sXs, sH_, sHN_ = 8 + 16, 8 + 0, 0, 0
    sOPs, sXs, sHo, sHNo = 56, 60, 24, 36
    srd(E, sOPs, sWS, WS_OP, 16 * HSTR)
    srd(E, sXs, sX, 0, 2048 * 896)
    srd(E, sHo, sWS, WS_H, 2048 * 896)
    srd(E, sHNo, sWS, WS_HN, 2048 * 896)
    E("v_and_b32 v36, 7, v1\nv_bfe_u32 v37, v1, 3, 2\nv_lshrrev_b32 v38, 5, v1")
    E(f"s_lshl_b32 s{T}, s{sQB}, 3\ns_lshr_b32 s{T+1}, s{sU}, 1\ns_add_u32 s{T}, s{T}, s{T+1}")
    E(f"s_and_b32 s{T+1}, s{sU}, 1\ns_lshl_b32 s{T+1}, s{T+1}, 3")
    E(f"s_mul_i32 s{T+2}, s{T}, 14336")
    E(f"v_lshlrev_b32 v39, 4, v37\nv_add_u32 v39, v39, v36\nv_add_u32 v39, s{T+1}, v39\nv_lshlrev_b32 v39, 4, v39")
    E(f"v_lshlrev_b32 v40, 10, v38\nv_add_u32 v39, v39, v40\nv_add_u32 v39, s{T+2}, v39")
    E(f"s_lshl_b32 s{T+2}, s{sQB}, 7\ns_lshl_b32 s{T+3}, s{sU}, 3\ns_add_u32 s{T+2}, s{T+2}, s{T+3}")
    E(f"v_add_u32 v41, s{T+2}, v36\nv_mul_u32_u24 v41, 896, v41\nv_lshlrev_b32 v40, 6, v38\nv_add_u32 v41, v41, v40\nv_lshlrev_b32 v40, 3, v37\nv_add_u32 v41, v41, v40")
    for k in range(2):
        E(f"s_add_u32 s{T}, s{sWave}, {4*k}")
        E(f"s_lshl_b32 s{54+k}, s{T}, 11")
        E(f"s_lshl_b32 s{T+1}, s{T}, 7")
        if k == 1:
            E(f"s_cmp_lt_u32 s{T}, 7\ns_cselect_b32 s{54+k}, s{54+k}, 0x7ff00000\ns_cselect_b32 s{T+1}, s{T+1}, 0x7ff00000")
        E(f"buffer_load_dwordx2 v[{48+4*k}:{49+4*k}], v41, s[{sXs}:{sXs+3}], s{T+1} offen")
        E(f"buffer_load_dwordx2 v[{50+4*k}:{51+4*k}], v41, s[{sXs}:{sXs+3}], s{T+1} offen offset:32")
    return dict(LDS=LDS, sOPs=sOPs, sHo=sHo, sHNo=sHNo)

def t1_main(E, c):
    LDS, sOPs, sHo, sHNo = c["LDS"], c["sOPs"], c["sHo"], c["sHNo"]
    D = lambda k, h: 64 + k * 64 + h * 4
    for k in range(2):
        for h in range(16):
            E(f"s_add_u32 s{T}, s{54+k}, {h*HSTR}")
            E(f"buffer_load_dwordx4 v[{D(k,h)}:{D(k,h)+3}], v39, s[{sOPs}:{sOPs+3}], s{T} offen")
    A = lambda k: 192 + 8 * k
    for k in range(2):
        for h in range(16):
            if h % 4 == 0: E(f"s_waitcnt vmcnt({32 - (k*16 + h + 4)})")
            for r in range(4):
                src = D(k, h) + r
                if h == 0:
                    E(f"v_lshlrev_b32 v{A(k)+2*r}, 16, v{src}\nv_and_b32 v{A(k)+2*r+1}, 0xffff0000, v{src}")
                else:
                    t = 44 + (r & 1) * 2
                    E(f"v_lshlrev_b32 v{t}, 16, v{src}\nv_and_b32 v{t+1}, 0xffff0000, v{src}")
                    E(f"v_pk_add_f32 v[{A(k)+2*r}:{A(k)+2*r+1}], v[{A(k)+2*r}:{A(k)+2*r+1}], v[{t}:{t+1}]")
        for r in range(4):
            xs = 48 + 4*k + r
            E(f"v_lshlrev_b32 v44, 16, v{xs}\nv_and_b32 v45, 0xffff0000, v{xs}")
            E(f"v_add_f32 v{A(k)+2*r}, v{A(k)+2*r}, v44\nv_add_f32 v{A(k)+2*r+1}, v{A(k)+2*r+1}, v45")
            E(f"v_cvt_pk_bf16_f32 v{208+4*k+r}, v{A(k)+2*r}, v{A(k)+2*r+1}")
            E(f"v_lshlrev_b32 v{A(k)+2*r}, 16, v{208+4*k+r}\nv_and_b32 v{A(k)+2*r+1}, 0xffff0000, v{208+4*k+r}")
    E(f"buffer_store_dwordx4 v[208:211], v39, s[{sHo}:{sHo+3}], s54 offen sc1")
    E(f"buffer_store_dwordx4 v[212:215], v39, s[{sHo}:{sHo+3}], s55 offen sc1")
    E("v_add_f32 v216, v192, v193\nv_mul_f32 v217, v192, v192\nv_fmac_f32 v217, v193, v193")
    for r in range(194, 208): E(f"v_add_f32 v216, v216, v{r}\nv_fmac_f32 v217, v{r}, v{r}")
    E("s_nop 1")
    E("v_add_f32_dpp v216, v216, v216 row_ror:8 row_mask:0xf bank_mask:0xf\nv_add_f32_dpp v217, v217, v217 row_ror:8 row_mask:0xf bank_mask:0xf")
    for sw in ("v_permlane16_swap_b32", "v_permlane32_swap_b32"):
        E("v_mov_b32 v218, v216\nv_mov_b32 v219, v217\ns_nop 0")
        E(f"{sw} v216, v218\n{sw} v217, v219\ns_nop 0")
        E("v_add_f32 v216, v216, v218\nv_add_f32 v217, v217, v219")
    E(f"v_lshlrev_b32 v220, 3, v36\ns_lshl_b32 s{T}, s{sWave}, 6\ns_add_u32 s{T}, s{T}, {LDS}\nv_add_u32 v221, s{T}, v220")
    E("s_mov_b64 exec, 0xff\nds_write_b64 v221, v[216:217]\ns_mov_b64 exec, -1")
    E("s_waitcnt lgkmcnt(0)\ns_barrier")
    E(f"v_add_u32 v220, {LDS}, v220")
    for w in range(4): E(f"ds_read_b64 v[{222+2*w}:{223+2*w}], v220 offset:{64*w}")
    E("s_waitcnt lgkmcnt(0)")
    E("v_add_f32 v216, v222, v224\nv_add_f32 v217, v223, v225\nv_add_f32 v218, v226, v228\nv_add_f32 v219, v227, v229")
    E("v_add_f32 v216, v216, v218\nv_add_f32 v217, v217, v219")
    E("v_mul_f32 v216, 0x3b124925, v216")
    E("v_mul_f32 v217, 0x3b124925, v217")
    E("v_fma_f32 v217, -v216, v216, v217")
    E("v_max_f32 v217, 0, v217")
    E("v_add_f32 v217, 0x3727c5ac, v217")
    E("v_rsq_f32 v217, v217\ns_nop 0")
    for r in range(192, 208): E(f"v_sub_f32 v{r}, v{r}, v216")
    for r in range(192, 208): E(f"v_mul_f32 v{r}, v{r}, v217")
    for r in range(8): E(f"v_cvt_pk_bf16_f32 v{208+r}, v{192+2*r}, v{193+2*r}")
    E(f"buffer_store_dwordx4 v[208:211], v39, s[{sHNo}:{sHNo+3}], s54 offen sc1")
    E(f"buffer_store_dwordx4 v[212:215], v39, s[{sHNo}:{sHNo+3}], s55 offen sc1")

class T3:
    NSL = 10; DEP = 8; NB = 8
    sHM, sWDs, sH, sO = 8, 12, 16, 20
    def __init__(self, E): self.E = E; self.vm = []
    def BF(self, s, qt): return 64 + (s % self.NB) * 16 + qt * 4
    def WF(self, st, mb): return 192 + st * 16 + mb * 4
    def setup(self):
        E = self.E
        E(f"s_cmp_ge_u32 s{sU}, 7\ns_cselect_b32 s{T}, 1, 0\ns_lshl_b32 s54, s{sQB}, 1\ns_add_u32 s54, s54, s{T}\ns_mul_i32 s{T}, s{T}, 7\ns_sub_u32 s55, s{sU}, s{T}")
        E("v_and_b32 v1, 63, v0\nv_lshlrev_b32 v3, 4, v1")
        E("v_lshrrev_b32 v4, 3, v1\nv_bfe_u32 v5, v4, 1, 2\nv_lshlrev_b32 v5, 1, v5\nv_and_b32 v6, 7, v1\nv_xor_b32 v5, v5, v6\nv_lshlrev_b32 v5, 4, v5")
        E("v_mul_u32_u24 v4, 896, v4\nv_add_u32 v4, v4, v5")
        for p in range(4): E(f"v_add_u32 v{16+p}, {p*(8*896-1024)}, v4")
        E(f"s_mul_i32 s{T}, s54, {4*56*1024}\ns_mul_i32 s{T+1}, s{sWave}, {14*1024}\ns_add_u32 s{T}, s{T}, s{T+1}\ns_add_u32 s{T}, s{T}, {WS_HM}")
        srd(E, self.sHM, sWS, f"s{T}", 4 * 56 * 1024); E(f"s_sub_u32 s{self.sHM+2}, s{self.sHM+2}, s{T+1}")
        E(f"s_mul_i32 s{T}, s{sWave}, {14*32*896}\ns_lshl_b32 s{T+1}, s55, 7\ns_add_u32 s{T}, s{T}, s{T+1}")
        srd(E, self.sWDs, sWD, f"s{T}", 1792 * 896); E(f"s_sub_u32 s{self.sWDs+2}, s{self.sWDs+2}, s{T}")
        E(f"s_mul_i32 s52, s{sWave}, {10*4096}")
        E("v_bfe_u32 v4, v1, 4, 2\nv_lshlrev_b32 v4, 2, v4\nv_bfe_u32 v5, v1, 2, 2\nv_add_u32 v4, v4, v5")
        E("v_bfe_u32 v5, v4, 1, 2\nv_lshlrev_b32 v4, 7, v4\nv_and_b32 v6, 3, v1\nv_lshlrev_b32 v6, 3, v6\nv_add_u32 v4, v4, v6\nv_add_u32 v4, s52, v4")
        for mb in range(4): E(f"v_xor_b32 v7, {mb}, v5\nv_lshlrev_b32 v7, 5, v7\nv_add_u32 v{20+mb}, v4, v7")
    def dmaW(self, s):
        u = [f"s_add_u32 m0, s52, {(s % self.NSL)*4096}\ns_mov_b32 s53, {s*32*896}\nbuffer_load_dwordx4 v16, s[{self.sWDs}:{self.sWDs+3}], s53 offen lds"]
        for p in range(1, 4): u.append(f"buffer_load_dwordx4 v{16+p}, s[{self.sWDs}:{self.sWDs+3}], s53 offen offset:{p*1024} lds")
        self.vm.extend([s] * 4); return u
    def ldB(self, s):
        u = []
        for qt in range(4):
            u.append(f"s_mov_b32 s53, {qt*56*1024 + s*1024}\nbuffer_load_dwordx4 v[{self.BF(s,qt)}:{self.BF(s,qt)+3}], v3, s[{self.sHM}:{self.sHM+3}], s53 offen")
        self.vm.extend([s] * 4); return u
    def need(self, s):
        idx = max(i for i, t in enumerate(self.vm) if t == s); return len(self.vm) - 1 - idx
    def reads(self, s, st):
        b = (s % self.NSL) * 4096
        return [f"ds_read_b64_tr_b16 v[{self.WF(st,mb)+2*t}:{self.WF(st,mb)+2*t+1}], v{20+mb} offset:{b + t*2048}" for mb in range(4) for t in range(2)]
    NPRE = 5
    def pre(self):
        for s in range(self.NPRE):
            for u in self.dmaW(s): self.E(u)
    def main(self):
        E = self.E
        AC = lambda mb, qt: (mb * 4 + qt) * 4
        self.vm = []
        for s in range(self.NB - 1):
            for u in self.ldB(s): E(u)
        for u in self.dmaW(self.NPRE): E(u)
        srd(E, self.sH, sWS, WS_H, 2048 * 896)
        E(f"s_lshl_b32 s{T}, s54, 2\ns_add_u32 s{T}, s{T}, s{sWave}\ns_mul_i32 s{T}, s{T}, 14336\ns_lshl_b32 s{T+1}, s55, 11\ns_add_u32 s{T}, s{T}, s{T+1}")
        E(f"buffer_load_dwordx4 v[24:27], v3, s[{self.sH}:{self.sH+3}], s{T} offen")
        E(f"buffer_load_dwordx4 v[28:31], v3, s[{self.sH}:{self.sH+3}], s{T} offen offset:1024")
        self.vm.extend(["H"] * 2)
        E(f"s_waitcnt vmcnt({self.need(0)})")
        for u in self.reads(0, 0): E(u)
        for s in range(14):
            st = s & 1
            Sc = Sched(16)
            if s + 1 < 14:
                E(f"s_waitcnt vmcnt({self.need(s+1)}) lgkmcnt(0)")
                for k, t in enumerate(self.reads(s + 1, st ^ 1)): Sc.put(k, 4, t)
                d = []
                if s + self.NPRE + 1 < 14: d += self.dmaW(s + self.NPRE + 1)
                if s + self.NB - 1 < 14: d += self.ldB(s + self.NB - 1)
                for g, t in zip(range(8, 16), d): Sc.put(g, 12, t)
            else:
                E("s_waitcnt lgkmcnt(0)")
            mf = []
            for mb in range(4):
                for qt in range(4):
                    d_ = f"a[{AC(mb,qt)}:{AC(mb,qt)+3}]"
                    mf.append(f"v_mfma_f32_16x16x32_bf16 {d_}, v[{self.WF(st,mb)}:{self.WF(st,mb)+3}], v[{self.BF(s,qt)}:{self.BF(s,qt)+3}], {'0' if s == 0 else d_}")
            Sc.emit(E, mf)
        E("s_nop 7\ns_barrier")
        E(f"s_lshl_b32 s{T}, s{sWave}, 14\nv_add_u32 v4, s{T}, v3")
        for t in range(16): E(f"ds_write_b128 v4, a[{4*t}:{4*t+3}] offset:{t*1024}")
        E("s_waitcnt lgkmcnt(0)\ns_barrier")
        E(f"s_lshl_b32 s{T}, s{sWave}, 10\nv_add_u32 v4, s{T}, v3")
        for mb in range(4):
            for w in range(4):
                E(f"ds_read_b128 v[{64+mb*16+w*4}:{67+mb*16+w*4}], v4 offset:{w*16384 + mb*4096}")
        E(f"s_mov_b32 s{self.sO}, s{sOUT}\ns_mov_b32 s{self.sO+1}, s{sOUT+1}\ns_mov_b32 s{self.sO+2}, {2048*896}\ns_mov_b32 s{self.sO+3}, 0x20000")
        E(f"s_lshl_b32 s{T}, s54, 6\ns_lshl_b32 s{T+1}, s{sWave}, 4\ns_add_u32 s{T}, s{T}, s{T+1}")
        E(f"v_and_b32 v4, 15, v1\nv_add_u32 v4, s{T}, v4\nv_mul_u32_u24 v4, 896, v4")
        E("v_bfe_u32 v5, v1, 4, 1\nv_lshlrev_b32 v5, 5, v5\nv_add_u32 v4, v4, v5")
        E("v_bfe_u32 v5, v1, 5, 1\nv_lshlrev_b32 v5, 4, v5\nv_add_u32 v4, v4, v5")
        E(f"s_lshl_b32 s{T+1}, s55, 7")
        E("s_waitcnt vmcnt(0) lgkmcnt(0)")
        for mb in range(4):
            b = 64 + mb * 16
            for r in range(4):
                E(f"v_add_f32 v{b+r}, v{b+r}, v{b+4+r}\nv_add_f32 v{b+8+r}, v{b+8+r}, v{b+12+r}")
            for r in range(4): E(f"v_add_f32 v{b+r}, v{b+r}, v{b+8+r}")
            hsrc = 24 + (mb >> 1) * 4 + (mb & 1) * 2
            for j in range(2):
                E(f"v_lshlrev_b32 v10, 16, v{hsrc+j}\nv_and_b32 v11, 0xffff0000, v{hsrc+j}")
                E(f"v_add_f32 v{b+2*j}, v{b+2*j}, v10\nv_add_f32 v{b+2*j+1}, v{b+2*j+1}, v11")
        for k in range(2):
            A = 64 + (2*k) * 16; B = 64 + (2*k+1) * 16; t = 32 + 4 * k
            E(f"v_cvt_pk_bf16_f32 v{t}, v{A}, v{A+1}\nv_cvt_pk_bf16_f32 v{t+1}, v{A+2}, v{A+3}")
            E(f"v_cvt_pk_bf16_f32 v{t+2}, v{B}, v{B+1}\nv_cvt_pk_bf16_f32 v{t+3}, v{B+2}, v{B+3}")
            E("s_nop 1")
            E(f"v_permlane16_swap_b32 v{t}, v{t+2}\nv_permlane16_swap_b32 v{t+1}, v{t+3}")
            E("s_nop 1")
            E(f"buffer_store_dwordx4 v[{t}:{t+3}], v4, s[{self.sO}:{self.sO+3}], s{T+1} offen offset:{64*k}")

class Cap:
    def __init__(self): self.l = []
    def __call__(self, t):
        for x in t.split("\n"):
            if x.strip(): self.l.append(x.strip())
def tail_setup():
    cap = Cap()
    t2 = T2(cap); t2.setup()
    c = t1_part(cap)
    return cap.l, t2, c
def gen_tail(E, name, stamp, t2, c):
    E("tl_start:")
    t2.E = E
    signal(E, 1, 1)
    E(f"s_cmp_ge_u32 s{sU}, 14\ns_cbranch_scc1 tl_now2")
    t2.pre()
    E("tl_now2:")
    stamp(5)
    wait(E, 1, 0, 16)
    stamp(6)
    t1_main(E, c)
    signal(E, 2, 0x100)
    stamp(7)
    E(f"s_cmp_ge_u32 s{sU}, 14\ns_cbranch_scc1 tl_done")
    wait(E, 2, 8, 16)
    stamp(8)
    t2.main()
    t3 = T3(E)
    t3.setup()
    signal(E, 3, 0x10000)
    t3.pre()
    stamp(9)
    wait(E, 3, 16, 14)
    stamp(10)
    t3.main()
    E("tl_done:")
```

```python
class Emit:
    def __init__(self):
        self.lines = []
    def __call__(self, s):
        for l in s.split("\n"):
            l = l.strip()
            if l: self.lines.append(l)
    def text(self):
        return "\n".join(("" if l.endswith(":") else "  ") + l for l in self.lines) + "\n"

def vr(base, n=1):
    return f"v{base}" if n == 1 else f"v[{base}:{base+n-1}]"
def ar(base, n=1):
    return f"a{base}" if n == 1 else f"a[{base}:{base+n-1}]"
def sr(base, n=1):
    return f"s{base}" if n == 1 else f"s[{base}:{base+n-1}]"

def interleave(mfmas, fillers, start=0, per_gap=None, plan=None):
    out = []
    if plan is None:
        n = len(mfmas)
        plan = [min(n - 1, start + k) for k in range(len(fillers))]
    by = {}
    for f, g in zip(fillers, plan):
        by.setdefault(g, []).append(f)
    for g in sorted(by):
        assert -1 <= g < len(mfmas), (g, len(mfmas))
    for f in by.get(-1, []): out.append(f)
    for i, m in enumerate(mfmas):
        out.append(m)
        for f in by.get(i, []): out.append(f)
    return out

def kernel_desc(name, vgpr, acc, sgpr=102):
    return f""".section .rodata,"a"
.p2align 6
.amdhsa_kernel {name}
  .amdhsa_next_free_vgpr {vgpr}
  .amdhsa_next_free_sgpr {sgpr}
  .amdhsa_accum_offset {acc}
  .amdhsa_group_segment_fixed_size 0
  .amdhsa_kernarg_size 104
  .amdhsa_user_sgpr_count 2
  .amdhsa_user_sgpr_kernarg_segment_ptr 1
  .amdhsa_system_sgpr_workgroup_id_x 1
  .amdhsa_float_denorm_mode_32 3
.end_amdhsa_kernel
.text
"""
def kernel_head(name):
    return f""".globl {name}
.p2align 8
.type {name},@function
{name}:
"""

class Sched:
    def __init__(self, n, budget=8):
        self.n = n; self.g = [[] for _ in range(n)]; self.c = [0] * n; self.b = budget
    def put(self, gap, cost, text):
        self.g[gap].append(text); self.c[gap] += cost
    def put_free(self, items, start=0, end=None, stride=1, alone=False):
        end = self.n if end is None else end
        cur = start; left = []
        for k, (c, t) in enumerate(items):
            g = cur
            while g < end:
                if c == 0: break
                if alone:
                    if self.c[g] == 0: break
                elif self.c[g] + c <= self.b: break
                g += 1
            if g >= end:
                left = items[k:]; break
            self.put(g, c, t)
            cur = g + (stride if c else 0)
        return left
    def emit(self, E, mf, before=None):
        for i, m in enumerate(mf):
            if before and i in before:
                for t in before[i]: E(t)
            E(m)
            for t in self.g[i]: E(t)

def code_prefetch(E, target, nbytes, uid, sp, st, v0, nwaves=4):
    E(f"s_getpc_b64 s[{sp}:{sp+1}]\ncpf_{uid}:")
    E(f"s_mov_b32 s{st}, {target}-cpf_{uid}")
    E(f"s_ashr_i32 s{st+1}, s{st}, 31")
    E(f"s_add_u32 s{sp}, s{sp}, s{st}\ns_addc_u32 s{sp+1}, s{sp+1}, s{st+1}")
    E(f"v_lshlrev_b32 v{v0}, 7, v0")
    per = nwaves * 64 * 128
    if nbytes == "TL": nbytes = 0x6000
    n = (nbytes + per - 1) // per
    for k in range(n):
        if k: E(f"v_add_u32 v{v0}, {per}, v{v0}")
        E(f"v_min_u32 v{v0+1}, {nbytes - 4}, v{v0}")
        E(f"global_load_dword v{v0+1}, v{v0+1}, s[{sp}:{sp+1}]")
    return n

def code_prefetch_shared(E, target, nbytes, uid, sp, st, v0, swave, which=0):
    sk = f"cps_{uid}_skip"
    E(f"s_cmp_lg_u32 s{swave}, {which}\ns_cbranch_scc1 {sk}")
    E(f"s_getpc_b64 s[{sp}:{sp+1}]\ncpf_{uid}:")
    E(f"s_mov_b32 s{st}, {target}-cpf_{uid}")
    E(f"s_ashr_i32 s{st+1}, s{st}, 31")
    E(f"s_add_u32 s{sp}, s{sp}, s{st}\ns_addc_u32 s{sp+1}, s{sp+1}, s{st+1}")
    E(f"s_lshr_b32 s{st}, s2, 3\ns_lshl_b32 s{st}, s{st}, 12")
    E(f"v_and_b32 v{v0}, 63, v0\nv_lshlrev_b32 v{v0}, 6, v{v0}\nv_add_u32 v{v0}, s{st}, v{v0}\nv_min_u32 v{v0}, {nbytes - 4}, v{v0}")
    E(f"global_load_dword v{v0+1}, v{v0}, s[{sp}:{sp+1}]")
    E(f"{sk}:")
```

```python
import sys
from asmlib import *
import k0, k1, k2, t1, t2, t3
HDR = '.amdgcn_target "amdgcn-amd-amdhsa--gfx950"\n.text\n'
ABBR = [("v_mfma_f32_16x16x32_bf16", "MF"), ("ds_read_b64_tr_b16", "DT"), ("ds_read_b128", "DR"), ("buffer_load_dwordx4", "BL"),
        ("buffer_store_dwordx4", "BS"), ("v_accvgpr_read_b32", "AR"), ("v_accvgpr_write_b32", "AW"), ("v_cvt_pk_bf16_f32", "CV"),
        ("v_exp_f32", "EX"), ("v_add_f32", "FA"), ("v_mul_f32", "FM"), ("s_waitcnt", "WT"), ("v_cndmask_b32", "CM"), ("s_add_u32", "SA"), ("v_sub_f32", "FS")]
def compact(t):
    lines = t.split("\n")
    out = []; started = False
    for l in lines:
        st = l.strip()
        if st.startswith(".amdgcn_target") and not started:
            out.append(st); started = True
            for full, ab in ABBR:
                out.append(f".macro {ab} a:vararg\n{full} \\a\n.endm")
            continue
        if not started or st.startswith("."):
            out.append(l); continue
        p = st.split(None, 1)
        if len(p) == 2:
            for full, ab in ABBR:
                if p[0] == full: st = ab + " " + p[1].replace(", ", ","); break
            else: st = p[0] + " " + p[1].replace(", ", ",")
        out.append(st)
    return "\n".join(out)
def make(kernels, path):
    t = ""
    for (name, grid, block, lds, body, vgpr, acc) in kernels:
        t += f"; @launch kernel={name} grid=({grid},1,1) block=({block},1,1) lds={lds}\n"
    t += HDR
    seen = set()
    for (name, grid, block, lds, body, vgpr, acc) in kernels:
        if name in seen: continue
        seen.add(name)
        t += kernel_head(name) + body + kernel_desc(name, vgpr, acc)
    open(path, "w").write(compact(t))
K0 = lambda: ("k0_kernel", 256, 256, 0, k0.gen_k0(), 32, 32)
K1 = lambda **kw: ("k1_kernel", 256, 256, 163840, k1.gen_k1(**kw), 512, 256)
K2 = lambda **kw: ("k2_kernel", 256, 256, 163840, k2.gen_k2(**kw), 512, 256)
T1 = lambda **kw: ("t1_kernel", 256, 512, 1024, t1.gen_t1(**kw), 128, 128)
T2 = lambda **kw: ("t2_kernel", 224, 256, 147456, t2.gen_t2(**kw), 384, 256)
T3 = lambda **kw: ("t3_kernel", 224, 256, 131072, t3.gen_t3(**kw), 320, 256)
NX = {"k1": ("k2_kernel", 0xd600)}
def pipeline(path, exp="", stamps=False, cpf=True):
    ks = []
    for i, (f, key) in enumerate([(K1, "k1"), (K2, None)]):
        k1.STAMP_OFF[0] = i * 65536
        kw = dict(stamps=stamps, exp=exp)
        if key and cpf: kw["nxt"] = NX[key]
        ks.append(f(**kw))
    k1.STAMP_OFF[0] = 0
    make(ks, path)
KN = "sequential_preLN__compressed_kv_cla__glu_gated_reglu__prompt_kernel"
def fused(path, exp="", stamps=False):
    b1 = k1.gen_k1(name="k1", stamps=stamps, exp=exp, nxt=("k2_entry", 0xd600), fused="k2_entry")
    b2 = k2.gen_k2(name="k2", stamps=stamps, exp=exp, fused=True)
    body = "k1:\n" + b1 + b2
    t = f"; @launch grid=(256,1,1) block=(256,1,1) lds=163840\n" + HDR + kernel_head(KN) + body + kernel_desc(KN, 512, 256)
    open(path, "w").write(compact(t))
if __name__ == "__main__":
    pipeline("full2.s", "wt_pf18")
    fused("full.s", "wt_pf18")
    fused("st_all.s", "wt_pf18", stamps=True)
```

```python
from asmlib import *
from ws import *
import k0

FUSED_STAMPS = [False]
def stamp_code(E, i, on):
    if on is True:
        if FUSED_STAMPS[0]: E(f"s_memtime s[96:97]\ns_memrealtime s[98:99]\ns_waitcnt lgkmcnt(0)\nv_writelane_b32 v252, s96, {16+i}\nv_writelane_b32 v253, s98, {16+i}")
        else: E(f"s_memtime s[{76+4*i}:{77+4*i}]\ns_memrealtime s[{78+4*i}:{79+4*i}]")

STAMP_OFF = [0]
SPIN_MAX = 0x40000
def stamp_dump(E, n, lab, sws=6):
    E("s_waitcnt vmcnt(0) lgkmcnt(0)")
    E(f"s_mov_b32 s60, s{sws}\ns_mov_b32 s61, s{sws+1}\ns_mov_b32 s62, 0x10000000\ns_mov_b32 s63, 0x20000")
    E(f"s_lshl_b32 s64, s2, 6\ns_add_u32 s64, s64, {WS_DBG + STAMP_OFF[0]}")
    E("v_cmp_eq_u32 vcc, 0, v0\ns_and_saveexec_b64 s[66:67], vcc\ns_cbranch_execz " + f"{lab}_stsk")
    for i in range(n):
        E(f"v_mov_b32 v4, s{76+4*i}\nv_mov_b32 v5, s{78+4*i}\nv_mov_b32 v6, {8*i}")
        E("buffer_store_dwordx2 v[4:5], v6, s[60:63], s64 offen")
        E("s_nop 1")
    E(f"{lab}_stsk:\ns_mov_b64 exec, s[66:67]")

def gen_k1(name="k1_kernel", stamps=False, exp="", nxt=None, fused=None):
    FUSED_STAMPS[0] = bool(fused)
    E = Emit()
    XSLOT = 32768; WBASE = 98304; WSLOT = 16384
    XF = lambda st, i: 64 + st * 32 + i * 4
    WF = lambda st, j: 128 + st * 32 + j * 4
    XA = lambda t, seg: 10 + t * 2 + seg
    WA = lambda j: 14 + j
    XD = lambda p: 22 + p
    WD = lambda p: 26 + p
    XQ = lambda p: 30 + p
    WA2 = lambda j: 40 + j
    sX, sW, sO, sXq, sWq, sOq = 8, 12, 16, 36, 40, 44
    sWave, sXk, sWk, sM0X, sM0W, sSel, sH, sMB = 20, 21, 22, 23, 24, 26, 27, 28
    sXqk, sWqk, sHq, sRB = 48, 49, 50, 51
    NKV, NQ = 32, 14
    SC = ' sc1' if 'wt' in exp else ''
    GLN = 8 if 'g0' not in exp else 0
    if 'lnpro' in exp: GLN = -2
    PL = 8
    if 'bst' in exp: stamps = 'dumponly'
    NG = NKV + NQ
    if "noq" in exp: NG = NKV
    E("s_cmp_ge_u32 s2, 256")
    E(f"s_cbranch_scc1 {name}_end")
    stamp_code(E, 0, stamps)
    E("s_load_dwordx4 s[4:7], s[0:1], 8")
    E("s_load_dwordx4 s[32:35], s[0:1], 24")
    E("s_load_dwordx2 s[52:53], s[0:1], 96")
    E("s_load_dwordx2 s[54:55], s[0:1], 0")
    E("s_load_dwordx2 s[56:57], s[0:1], 88")
    E("s_load_dwordx2 s[58:59], s[0:1], 40")
    E("s_and_b32 s29, s2, 7")
    E("s_lshr_b32 s30, s2, 3")
    E(f"s_lshr_b32 s{sMB}, s30, 2")
    E("s_and_b32 s31, s30, 3")
    E("s_lshl_b32 s25, s29, 2")
    E("s_add_u32 s25, s25, s31")
    E(f"s_lshr_b32 s{sSel}, s25, 4")
    E(f"s_and_b32 s{sH}, s25, 15")
    NCP = 0
    E("s_and_b32 s31, s30, 1")
    E("s_lshl_b32 s29, s29, 1")
    E(f"s_add_u32 s{sHq}, s29, s31")
    E(f"s_lshr_b32 s{sRB}, s2, 4")
    LB = 192
    k0.ln_addr(E, LB)
    E("v_and_b32 v1, 63, v0")
    E("v_lshrrev_b32 v2, 6, v0")
    E("s_nop 0")
    E(f"v_readfirstlane_b32 s{sWave}, v2")
    E("v_lshrrev_b32 v3, 3, v1")
    E("v_lshlrev_b32 v4, 5, v2")
    E("v_add_u32 v3, v3, v4")
    E("v_and_b32 v4, 7, v1")
    E("v_lshrrev_b32 v5, 4, v1")
    E("v_xor_b32 v4, v4, v5")
    E("v_xor_b32 v5, 4, v4")
    E("v_lshlrev_b32 v4, 4, v4")
    E("v_lshlrev_b32 v5, 4, v5")
    E("v_lshlrev_b32 v6, 11, v3")
    E("v_mul_u32_u24 v7, 896, v3")
    for p in range(4):
        c = "v4" if p % 2 == 0 else "v5"
        E(f"v_add_u32 v8, v6, {c}")
        E(f"v_add_u32 v{XD(p)}, {p*(8*2048-1024)}, v8")
        E(f"v_add_u32 v8, v7, {c}")
        E(f"v_add_u32 v{XQ(p)}, {p*(8*896-1024)}, v8")
    E("v_lshrrev_b32 v3, 5, v1")
    E("v_lshlrev_b32 v4, 3, v2")
    E("v_add_u32 v4, v4, v3")
    E("v_lshlrev_b32 v4, 13, v4")
    E("v_and_b32 v5, 31, v1")
    E("v_and_b32 v7, 1, v2")
    E("v_lshlrev_b32 v7, 3, v7")
    E("v_xor_b32 v5, v5, v7")
    for p in range(4):
        E(f"v_add_u32 v6, {2*p}, v3")
        E("v_and_b32 v6, 3, v6")
        E("v_lshlrev_b32 v6, 1, v6")
        E("v_xor_b32 v6, v6, v5")
        E("v_lshlrev_b32 v6, 4, v6")
        E("v_add_u32 v6, v6, v4")
        E(f"v_add_u32 v{WD(p)}, {p*(2*8192-1024)}, v6")
    E("s_waitcnt lgkmcnt(0)")
    if "pst" in exp: stamp_code(E, 1, True)
    if fused:
        E(f"s_add_u32 s92, s52, {WS_FLG}\ns_addc_u32 s93, s53, 0\ns_load_dword s95, s[92:93], {NONCE_OFF}")
    def srd(s, lo, hi, off_s, size):
        if off_s is None:
            E(f"s_mov_b32 s{s}, s{lo}\ns_mov_b32 s{s+1}, s{hi}")
        else:
            E(f"s_add_u32 s{s}, s{lo}, {off_s}\ns_addc_u32 s{s+1}, s{hi}, 0")
        E(f"s_mov_b32 s{s+2}, {size}\ns_mov_b32 s{s+3}, 0x20000")
    sLI, sLO, sFL, sPF = 60, 64, 68, 72
    srd(sLI, 54, 55, None, 2048*896)
    k0.ln_load(E, LB, sLI)
    E(f"s_lshl_b32 s29, s{sMB}, 19")
    srd(sX, 4, 5, "s29", 0x80000)
    E(f"s_cmp_eq_u32 s{sSel}, 0")
    E("s_cselect_b32 s30, s32, s34")
    E("s_cselect_b32 s31, s33, s35")
    E(f"s_lshl_b32 s29, s{sH}, 9")
    srd(sW, 30, 31, "s29", 0x800000)
    E(f"s_sub_u32 s{sW+2}, s{sW+2}, s29")
    E(f"s_lshl_b32 s{sM0X}, s{sWave}, 12")
    E(f"s_add_u32 s{sM0W}, s{sM0X}, {WBASE}")
    E(f"s_mov_b32 s{sXk}, 0")
    E(f"s_mov_b32 s{sWk}, 0")

    vm = [("C", 0)] * NCP + [("LN", 0)] * 2
    def dma_x(grp, hf):
        slot = grp % 3
        u = []
        if grp < 16:
            so = hf * 128 * 2048 + grp * 128
            reg, srd_, lds = XD, sX, slot * XSLOT + hf * 16384
        else:
            so = (grp - 16) * 128
            reg, srd_, lds = XQ, sXq, slot * XSLOT
        u.append(f"s_add_u32 m0, s{sM0X}, {lds}\ns_mov_b32 s{sXk}, {so}\nbuffer_load_dwordx4 v{reg(0)}, s[{srd_}:{srd_+3}], s{sXk} offen lds")
        for p in range(1, 4):
            u.append(f"buffer_load_dwordx4 v{reg(p)}, s[{srd_}:{srd_+3}], s{sXk} offen offset:{p*1024} lds")
        return [(t, ("X", grp)) for t in u]
    def wslot(G):
        if G < NKV: return WBASE + (G % 4) * WSLOT
        L = [WBASE, WBASE + WSLOT, WBASE + 2*WSLOT, WBASE + 3*WSLOT, 49152, 81920]
        return L[(G - NKV) % 6]
    def dma_w(G):
        if G < NKV: so, srd_ = G * 32 * 8192, sW
        else: so, srd_ = (G - NKV) * 32 * 8192, sWq
        u = [f"s_add_u32 m0, s{sM0X}, {wslot(G)}\ns_mov_b32 s{sWk}, {so}\nbuffer_load_dwordx4 v{WD(0)}, s[{srd_}:{srd_+3}], s{sWk} offen lds"]
        for p in range(1, 4):
            u.append(f"buffer_load_dwordx4 v{WD(p)}, s[{srd_}:{srd_+3}], s{sWk} offen offset:{p*1024} lds")
        return [(t, ("W", G)) for t in u]
    def need(*tags):
        idx = max(max(i for i, t in enumerate(vm) if t == tag) for tag in tags)
        return len(vm) - 1 - idx
    def xgrp(G): return G >> 1 if G < NKV else 16 + ((G - NKV) >> 1)
    def reads(G, st):
        grp = xgrp(G); t = G & 1
        slot = grp % 3
        seg = 1 if slot == 2 else 0
        xb = slot * XSLOT - seg * 65536
        nx = 8 if G < NKV else 4
        xr = [f"ds_read_b128 v[{XF(st,i)}:{XF(st,i)+3}], v{XA(t,seg)} offset:{xb + i*2048}" for i in range(nx)]
        ws_ = wslot(G)
        if ws_ >= WBASE: wb, wa = ws_ - WBASE, WA
        else: wb, wa = ws_ - (WBASE - 65536), WA2
        wr = []
        for j in range(8):
            for tt in range(2):
                wr.append(f"ds_read_b64_tr_b16 v[{WF(st,j)+2*tt}:{WF(st,j)+2*tt+1}], v{wa(j)} offset:{wb + tt*2048}")
        return [xr[0]] + wr + xr[1:]
    def mfmas(G, st, sel):
        m = []
        first = G == 0 or G == NKV
        nx = 8 if G < NKV else 4
        for i in range(nx):
            for j in range(8):
                b = (i*8+j)*4
                acc = f"a[{b}:{b+3}]"
                x = f"v[{XF(st,i)}:{XF(st,i)+3}]"; w = f"v[{WF(st,j)}:{WF(st,j)+3}]"
                c = "0" if first else acc
                if sel == 0 or G >= NKV: m.append(f"v_mfma_f32_16x16x32_bf16 {acc}, {w}, {x}, {c}")
                else:                    m.append(f"v_mfma_f32_16x16x32_bf16 {acc}, {x}, {w}, {c}")
        return m

    RAMP = "noramp" not in exp
    pro = dma_x(0,0) + dma_x(0,1) + dma_w(0) + dma_w(1) + dma_x(1,0) + dma_x(1,1) + dma_w(2)
    if not RAMP: pro += dma_w(3) + dma_x(2,0) + dma_x(2,1)
    for u, tg in pro:
        E(u); vm.append(tg)
    backlog0 = [(2, "w", 3), (3, "x", (2, 0)), (3, "x", (2, 1))] if RAMP else []
    if "pst" in exp: stamp_code(E, 2, True)
    if "nocpf" not in exp:
        E(f"s_cmp_eq_u32 s{sSel}, 0\ns_cbranch_scc0 {name}_cpv")
        code_prefetch_shared(E, name, 0xa800, name + "_a", 72, 74, 8, sWave)
        E(f"s_branch {name}_cpd\n{name}_cpv:")
        code_prefetch_shared(E, name + "_v", 0xa800, name + "_b", 72, 74, 8, sWave)
        E(f"{name}_cpd:")
        if fused: code_prefetch_shared(E, nxt[0], nxt[1], name + "_e", 72, 74, 8, sWave, which=2)
    E(f"s_lshl_b32 s29, s{sSel}, 24")
    E(f"s_lshl_b32 s30, s{sH}, 20")
    E("s_add_u32 s29, s29, s30")
    srd(sO, 52, 53, "s29", 0x100000)
    E(f"s_mul_i32 s29, s{sRB}, {128*896}")
    E(f"s_add_u32 s29, s29, {WS_XN}")
    srd(sXq, 52, 53, "s29", 128*896)
    E(f"s_lshl_b32 s29, s{sHq}, 9")
    srd(sWq, 6, 7, "s29", 448*8192)
    E(f"s_sub_u32 s{sWq+2}, s{sWq+2}, s29")
    E(f"s_lshl_b32 s29, s{sHq}, 20")
    E(f"s_add_u32 s29, s29, {WS_Q}")
    srd(sOq, 52, 53, "s29", 0x100000)
    E("v_and_b32 v3, 15, v1")
    E("v_lshrrev_b32 v4, 4, v1")
    E("v_bfe_u32 v5, v1, 1, 3")
    E("v_xor_b32 v4, v4, v5")
    E("v_lshrrev_b32 v6, 7, v0")
    E("v_lshlrev_b32 v6, 7, v6")
    E("v_add_u32 v3, v3, v6")
    E("v_lshlrev_b32 v3, 7, v3")
    for t in range(2):
        E(f"v_xor_b32 v5, {4*t}, v4")
        E("v_lshlrev_b32 v5, 4, v5")
        E(f"v_add_u32 v{XA(t,0)}, v3, v5")
        E(f"v_add_u32 v{XA(t,1)}, 0x10000, v{XA(t,0)}")
    E("v_bfe_u32 v3, v1, 2, 2")
    E("v_lshrrev_b32 v4, 4, v1")
    E("v_lshlrev_b32 v5, 3, v4")
    E("v_add_u32 v5, v5, v3")
    E("v_lshlrev_b32 v5, 9, v5")
    E("v_and_b32 v4, 1, v4")
    E("v_lshlrev_b32 v4, 2, v4")
    E("v_or_b32 v3, v3, v4")
    E("v_and_b32 v6, 3, v1")
    E("v_lshlrev_b32 v6, 3, v6")
    E("v_add_u32 v5, v5, v6")
    E("v_bfe_u32 v6, v0, 6, 1")
    E("v_lshlrev_b32 v6, 8, v6")
    E("v_add_u32 v5, v5, v6")
    E(f"v_add_u32 v5, {WBASE}, v5")
    for j in range(8):
        E(f"v_xor_b32 v6, {j}, v3")
        E("v_lshlrev_b32 v6, 5, v6")
        E(f"v_add_u32 v{WA(j)}, v5, v6")
        E(f"v_subrev_u32 v{WA2(j)}, 0x10000, v{WA(j)}")
    srd(sLO, 52, 53, WS_XN, 2048*896)
    srd(sFL, 56, 57, None, 256)
    PFW, PFX = 34, 35
    PX, PW = 48, 49
    E("s_lshr_b32 s29, s2, 3\ns_and_b32 s29, s29, 3\ns_lshl_b32 s29, s29, 6")
    E(f"s_lshl_b32 s30, s{sWave}, 4\ns_add_u32 s29, s29, s30\nv_and_b32 v3, 15, v1\nv_add_u32 v3, s29, v3\nv_lshlrev_b32 v3, 11, v3\nv_lshrrev_b32 v4, 4, v1\nv_lshlrev_b32 v4, 5, v4\nv_add_u32 v{PX}, v3, v4")
    E(f"s_lshl_b32 s29, s{sMB}, 3\ns_lshl_b32 s30, s{sWave}, 1\ns_add_u32 s29, s29, s30\nv_bfe_u32 v3, v1, 4, 1\nv_add_u32 v3, s29, v3\nv_lshlrev_b32 v3, 13, v3")
    E(f"v_and_b32 v4, 15, v1\nv_lshlrev_b32 v4, 5, v4\nv_add_u32 v{PW}, v3, v4")
    E("s_lshr_b32 s29, s2, 3")
    E(f"s_mul_i32 s30, s{sWave}, 56\nv_min_u32 v3, 55, v1\nv_add_u32 v3, s30, v3")
    E("v_lshrrev_b32 v4, 4, v3\ns_mul_i32 s30, s29, 14\nv_add_u32 v4, s30, v4\nv_lshlrev_b32 v4, 13, v4")
    E("v_and_b32 v3, 15, v3\nv_lshlrev_b32 v3, 6, v3\nv_add_u32 v4, v4, v3")
    E(f"s_and_b32 s30, s{sHq}, 1\ns_lshl_b32 s30, s30, 9")
    E(f"v_subrev_u32 v4, s30, v4\nv_max_i32 v{PFW}, 0, v4")
    E(f"s_mul_i32 s30, s29, 448\ns_mul_i32 s31, s{sWave}, 112\ns_add_u32 s30, s30, s31")
    E(f"v_add_u32 v3, s30, v1\nv_lshlrev_b32 v{PFX}, 7, v3")
    E(f"v_min_u32 v4, 47, v1\nv_add_u32 v4, 64, v4\nv_add_u32 v4, s30, v4\nv_lshlrev_b32 v{PFX+1}, 7, v4")
    class Cap:
        def __init__(self): self.l = []
        def __call__(self, t):
            for x in t.split("\n"):
                if x.strip(): self.l.append(x.strip())
    cap = Cap(); k0.ln_math_store(cap, LB, sLO, "sc1")
    ln_stream = []
    for t in cap.l:
        if t.startswith("buffer_store"): ln_stream.append((12, t, ("LS", 0)))
        elif t.startswith("s_nop"): ln_stream.append((0, t, None))
        elif t.startswith("v_rsq"): ln_stream.append((8, t, None))
        else: ln_stream.append((4, t, None))
    if "tlb" in exp:
        E(f"s_lshl_b32 s29, s{sMB}, 17\ns_lshl_b32 s30, s{sWave}, 15\ns_add_u32 s29, s29, s30\nv_mov_b32 v8, s29")
        E(f"buffer_load_dword v9, v8, s[{sO}:{sO+3}], 0 offen")
        E(f"s_lshl_b32 s29, s{sRB}, 16\ns_lshl_b32 s30, s{sWave}, 14\ns_add_u32 s29, s29, s30\nv_mov_b32 v8, s29")
        E(f"buffer_load_dword v9, v8, s[{sOq}:{sOq+3}], 0 offen")
        E(f"s_mul_i32 s30, s{sWave}, {112*8192}\nv_mov_b32 v8, s30")
        E(f"buffer_load_dword v9, v8, s[{sWq}:{sWq+3}], 0 offen")
        E(f"s_mul_i32 s30, s{sWave}, {32*896}\nv_mov_b32 v8, s30")
        E(f"buffer_load_dword v9, v8, s[{sXq}:{sXq+3}], 0 offen")
        vm.extend([("T", 0)] * 4)
    if "nopf" not in exp and "pf18" not in exp and NG > NKV:
        E(f"buffer_load_dword v7, v{PFW}, s[{sWq}:{sWq+3}], 0 offen"); vm.append(("P", 0))
    if "lnpro" in exp:
        E(f"s_waitcnt vmcnt({need(('LN',0))})")
        for c, t, tg in ln_stream:
            E(t)
            if tg: vm.append(tg)
    E(f"s_waitcnt vmcnt({need(('X',0),('W',0))})")
    if "pst" in exp: stamp_code(E, 3, True)
    E("s_barrier")
    if "pst" in exp: stamps = "dumponly2"; stamp_code(E, 4, True)
    stamp_code(E, 1, stamps)
    for u in reads(0, 0): E(u)
    E(f"s_cmp_eq_u32 s{sSel}, 0")
    E(f"s_cbranch_scc0 {name}_v")
    E(f"{name}_k0:")
    vm0 = list(vm)

    def kv_epi_setup(sel):
        E("v_lshlrev_b32 v3, 4, v1")
        E("v_lshrrev_b32 v4, 7, v0")
        E("v_lshlrev_b32 v4, 16, v4")
        E("v_add_u32 v3, v3, v4")
        E("v_bfe_u32 v4, v0, 6, 1")
        E(f"v_lshlrev_b32 v4, {12 if sel == 0 else 13}, v4")
        E("v_add_u32 v3, v3, v4")
        E(f"s_lshl_b32 s29, s{sMB}, 17")
    def kv_units(sel):
        units = []; n = 0
        for a in range(8 if sel == 0 else 4):
            for b in range(4 if sel == 0 else 8):
                t = 192 + (n % 4) * 12; n += 1
                if sel == 0:
                    src = [(a*8 + 2*b)*4 + r for r in range(8)]; off = a*8192 + b*1024
                else:
                    src = [(2*a*8 + b)*4 + r for r in range(4)] + [((2*a+1)*8 + b)*4 + r for r in range(4)]; off = a*16384 + b*1024
                u = [(4, f"v_accvgpr_read_b32 v{t+r}, a{src[r]}", None) for r in range(8)]
                u += [(4, f"v_cvt_pk_bf16_f32 v{t+8+r}, v{t+2*r}, v{t+2*r+1}", None) for r in range(4)]
                u += [(12, f"s_add_u32 s30, s29, {off}\nbuffer_store_dwordx4 v[{t+8}:{t+11}], v3, s[{sO}:{sO+3}], s30 offen{SC}", ("S", 0))]
                units.append(u)
        assert all(int(x[1].split("a")[-1]) < 128 for u in units[:16] for x in u[:8])
        return units
    def q_epilogue():
        E("s_nop 7")
        E("v_lshlrev_b32 v3, 4, v1")
        E("v_lshrrev_b32 v4, 7, v0")
        E("v_lshlrev_b32 v4, 15, v4")
        E("v_add_u32 v3, v3, v4")
        E("v_bfe_u32 v4, v0, 6, 1")
        E("v_lshlrev_b32 v4, 12, v4")
        E("v_add_u32 v3, v3, v4")
        E(f"s_lshl_b32 s29, s{sRB}, 16")
        E("s_mov_b32 s31, 0x3db8aa3b")
        n = 0
        for a in range(4):
            for b in range(4):
                t = 192 + (n % 4) * 12; n += 1
                src = [(a*8 + 2*b)*4 + r for r in range(8)]; off = a*8192 + b*1024
                for r in range(8): E(f"v_accvgpr_read_b32 v{t+r}, a{src[r]}")
                for r in range(8): E(f"v_mul_f32 v{t+r}, s31, v{t+r}")
                for r in range(4): E(f"v_cvt_pk_bf16_f32 v{t+8+r}, v{t+2*r}, v{t+2*r+1}")
                E(f"s_add_u32 s30, s29, {off}")
                E(f"buffer_store_dwordx4 v[{t+8}:{t+11}], v3, s[{sOq}:{sOq+3}], s30 offen{SC}")

    for sel in range(2):
        lab = f"{name}_{'kv'[sel]}"
        if sel == 1: E(f"{lab}:")
        vm[:] = vm0
        pend = []
        backlog = list(backlog0)
        if 'noln' in exp: vm.append(('LS', 0))
        for G in range(NG):
            st = G & 1
            if G == GLN and 'noln' not in exp and 'lnpro' not in exp: pend = list(ln_stream)
            if G == NKV:
                stamp_code(E, 2, stamps)
                E("v_lshrrev_b32 v4, 7, v0\nv_lshlrev_b32 v4, 13, v4")
                for t in range(2):
                    for seg in range(2): E(f"v_sub_u32 v{XA(t,seg)}, v{XA(t,seg)}, v4")
                for u in reads(NKV, st): E(u)
                E("s_nop 4")
                kv_epi_setup(sel)
                un = kv_units(sel)
                nexp = 32 if "allexp" in exp else (8 if "exp8" in exp else 16)
                for u in un[:nexp]:
                    for c, t, tg in u:
                        E(t)
                        if tg: vm.append(tg)
                pend = [x for u in un[nexp:] for x in u]
                stamp_code(E, 3, stamps)
            if "bst" in exp and G % 6 == 0 and G < 36: E(f"s_memtime s[{76+4*(G//6)}:{77+4*(G//6)}]\ns_memrealtime s[{78+4*(G//6)}:{79+4*(G//6)}]")
            last = G == NG - 1
            ngap = 64 if G < NKV else 32
            S = Sched(ngap)
            tags = {}
            def putv(g, c, t, tg):
                S.put(g, c, t); tags.setdefault(g, []).append(tg)
            if not last:
                E(f"s_waitcnt vmcnt({need(('X', xgrp(G+1)), ('W', G+1))}) lgkmcnt(0)")
                E("s_barrier")
                if G + 1 != NKV:
                    rd = reads(G + 1, st ^ 1)
                    step = 2 if ngap == 64 else 1
                    for k, t in enumerate(rd): S.put(step * k, 4, t)
                reg = []
                if G + 4 < NKV + (4 if NG > NKV else 0) and G < NKV: reg.append((G + 3, "w", G + 4))
                if NG > NKV and G == 28: reg.append((NKV + 3, "w", NKV + 4))
                if NG > NKV and G == 30: reg.append((NKV + 4, "w", NKV + 5))
                if G >= NKV and G + 6 < NG: reg.append((G + 5, "w", G + 6))
                if G < NKV:
                    if G % 2 == 1: grp, hf = (G - 1) // 2 + 3, 0
                    else: grp, hf = G // 2 + 2, 1
                    if G == 0: grp = None
                else:
                    it = G - NKV
                    grp, hf = (16 + (it - 1) // 2 + 3, 0) if it % 2 == 1 else (None, 0)
                if grp is not None:
                    maxg = 16 + 7 if NG > NKV else 16
                    if grp < 16 or (grp < maxg and hf == 0):
                        dl = 2 * grp - 1 if grp < 16 else NKV + 2 * (grp - 16) - 1
                        reg.append((dl, "x", (grp, hf)))
                backlog.extend(reg); backlog.sort(key=lambda x: x[0])
                ntake = 3 if (G < 6 or len(backlog) > 2) else len(backlog)
                take, backlog[:] = backlog[:ntake], backlog[ntake:]
                d = []
                for dl, kind, arg in take:
                    assert dl > G or dl == G, (G, dl, kind, arg)
                    assert dl >= G + 1 or True
                    d += dma_x(*arg) if kind == "x" else dma_w(arg)
                dp = [5, 11, 17, 23, 29, 35, 41, 47, 51, 55, 59, 63] if ngap == 64 else [20, 22, 24, 26, 21, 23, 25, 27]
                if ngap == 32 and len(d) <= 4: dp = [21, 24, 27, 30]
                elif ngap == 32: dp = [20, 21, 22, 24, 25, 27, 29, 31]
                for (t, tg), g in zip(d, dp): putv(g, 12, t, tg)
                if "l2pf" in exp and G < NKV:
                    if G % 2 == 1 and (G + PL + 1) // 2 < 16:
                        putv(57, 12, f"s_mov_b32 s31, {((G + PL + 1) // 2) * 128}\nbuffer_load_dword v7, v{PX}, s[{sX}:{sX+3}], s31 offen", ("P", 2))
                    if G % 2 == 0 and G + PL < NKV:
                        putv(57, 12, f"s_mov_b32 s31, {(G + PL) * 32 * 8192}\nbuffer_load_dword v7, v{PW}, s[{sW}:{sW+3}], s31 offen", ("P", 3))
                if G == GLN + 7 and 'nosig' not in exp:
                    assert need(('W', G+1)) <= len(vm) - 1 - max(i for i, t in enumerate(vm) if t == ('LS', 0)) - 0 and True
                    sk = f"{lab}_nosig"
                    S.put(51, 0, f"s_cmp_lg_u32 s{sWave}, 0\ns_cbranch_scc1 {sk}\ns_lshr_b32 s30, s2, 4\ns_lshl_b32 s30, s30, 2\nv_mov_b32 v4, 1\nv_mov_b32 v5, s30\ns_mov_b64 exec, 1\nbuffer_atomic_add v4, v5, s[{sFL}:{sFL+3}], 0 offen sc1\ns_mov_b64 exec, -1\n{sk}:")
                if fused and G == 1: S.put(55, 0, 's_add_u32 s95, s95, 1')
                if G == 4 and not fused:
                    zk = f"{lab}_nozero"
                    putz = f"s_cmp_lg_u32 s{sWave}, 0\ns_cbranch_scc1 {zk}\ns_add_u32 s60, s52, {WS_FLG}\ns_addc_u32 s61, s53, 0\ns_mov_b32 s62, {FLG_BYTES}\ns_mov_b32 s63, 0x20000\ns_lshl_b32 s30, s2, 7\nv_lshlrev_b32 v4, 2, v1\nv_mov_b32 v5, 0\ns_mov_b32 exec_hi, 0\nbuffer_store_dword v5, v4, s[60:63], s30 offen\ns_mov_b64 exec, -1\n{zk}:"
                    S.put(55, 0, putz)
                if NG > NKV and G == GLN + 10 and 'nopoll' not in exp:
                    putv(53, 12, f"s_lshl_b32 s30, s{sRB}, 2\nv_mov_b32 v5, s30\nbuffer_load_dword v6, v5, s[{sFL}:{sFL+3}], 0 offen sc1", ("F", 0))
                if NG > NKV and G == GLN + 14 and 'nopoll' not in exp:
                    ok, pl = f"{lab}_xnok", f"{lab}_xnpoll"
                    to = f"{lab}_xnto"
                    S.put(53, 8, f"v_readfirstlane_b32 s30, v6\ns_cmp_ge_u32 s30, 16\ns_cbranch_scc1 {ok}\ns_mov_b32 s31, 0\n{pl}:\ns_sleep 1\nbuffer_load_dword v6, v5, s[{sFL}:{sFL+3}], 0 offen sc1\ns_waitcnt vmcnt(0)\nv_readfirstlane_b32 s30, v6\ns_add_u32 s31, s31, 1\ns_cmp_ge_u32 s31, {SPIN_MAX}\ns_cbranch_scc1 {to}\ns_cmp_ge_u32 s30, 16\ns_cbranch_scc0 {pl}\ns_branch {ok}\n{to}:\nv_mov_b32 v6, 0xbad1\nv_mov_b32 v7, 128\nbuffer_store_dword v6, v7, s[{sFL}:{sFL+3}], 0 offen\n{ok}:")
                if NG > NKV and G == 18 and "pf18" in exp:
                    putv(53, 12, f"buffer_load_dword v7, v{PFW}, s[{sWq}:{sWq+3}], 0 offen", ("P", 0))
                if NG > NKV and G in (19, 20) and "pfx" in exp:
                    putv(53, 12, f"buffer_load_dword v7, v{PFX}, s[{sLO}:{sLO+3}], 0 offen offset:{0 if G == 19 else 0}" if G == 19 else f"buffer_load_dword v7, v{PFX+1}, s[{sLO}:{sLO+3}], 0 offen", ("P", 1))
                if pend:
                    k = 0; cur = 0
                    while k < len(pend):
                        c, t, tg = pend[k]
                        g = cur
                        while g < ngap and c and not (S.c[g] == 0 if c == 12 else S.c[g] + c <= 8): g += 1
                        if g >= ngap: break
                        if tg: putv(g, c, t, tg)
                        else: S.put(g, c, t)
                        cur = g; k += 1
                        if G >= NKV and k >= 26 and pend[k-1][2]: break
                    pend = pend[k:]
            else:
                E("s_waitcnt lgkmcnt(0)")
            S.emit(E, mfmas(G, st, sel))
            for g in sorted(tags): vm.extend(tags[g])
        for c, t, tg in pend: E(t)
        if NG == NKV:
            stamp_code(E, 2, stamps)
            E("s_nop 7")
            kv_epi_setup(sel)
            for u in kv_units(sel):
                for c, t, tg in u: E(t)
            stamp_code(E, 3, stamps)
        else:
            stamp_code(E, 4, stamps)
            if nxt and "nocpf" not in exp and not fused: code_prefetch_shared(E, nxt[0], nxt[1], f"{lab}_n", 72, 74, 8, sWave)
            q_epilogue()
        if fused:
            sk = f"{lab}_done"
            E("s_waitcnt vmcnt(0)\ns_barrier")
            E(f"s_cmp_lg_u32 s{sWave}, 0\ns_cbranch_scc1 {sk}")
            E(f"s_add_u32 s60, s52, {WS_FLG}\ns_addc_u32 s61, s53, 0\ns_mov_b32 s62, {FLG_BYTES}\ns_mov_b32 s63, 0x20000")
            E(f"s_lshl_b32 s29, s{sH}, 7\ns_lshl_b32 s30, s{sSel}, 3\ns_add_u32 s30, s30, s{sMB}\ns_lshl_b32 s30, s30, 2\ns_add_u32 s29, s29, s30\ns_add_u32 s29, s29, {HEAD_OFF}")
            E(f"s_lshl_b32 s30, s{sHq}, 7\ns_lshl_b32 s31, s{sRB}, 2\ns_add_u32 s30, s30, s31\ns_add_u32 s30, s30, {HEAD_OFF + 64}")
            E("v_mov_b32 v4, s29\nv_mov_b32 v5, s30\nv_cmp_eq_u32 vcc, 0, v0\nv_mov_b32 v6, s95\ns_nop 0\nv_cndmask_b32 v4, v5, v4, vcc")
            E("s_mov_b64 exec, 3\nbuffer_store_dword v6, v4, s[60:63], 0 offen sc1\ns_mov_b64 exec, -1")
            E(f"{sk}:")
            if "nocpf" not in exp: code_prefetch_shared(E, nxt[0], nxt[1], f"{lab}_n", 72, 74, 8, sWave, which=1)
            stamp_code(E, 5, stamps)
            E(f"s_branch {fused}")
            continue
        if stamps:
            E("s_waitcnt vmcnt(0)")
            stamp_code(E, 5 if NG > NKV else 4, True)
            stamp_dump(E, 6 if NG > NKV else 5, lab, 52)
        E("s_endpgm")
    E(f"{name}_end:")
    E("s_endpgm")
    return E.text()
```

```python
from asmlib import *
from ws import *
from k1 import SPIN_MAX, STAMP_OFF
import tail

NS = 5
CH = 32768
THR = 0x44800000
NA = 18

def O(db, qt): return (db * 2 + qt) * 4
def Q(qt, ds): return 128 + (qt * 8 + ds) * 4
def F(f): return 192 + (f % 16) * 4
def S(par, kb, qt): return 64 + par * 32 + (kb * 2 + qt) * 4
def P(par, s, qt): return 128 + par * 16 + (s * 2 + qt) * 4
def NEGM(qt): return 160 + 4 * qt
TMP = 168
L_ = lambda qt: 184 + qt
LS = lambda qt: 186 + qt
M_ = lambda qt: 188 + qt
DM = lambda qt: 190 + qt
vRA, vRB, vLane16, vTab = 192, 193, 194, 196
vT0 = 200
vD = 224
vW = 232
vWA = 240
vPM = 246
vFL = 250
sDM = 8
sQ = 12
sPT = 16
sOP = 20
sWO = 24
sFL = 28
sWave, sH, sPair, sType = 32, 33, 34, 35
sC, sWr, sRdN, sOff, sN, sI, sT, sQB, sItem = 36, 37, 38, 39, 40, 41, 42, 43, 44
sTmp, sTmp2, sTmp3 = 45, 46, 47
sM0 = 48
sNKV, sSig, sHasP, sPI = 52, 53, 54, 62

def a4(b): return f"a[{b}:{b+3}]"
def v4(b): return f"v[{b}:{b+3}]"

def stamp_code(E, i, on):
    if on: E(f"s_memtime s[96:97]\ns_memrealtime s[98:99]\ns_waitcnt lgkmcnt(0)\nv_writelane_b32 v252, s96, {i}\nv_writelane_b32 v253, s98, {i}")
def stamp_dump(E, n, lab, sws):
    E("s_mov_b64 exec, -1\ns_waitcnt vmcnt(0) lgkmcnt(0)")
    E(f"s_mov_b32 s60, s{sws}\ns_mov_b32 s61, s{sws+1}\ns_mov_b32 s62, 0x10000000\ns_mov_b32 s63, 0x20000")
    E(f"s_lshl_b32 s56, s2, 8\ns_add_u32 s56, s56, {WS_DBG + 65536}")
    E(f"s_cmp_lg_u32 s{sWave}, 0\ns_cbranch_scc1 {lab}_stsk")
    E("v_and_b32 v4, 63, v0\nv_lshlrev_b32 v4, 3, v4\nv_mov_b32 v6, v252\nv_mov_b32 v7, v253\ns_mov_b64 exec, 0xffffff")
    E("buffer_store_dwordx2 v[6:7], v4, s[60:63], s56 offen")
    E(f"{lab}_stsk:")

class K2:
    def __init__(self, name, stamps=False, exp="", nxt=None, fused=False):
        self.nxt = nxt; self.fused = fused
        self.name = name; self.E = Emit(); self.stamps = stamps; self.exp = exp
        self.uid = 0; self.rare = []
    def ist(self, i):
        if "ist" in self.exp: stamp_code(self.E, i, True)
    def lab(self, s):
        self.uid += 1
        return f"{self.name}_{s}{self.uid}"

    def head_items(self, Sc, nxt, vmw=16, dma_gaps=None, sw=False, sg=False, m0gap=6):
        if isinstance(vmw, int): w = f"s_waitcnt vmcnt({vmw})"
        else: w = vmw
        Sc.put(1, 0, w + ("\ns_barrier" if "nobar" not in self.exp else ""))
        if sg:
            a, b = self.lab("sg"), self.lab("sgb")
            Sc.put(13, 0, f"s_cmp_eq_u32 s{sSig}, 1\ns_cbranch_scc1 {a}\n{b}:")
            self.rare.append(("signal", a, b))
        g0 = 2
        if sw:
            a, b = self.lab("sw"), self.lab("swb")
            Sc.put(2, 0, f"s_cmp_eq_u32 s{sC}, s{sNKV}\ns_cbranch_scc1 {a}\n{b}:")
            self.rare.append(("switch", a, b))
        Sc.put(3, 4, f"v_readlane_b32 s{sOff}, v{vTab}, s{sC}")
        Sc.put(4, 0, f"s_add_u32 s{sRdN}, s{sRdN}, {CH}\ns_cmp_eq_u32 s{sRdN}, {NS*CH}\ns_cselect_b32 s{sRdN}, 0, s{sRdN}")
        Sc.put(6, 0, f"s_add_u32 s{sC}, s{sC}, 1")
        Sc.put(m0gap, 0, f"s_add_u32 m0, s{sWr}, s{sM0}")
        g = 6
        for reg, base in nxt:
            while Sc.c[g] + 4 > 8: g += 1
            Sc.put(g, 4, f"v_add_u32 v{reg}, s{sRdN}, v{base}")
        dg = dma_gaps or [9, 15, 21, 27, 33, 39, 45, 51]
        for p in range(8):
            t = f"buffer_load_dwordx4 v{vD+p}, s[{sDM}:{sDM+3}], s{sOff} offen offset:{(p&3)*1024} lds"
            if "nodma" not in self.exp: Sc.put(dg[p], 12, t)
            if p == 3: Sc.put(dg[p] + 1, 0, f"s_add_u32 m0, m0, 4096")
            if p == 7: Sc.put(dg[p] + 1, 0, f"s_add_u32 s{sWr}, s{sWr}, {CH}\ns_cmp_eq_u32 s{sWr}, {NS*CH}\ns_cselect_b32 s{sWr}, 0, s{sWr}")

    def frag_read(self, f, cur, nxt):
        if f < 32: return f"ds_read_b128 {a4(F(f))}, v{cur} offset:{f*1024}"
        return f"ds_read_b128 {a4(F(f))}, v{nxt} offset:{(f-32)*1024}"

    def qk_mfmas(self, par, cinit):
        m = []
        for kb in range(4):
            for ds in range(8):
                f = kb * 8 + ds
                for qt in range(2):
                    d = v4(S(par, kb, qt))
                    c = (v4(NEGM(qt)) if cinit else "0") if ds == 0 else d
                    m.append(f"v_mfma_f32_16x16x32_bf16 {d}, {a4(F(f))}, {a4(Q(qt, ds))}, {c}")
        return m
    def pv_mfmas(self, par):
        m = []
        for s in range(2):
            for db in range(16):
                f = s * 16 + db
                for qt in range(2):
                    d = a4(O(db, qt))
                    m.append(f"v_mfma_f32_16x16x32_bf16 {d}, {a4(F(f))}, {v4(P(par, s, qt))}, {d}")
        return m

    def sm_stream(self, par, half):
        out = []
        for kb in (2 * half, 2 * half + 1):
            for qt in range(2):
                s0 = S(par, kb, qt); t = TMP + ((kb * 2 + qt) % 4) * 4
                p = P(par, kb >> 1, qt) + 2 * (kb & 1)
                for r in range(4): out.append((8, f"v_exp_f32 v{t+r}, v{s0+r}"))
                if kb == 0:
                    out.append((4, f"v_add_f32 v{LS(qt)}, v{t}, v{t+1}"))
                else:
                    out.append((4, f"v_add_f32 v{LS(qt)}, v{LS(qt)}, v{t}"))
                    out.append((4, f"v_add_f32 v{LS(qt)}, v{LS(qt)}, v{t+1}"))
                out.append((4, f"v_cvt_pk_bf16_f32 v{p}, v{t}, v{t+1}"))
                out.append((4, f"v_add_f32 v{LS(qt)}, v{LS(qt)}, v{t+2}"))
                out.append((4, f"v_cvt_pk_bf16_f32 v{p+1}, v{t+2}, v{t+3}"))
                out.append((4, f"v_add_f32 v{LS(qt)}, v{LS(qt)}, v{t+3}"))
        return out

    def emit_phase(self, mf, cur, sm=(), extra=(), tail=(), vmw=16, pre=(), sw=False, sg=False, first=False):
        E = self.E
        nxt = vRB if cur == vRA else vRA
        n = len(mf)
        Sc = Sched(n)
        for f in range(32):
            if "nords" in self.exp: continue
            Sc.put(2 * f, 4, self.frag_read(f + 8, cur, nxt))
        if first:
            g = 3
            for c, so in ((2, 74), (3, 75)):
                for p in range(8):
                    pre_ = f"s_add_u32 m0, s{sM0}, {c*CH}\ns_nop 0\n" if p == 0 else ("s_add_u32 m0, m0, 4096\ns_nop 0\n" if p == 4 else "")
                    Sc.put(g, 12, pre_ + f"buffer_load_dwordx4 v{vD+p}, s[{sDM}:{sDM+3}], s{so} offen offset:{(p&3)*1024} lds"); g += 2
            self.head_items(Sc, [(nxt, vLane16)], 0, dma_gaps=[37, 39, 41, 43, 45, 47, 49, 51], sw=False, m0gap=36)
        else:
            self.head_items(Sc, [(nxt, vLane16)], vmw, sw=sw, sg=sg)
        for g, c, t in pre: Sc.put(g, c, t)
        if "nosm" in self.exp: sm = []
        if sm:
            exps = [t for c, t in sm if c == 8]
            free_odd = [g for g in range(5, n, 2) if Sc.c[g] == 0 and g <= 53]
            assert len(free_odd) >= len(exps), (len(free_odd), len(exps))
            egap = [free_odd[(j * len(free_odd)) // len(exps)] for j in range(len(exps))]
            for t, g in zip(exps, egap): Sc.put(g, 8, t)
            ne = 0; g = 0
            for c, t in sm:
                if c == 8: ne += 1; continue
                g = max(g, egap[ne - 1] + 1)
                while Sc.c[g] + c > 8: g += 1
                Sc.put(g, c, t)
            lastsm = g
        else: lastsm = 0
        if extra:
            left = Sc.put_free(list(extra), start=2, stride=0)
            assert not left or True
        else: left = []
        g = max(lastsm + 1, n - 2 * len(tail) - 2)
        for c, t in tail:
            while Sc.c[g] + c > 8 and g < n - 1: g += 1
            Sc.put(g, c, t)
        before = {8 * k: ["s_waitcnt lgkmcnt(4)"] for k in range(8)}
        Sc.emit(E, mf, before)
        for c, t in left: E(t)

    def mask_block(self, par):
        E = self.E
        E(f"s_lshl_b32 s{sTmp}, s{sT}, 6")
        for qt in range(2): E(f"v_subrev_u32 v{vT0+qt}, s{sTmp}, v{DM(qt)}")
        E(f"v_mov_b32 v{vT0+2}, 0xff800000")
        k = 0
        items = [(qt, kb, r) for qt in range(2) for kb in range(4) for r in range(4)]
        masks = ["s[56:57]", "s[58:59]", "s[60:61]"]
        for i in range(len(items) + 2):
            if i < len(items):
                qt, kb, r = items[i]
                E(f"v_cmp_le_i32 {masks[i % 3]}, {16*kb+r}, v{vT0+qt}")
            if i >= 2:
                qt, kb, r = items[i - 2]
                E(f"v_cndmask_b32 v{S(par,kb,qt)+r}, v{vT0+2}, v{S(par,kb,qt)+r}, {masks[(i-2) % 3]}")
            if i >= len(items): E("s_nop 0")

    def xlane(self, op, r, t):
        E = self.E
        E(f"v_mov_b32 v{t}, v{r}\ns_nop 1")
        E(f"v_permlane16_swap_b32 v{r}, v{t}\ns_nop 1")
        E(f"{op} v{r}, v{r}, v{t}")
        E(f"v_mov_b32 v{t}, v{r}\ns_nop 1")
        E(f"v_permlane32_swap_b32 v{r}, v{t}\ns_nop 1")
        E(f"{op} v{r}, v{r}, v{t}")

    def rowmax_inlane(self, par, qt, r):
        E = self.E
        vals = [S(par, kb, qt) + i for kb in range(4) for i in range(4)]
        E(f"v_max3_f32 v{r}, v{vals[0]}, v{vals[1]}, v{vals[2]}")
        for i in range(3, 15, 2): E(f"v_max3_f32 v{r}, v{r}, v{vals[i]}, v{vals[i+1]}")
        E(f"v_max_f32 v{r}, v{r}, v{vals[15]}")
    def xlane2(self, op, r0, r1, t0, t1):
        E = self.E
        for sw in ("v_permlane16_swap_b32", "v_permlane32_swap_b32"):
            E(f"v_mov_b32 v{t0}, v{r0}\nv_mov_b32 v{t1}, v{r1}\ns_nop 0")
            E(f"{sw} v{r0}, v{t0}\n{sw} v{r1}, v{t1}\ns_nop 0")
            E(f"{op} v{r0}, v{r0}, v{t0}\n{op} v{r1}, v{r1}, v{t1}")

    def init_block(self):
        E = self.E
        for qt in range(2): self.rowmax_inlane(0, qt, M_(qt))
        self.xlane2("v_max_f32", M_(0), M_(1), vT0, vT0 + 1)
        for qt in range(2):
            E(f"v_max_f32 v{M_(qt)}, 0xf149f2ca, v{M_(qt)}")
            for r in range(4): E(f"v_sub_f32 v{NEGM(qt)+r}, 0, v{M_(qt)}")
            E(f"v_mov_b32 v{L_(qt)}, 0")
        for qt in range(2):
            for kb in range(4):
                for r in range(4): E(f"v_sub_f32 v{S(0,kb,qt)+r}, v{S(0,kb,qt)+r}, v{M_(qt)}")

    def slow_block(self, par):
        E = self.E
        E("s_nop 15")
        for qt in range(2):
            d = vT0 + qt
            self.rowmax_inlane(par, qt, d)
            self.xlane("v_max_f32", d, vT0 + 2)
            E(f"v_max_f32 v{d}, 0, v{d}")
            E(f"v_add_f32 v{M_(qt)}, v{M_(qt)}, v{d}")
            for r in range(4): E(f"v_sub_f32 v{NEGM(qt)+r}, v{NEGM(qt)+r}, v{d}")
            for pp in (par, par ^ 1):
                for kb in range(4):
                    for r in range(4): E(f"v_sub_f32 v{S(pp,kb,qt)+r}, v{S(pp,kb,qt)+r}, v{d}")
            E(f"v_sub_f32 v{vT0+3}, 0, v{d}")
            E(f"v_exp_f32 v{vT0+3}, v{vT0+3}\ns_nop 0")
            E(f"v_mul_f32 v{L_(qt)}, v{L_(qt)}, v{vT0+3}")
            for db in range(16):
                for r in range(4):
                    a = O(db, qt) + r
                    E(f"v_accvgpr_read_b32 v{vT0+4}, a{a}")
                    E(f"v_mul_f32 v{vT0+4}, v{vT0+4}, v{vT0+3}")
                    E(f"v_accvgpr_write_b32 a{a}, v{vT0+4}")
        for half in range(2):
            for c, t in self.sm_stream(par, half): E(t)
        E(f"s_nop 2")

    def check_tail(self):
        return [(4, f"v_max_f32 v{vT0}, v{LS(0)}, v{LS(1)}"), (4, f"v_cmp_lt_f32 vcc, {THR}, v{vT0}")]
    def check(self, par, computed):
        E = self.E
        sl = self.lab("slow"); back = self.lab("back")
        if not computed:
            for c, t in self.check_tail(): E(t)
        if "noslow" not in self.exp: E(f"s_cbranch_vccnz {sl}")
        E(f"{back}:")
        for qt in range(2): E(f"v_add_f32 v{L_(qt)}, v{L_(qt)}, v{LS(qt)}")
        self.rare.append(("slow", sl, back, par))

    def maybe_mask(self, par):
        E = self.E
        sk = self.lab("nomask")
        E(f"s_lshl_b32 s{sTmp}, s{sQB}, 1")
        E(f"s_cmp_lt_u32 s{sT}, s{sTmp}")
        E(f"s_cbranch_scc1 {sk}")
        self.mask_block(par)
        E(f"{sk}:")

    def item_loop(self, first=False):
        E = self.E; nm = self.name
        E(f"s_lshl_b32 s{sTmp}, s{sQB}, 7")
        E(f"s_lshl_b32 s{sTmp2}, s{sWave}, 5")
        E(f"s_add_u32 s{sTmp}, s{sTmp}, s{sTmp2}")
        E(f"v_and_b32 v{vT0}, 15, v0")
        E(f"v_bfe_u32 v{vT0+1}, v0, 4, 2")
        E(f"v_lshlrev_b32 v{vT0+1}, 2, v{vT0+1}")
        E(f"v_sub_u32 v{vT0}, v{vT0}, v{vT0+1}")
        E(f"v_add_u32 v{DM(0)}, s{sTmp}, v{vT0}")
        E(f"v_add_u32 v{DM(1)}, 16, v{DM(0)}")
        zero = [(4, f"v_accvgpr_write_b32 a{i}, 0") for i in range(128)]
        self.emit_phase(self.qk_mfmas(0, False), vRA, extra=zero, sw=True, first=first)
        if first:
            if "nopf" not in self.exp: self.prefetch_weights()
            E(f"s_branch {nm}_qk0done")
            return
        E(f"{nm}_qk0done:")
        self.ist(2)
        E("s_nop 7")
        self.maybe_mask(0)
        self.init_block()
        self.ist(3)
        self.emit_phase(self.qk_mfmas(1, True), vRB, sm=self.sm_stream(0, 0))
        for c, t in self.sm_stream(0, 1): E(t)
        self.check(0, False)
        E(f"s_add_u32 s{sT}, s{sT}, 1")
        E(f"s_lshr_b32 s{sI}, s{sN}, 1\ns_sub_u32 s{sI}, s{sI}, 1")
        if "mid" in self.exp: stamp_code(E, 1, True)
        self.ist(4)
        E(f"s_cmp_eq_u32 s{sI}, 0")
        E(f"s_cbranch_scc1 {nm}_last")
        E(f"{nm}_loop:")
        for par in (1, 0):
            if par == 0: self.maybe_mask(0)
            self.emit_phase(self.qk_mfmas(par ^ 1, True), vRA, sm=self.sm_stream(par, 0), sw=(par == 0), sg=(par == 1))
            pre = [(8, 0, f"s_add_u32 s{sT}, s{sT}, 1")]
            if par == 0: pre.append((12, 0, f"s_sub_u32 s{sI}, s{sI}, 1"))
            self.emit_phase(self.pv_mfmas(par ^ 1), vRB, sm=self.sm_stream(par, 1), tail=self.check_tail(), pre=pre)
            self.check(par, True)
        E(f"s_cmp_lg_u32 s{sI}, 0")
        E(f"s_cbranch_scc1 {nm}_loop")
        E(f"{nm}_last:")
        if "mid" in self.exp: stamp_code(E, 2, True)
        self.ist(5)
        self.maybe_mask(1)
        for c, t in self.sm_stream(1, 0): E(t)
        pre = [(7, 12, f"buffer_load_dword v{vFL}, v{vFL+1}, s[{sFL}:{sFL+3}], 0 offen sc1")]
        self.emit_phase(self.pv_mfmas(0), vRA, sm=self.sm_stream(1, 1), tail=self.check_tail(), pre=pre, sg=True)
        self.check(1, True)
        self.ist(6)
        nop_, fin_a, fin_b = self.lab("nopre"), self.lab("fina"), self.lab("finb")
        qn = self.lab("qnext")
        E(f"s_cmp_eq_u32 s{sItem}, 1")
        E(f"s_cbranch_scc0 {qn}")
        E(f"s_cmp_eq_u32 s{sHasP}, 0")
        E(f"s_cbranch_scc1 {nop_}")
        got, pl = self.lab("got"), self.lab("poll")
        E("s_waitcnt vmcnt(7)")
        to = self.lab("to")
        E(f"s_mov_b32 s73, 0")
        E(f"{pl}:")
        E(f"v_readfirstlane_b32 s{sTmp3}, v{vFL}")
        E(f"s_cmp_eq_u32 s{sTmp3}, s95" if self.fused else f"s_cmp_lg_u32 s{sTmp3}, 0")
        E(f"s_cbranch_scc1 {got}")
        E("s_sleep 2")
        E(f"buffer_load_dword v{vFL}, v{vFL+1}, s[{sFL}:{sFL+3}], 0 offen sc1")
        E("s_waitcnt vmcnt(0)")
        E(f"s_add_u32 s73, s73, 1\ns_cmp_lt_u32 s73, {SPIN_MAX}")
        E(f"s_cbranch_scc1 {pl}")
        E(f"v_mov_b32 v{vT0}, 0xbad2\nv_mov_b32 v{vT0+1}, {FLG_ERR}\nbuffer_store_dword v{vT0}, v{vT0+1}, s[{sFL}:{sFL+3}], 0 offen")
        E(f"{got}:")
        E(f"s_lshl_b32 s{sTmp}, s{sWave}, 15")
        for i in range(16):
            E(f"s_add_u32 s{sTmp2}, s{sTmp}, {i*1024}")
            E(f"buffer_load_dwordx4 v[{64+4*i}:{67+4*i}], v{vLane16}, s[{sPT}:{sPT+3}], s{sTmp2} offen sc1")
        E(f"s_add_u32 s{sTmp2}, s{sTmp}, 16384")
        E(f"buffer_load_dwordx4 v[{vPM}:{vPM+3}], v{vLane16}, s[{sPT}:{sPT+3}], s{sTmp2} offen sc1")
        E(f"s_mov_b32 s{sTmp3}, 1")
        E(f"s_branch {fin_a}")
        E(f"{qn}:")
        self.load_q(next_item=True)
        E(f"s_mov_b32 s{sTmp3}, 1")
        E(f"s_branch {fin_a}")
        E(f"{nop_}:")
        E(f"s_mov_b32 s{sTmp3}, 0")
        E(f"{fin_a}:")
        self.ist(7)
        w1, w2 = self.lab("w"), self.lab("w")
        vmw = f"s_cmp_eq_u32 s{sTmp3}, 0\ns_cbranch_scc1 {w1}\ns_waitcnt vmcnt(32)\ns_branch {w2}\n{w1}:\ns_waitcnt vmcnt(16)\n{w2}:"
        self.emit_phase(self.pv_mfmas(1), vRB, vmw=vmw)
        self.ist(8)
        E(f"{nm}_itemdone:")

    def prologue(self):
        E = self.E; nm = self.name
        if self.fused: E(f"{nm}_entry:")
        else:
            E("s_cmp_ge_u32 s2, 256")
            E(f"s_cbranch_scc1 {nm}_end")
        stamp_code(E, 0, self.stamps)
        E("s_load_dwordx2 s[4:5], s[0:1], 96")
        E("s_load_dwordx2 s[6:7], s[0:1], 40")
        E("s_load_dwordx4 s[64:67], s[0:1], 56")
        E("s_load_dwordx2 s[68:69], s[0:1], 72")
        E("s_load_dwordx2 s[78:79], s[0:1], 0")
        E("s_load_dwordx2 s[80:81], s[0:1], 80")
        E("s_and_b32 s45, s2, 7")
        E("s_lshr_b32 s46, s2, 3")
        E("s_and_b32 s47, s46, 1")
        E("s_lshl_b32 s45, s45, 1")
        E(f"s_add_u32 s{sH}, s45, s47")
        E("s_lshr_b32 s46, s46, 1")
        E(f"s_and_b32 s{sType}, s46, 1")
        E(f"s_lshr_b32 s{sPair}, s46, 1")
        E(f"v_lshrrev_b32 v{vT0}, 6, v0")
        E(f"v_and_b32 v1, 63, v0")
        E(f"v_readfirstlane_b32 s{sWave}, v{vT0}")
        E(f"v_lshlrev_b32 v{vLane16}, 4, v1")
        E(f"s_lshl_b32 s45, s{sPair}, 1")
        E(f"s_sub_u32 s46, {32-NA}, s45")
        E(f"s_add_u32 s47, s45, 2")
        E(f"s_cmp_eq_u32 s{sType}, 0")
        E(f"s_cselect_b32 s70, {NA}, s46")
        E(f"s_cselect_b32 s71, 0, {NA}")
        E(f"s_cselect_b32 s72, 0, s47")
        E(f"s_lshl_b32 s55, s70, 1")
        E(f"s_lshl_b32 s{sNKV}, s72, 1\ns_add_u32 s{sNKV}, s{sNKV}, s55")
        t = vT0
        E(f"v_cmp_gt_u32 vcc, s55, v1")
        E(f"v_subrev_u32 v{t+3}, s55, v1")
        E("s_nop 0")
        E(f"v_cndmask_b32 v{t}, v{t+3}, v1, vcc")
        E(f"v_mov_b32 v{t+4}, s72\nv_mov_b32 v{t+5}, s70")
        E(f"v_cndmask_b32 v{t+1}, v{t+4}, v{t+5}, vcc")
        E(f"v_mov_b32 v{t+4}, 0\nv_mov_b32 v{t+5}, s71")
        E(f"v_cndmask_b32 v{t+2}, v{t+4}, v{t+5}, vcc")
        E(f"v_min_u32 v{t+4}, 2, v{t+1}")
        E(f"v_cmp_lt_u32 s[56:57], v{t}, v{t+4}")
        E(f"v_lshlrev_b32 v{t+5}, 1, v{t+1}")
        E(f"v_subrev_u32 v{t+5}, 2, v{t+5}")
        E(f"v_cmp_lt_i32 s[58:59], v{t}, v{t+5}")
        E(f"v_and_b32 v{t+6}, 1, v{t}")
        E(f"v_cmp_eq_u32 s[60:61], 0, v{t+6}")
        E(f"v_sub_u32 v{t+7}, v{t}, v{t+1}")
        E(f"v_lshrrev_b32 v{t+8}, 1, v{t}")
        E(f"v_add_u32 v{t+9}, 1, v{t+8}")
        E(f"v_subrev_u32 v{t+8}, 1, v{t+8}")
        E(f"v_cndmask_b32 v{t+8}, v{t+8}, v{t+9}, s[60:61]")
        E(f"v_cndmask_b32 v{t+7}, v{t+7}, v{t+8}, s[58:59]")
        E(f"v_cndmask_b32 v{t+7}, v{t+7}, v{t}, s[56:57]")
        E(f"s_and_b64 s[58:59], s[58:59], s[60:61]")
        E(f"s_or_b64 s[58:59], s[58:59], s[56:57]")
        E(f"v_mov_b32 v{t+8}, {WS_V - WS_K}\nv_mov_b32 v{t+9}, 0")
        E(f"v_cndmask_b32 v{t+8}, v{t+8}, v{t+9}, s[58:59]")
        E(f"v_add_u32 v{t+7}, v{t+7}, v{t+2}")
        E(f"v_lshlrev_b32 v{t+7}, 15, v{t+7}")
        E(f"v_add_u32 v{t+7}, v{t+7}, v{t+8}")
        E(f"s_lshl_b32 s45, s{sH}, 20")
        E(f"v_add_u32 v{t+7}, s45, v{t+7}")
        E(f"v_subrev_u32 v{t+8}, s{sNKV}, v1")
        E(f"v_and_b32 v{t+9}, 3, v{t+8}\nv_mul_u32_u24 v{t+9}, {64*896}, v{t+9}")
        E(f"v_lshrrev_b32 v{t+10}, 2, v{t+8}\nv_mul_u32_u24 v{t+10}, 448, v{t+10}\nv_add_u32 v{t+9}, v{t+9}, v{t+10}")
        E(f"v_cmp_gt_u32 vcc, 8, v{t+8}\nv_mov_b32 v{t+10}, 0x7ff00000\ns_nop 0")
        E(f"v_cndmask_b32 v{t+9}, v{t+10}, v{t+9}, vcc")
        E(f"v_cmp_gt_u32 vcc, s{sNKV}, v1\ns_nop 1")
        E(f"v_cndmask_b32 v{vTab}, v{t+9}, v{t+7}, vcc")
        E(f"s_lshl_b32 s{sM0}, s{sWave}, 13")
        E(f"v_add_u32 v{vD}, s{sM0}, v{vLane16}")
        for p in range(1, 8): E(f"v_add_u32 v{vD+p}, {4096*(p>>2)}, v{vD}") if p >= 4 else E(f"v_mov_b32 v{vD+p}, v{vD}")
        E("s_waitcnt lgkmcnt(0)")
        def srd(s, lo, off, size):
            if isinstance(off, int) and off == 0: E(f"s_mov_b32 s{s}, s{lo}\ns_mov_b32 s{s+1}, s{lo+1}")
            else: E(f"s_add_u32 s{s}, s{lo}, {off}\ns_addc_u32 s{s+1}, s{lo+1}, 0")
            E(f"s_mov_b32 s{s+2}, {size}\ns_mov_b32 s{s+3}, 0x20000")
        srd(sDM, 4, WS_K, 32 << 20)
        E(f"s_lshl_b32 s45, s{sH}, 20")
        E(f"s_add_u32 s45, s45, {WS_Q}")
        srd(sQ, 4, "s45", 1 << 20)
        E(f"s_mov_b32 s{sN}, s70\ns_mov_b32 s{sT}, s71\ns_sub_u32 s{sQB}, 15, s{sPair}")
        E(f"s_xor_b32 s{sItem}, s{sType}, 1")
        E(f"s_cmp_lg_u32 s70, 0")
        sk = self.lab("n1ok")
        E(f"s_cbranch_scc1 {sk}")
        E(f"s_mov_b32 s{sN}, s72\ns_mov_b32 s{sT}, 0\ns_mov_b32 s{sQB}, s{sPair}\ns_mov_b32 s{sItem}, 1")
        E(f"{sk}:")
        E(f"s_cmp_lt_u32 s{sPair}, 7\ns_cselect_b32 s{sHasP}, 1, 0\ns_cmp_eq_u32 s{sType}, 0\ns_cselect_b32 s{sHasP}, s{sHasP}, 0")
        E(f"s_mov_b32 s{sSig}, 0\ns_mov_b32 s82, 1")
        if self.fused:
            self.wo_setup()
            self.wait_k1()
        self.load_q()
        for c in range(4):
            E(f"v_readlane_b32 s{sOff}, v{vTab}, {c}")
            E(f"s_add_u32 m0, s{sM0}, {c*CH}")
            E("s_nop 3")
            for p in range(8):
                E(f"buffer_load_dwordx4 v{vD+p}, s[{sDM}:{sDM+3}], s{sOff} offen offset:{(p&3)*1024} lds")
                if p == 3: E("s_add_u32 m0, m0, 4096\ns_nop 0")
        if "nopf" not in self.exp: self.prefetch_weights()
        E(f"s_lshl_b32 s45, s{sH}, 3\ns_add_u32 s{sPI}, s45, s{sPair}")
        E(f"s_lshl_b32 s45, s{sPI}, 17")
        E(f"s_add_u32 s45, s45, {WS_PT}")
        srd(sPT, 4, "s45", 131072)
        E(f"s_mul_i32 s45, s{sH}, {128*14*1024}")
        E(f"s_add_u32 s45, s45, {WS_OP}")
        srd(sOP, 4, "s45", 128*14*1024)
        E(f"s_mul_i32 s45, s{sH}, {256*896}")
        srd(sWO, 6, "s45", 256*896)
        srd(sFL, 4, WS_FLG, FLG_BYTES)
        E(f"s_lshl_b32 s45, s{sPI}, 7\nv_mov_b32 v{vFL+1}, s45")
        E(f"s_mov_b32 s{sC}, 4")
        E(f"s_mov_b32 s{sWr}, {4*CH}")
        E(f"s_mov_b32 s{sRdN}, 0")
        E(f"v_mov_b32 v{vRA}, v{vLane16}")
        if not self.fused: self.wo_setup()
        E(f"s_waitcnt vmcnt({24 + (4 if 'nopf' not in self.exp else 0)})")
        E("s_barrier")
        for f in range(8): E(self.frag_read(32 + f, vRB, vRA))
        if "mid" not in self.exp: stamp_code(E, 1, self.stamps)

    def wait_k1(self):
        E = self.E; nm = self.name
        sk, pl = f"{nm}_k1ok", f"{nm}_k1poll"
        E(f"s_add_u32 s{sFL}, s4, {WS_FLG}\ns_addc_u32 s{sFL+1}, s5, 0\ns_mov_b32 s{sFL+2}, {FLG_BYTES}\ns_mov_b32 s{sFL+3}, 0x20000")
        E(f"s_cmp_lg_u32 s{sWave}, 0\ns_cbranch_scc1 {sk}")
        E(f"s_lshl_b32 s45, s{sH}, 7\ns_add_u32 s45, s45, {HEAD_OFF}\nv_lshlrev_b32 v3, 2, v0\nv_add_u32 v3, s45, v3\ns_mov_b32 s46, 0")
        E("s_mov_b32 exec_hi, 0")
        E(f"{pl}:")
        E(f"buffer_load_dword v2, v3, s[{sFL}:{sFL+3}], 0 offen sc1")
        E("s_waitcnt vmcnt(0)")
        E("v_cmp_eq_u32 vcc, s95, v2\ns_nop 0")
        E(f"s_cmp_eq_u32 vcc_lo, -1\ns_cbranch_scc1 {pl}_ok")
        E("s_sleep 1")
        E(f"s_add_u32 s46, s46, 1\ns_cmp_lt_u32 s46, {SPIN_MAX}\ns_cbranch_scc1 {pl}")
        E(f"v_mov_b32 v2, 0xbad7\nv_mov_b32 v3, {FLG_ERR}\nbuffer_store_dword v2, v3, s[{sFL}:{sFL+3}], 0 offen")
        E(f"{pl}_ok:\ns_mov_b64 exec, -1")
        E(f"{sk}:")
        E("s_barrier")

    def load_q(self, next_item=False):
        E = self.E
        qb = sPair if next_item else sQB
        E(f"s_lshl_b32 s{sTmp}, s{qb}, 3\ns_lshl_b32 s{sTmp2}, s{sWave}, 1\ns_add_u32 s{sTmp}, s{sTmp}, s{sTmp2}\ns_lshl_b32 s{sTmp}, s{sTmp}, 13")
        for qt in range(2):
            for hh in range(2):
                E(f"s_add_u32 s{sTmp2}, s{sTmp}, {qt*8192 + hh*4096}")
                for d in range(4):
                    E(f"buffer_load_dwordx4 {a4(Q(qt, hh*4+d))}, v{vLane16}, s[{sQ}:{sQ+3}], s{sTmp2} offen offset:{d*1024}")

    def wo_setup(self):
        E = self.E
        t = vT0
        for p in range(8):
            E(f"s_lshl_b32 s{sTmp}, s{sWave}, 9\ns_add_u32 s{sTmp}, s{sTmp}, {64*p}")
            E(f"v_add_u32 v{t}, s{sTmp}, v1")
            E(f"v_mul_u32_u24 v{t+1}, 9363, v{t}\nv_lshrrev_b32 v{t+1}, 18, v{t+1}")
            E(f"v_mul_u32_u24 v{t+2}, 28, v{t+1}\nv_sub_u32 v{t+3}, v{t}, v{t+2}")
            E(f"v_bfe_u32 v{t+2}, v{t+1}, 2, 1\nv_lshlrev_b32 v{t+2}, 1, v{t+2}\nv_xor_b32 v{t+3}, v{t+3}, v{t+2}")
            E(f"v_lshlrev_b32 v{t+3}, 4, v{t+3}\nv_mul_u32_u24 v{t+1}, 896, v{t+1}\nv_add_u32 v{t+3}, v{t+3}, v{t+1}")
            E(f"v_cmp_gt_u32 vcc, 1792, v{t}\nv_subrev_u32 v{t+3}, {(p&3)*1024}, v{t+3}\nv_mov_b32 v{t+2}, 0x7ff00000")
            E(f"v_add_u32 v{t+3}, 4096, v{t+3}")
            E(f"v_cndmask_b32 v{vW+p}, v{t+2}, v{t+3}, vcc")
        E(f"v_bfe_u32 v{t}, v1, 4, 2\nv_lshlrev_b32 v{t+1}, 2, v{t}\nv_bfe_u32 v{t+2}, v1, 2, 2\nv_add_u32 v{t+1}, v{t+1}, v{t+2}")
        E(f"v_mul_u32_u24 v{t+1}, 448, v{t+1}\nv_and_b32 v{t+2}, 3, v1\nv_lshlrev_b32 v{t+2}, 3, v{t+2}\nv_add_u32 v{t+1}, v{t+1}, v{t+2}")
        E(f"v_and_b32 v{t}, 1, v{t}\nv_lshlrev_b32 v{t}, 5, v{t}")
        E(f"v_add_u32 v{vWA}, v{t+1}, v{t}\nv_sub_u32 v{vWA+1}, v{t+1}, v{t}\nv_add_u32 v{vWA+1}, 32, v{vWA+1}")

    def rare_blocks(self):
        E = self.E
        for r in self.rare:
            if r[0] == "slow":
                E(f"{r[1]}:"); self.slow_block(r[3]); E(f"s_branch {r[2]}")
            elif r[0] == "switch":
                E(f"{r[1]}:")
                for p in range(8): E(f"v_mov_b32 v{vD+p}, v{vW+p}")
                E(f"s_sub_u32 s{sDM}, s{sWO}, 4096\ns_subb_u32 s{sDM+1}, s{sWO+1}, 0\ns_add_u32 s{sDM+2}, s{sWO+2}, 4096\ns_mov_b32 s{sDM+3}, 0x20000")
                E(f"s_branch {r[2]}")
            elif r[0] == "signal":
                sk = self.lab("nosig")
                E(f"{r[1]}:")
                E(f"s_mov_b32 s{sSig}, 0")
                E(f"s_cmp_lg_u32 s{sWave}, 0\ns_cbranch_scc1 {sk}")
                E(f"v_mov_b32 v254, s95" if self.fused else f"v_mov_b32 v254, 1")
                E("s_mov_b64 exec, 1")
                E(f"buffer_store_dword v254, v{vFL+1}, s[{sFL}:{sFL+3}], 0 offen sc1")
                E("s_mov_b64 exec, -1")
                E(f"{sk}:\ns_branch {r[2]}")
        self.rare = []

    def finish(self):
        E = self.E; nm = self.name
        E("s_nop 7")
        self.xlane2("v_add_f32", L_(0), L_(1), vT0, vT0 + 1)
        E(f"s_cmp_eq_u32 s{sItem}, 1")
        E(f"s_cbranch_scc1 {nm}_final")
        E(f"s_lshl_b32 s{sTmp}, s{sWave}, 15")
        for i in range(16):
            t = vT0 + (i % 2) * 12
            qt = i >> 3; s = i & 7
            src = [O(2*s, qt) + r for r in range(4)] + [O(2*s+1, qt) + r for r in range(4)]
            for r in range(8): E(f"v_accvgpr_read_b32 v{t+r}, a{src[r]}")
            for r in range(4): E(f"v_cvt_pk_bf16_f32 v{t+8+r}, v{t+2*r}, v{t+2*r+1}")
            E(f"s_add_u32 s{sTmp2}, s{sTmp}, {i*1024}")
            E(f"buffer_store_dwordx4 v[{t+8}:{t+11}], v{vLane16}, s[{sPT}:{sPT+3}], s{sTmp2} offen sc1")
        E(f"v_mov_b32 v{vPM}, v{M_(0)}\nv_mov_b32 v{vPM+1}, v{M_(1)}\nv_mov_b32 v{vPM+2}, v{L_(0)}\nv_mov_b32 v{vPM+3}, v{L_(1)}")
        E(f"s_add_u32 s{sTmp2}, s{sTmp}, 16384")
        E(f"buffer_store_dwordx4 v[{vPM}:{vPM+3}], v{vLane16}, s[{sPT}:{sPT+3}], s{sTmp2} offen sc1")
        E(f"s_lshl_b32 s{sTmp}, s{sPair}, 1\ns_add_u32 s{sN}, s{sTmp}, 2\ns_mov_b32 s{sT}, 0\ns_mov_b32 s{sQB}, s{sPair}\ns_mov_b32 s{sItem}, 1")
        E(f"s_mov_b32 s{sSig}, 1")
        E("s_waitcnt vmcnt(25)")
        E(f"s_branch {nm}_item")
        E(f"{nm}_final:")
        E(f"s_cmp_eq_u32 s{sHasP}, 0")
        E(f"s_cbranch_scc1 {nm}_plain")
        E("s_waitcnt vmcnt(8)")
        for qt in range(2):
            mB, lB = vPM + qt, vPM + 2 + qt
            ms, fA, fB = vT0 + 12, vT0 + 13, vT0 + 14
            E(f"v_max_f32 v{ms}, v{M_(qt)}, v{mB}")
            E(f"v_sub_f32 v{fA}, v{M_(qt)}, v{ms}\nv_sub_f32 v{fB}, v{mB}, v{ms}")
            E(f"v_exp_f32 v{fA}, v{fA}\nv_exp_f32 v{fB}, v{fB}\ns_nop 0")
            E(f"v_mul_f32 v{ms}, v{L_(qt)}, v{fA}\nv_fmac_f32 v{ms}, v{lB}, v{fB}")
            E(f"v_rcp_f32 v{ms}, v{ms}\ns_nop 0")
            E(f"v_mul_f32 v{vT0+8+qt}, v{fA}, v{ms}\nv_mul_f32 v{vT0+10+qt}, v{fB}, v{ms}")
        self.oproj_first("A")
        E(f"s_branch {nm}_oproj3")
        E(f"{nm}_plain:")
        for qt in range(2): E(f"v_rcp_f32 v{vT0+8+qt}, v{L_(qt)}")
        E("s_nop 0")
        self.oproj_first("P")
        E(f"{nm}_oproj3:")
        self.oproj_rest()

    def conv_unit(self, mode, qt, s, n):
        src = [O(2*s, qt) + r for r in range(4)] + [O(2*s+1, qt) + r for r in range(4)]
        t = 10 + (n % 2) * 12; c = 64 + 4 * (qt * 8 + s)
        u = [f"v_accvgpr_read_b32 v{t+r}, a{src[r]}" for r in range(8)]
        u += [f"v_mul_f32 v{t+r}, v{t+r}, v{vT0+8+qt}" for r in range(8)]
        for r in range(4):
            if mode == "A":
                u += [f"v_lshlrev_b32 v{t+8}, 16, v{c+r}", f"v_and_b32 v{t+9}, 0xffff0000, v{c+r}",
                      f"v_fmac_f32 v{t+2*r}, v{t+8}, v{vT0+10+qt}", f"v_fmac_f32 v{t+2*r+1}, v{t+9}, v{vT0+10+qt}"]
            u.append(f"v_cvt_pk_bf16_f32 v{c+r}, v{t+2*r}, v{t+2*r+1}")
        return [(4, x) for x in u]

    def oproj_first(self, mode):
        self.oproj(mode)
    def oproj_rest(self):
        self.oproj(None)
    def oproj(self, mode):
        E = self.E; nm = self.name
        C = lambda qt, s: 64 + (qt * 8 + s) * 4
        WFR = lambda f: 128 + (f % 16) * 4
        OUT = lambda ps, mb, qt: ((128 if ps == 0 else 0) + (mb * 2 + qt) * 4)
        AD = lambda k, par: 242 + (k & 1) * 2 + par
        D = 6
        def rd(k, f):
            sl, mb = divmod(f, 14)
            fr = WFR(k * 28 + f)
            base = AD(k, mb & 1); off = sl * 14336 + (mb & ~1) * 32
            return [f"ds_read_b64_tr_b16 v[{fr}:{fr+1}], v{base} offset:{off}",
                    f"ds_read_b64_tr_b16 v[{fr+2}:{fr+3}], v{base} offset:{off + 7168}"]
        if mode:
            if "nocpf" not in self.exp: code_prefetch_shared(E, "tl_start", 0x5000, nm + "_t" + mode, 72, 74, 8, sWave)
            if "mid" not in self.exp and "ist" not in self.exp: stamp_code(E, 3, self.stamps)
            for par in range(2): E(f"v_add_u32 v{AD(0,par)}, s{sRdN}, v{vWA+par}")
            for f in range(D):
                for l in rd(0, f): E(l)
            nn = 0
            for s_ in range(2):
                for qt in range(2):
                    for c_, t_ in self.conv_unit(mode, qt, s_, nn): E(t_)
                    nn += 1
            E("s_nop 1")
        if mode: E(f"s_lshl_b32 s{sTmp}, s{sQB}, 3\ns_lshl_b32 s{sTmp2}, s{sWave}, 1\ns_add_u32 s{sTmp}, s{sTmp}, s{sTmp2}\ns_mul_i32 s70, s{sTmp}, {14*1024}")
        def units(ps):
            us = []; n = 0
            for qt in range(2):
                for ms in range(7):
                    t = 168 + (n % 2) * 12 if False else 200 + (n % 2) * 12; n += 1
                    src = [OUT(ps, 2*ms, qt) + r for r in range(4)] + [OUT(ps, 2*ms+1, qt) + r for r in range(4)]
                    u = [(4, f"v_accvgpr_read_b32 v{t+r}, a{src[r]}") for r in range(8)]
                    u += [(4, f"v_cvt_pk_bf16_f32 v{t+8+r}, v{t+2*r}, v{t+2*r+1}") for r in range(4)]
                    u += [(12, f"s_add_u32 s71, s70, {(qt*14 + ps*7 + ms)*1024}\nbuffer_store_dwordx4 v[{t+8}:{t+11}], v{vLane16}, s[{sOP}:{sOP+3}], s71 offen{' sc1' if 'wt' in self.exp else ''}")]
                    us.append(u)
            return us
        pend = []
        nst = 0
        hist = []
        log = [("D", k) for k in range(4) for _ in range(8)]
        if not mode: log += [("D", k) for k in range(4, 7) for _ in range(8)]
        for k in (range(3) if mode else range(3, 8)):
            ps, sp = divmod(k, 4)
            mf = []
            for sl in range(2):
                s = 2 * sp + sl
                for mb in range(14):
                    for qt in range(2):
                        d = a4(OUT(ps, mb, qt)); c = "0" if s == 0 else d
                        mf.append(f"v_mfma_f32_16x16x32_bf16 {d}, {v4(WFR(k*28 + sl*14 + mb))}, {v4(C(qt, s))}, {c}")
            n = len(mf)
            Sc = Sched(n)
            for f in range(28):
                ff = f + D
                if ff < 28: r = rd(k, ff)
                elif k + 1 < 8: r = rd(k + 1, ff - 28)
                else: continue
                Sc.put(2 * f, 4, r[0]); Sc.put(2 * f + 1, 4, r[1])
            if k + 1 < 8:
                idx = max(i for i, t in enumerate(log) if t == ("D", k + 1))
                w = len(log) - 1 - idx
                nxt = [(AD(k + 1, 0), vWA), (AD(k + 1, 1), vWA + 1)]
                if k + 4 < 8:
                    self.head_items(Sc, nxt, w, dma_gaps=[9, 14, 19, 24, 29, 34, 39, 43])
                    order_d = [(g, ("D", k + 4)) for g in [9, 14, 19, 24, 29, 34, 39, 43]]
                else:
                    Sc.put(1, 0, f"s_waitcnt vmcnt({w})\ns_barrier")
                    Sc.put(3, 0, f"s_add_u32 s{sRdN}, s{sRdN}, {CH}\ns_cmp_eq_u32 s{sRdN}, {NS*CH}\ns_cselect_b32 s{sRdN}, 0, s{sRdN}")
                    Sc.put(3, 4, f"v_add_u32 v{nxt[0][0]}, s{sRdN}, v{nxt[0][1]}"); Sc.put(4, 4, f"v_add_u32 v{nxt[1][0]}, s{sRdN}, v{nxt[1][1]}")
                    order_d = []
            else: order_d = []
            if k == 4: pend = [x for u in units(0) for x in u]
            if mode:
                pend = []
                for s_ in (2 * k + 2, 2 * k + 3):
                    for qt in range(2):
                        pend += self.conv_unit(mode, qt, s_, nn); nn += 1
            order_s = []
            if pend:
                cur = 6; j = 0; nun = 0
                while j < len(pend):
                    c, t = pend[j]; g = cur
                    while g < n and Sc.c[g] + (c if c < 12 else 4) > (8 if c < 12 else 8): g += 1
                    if g >= n - (2 if mode else 0): break
                    Sc.put(g, c, t); cur = g; j += 1
                    if c == 12:
                        order_s.append((g, ("S", 0))); nun += 1; cur = g + 1
                        if nun >= 4: break
                pend = pend[j:]
            before = {}
            for i in range(0, n, 4):
                f = i // 2
                rem = D - 2
                if k == 7: rem = min(D - 2, 26 - f)
                before[i] = [f"s_waitcnt lgkmcnt({2*max(rem,0)})"]
            Sc.emit(E, mf, before)
            for g, tg in sorted(order_d + order_s): log.append(tg)
            if mode:
                for c, t in pend: E(t)
                pend = []
                E("s_nop 1")
        if mode: return
        for c, t in pend: E(t)
        if "mid" not in self.exp and "ist" not in self.exp: stamp_code(E, 4, self.stamps)
        E("s_nop 7")
        fill = list(getattr(self, "weave", []))
        un = units(1)
        per = (len(fill) + len(un) - 1) // len(un)
        for u in un:
            for c, t in u: E(t)
            k = min(per, len(fill))
            while k < len(fill) and fill[k].startswith(("s_addc", "s_cselect", "s_subb", "s_cbranch")): k += 1
            for l in fill[:k]: E(l)
            fill = fill[k:]
        for l in fill: E(l)

    def tail_prefetch(self):
        E = self.E
        E(f"s_lshl_b32 s{sTmp}, s2, 2\ns_add_u32 s{sTmp}, s{sTmp}, s{sWave}\ns_mul_i32 s{sTmp}, s{sTmp}, 1568")
        E("v_min_u32 v2, 24, v1\nv_lshlrev_b32 v2, 6, v2")
        for i, lo in enumerate((64, 66, 68)):
            E(f"s_mov_b32 s56, s{lo}\ns_mov_b32 s57, s{lo+1}\ns_mov_b32 s58, {448*1792*2}\ns_mov_b32 s59, 0x20000")
            E(f"buffer_load_dword v{3+i}, v2, s[56:59], s{sTmp} offen")

    def prefetch_weights(self):
        E = self.E
        self.tail_prefetch()
        E(f"s_mov_b32 s56, s6\ns_mov_b32 s57, s7\ns_mov_b32 s58, {16*256*896}\ns_mov_b32 s59, 0x20000")
        E(f"s_lshl_b32 s45, s2, 2\ns_add_u32 s45, s45, s{sWave}\ns_mul_i32 s45, s45, 3584")
        E("v_lshlrev_b32 v2, 6, v1\nbuffer_load_dword v3, v2, s[56:59], s45 offen")

    def gen(self):
        E = self.E; nm = self.name
        self.prologue()
        E(f"{nm}_item:")
        self.item_loop()
        if "ist" in self.exp: self.stamps_tail = False
        if "mid" not in self.exp and "ist" not in self.exp: stamp_code(E, 2, self.stamps)
        self.weave, t2, c1 = tail.tail_setup()
        self.finish()
        if "notail" not in self.exp:
            tail.NONCE[0] = self.fused
            tail.gen_tail(E, nm, lambda i: stamp_code(E, i, self.stamps and "ist" not in self.exp), t2, c1)
        if self.stamps:
            stamp_code(E, 11, True)
            E("s_waitcnt vmcnt(0)")
            stamp_code(E, 12, True)
            stamp_dump(E, 13, nm, 4)
        E("s_endpgm")
        E("tl_end:")
        self.rare_blocks()
        E(f"{nm}_end:")
        E("s_endpgm")
        return E.text()

def gen_k2(name="k2_kernel", **kw):
    return K2(name, **kw).gen()
```

```python
from asmlib import *
from ws import *
from k1 import SPIN_MAX
HSTR = 128 * 14 * 1024
sFL, sWave, sU, sQB, sWS = 28, 32, 33, 43, 4
sWG, sWU, sWD, sX, sOUT = 64, 66, 68, 78, 80
CNT0 = 16384
T = 45

def srd(E, s, lo, off, size):
    if off == 0: E(f"s_mov_b32 s{s}, s{lo}\ns_mov_b32 s{s+1}, s{lo+1}")
    else: E(f"s_add_u32 s{s}, s{lo}, {off}\ns_addc_u32 s{s+1}, s{lo+1}, 0")
    E(f"s_mov_b32 s{s+2}, {size}\ns_mov_b32 s{s+3}, 0x20000")

NONCE = [False]
def cnt_off(E, which):
    E(f"s_mul_i32 s{T}, s{sQB}, 384\ns_add_u32 s{T}, s{T}, {CNT0 + 128*which}")
def signal(E, uid, inc):
    E("s_waitcnt vmcnt(0)\ns_barrier")
    sk = f"tl_sig{uid}"
    E(f"s_cmp_lg_u32 s{sWave}, 0\ns_cbranch_scc1 {sk}")
    cnt_off(E, uid - 1)
    E(f"s_lshl_b32 s{T+1}, s{sU}, 2\ns_add_u32 s{T}, s{T}, s{T+1}")
    E(f"v_mov_b32 v42, {'s95' if NONCE[0] else 1}\nv_mov_b32 v43, s{T}")
    E("s_mov_b64 exec, 1")
    E(f"buffer_store_dword v42, v43, s[{sFL}:{sFL+3}], 0 offen sc1")
    E("s_mov_b64 exec, -1")
    E(f"{sk}:")

def wait(E, uid, shift, target):
    sk, pl = f"tl_w{uid}", f"tl_p{uid}"
    mask = (1 << target) - 1
    E(f"s_cmp_lg_u32 s{sWave}, 0\ns_cbranch_scc1 {sk}")
    cnt_off(E, uid - 1)
    E(f"v_lshlrev_b32 v43, 2, v0\nv_add_u32 v43, s{T}, v43\ns_mov_b32 s{T+1}, 0")
    E(f"s_mov_b64 exec, {mask}")
    E(f"{pl}:")
    E(f"buffer_load_dword v42, v43, s[{sFL}:{sFL+3}], 0 offen sc1")
    E("s_waitcnt vmcnt(0)")
    E("v_cmp_eq_u32 vcc, s95, v42" if NONCE[0] else "v_cmp_ne_u32 vcc, 0, v42")
    E("s_nop 0")
    E(f"s_cmp_eq_u32 vcc_lo, {mask}\ns_cbranch_scc1 {pl}_ok")
    E("s_sleep 1")
    E(f"s_add_u32 s{T+1}, s{T+1}, 1\ns_cmp_lt_u32 s{T+1}, {SPIN_MAX}")
    E(f"s_cbranch_scc1 {pl}")
    E(f"v_mov_b32 v42, {0xbad3 + uid}\nv_mov_b32 v43, {FLG_ERR}\nbuffer_store_dword v42, v43, s[{sFL}:{sFL+3}], 0 offen")
    E(f"{pl}_ok:")
    E("s_mov_b64 exec, -1")
    E(f"{sk}:")
    E("s_barrier")

NH, NW = 10, 5
WB = NH * 8192
class T2:
    HF = staticmethod(lambda st, qt: 64 + st * 48 + qt * 4)
    WF = staticmethod(lambda st, m, fb: 64 + st * 48 + 16 + (m * 4 + fb) * 4)
    DH = staticmethod(lambda i: 16 + i)
    DW = staticmethod(lambda i: 18 + i)
    GA = staticmethod(lambda fb, qt: (fb * 4 + qt) * 4)
    UA = staticmethod(lambda fb, qt: 64 + (fb * 4 + qt) * 4)
    sHN, sG, sUp, sO = 8, 12, 16, 20
    def __init__(self, E): self.E = E; self.vm = []
    def setup(self):
        E = self.E
        E("v_and_b32 v1, 63, v0\nv_lshrrev_b32 v2, 6, v0\nv_lshlrev_b32 v3, 4, v1")
        E(f"v_mul_u32_u24 v4, {2*14336}, v2\nv_add_u32 v4, v4, v3")
        E(f"v_mov_b32 v{self.DH(0)}, v4\nv_add_u32 v{self.DH(1)}, {14336-1024}, v4")
        for i in range(2):
            E(f"v_lshlrev_b32 v4, 3, v2\nv_add_u32 v4, {4*i}, v4\nv_lshrrev_b32 v5, 4, v1\nv_add_u32 v4, v4, v5")
            E("v_and_b32 v5, 7, v4\nv_lshlrev_b32 v5, 1, v5\nv_and_b32 v6, 15, v1\nv_xor_b32 v5, v5, v6\nv_lshlrev_b32 v5, 4, v5")
            E(f"v_mul_u32_u24 v4, 3584, v4\nv_add_u32 v4, v4, v5")
            E(f"v_subrev_u32 v{self.DW(i)}, {i*1024}, v4")
        E(f"s_mul_i32 s{T}, s{sQB}, {8*14336}\ns_add_u32 s{T}, s{T}, {WS_HN}")
        srd(E, self.sHN, sWS, f"s{T}", 8 * 14336)
        E(f"s_lshl_b32 s{T}, s{sU}, 8")
        srd(E, self.sG, sWG, f"s{T}", 448 * 3584); E(f"s_sub_u32 s{self.sG+2}, s{self.sG+2}, s{T}")
        srd(E, self.sUp, sWU, f"s{T}", 448 * 3584); E(f"s_sub_u32 s{self.sUp+2}, s{self.sUp+2}, s{T}")
        E(f"s_lshl_b32 s52, s{sWave}, 11")
        E("v_lshrrev_b32 v4, 7, v0\nv_lshlrev_b32 v4, 12, v4\nv_add_u32 v20, v4, v3\nv_add_u32 v21, 0x10000, v20")
        E("v_bfe_u32 v4, v1, 4, 2\nv_lshlrev_b32 v4, 2, v4\nv_bfe_u32 v5, v1, 2, 2\nv_add_u32 v4, v4, v5")
        E("v_and_b32 v5, 7, v4")
        E(f"v_lshlrev_b32 v4, 8, v4\nv_and_b32 v6, 3, v1\nv_lshlrev_b32 v6, 3, v6\nv_add_u32 v4, v4, v6\nv_add_u32 v4, {WB}, v4")
        E("v_bfe_u32 v6, v0, 6, 1\nv_lshlrev_b32 v6, 2, v6")
        for fb in range(4):
            E(f"v_add_u32 v7, {fb}, v6\nv_xor_b32 v7, v7, v5\nv_lshlrev_b32 v7, 5, v7\nv_add_u32 v{24+2*fb}, v7, v4\nv_add_u32 v{25+2*fb}, 0x10000, v{24+2*fb}")
    def dmaW(self, s):
        base = WB + (s % NW) * 16384
        u = [f"s_add_u32 m0, s52, {base}\ns_mov_b32 s53, {s*32*3584}\nbuffer_load_dwordx4 v{self.DW(0)}, s[{self.sG}:{self.sG+3}], s53 offen lds",
             f"buffer_load_dwordx4 v{self.DW(1)}, s[{self.sG}:{self.sG+3}], s53 offen offset:1024 lds",
             f"s_add_u32 m0, s52, {base+8192}\ns_nop 0\nbuffer_load_dwordx4 v{self.DW(0)}, s[{self.sUp}:{self.sUp+3}], s53 offen lds",
             f"buffer_load_dwordx4 v{self.DW(1)}, s[{self.sUp}:{self.sUp+3}], s53 offen offset:1024 lds"]
        self.vm.extend([("W", s)] * 4); return u
    def dmaH(self, s):
        base = (s % NH) * 8192
        u = [f"s_add_u32 m0, s52, {base}\ns_mov_b32 s53, {s*1024}\nbuffer_load_dwordx4 v{self.DH(0)}, s[{self.sHN}:{self.sHN+3}], s53 offen lds",
             f"buffer_load_dwordx4 v{self.DH(1)}, s[{self.sHN}:{self.sHN+3}], s53 offen offset:1024 lds"]
        self.vm.extend([("H", s)] * 2); return u
    def need(self, s):
        idx = max(i for i, t in enumerate(self.vm) if t in (("W", s), ("H", s))); return len(self.vm) - 1 - idx
    def reads(self, s, st):
        hs = s % NH; hb, hr = (hs * 8192, 20) if hs < 8 else (hs * 8192 - 65536, 21)
        wsl = s % NW; wb, wo = (wsl * 16384, 0) if wsl < 4 else (wsl * 16384 - 65536, 1)
        hn = [f"ds_read_b128 v[{self.HF(st,qt)}:{self.HF(st,qt)+3}], v{hr} offset:{hb + qt*1024}" for qt in range(4)]
        w = []
        for fb in range(4):
            for m in range(2):
                for t in range(2):
                    w.append(f"ds_read_b64_tr_b16 v[{self.WF(st,m,fb)+2*t}:{self.WF(st,m,fb)+2*t+1}], v{24+2*fb+wo} offset:{wb + m*8192 + t*4096}")
        return [hn[0]] + w[:4] + hn[1:] + w[4:]
    def pre(self):
        for s in range(NW - 1):
            for u in self.dmaW(s): self.E(u)
    def main(self):
        E = self.E
        self.vm = [("W", s) for s in range(NW - 1) for _ in range(4)]
        nh = 5
        for s in range(nh):
            for u in self.dmaH(s): E(u)
        E(f"s_mul_i32 s{T}, s{sQB}, {8*56*1024}\ns_add_u32 s{T}, s{T}, {WS_HM}")
        srd(E, self.sO, sWS, f"s{T}", 8 * 56 * 1024)
        E(f"s_waitcnt vmcnt({self.need(0)})\ns_barrier")
        for u in self.reads(0, 0): E(u)
        for s in range(14):
            st = s & 1
            Sc = Sched(32)
            if s + 1 < 14:
                E(f"s_waitcnt vmcnt({self.need(s+1)}) lgkmcnt(0)\ns_barrier")
                for k, t in enumerate(self.reads(s + 1, st ^ 1)): Sc.put(k, 4, t)
                d = []
                k_ = 0
                while nh < 14 and nh <= s + NH - 1 and k_ < 2:
                    d += self.dmaH(nh); nh += 1; k_ += 1
                if s + NW - 1 < 14: d += self.dmaW(s + NW - 1)
                gaps = [20, 21, 22, 24, 26, 28, 30, 31][:len(d)] if len(d) > 6 else [20, 22, 24, 26, 28, 30][:len(d)]
                for g, t in zip(gaps, d): Sc.put(g, 12, t)
            else:
                E("s_waitcnt lgkmcnt(0)")
            mf = []
            for fb in range(4):
                for qt in range(4):
                    for m in range(2):
                        a = (self.GA if m == 0 else self.UA)(fb, qt); d_ = f"a[{a}:{a+3}]"
                        mf.append(f"v_mfma_f32_16x16x32_bf16 {d_}, v[{self.WF(st,m,fb)}:{self.WF(st,m,fb)+3}], v[{self.HF(st,qt)}:{self.HF(st,qt)+3}], {'0' if s == 0 else d_}")
            Sc.emit(E, mf)
        E("s_nop 7")
        E(f"v_lshrrev_b32 v4, 7, v0\nv_mul_u32_u24 v4, {4*56*1024}, v4\nv_add_u32 v4, v4, v3")
        E("v_bfe_u32 v5, v0, 6, 1\nv_lshlrev_b32 v5, 11, v5\nv_add_u32 v4, v4, v5")
        E(f"s_lshl_b32 s{T}, s{sU}, 12")
        n = 0
        for qt in range(4):
            for k in range(2):
                t = 160 + (n % 2) * 24; n += 1
                for j in range(2):
                    for r in range(4):
                        E(f"v_accvgpr_read_b32 v{t+4*j+r}, a{self.GA(2*k+j, qt)+r}")
                        E(f"v_accvgpr_read_b32 v{t+8+4*j+r}, a{self.UA(2*k+j, qt)+r}")
                for r in range(8): E(f"v_max_f32 v{t+r}, 0, v{t+r}")
                for r in range(8): E(f"v_mul_f32 v{t+r}, v{t+r}, v{t+8+r}")
                for r in range(4): E(f"v_cvt_pk_bf16_f32 v{t+16+r}, v{t+2*r}, v{t+2*r+1}")
                E(f"s_add_u32 s53, s{T}, {qt*56*1024 + k*1024}")
                E(f"buffer_store_dwordx4 v[{t+16}:{t+19}], v4, s[{self.sO}:{self.sO+3}], s53 offen sc1")

def t1_part(E):
    LDS = 0
    sOPs, sXs, sH_, sHN_ = 8 + 16, 8 + 0, 0, 0
    sOPs, sXs, sHo, sHNo = 56, 60, 24, 36
    srd(E, sOPs, sWS, WS_OP, 16 * HSTR)
    srd(E, sXs, sX, 0, 2048 * 896)
    srd(E, sHo, sWS, WS_H, 2048 * 896)
    srd(E, sHNo, sWS, WS_HN, 2048 * 896)
    E("v_and_b32 v36, 7, v1\nv_bfe_u32 v37, v1, 3, 2\nv_lshrrev_b32 v38, 5, v1")
    E(f"s_lshl_b32 s{T}, s{sQB}, 3\ns_lshr_b32 s{T+1}, s{sU}, 1\ns_add_u32 s{T}, s{T}, s{T+1}")
    E(f"s_and_b32 s{T+1}, s{sU}, 1\ns_lshl_b32 s{T+1}, s{T+1}, 3")
    E(f"s_mul_i32 s{T+2}, s{T}, 14336")
    E(f"v_lshlrev_b32 v39, 4, v37\nv_add_u32 v39, v39, v36\nv_add_u32 v39, s{T+1}, v39\nv_lshlrev_b32 v39, 4, v39")
    E(f"v_lshlrev_b32 v40, 10, v38\nv_add_u32 v39, v39, v40\nv_add_u32 v39, s{T+2}, v39")
    E(f"s_lshl_b32 s{T+2}, s{sQB}, 7\ns_lshl_b32 s{T+3}, s{sU}, 3\ns_add_u32 s{T+2}, s{T+2}, s{T+3}")
    E(f"v_add_u32 v41, s{T+2}, v36\nv_mul_u32_u24 v41, 896, v41\nv_lshlrev_b32 v40, 6, v38\nv_add_u32 v41, v41, v40\nv_lshlrev_b32 v40, 3, v37\nv_add_u32 v41, v41, v40")
    for k in range(2):
        E(f"s_add_u32 s{T}, s{sWave}, {4*k}")
        E(f"s_lshl_b32 s{54+k}, s{T}, 11")
        E(f"s_lshl_b32 s{T+1}, s{T}, 7")
        if k == 1:
            E(f"s_cmp_lt_u32 s{T}, 7\ns_cselect_b32 s{54+k}, s{54+k}, 0x7ff00000\ns_cselect_b32 s{T+1}, s{T+1}, 0x7ff00000")
        E(f"buffer_load_dwordx2 v[{48+4*k}:{49+4*k}], v41, s[{sXs}:{sXs+3}], s{T+1} offen")
        E(f"buffer_load_dwordx2 v[{50+4*k}:{51+4*k}], v41, s[{sXs}:{sXs+3}], s{T+1} offen offset:32")
    return dict(LDS=LDS, sOPs=sOPs, sHo=sHo, sHNo=sHNo)

def t1_main(E, c):
    LDS, sOPs, sHo, sHNo = c["LDS"], c["sOPs"], c["sHo"], c["sHNo"]
    D = lambda k, h: 64 + k * 64 + h * 4
    for k in range(2):
        for h in range(16):
            E(f"s_add_u32 s{T}, s{54+k}, {h*HSTR}")
            E(f"buffer_load_dwordx4 v[{D(k,h)}:{D(k,h)+3}], v39, s[{sOPs}:{sOPs+3}], s{T} offen")
    A = lambda k: 192 + 8 * k
    for k in range(2):
        for h in range(16):
            if h % 4 == 0: E(f"s_waitcnt vmcnt({32 - (k*16 + h + 4)})")
            for r in range(4):
                src = D(k, h) + r
                if h == 0:
                    E(f"v_lshlrev_b32 v{A(k)+2*r}, 16, v{src}\nv_and_b32 v{A(k)+2*r+1}, 0xffff0000, v{src}")
                else:
                    t = 44 + (r & 1) * 2
                    E(f"v_lshlrev_b32 v{t}, 16, v{src}\nv_and_b32 v{t+1}, 0xffff0000, v{src}")
                    E(f"v_pk_add_f32 v[{A(k)+2*r}:{A(k)+2*r+1}], v[{A(k)+2*r}:{A(k)+2*r+1}], v[{t}:{t+1}]")
        for r in range(4):
            xs = 48 + 4*k + r
            E(f"v_lshlrev_b32 v44, 16, v{xs}\nv_and_b32 v45, 0xffff0000, v{xs}")
            E(f"v_add_f32 v{A(k)+2*r}, v{A(k)+2*r}, v44\nv_add_f32 v{A(k)+2*r+1}, v{A(k)+2*r+1}, v45")
            E(f"v_cvt_pk_bf16_f32 v{208+4*k+r}, v{A(k)+2*r}, v{A(k)+2*r+1}")
            E(f"v_lshlrev_b32 v{A(k)+2*r}, 16, v{208+4*k+r}\nv_and_b32 v{A(k)+2*r+1}, 0xffff0000, v{208+4*k+r}")
    E(f"buffer_store_dwordx4 v[208:211], v39, s[{sHo}:{sHo+3}], s54 offen sc1")
    E(f"buffer_store_dwordx4 v[212:215], v39, s[{sHo}:{sHo+3}], s55 offen sc1")
    E("v_add_f32 v216, v192, v193\nv_mul_f32 v217, v192, v192\nv_fmac_f32 v217, v193, v193")
    for r in range(194, 208): E(f"v_add_f32 v216, v216, v{r}\nv_fmac_f32 v217, v{r}, v{r}")
    E("s_nop 1")
    E("v_add_f32_dpp v216, v216, v216 row_ror:8 row_mask:0xf bank_mask:0xf\nv_add_f32_dpp v217, v217, v217 row_ror:8 row_mask:0xf bank_mask:0xf")
    for sw in ("v_permlane16_swap_b32", "v_permlane32_swap_b32"):
        E("v_mov_b32 v218, v216\nv_mov_b32 v219, v217\ns_nop 0")
        E(f"{sw} v216, v218\n{sw} v217, v219\ns_nop 0")
        E("v_add_f32 v216, v216, v218\nv_add_f32 v217, v217, v219")
    E(f"v_lshlrev_b32 v220, 3, v36\ns_lshl_b32 s{T}, s{sWave}, 6\ns_add_u32 s{T}, s{T}, {LDS}\nv_add_u32 v221, s{T}, v220")
    E("s_mov_b64 exec, 0xff\nds_write_b64 v221, v[216:217]\ns_mov_b64 exec, -1")
    E("s_waitcnt lgkmcnt(0)\ns_barrier")
    E(f"v_add_u32 v220, {LDS}, v220")
    for w in range(4): E(f"ds_read_b64 v[{222+2*w}:{223+2*w}], v220 offset:{64*w}")
    E("s_waitcnt lgkmcnt(0)")
    E("v_add_f32 v216, v222, v224\nv_add_f32 v217, v223, v225\nv_add_f32 v218, v226, v228\nv_add_f32 v219, v227, v229")
    E("v_add_f32 v216, v216, v218\nv_add_f32 v217, v217, v219")
    E("v_mul_f32 v216, 0x3b124925, v216")
    E("v_mul_f32 v217, 0x3b124925, v217")
    E("v_fma_f32 v217, -v216, v216, v217")
    E("v_max_f32 v217, 0, v217")
    E("v_add_f32 v217, 0x3727c5ac, v217")
    E("v_rsq_f32 v217, v217\ns_nop 0")
    for r in range(192, 208): E(f"v_sub_f32 v{r}, v{r}, v216")
    for r in range(192, 208): E(f"v_mul_f32 v{r}, v{r}, v217")
    for r in range(8): E(f"v_cvt_pk_bf16_f32 v{208+r}, v{192+2*r}, v{193+2*r}")
    E(f"buffer_store_dwordx4 v[208:211], v39, s[{sHNo}:{sHNo+3}], s54 offen sc1")
    E(f"buffer_store_dwordx4 v[212:215], v39, s[{sHNo}:{sHNo+3}], s55 offen sc1")

class T3:
    NSL = 10; DEP = 8; NB = 8
    sHM, sWDs, sH, sO = 8, 12, 16, 20
    def __init__(self, E): self.E = E; self.vm = []
    def BF(self, s, qt): return 64 + (s % self.NB) * 16 + qt * 4
    def WF(self, st, mb): return 192 + st * 16 + mb * 4
    def setup(self):
        E = self.E
        E(f"s_cmp_ge_u32 s{sU}, 7\ns_cselect_b32 s{T}, 1, 0\ns_lshl_b32 s54, s{sQB}, 1\ns_add_u32 s54, s54, s{T}\ns_mul_i32 s{T}, s{T}, 7\ns_sub_u32 s55, s{sU}, s{T}")
        E("v_and_b32 v1, 63, v0\nv_lshlrev_b32 v3, 4, v1")
        E("v_lshrrev_b32 v4, 3, v1\nv_bfe_u32 v5, v4, 1, 2\nv_lshlrev_b32 v5, 1, v5\nv_and_b32 v6, 7, v1\nv_xor_b32 v5, v5, v6\nv_lshlrev_b32 v5, 4, v5")
        E("v_mul_u32_u24 v4, 896, v4\nv_add_u32 v4, v4, v5")
        for p in range(4): E(f"v_add_u32 v{16+p}, {p*(8*896-1024)}, v4")
        E(f"s_mul_i32 s{T}, s54, {4*56*1024}\ns_mul_i32 s{T+1}, s{sWave}, {14*1024}\ns_add_u32 s{T}, s{T}, s{T+1}\ns_add_u32 s{T}, s{T}, {WS_HM}")
        srd(E, self.sHM, sWS, f"s{T}", 4 * 56 * 1024); E(f"s_sub_u32 s{self.sHM+2}, s{self.sHM+2}, s{T+1}")
        E(f"s_mul_i32 s{T}, s{sWave}, {14*32*896}\ns_lshl_b32 s{T+1}, s55, 7\ns_add_u32 s{T}, s{T}, s{T+1}")
        srd(E, self.sWDs, sWD, f"s{T}", 1792 * 896); E(f"s_sub_u32 s{self.sWDs+2}, s{self.sWDs+2}, s{T}")
        E(f"s_mul_i32 s52, s{sWave}, {10*4096}")
        E("v_bfe_u32 v4, v1, 4, 2\nv_lshlrev_b32 v4, 2, v4\nv_bfe_u32 v5, v1, 2, 2\nv_add_u32 v4, v4, v5")
        E("v_bfe_u32 v5, v4, 1, 2\nv_lshlrev_b32 v4, 7, v4\nv_and_b32 v6, 3, v1\nv_lshlrev_b32 v6, 3, v6\nv_add_u32 v4, v4, v6\nv_add_u32 v4, s52, v4")
        for mb in range(4): E(f"v_xor_b32 v7, {mb}, v5\nv_lshlrev_b32 v7, 5, v7\nv_add_u32 v{20+mb}, v4, v7")
    def dmaW(self, s):
        u = [f"s_add_u32 m0, s52, {(s % self.NSL)*4096}\ns_mov_b32 s53, {s*32*896}\nbuffer_load_dwordx4 v16, s[{self.sWDs}:{self.sWDs+3}], s53 offen lds"]
        for p in range(1, 4): u.append(f"buffer_load_dwordx4 v{16+p}, s[{self.sWDs}:{self.sWDs+3}], s53 offen offset:{p*1024} lds")
        self.vm.extend([s] * 4); return u
    def ldB(self, s):
        u = []
        for qt in range(4):
            u.append(f"s_mov_b32 s53, {qt*56*1024 + s*1024}\nbuffer_load_dwordx4 v[{self.BF(s,qt)}:{self.BF(s,qt)+3}], v3, s[{self.sHM}:{self.sHM+3}], s53 offen")
        self.vm.extend([s] * 4); return u
    def need(self, s):
        idx = max(i for i, t in enumerate(self.vm) if t == s); return len(self.vm) - 1 - idx
    def reads(self, s, st):
        b = (s % self.NSL) * 4096
        return [f"ds_read_b64_tr_b16 v[{self.WF(st,mb)+2*t}:{self.WF(st,mb)+2*t+1}], v{20+mb} offset:{b + t*2048}" for mb in range(4) for t in range(2)]
    NPRE = 5
    def pre(self):
        for s in range(self.NPRE):
            for u in self.dmaW(s): self.E(u)
    def main(self):
        E = self.E
        AC = lambda mb, qt: (mb * 4 + qt) * 4
        self.vm = []
        for s in range(self.NB - 1):
            for u in self.ldB(s): E(u)
        for u in self.dmaW(self.NPRE): E(u)
        srd(E, self.sH, sWS, WS_H, 2048 * 896)
        E(f"s_lshl_b32 s{T}, s54, 2\ns_add_u32 s{T}, s{T}, s{sWave}\ns_mul_i32 s{T}, s{T}, 14336\ns_lshl_b32 s{T+1}, s55, 11\ns_add_u32 s{T}, s{T}, s{T+1}")
        E(f"buffer_load_dwordx4 v[24:27], v3, s[{self.sH}:{self.sH+3}], s{T} offen")
        E(f"buffer_load_dwordx4 v[28:31], v3, s[{self.sH}:{self.sH+3}], s{T} offen offset:1024")
        self.vm.extend(["H"] * 2)
        E(f"s_waitcnt vmcnt({self.need(0)})")
        for u in self.reads(0, 0): E(u)
        for s in range(14):
            st = s & 1
            Sc = Sched(16)
            if s + 1 < 14:
                E(f"s_waitcnt vmcnt({self.need(s+1)}) lgkmcnt(0)")
                for k, t in enumerate(self.reads(s + 1, st ^ 1)): Sc.put(k, 4, t)
                d = []
                if s + self.NPRE + 1 < 14: d += self.dmaW(s + self.NPRE + 1)
                if s + self.NB - 1 < 14: d += self.ldB(s + self.NB - 1)
                for g, t in zip(range(8, 16), d): Sc.put(g, 12, t)
            else:
                E("s_waitcnt lgkmcnt(0)")
            mf = []
            for mb in range(4):
                for qt in range(4):
                    d_ = f"a[{AC(mb,qt)}:{AC(mb,qt)+3}]"
                    mf.append(f"v_mfma_f32_16x16x32_bf16 {d_}, v[{self.WF(st,mb)}:{self.WF(st,mb)+3}], v[{self.BF(s,qt)}:{self.BF(s,qt)+3}], {'0' if s == 0 else d_}")
            Sc.emit(E, mf)
        E("s_nop 7\ns_barrier")
        E(f"s_lshl_b32 s{T}, s{sWave}, 14\nv_add_u32 v4, s{T}, v3")
        for t in range(16): E(f"ds_write_b128 v4, a[{4*t}:{4*t+3}] offset:{t*1024}")
        E("s_waitcnt lgkmcnt(0)\ns_barrier")
        E(f"s_lshl_b32 s{T}, s{sWave}, 10\nv_add_u32 v4, s{T}, v3")
        for mb in range(4):
            for w in range(4):
                E(f"ds_read_b128 v[{64+mb*16+w*4}:{67+mb*16+w*4}], v4 offset:{w*16384 + mb*4096}")
        E(f"s_mov_b32 s{self.sO}, s{sOUT}\ns_mov_b32 s{self.sO+1}, s{sOUT+1}\ns_mov_b32 s{self.sO+2}, {2048*896}\ns_mov_b32 s{self.sO+3}, 0x20000")
        E(f"s_lshl_b32 s{T}, s54, 6\ns_lshl_b32 s{T+1}, s{sWave}, 4\ns_add_u32 s{T}, s{T}, s{T+1}")
        E(f"v_and_b32 v4, 15, v1\nv_add_u32 v4, s{T}, v4\nv_mul_u32_u24 v4, 896, v4")
        E("v_bfe_u32 v5, v1, 4, 1\nv_lshlrev_b32 v5, 5, v5\nv_add_u32 v4, v4, v5")
        E("v_bfe_u32 v5, v1, 5, 1\nv_lshlrev_b32 v5, 4, v5\nv_add_u32 v4, v4, v5")
        E(f"s_lshl_b32 s{T+1}, s55, 7")
        E("s_waitcnt vmcnt(0) lgkmcnt(0)")
        for mb in range(4):
            b = 64 + mb * 16
            for r in range(4):
                E(f"v_add_f32 v{b+r}, v{b+r}, v{b+4+r}\nv_add_f32 v{b+8+r}, v{b+8+r}, v{b+12+r}")
            for r in range(4): E(f"v_add_f32 v{b+r}, v{b+r}, v{b+8+r}")
            hsrc = 24 + (mb >> 1) * 4 + (mb & 1) * 2
            for j in range(2):
                E(f"v_lshlrev_b32 v10, 16, v{hsrc+j}\nv_and_b32 v11, 0xffff0000, v{hsrc+j}")
                E(f"v_add_f32 v{b+2*j}, v{b+2*j}, v10\nv_add_f32 v{b+2*j+1}, v{b+2*j+1}, v11")
        for k in range(2):
            A = 64 + (2*k) * 16; B = 64 + (2*k+1) * 16; t = 32 + 4 * k
            E(f"v_cvt_pk_bf16_f32 v{t}, v{A}, v{A+1}\nv_cvt_pk_bf16_f32 v{t+1}, v{A+2}, v{A+3}")
            E(f"v_cvt_pk_bf16_f32 v{t+2}, v{B}, v{B+1}\nv_cvt_pk_bf16_f32 v{t+3}, v{B+2}, v{B+3}")
            E("s_nop 1")
            E(f"v_permlane16_swap_b32 v{t}, v{t+2}\nv_permlane16_swap_b32 v{t+1}, v{t+3}")
            E("s_nop 1")
            E(f"buffer_store_dwordx4 v[{t}:{t+3}], v4, s[{self.sO}:{self.sO+3}], s{T+1} offen offset:{64*k}")

class Cap:
    def __init__(self): self.l = []
    def __call__(self, t):
        for x in t.split("\n"):
            if x.strip(): self.l.append(x.strip())
def tail_setup():
    cap = Cap()
    t2 = T2(cap); t2.setup()
    c = t1_part(cap)
    return cap.l, t2, c
def gen_tail(E, name, stamp, t2, c):
    E("tl_start:")
    t2.E = E
    signal(E, 1, 1)
    E(f"s_cmp_ge_u32 s{sU}, 14\ns_cbranch_scc1 tl_now2")
    t2.pre()
    E("tl_now2:")
    stamp(5)
    wait(E, 1, 0, 16)
    if NONCE[0]:
        E(f"s_or_b32 s{T}, s{sQB}, s{sU}\ns_or_b32 s{T}, s{T}, s{sWave}\ns_cmp_lg_u32 s{T}, 0\ns_cbranch_scc1 tl_noep")
        E(f"v_mov_b32 v42, s95\nv_mov_b32 v43, {NONCE_OFF}\ns_mov_b64 exec, 1\nbuffer_store_dword v42, v43, s[{sFL}:{sFL+3}], 0 offen sc1\ns_mov_b64 exec, -1")
        E("tl_noep:")
    stamp(6)
    t1_main(E, c)
    signal(E, 2, 0x100)
    stamp(7)
    E(f"s_cmp_ge_u32 s{sU}, 14\ns_cbranch_scc1 tl_done")
    wait(E, 2, 8, 16)
    stamp(8)
    t2.main()
    t3 = T3(E)
    t3.setup()
    signal(E, 3, 0x10000)
    t3.pre()
    stamp(9)
    wait(E, 3, 16, 14)
    stamp(10)
    t3.main()
    E("tl_done:")
```

```python
from asmlib import *
from ws import *
import k0

FUSED_STAMPS = [False]
def stamp_code(E, i, on):
    if on is True:
        if FUSED_STAMPS[0]: E(f"s_memtime s[96:97]\ns_memrealtime s[98:99]\ns_waitcnt lgkmcnt(0)\nv_writelane_b32 v252, s96, {16+i}\nv_writelane_b32 v253, s98, {16+i}")
        else: E(f"s_memtime s[{76+4*i}:{77+4*i}]\ns_memrealtime s[{78+4*i}:{79+4*i}]")

STAMP_OFF = [0]
SPIN_MAX = 0x40000
def stamp_dump(E, n, lab, sws=6):
    E("s_waitcnt vmcnt(0) lgkmcnt(0)")
    E(f"s_mov_b32 s60, s{sws}\ns_mov_b32 s61, s{sws+1}\ns_mov_b32 s62, 0x10000000\ns_mov_b32 s63, 0x20000")
    E(f"s_lshl_b32 s64, s2, 6\ns_add_u32 s64, s64, {WS_DBG + STAMP_OFF[0]}")
    E("v_cmp_eq_u32 vcc, 0, v0\ns_and_saveexec_b64 s[66:67], vcc\ns_cbranch_execz " + f"{lab}_stsk")
    for i in range(n):
        E(f"v_mov_b32 v4, s{76+4*i}\nv_mov_b32 v5, s{78+4*i}\nv_mov_b32 v6, {8*i}")
        E("buffer_store_dwordx2 v[4:5], v6, s[60:63], s64 offen")
        E("s_nop 1")
    E(f"{lab}_stsk:\ns_mov_b64 exec, s[66:67]")

def gen_k1(name="k1_kernel", stamps=False, exp="", nxt=None, fused=None):
    FUSED_STAMPS[0] = bool(fused)
    E = Emit()
    XSLOT = 32768; WBASE = 98304; WSLOT = 16384
    XF = lambda st, i: 64 + st * 32 + i * 4
    WF = lambda st, j: 128 + st * 32 + j * 4
    XA = lambda t, seg: 10 + t * 2 + seg
    WA = lambda j: 14 + j
    XD = lambda p: 22 + p
    WD = lambda p: 26 + p
    XQ = lambda p: 30 + p
    WA2 = lambda j: 40 + j
    sX, sW, sO, sXq, sWq, sOq = 8, 12, 16, 36, 40, 44
    sWave, sXk, sWk, sM0X, sM0W, sSel, sH, sMB = 20, 21, 22, 23, 24, 26, 27, 28
    sXqk, sWqk, sHq, sRB = 48, 49, 50, 51
    NKV, NQ = 32, 14
    SC = ' sc1' if 'wt' in exp else ''
    GLN = 8 if 'g0' not in exp else 0
    if 'lnpro' in exp: GLN = -2
    PL = 8
    if 'bst' in exp: stamps = 'dumponly'
    NG = NKV + NQ
    if "noq" in exp: NG = NKV
    E("s_cmp_ge_u32 s2, 256")
    E(f"s_cbranch_scc1 {name}_end")
    stamp_code(E, 0, stamps)
    E("s_load_dwordx4 s[4:7], s[0:1], 8")
    E("s_load_dwordx4 s[32:35], s[0:1], 24")
    E("s_load_dwordx2 s[52:53], s[0:1], 96")
    E("s_load_dwordx2 s[54:55], s[0:1], 0")
    E("s_load_dwordx2 s[56:57], s[0:1], 88")
    E("s_load_dwordx2 s[58:59], s[0:1], 40")
    E("s_and_b32 s29, s2, 7")
    E("s_lshr_b32 s30, s2, 3")
    E(f"s_lshr_b32 s{sMB}, s30, 2")
    E("s_and_b32 s31, s30, 3")
    E("s_lshl_b32 s25, s29, 2")
    E("s_add_u32 s25, s25, s31")
    E(f"s_lshr_b32 s{sSel}, s25, 4")
    E(f"s_and_b32 s{sH}, s25, 15")
    NCP = 0
    E("s_and_b32 s31, s30, 1")
    E("s_lshl_b32 s29, s29, 1")
    E(f"s_add_u32 s{sHq}, s29, s31")
    E(f"s_lshr_b32 s{sRB}, s2, 4")
    LB = 192
    k0.ln_addr(E, LB)
    E("v_and_b32 v1, 63, v0")
    E("v_lshrrev_b32 v2, 6, v0")
    E("s_nop 0")
    E(f"v_readfirstlane_b32 s{sWave}, v2")
    E("v_lshrrev_b32 v3, 3, v1")
    E("v_lshlrev_b32 v4, 5, v2")
    E("v_add_u32 v3, v3, v4")
    E("v_and_b32 v4, 7, v1")
    E("v_lshrrev_b32 v5, 4, v1")
    E("v_xor_b32 v4, v4, v5")
    E("v_xor_b32 v5, 4, v4")
    E("v_lshlrev_b32 v4, 4, v4")
    E("v_lshlrev_b32 v5, 4, v5")
    E("v_lshlrev_b32 v6, 11, v3")
    E("v_mul_u32_u24 v7, 896, v3")
    for p in range(4):
        c = "v4" if p % 2 == 0 else "v5"
        E(f"v_add_u32 v8, v6, {c}")
        E(f"v_add_u32 v{XD(p)}, {p*(8*2048-1024)}, v8")
        E(f"v_add_u32 v8, v7, {c}")
        E(f"v_add_u32 v{XQ(p)}, {p*(8*896-1024)}, v8")
    E("v_lshrrev_b32 v3, 5, v1")
    E("v_lshlrev_b32 v4, 3, v2")
    E("v_add_u32 v4, v4, v3")
    E("v_lshlrev_b32 v4, 13, v4")
    E("v_and_b32 v5, 31, v1")
    E("v_and_b32 v7, 1, v2")
    E("v_lshlrev_b32 v7, 3, v7")
    E("v_xor_b32 v5, v5, v7")
    for p in range(4):
        E(f"v_add_u32 v6, {2*p}, v3")
        E("v_and_b32 v6, 3, v6")
        E("v_lshlrev_b32 v6, 1, v6")
        E("v_xor_b32 v6, v6, v5")
        E("v_lshlrev_b32 v6, 4, v6")
        E("v_add_u32 v6, v6, v4")
        E(f"v_add_u32 v{WD(p)}, {p*(2*8192-1024)}, v6")
    E("s_waitcnt lgkmcnt(0)")
    if "pst" in exp: stamp_code(E, 1, True)
    if fused:
        E(f"s_add_u32 s92, s52, {WS_FLG}\ns_addc_u32 s93, s53, 0\ns_load_dword s95, s[92:93], {NONCE_OFF}")
    def srd(s, lo, hi, off_s, size):
        if off_s is None:
            E(f"s_mov_b32 s{s}, s{lo}\ns_mov_b32 s{s+1}, s{hi}")
        else:
            E(f"s_add_u32 s{s}, s{lo}, {off_s}\ns_addc_u32 s{s+1}, s{hi}, 0")
        E(f"s_mov_b32 s{s+2}, {size}\ns_mov_b32 s{s+3}, 0x20000")
    sLI, sLO, sFL, sPF = 60, 64, 68, 72
    srd(sLI, 54, 55, None, 2048*896)
    k0.ln_load(E, LB, sLI)
    E(f"s_lshl_b32 s29, s{sMB}, 19")
    srd(sX, 4, 5, "s29", 0x80000)
    E(f"s_cmp_eq_u32 s{sSel}, 0")
    E("s_cselect_b32 s30, s32, s34")
    E("s_cselect_b32 s31, s33, s35")
    E(f"s_lshl_b32 s29, s{sH}, 9")
    srd(sW, 30, 31, "s29", 0x800000)
    E(f"s_sub_u32 s{sW+2}, s{sW+2}, s29")
    E(f"s_lshl_b32 s{sM0X}, s{sWave}, 12")
    E(f"s_add_u32 s{sM0W}, s{sM0X}, {WBASE}")
    E(f"s_mov_b32 s{sXk}, 0")
    E(f"s_mov_b32 s{sWk}, 0")

    vm = [("C", 0)] * NCP + [("LN", 0)] * 2
    def dma_x(grp, hf):
        slot = grp % 3
        u = []
        if grp < 16:
            so = hf * 128 * 2048 + grp * 128
            reg, srd_, lds = XD, sX, slot * XSLOT + hf * 16384
        else:
            so = (grp - 16) * 128
            reg, srd_, lds = XQ, sXq, slot * XSLOT
        u.append(f"s_add_u32 m0, s{sM0X}, {lds}\ns_mov_b32 s{sXk}, {so}\nbuffer_load_dwordx4 v{reg(0)}, s[{srd_}:{srd_+3}], s{sXk} offen lds")
        for p in range(1, 4):
            u.append(f"buffer_load_dwordx4 v{reg(p)}, s[{srd_}:{srd_+3}], s{sXk} offen offset:{p*1024} lds")
        return [(t, ("X", grp)) for t in u]
    def wslot(G):
        if G < NKV: return WBASE + (G % 4) * WSLOT
        L = [WBASE, WBASE + WSLOT, WBASE + 2*WSLOT, WBASE + 3*WSLOT, 49152, 81920]
        return L[(G - NKV) % 6]
    def dma_w(G):
        if G < NKV: so, srd_ = G * 32 * 8192, sW
        else: so, srd_ = (G - NKV) * 32 * 8192, sWq
        u = [f"s_add_u32 m0, s{sM0X}, {wslot(G)}\ns_mov_b32 s{sWk}, {so}\nbuffer_load_dwordx4 v{WD(0)}, s[{srd_}:{srd_+3}], s{sWk} offen lds"]
        for p in range(1, 4):
            u.append(f"buffer_load_dwordx4 v{WD(p)}, s[{srd_}:{srd_+3}], s{sWk} offen offset:{p*1024} lds")
        return [(t, ("W", G)) for t in u]
    def need(*tags):
        idx = max(max(i for i, t in enumerate(vm) if t == tag) for tag in tags)
        return len(vm) - 1 - idx
    def xgrp(G): return G >> 1 if G < NKV else 16 + ((G - NKV) >> 1)
    def reads(G, st):
        grp = xgrp(G); t = G & 1
        slot = grp % 3
        seg = 1 if slot == 2 else 0
        xb = slot * XSLOT - seg * 65536
        nx = 8 if G < NKV else 4
        xr = [f"ds_read_b128 v[{XF(st,i)}:{XF(st,i)+3}], v{XA(t,seg)} offset:{xb + i*2048}" for i in range(nx)]
        ws_ = wslot(G)
        if ws_ >= WBASE: wb, wa = ws_ - WBASE, WA
        else: wb, wa = ws_ - (WBASE - 65536), WA2
        wr = []
        for j in range(8):
            for tt in range(2):
                wr.append(f"ds_read_b64_tr_b16 v[{WF(st,j)+2*tt}:{WF(st,j)+2*tt+1}], v{wa(j)} offset:{wb + tt*2048}")
        return [xr[0]] + wr + xr[1:]
    def mfmas(G, st, sel):
        m = []
        first = G == 0 or G == NKV
        nx = 8 if G < NKV else 4
        for i in range(nx):
            for j in range(8):
                b = (i*8+j)*4
                acc = f"a[{b}:{b+3}]"
                x = f"v[{XF(st,i)}:{XF(st,i)+3}]"; w = f"v[{WF(st,j)}:{WF(st,j)+3}]"
                c = "0" if first else acc
                if sel == 0 or G >= NKV: m.append(f"v_mfma_f32_16x16x32_bf16 {acc}, {w}, {x}, {c}")
                else:                    m.append(f"v_mfma_f32_16x16x32_bf16 {acc}, {x}, {w}, {c}")
        return m

    RAMP = "noramp" not in exp
    pro = dma_x(0,0) + dma_x(0,1) + dma_w(0) + dma_w(1) + dma_x(1,0) + dma_x(1,1) + dma_w(2)
    if not RAMP: pro += dma_w(3) + dma_x(2,0) + dma_x(2,1)
    for u, tg in pro:
        E(u); vm.append(tg)
    backlog0 = [(2, "w", 3), (3, "x", (2, 0)), (3, "x", (2, 1))] if RAMP else []
    if "pst" in exp: stamp_code(E, 2, True)
    if "nocpf" not in exp:
        E(f"s_cmp_eq_u32 s{sSel}, 0\ns_cbranch_scc0 {name}_cpv")
        code_prefetch_shared(E, name, 0xa800, name + "_a", 72, 74, 8, sWave)
        E(f"s_branch {name}_cpd\n{name}_cpv:")
        code_prefetch_shared(E, name + "_v", 0xa800, name + "_b", 72, 74, 8, sWave)
        E(f"{name}_cpd:")
        if fused: code_prefetch_shared(E, nxt[0], nxt[1], name + "_e", 72, 74, 8, sWave, which=2)
    E(f"s_lshl_b32 s29, s{sSel}, 24")
    E(f"s_lshl_b32 s30, s{sH}, 20")
    E("s_add_u32 s29, s29, s30")
    srd(sO, 52, 53, "s29", 0x100000)
    E(f"s_mul_i32 s29, s{sRB}, {128*896}")
    E(f"s_add_u32 s29, s29, {WS_XN}")
    srd(sXq, 52, 53, "s29", 128*896)
    E(f"s_lshl_b32 s29, s{sHq}, 9")
    srd(sWq, 6, 7, "s29", 448*8192)
    E(f"s_sub_u32 s{sWq+2}, s{sWq+2}, s29")
    E(f"s_lshl_b32 s29, s{sHq}, 20")
    E(f"s_add_u32 s29, s29, {WS_Q}")
    srd(sOq, 52, 53, "s29", 0x100000)
    E("v_and_b32 v3, 15, v1")
    E("v_lshrrev_b32 v4, 4, v1")
    E("v_bfe_u32 v5, v1, 1, 3")
    E("v_xor_b32 v4, v4, v5")
    E("v_lshrrev_b32 v6, 7, v0")
    E("v_lshlrev_b32 v6, 7, v6")
    E("v_add_u32 v3, v3, v6")
    E("v_lshlrev_b32 v3, 7, v3")
    for t in range(2):
        E(f"v_xor_b32 v5, {4*t}, v4")
        E("v_lshlrev_b32 v5, 4, v5")
        E(f"v_add_u32 v{XA(t,0)}, v3, v5")
        E(f"v_add_u32 v{XA(t,1)}, 0x10000, v{XA(t,0)}")
    E("v_bfe_u32 v3, v1, 2, 2")
    E("v_lshrrev_b32 v4, 4, v1")
    E("v_lshlrev_b32 v5, 3, v4")
    E("v_add_u32 v5, v5, v3")
    E("v_lshlrev_b32 v5, 9, v5")
    E("v_and_b32 v4, 1, v4")
    E("v_lshlrev_b32 v4, 2, v4")
    E("v_or_b32 v3, v3, v4")
    E("v_and_b32 v6, 3, v1")
    E("v_lshlrev_b32 v6, 3, v6")
    E("v_add_u32 v5, v5, v6")
    E("v_bfe_u32 v6, v0, 6, 1")
    E("v_lshlrev_b32 v6, 8, v6")
    E("v_add_u32 v5, v5, v6")
    E(f"v_add_u32 v5, {WBASE}, v5")
    for j in range(8):
        E(f"v_xor_b32 v6, {j}, v3")
        E("v_lshlrev_b32 v6, 5, v6")
        E(f"v_add_u32 v{WA(j)}, v5, v6")
        E(f"v_subrev_u32 v{WA2(j)}, 0x10000, v{WA(j)}")
    srd(sLO, 52, 53, WS_XN, 2048*896)
    srd(sFL, 56, 57, None, 256)
    PFW, PFX = 34, 35
    PX, PW = 48, 49
    E("s_lshr_b32 s29, s2, 3\ns_and_b32 s29, s29, 3\ns_lshl_b32 s29, s29, 6")
    E(f"s_lshl_b32 s30, s{sWave}, 4\ns_add_u32 s29, s29, s30\nv_and_b32 v3, 15, v1\nv_add_u32 v3, s29, v3\nv_lshlrev_b32 v3, 11, v3\nv_lshrrev_b32 v4, 4, v1\nv_lshlrev_b32 v4, 5, v4\nv_add_u32 v{PX}, v3, v4")
    E(f"s_lshl_b32 s29, s{sMB}, 3\ns_lshl_b32 s30, s{sWave}, 1\ns_add_u32 s29, s29, s30\nv_bfe_u32 v3, v1, 4, 1\nv_add_u32 v3, s29, v3\nv_lshlrev_b32 v3, 13, v3")
    E(f"v_and_b32 v4, 15, v1\nv_lshlrev_b32 v4, 5, v4\nv_add_u32 v{PW}, v3, v4")
    E("s_lshr_b32 s29, s2, 3")
    E(f"s_mul_i32 s30, s{sWave}, 56\nv_min_u32 v3, 55, v1\nv_add_u32 v3, s30, v3")
    E("v_lshrrev_b32 v4, 4, v3\ns_mul_i32 s30, s29, 14\nv_add_u32 v4, s30, v4\nv_lshlrev_b32 v4, 13, v4")
    E("v_and_b32 v3, 15, v3\nv_lshlrev_b32 v3, 6, v3\nv_add_u32 v4, v4, v3")
    E(f"s_and_b32 s30, s{sHq}, 1\ns_lshl_b32 s30, s30, 9")
    E(f"v_subrev_u32 v4, s30, v4\nv_max_i32 v{PFW}, 0, v4")
    E(f"s_mul_i32 s30, s29, 448\ns_mul_i32 s31, s{sWave}, 112\ns_add_u32 s30, s30, s31")
    E(f"v_add_u32 v3, s30, v1\nv_lshlrev_b32 v{PFX}, 7, v3")
    E(f"v_min_u32 v4, 47, v1\nv_add_u32 v4, 64, v4\nv_add_u32 v4, s30, v4\nv_lshlrev_b32 v{PFX+1}, 7, v4")
    class Cap:
        def __init__(self): self.l = []
        def __call__(self, t):
            for x in t.split("\n"):
                if x.strip(): self.l.append(x.strip())
    cap = Cap(); k0.ln_math_store(cap, LB, sLO, "sc1")
    ln_stream = []
    for t in cap.l:
        if t.startswith("buffer_store"): ln_stream.append((12, t, ("LS", 0)))
        elif t.startswith("s_nop"): ln_stream.append((0, t, None))
        elif t.startswith("v_rsq"): ln_stream.append((8, t, None))
        else: ln_stream.append((4, t, None))
    if "tlb" in exp:
        E(f"s_lshl_b32 s29, s{sMB}, 17\ns_lshl_b32 s30, s{sWave}, 15\ns_add_u32 s29, s29, s30\nv_mov_b32 v8, s29")
        E(f"buffer_load_dword v9, v8, s[{sO}:{sO+3}], 0 offen")
        E(f"s_lshl_b32 s29, s{sRB}, 16\ns_lshl_b32 s30, s{sWave}, 14\ns_add_u32 s29, s29, s30\nv_mov_b32 v8, s29")
        E(f"buffer_load_dword v9, v8, s[{sOq}:{sOq+3}], 0 offen")
        E(f"s_mul_i32 s30, s{sWave}, {112*8192}\nv_mov_b32 v8, s30")
        E(f"buffer_load_dword v9, v8, s[{sWq}:{sWq+3}], 0 offen")
        E(f"s_mul_i32 s30, s{sWave}, {32*896}\nv_mov_b32 v8, s30")
        E(f"buffer_load_dword v9, v8, s[{sXq}:{sXq+3}], 0 offen")
        vm.extend([("T", 0)] * 4)
    if "nopf" not in exp and "pf18" not in exp and NG > NKV:
        E(f"buffer_load_dword v7, v{PFW}, s[{sWq}:{sWq+3}], 0 offen"); vm.append(("P", 0))
    if "lnpro" in exp:
        E(f"s_waitcnt vmcnt({need(('LN',0))})")
        for c, t, tg in ln_stream:
            E(t)
            if tg: vm.append(tg)
    E(f"s_waitcnt vmcnt({need(('X',0),('W',0))})")
    if "pst" in exp: stamp_code(E, 3, True)
    E("s_barrier")
    if "pst" in exp: stamps = "dumponly2"; stamp_code(E, 4, True)
    stamp_code(E, 1, stamps)
    for u in reads(0, 0): E(u)
    E(f"s_cmp_eq_u32 s{sSel}, 0")
    E(f"s_cbranch_scc0 {name}_v")
    E(f"{name}_k0:")
    vm0 = list(vm)

    def kv_epi_setup(sel):
        E("v_lshlrev_b32 v3, 4, v1")
        E("v_lshrrev_b32 v4, 7, v0")
        E("v_lshlrev_b32 v4, 16, v4")
        E("v_add_u32 v3, v3, v4")
        E("v_bfe_u32 v4, v0, 6, 1")
        E(f"v_lshlrev_b32 v4, {12 if sel == 0 else 13}, v4")
        E("v_add_u32 v3, v3, v4")
        E(f"s_lshl_b32 s29, s{sMB}, 17")
    def kv_units(sel):
        units = []; n = 0
        for a in range(8 if sel == 0 else 4):
            for b in range(4 if sel == 0 else 8):
                t = 192 + (n % 4) * 12; n += 1
                if sel == 0:
                    src = [(a*8 + 2*b)*4 + r for r in range(8)]; off = a*8192 + b*1024
                else:
                    src = [(2*a*8 + b)*4 + r for r in range(4)] + [((2*a+1)*8 + b)*4 + r for r in range(4)]; off = a*16384 + b*1024
                u = [(4, f"v_accvgpr_read_b32 v{t+r}, a{src[r]}", None) for r in range(8)]
                u += [(4, f"v_cvt_pk_bf16_f32 v{t+8+r}, v{t+2*r}, v{t+2*r+1}", None) for r in range(4)]
                u += [(12, f"s_add_u32 s30, s29, {off}\nbuffer_store_dwordx4 v[{t+8}:{t+11}], v3, s[{sO}:{sO+3}], s30 offen{SC}", ("S", 0))]
                units.append(u)
        assert all(int(x[1].split("a")[-1]) < 128 for u in units[:16] for x in u[:8])
        return units
    def q_epilogue():
        E("s_nop 7")
        E("v_lshlrev_b32 v3, 4, v1")
        E("v_lshrrev_b32 v4, 7, v0")
        E("v_lshlrev_b32 v4, 15, v4")
        E("v_add_u32 v3, v3, v4")
        E("v_bfe_u32 v4, v0, 6, 1")
        E("v_lshlrev_b32 v4, 12, v4")
        E("v_add_u32 v3, v3, v4")
        E(f"s_lshl_b32 s29, s{sRB}, 16")
        E("s_mov_b32 s31, 0x3db8aa3b")
        n = 0
        for a in range(4):
            for b in range(4):
                t = 192 + (n % 4) * 12; n += 1
                src = [(a*8 + 2*b)*4 + r for r in range(8)]; off = a*8192 + b*1024
                for r in range(8): E(f"v_accvgpr_read_b32 v{t+r}, a{src[r]}")
                for r in range(8): E(f"v_mul_f32 v{t+r}, s31, v{t+r}")
                for r in range(4): E(f"v_cvt_pk_bf16_f32 v{t+8+r}, v{t+2*r}, v{t+2*r+1}")
                E(f"s_add_u32 s30, s29, {off}")
                E(f"buffer_store_dwordx4 v[{t+8}:{t+11}], v3, s[{sOq}:{sOq+3}], s30 offen{SC}")

    for sel in range(2):
        lab = f"{name}_{'kv'[sel]}"
        if sel == 1: E(f"{lab}:")
        vm[:] = vm0
        pend = []
        backlog = list(backlog0)
        if 'noln' in exp: vm.append(('LS', 0))
        for G in range(NG):
            st = G & 1
            if G == GLN and 'noln' not in exp and 'lnpro' not in exp: pend = list(ln_stream)
            if G == NKV:
                stamp_code(E, 2, stamps)
                E("v_lshrrev_b32 v4, 7, v0\nv_lshlrev_b32 v4, 13, v4")
                for t in range(2):
                    for seg in range(2): E(f"v_sub_u32 v{XA(t,seg)}, v{XA(t,seg)}, v4")
                for u in reads(NKV, st): E(u)
                E("s_nop 4")
                kv_epi_setup(sel)
                un = kv_units(sel)
                nexp = 32 if "allexp" in exp else (8 if "exp8" in exp else 16)
                for u in un[:nexp]:
                    for c, t, tg in u:
                        E(t)
                        if tg: vm.append(tg)
                pend = [x for u in un[nexp:] for x in u]
                stamp_code(E, 3, stamps)
            if "bst" in exp and G % 6 == 0 and G < 36: E(f"s_memtime s[{76+4*(G//6)}:{77+4*(G//6)}]\ns_memrealtime s[{78+4*(G//6)}:{79+4*(G//6)}]")
            last = G == NG - 1
            ngap = 64 if G < NKV else 32
            S = Sched(ngap)
            tags = {}
            def putv(g, c, t, tg):
                S.put(g, c, t); tags.setdefault(g, []).append(tg)
            if not last:
                E(f"s_waitcnt vmcnt({need(('X', xgrp(G+1)), ('W', G+1))}) lgkmcnt(0)")
                E("s_barrier")
                if G + 1 != NKV:
                    rd = reads(G + 1, st ^ 1)
                    step = 2 if ngap == 64 else 1
                    for k, t in enumerate(rd): S.put(step * k, 4, t)
                reg = []
                if G + 4 < NKV + (4 if NG > NKV else 0) and G < NKV: reg.append((G + 3, "w", G + 4))
                if NG > NKV and G == 28: reg.append((NKV + 3, "w", NKV + 4))
                if NG > NKV and G == 30: reg.append((NKV + 4, "w", NKV + 5))
                if G >= NKV and G + 6 < NG: reg.append((G + 5, "w", G + 6))
                if G < NKV:
                    if G % 2 == 1: grp, hf = (G - 1) // 2 + 3, 0
                    else: grp, hf = G // 2 + 2, 1
                    if G == 0: grp = None
                else:
                    it = G - NKV
                    grp, hf = (16 + (it - 1) // 2 + 3, 0) if it % 2 == 1 else (None, 0)
                if grp is not None:
                    maxg = 16 + 7 if NG > NKV else 16
                    if grp < 16 or (grp < maxg and hf == 0):
                        dl = 2 * grp - 1 if grp < 16 else NKV + 2 * (grp - 16) - 1
                        reg.append((dl, "x", (grp, hf)))
                backlog.extend(reg); backlog.sort(key=lambda x: x[0])
                ntake = 3 if (G < 6 or len(backlog) > 2) else len(backlog)
                take, backlog[:] = backlog[:ntake], backlog[ntake:]
                d = []
                for dl, kind, arg in take:
                    assert dl > G or dl == G, (G, dl, kind, arg)
                    assert dl >= G + 1 or True
                    d += dma_x(*arg) if kind == "x" else dma_w(arg)
                dp = [5, 11, 17, 23, 29, 35, 41, 47, 51, 55, 59, 63] if ngap == 64 else [20, 22, 24, 26, 21, 23, 25, 27]
                if ngap == 32 and len(d) <= 4: dp = [21, 24, 27, 30]
                elif ngap == 32: dp = [20, 21, 22, 24, 25, 27, 29, 31]
                for (t, tg), g in zip(d, dp): putv(g, 12, t, tg)
                if "l2pf" in exp and G < NKV:
                    if G % 2 == 1 and (G + PL + 1) // 2 < 16:
                        putv(57, 12, f"s_mov_b32 s31, {((G + PL + 1) // 2) * 128}\nbuffer_load_dword v7, v{PX}, s[{sX}:{sX+3}], s31 offen", ("P", 2))
                    if G % 2 == 0 and G + PL < NKV:
                        putv(57, 12, f"s_mov_b32 s31, {(G + PL) * 32 * 8192}\nbuffer_load_dword v7, v{PW}, s[{sW}:{sW+3}], s31 offen", ("P", 3))
                if G == GLN + 7 and 'nosig' not in exp:
                    assert need(('W', G+1)) <= len(vm) - 1 - max(i for i, t in enumerate(vm) if t == ('LS', 0)) - 0 and True
                    sk = f"{lab}_nosig"
                    S.put(51, 0, f"s_cmp_lg_u32 s{sWave}, 0\ns_cbranch_scc1 {sk}\ns_lshr_b32 s30, s2, 4\ns_lshl_b32 s30, s30, 2\nv_mov_b32 v4, 1\nv_mov_b32 v5, s30\ns_mov_b64 exec, 1\nbuffer_atomic_add v4, v5, s[{sFL}:{sFL+3}], 0 offen sc1\ns_mov_b64 exec, -1\n{sk}:")
                if fused and G == 1: S.put(55, 0, 's_add_u32 s95, s95, 1')
                if G == 4 and not fused:
                    zk = f"{lab}_nozero"
                    putz = f"s_cmp_lg_u32 s{sWave}, 0\ns_cbranch_scc1 {zk}\ns_add_u32 s60, s52, {WS_FLG}\ns_addc_u32 s61, s53, 0\ns_mov_b32 s62, {FLG_BYTES}\ns_mov_b32 s63, 0x20000\ns_lshl_b32 s30, s2, 7\nv_lshlrev_b32 v4, 2, v1\nv_mov_b32 v5, 0\ns_mov_b32 exec_hi, 0\nbuffer_store_dword v5, v4, s[60:63], s30 offen\ns_mov_b64 exec, -1\n{zk}:"
                    S.put(55, 0, putz)
                if NG > NKV and G == GLN + 10 and 'nopoll' not in exp:
                    putv(53, 12, f"s_lshl_b32 s30, s{sRB}, 2\nv_mov_b32 v5, s30\nbuffer_load_dword v6, v5, s[{sFL}:{sFL+3}], 0 offen sc1", ("F", 0))
                if NG > NKV and G == GLN + 14 and 'nopoll' not in exp:
                    ok, pl = f"{lab}_xnok", f"{lab}_xnpoll"
                    to = f"{lab}_xnto"
                    S.put(53, 8, f"v_readfirstlane_b32 s30, v6\ns_cmp_ge_u32 s30, 16\ns_cbranch_scc1 {ok}\ns_mov_b32 s31, 0\n{pl}:\ns_sleep 1\nbuffer_load_dword v6, v5, s[{sFL}:{sFL+3}], 0 offen sc1\ns_waitcnt vmcnt(0)\nv_readfirstlane_b32 s30, v6\ns_add_u32 s31, s31, 1\ns_cmp_ge_u32 s31, {SPIN_MAX}\ns_cbranch_scc1 {to}\ns_cmp_ge_u32 s30, 16\ns_cbranch_scc0 {pl}\ns_branch {ok}\n{to}:\nv_mov_b32 v6, 0xbad1\nv_mov_b32 v7, 128\nbuffer_store_dword v6, v7, s[{sFL}:{sFL+3}], 0 offen\n{ok}:")
                if NG > NKV and G == 18 and "pf18" in exp:
                    putv(53, 12, f"buffer_load_dword v7, v{PFW}, s[{sWq}:{sWq+3}], 0 offen", ("P", 0))
                if NG > NKV and G in (19, 20) and "pfx" in exp:
                    putv(53, 12, f"buffer_load_dword v7, v{PFX}, s[{sLO}:{sLO+3}], 0 offen offset:{0 if G == 19 else 0}" if G == 19 else f"buffer_load_dword v7, v{PFX+1}, s[{sLO}:{sLO+3}], 0 offen", ("P", 1))
                if pend:
                    k = 0; cur = 0
                    while k < len(pend):
                        c, t, tg = pend[k]
                        g = cur
                        while g < ngap and c and not (S.c[g] == 0 if c == 12 else S.c[g] + c <= 8): g += 1
                        if g >= ngap: break
                        if tg: putv(g, c, t, tg)
                        else: S.put(g, c, t)
                        cur = g; k += 1
                        if G >= NKV and k >= 26 and pend[k-1][2]: break
                    pend = pend[k:]
            else:
                E("s_waitcnt lgkmcnt(0)")
            S.emit(E, mfmas(G, st, sel))
            for g in sorted(tags): vm.extend(tags[g])
        for c, t, tg in pend: E(t)
        if NG == NKV:
            stamp_code(E, 2, stamps)
            E("s_nop 7")
            kv_epi_setup(sel)
            for u in kv_units(sel):
                for c, t, tg in u: E(t)
            stamp_code(E, 3, stamps)
        else:
            stamp_code(E, 4, stamps)
            if nxt and "nocpf" not in exp and not fused: code_prefetch_shared(E, nxt[0], nxt[1], f"{lab}_n", 72, 74, 8, sWave)
            q_epilogue()
        if fused:
            E(f"s_lshl_b32 s90, s{sH}, 7\ns_lshl_b32 s30, s{sSel}, 3\ns_add_u32 s30, s30, s{sMB}\ns_lshl_b32 s30, s30, 2\ns_add_u32 s90, s90, s30\ns_add_u32 s90, s90, {HEAD_OFF}")
            E(f"s_lshl_b32 s91, s{sHq}, 7\ns_lshl_b32 s31, s{sRB}, 2\ns_add_u32 s91, s91, s31\ns_add_u32 s91, s91, {HEAD_OFF + 64}")
            stamp_code(E, 5, stamps)
            E(f"s_branch {fused}")
            continue
        if stamps:
            E("s_waitcnt vmcnt(0)")
            stamp_code(E, 5 if NG > NKV else 4, True)
            stamp_dump(E, 6 if NG > NKV else 5, lab, 52)
        E("s_endpgm")
    E(f"{name}_end:")
    E("s_endpgm")
    return E.text()
```

```python
from asmlib import *
from ws import *
from k1 import SPIN_MAX, STAMP_OFF
import tail

NS = 5
CH = 32768
THR = 0x44800000
NA = 18

def O(db, qt): return (db * 2 + qt) * 4
def Q(qt, ds): return 128 + (qt * 8 + ds) * 4
def F(f): return 192 + (f % 16) * 4
def S(par, kb, qt): return 64 + par * 32 + (kb * 2 + qt) * 4
def P(par, s, qt): return 128 + par * 16 + (s * 2 + qt) * 4
def NEGM(qt): return 160 + 4 * qt
TMP = 168
L_ = lambda qt: 184 + qt
LS = lambda qt: 186 + qt
M_ = lambda qt: 188 + qt
DM = lambda qt: 190 + qt
vRA, vRB, vLane16, vTab = 192, 193, 194, 196
vT0 = 200
vD = 224
vW = 232
vWA = 240
vPM = 246
vFL = 250
sDM = 8
sQ = 12
sPT = 16
sOP = 20
sWO = 24
sFL = 28
sWave, sH, sPair, sType = 32, 33, 34, 35
sC, sWr, sRdN, sOff, sN, sI, sT, sQB, sItem = 36, 37, 38, 39, 40, 41, 42, 43, 44
sTmp, sTmp2, sTmp3 = 45, 46, 47
sM0 = 48
sNKV, sSig, sHasP, sPI = 52, 53, 54, 62

def a4(b): return f"a[{b}:{b+3}]"
def v4(b): return f"v[{b}:{b+3}]"

def stamp_code(E, i, on):
    if on: E(f"s_memtime s[96:97]\ns_memrealtime s[98:99]\ns_waitcnt lgkmcnt(0)\nv_writelane_b32 v252, s96, {i}\nv_writelane_b32 v253, s98, {i}")
def stamp_dump(E, n, lab, sws):
    E("s_mov_b64 exec, -1\ns_waitcnt vmcnt(0) lgkmcnt(0)")
    E(f"s_mov_b32 s60, s{sws}\ns_mov_b32 s61, s{sws+1}\ns_mov_b32 s62, 0x10000000\ns_mov_b32 s63, 0x20000")
    E(f"s_lshl_b32 s56, s2, 8\ns_add_u32 s56, s56, {WS_DBG + 65536}")
    E(f"s_cmp_lg_u32 s{sWave}, 0\ns_cbranch_scc1 {lab}_stsk")
    E("v_and_b32 v4, 63, v0\nv_lshlrev_b32 v4, 3, v4\nv_mov_b32 v6, v252\nv_mov_b32 v7, v253\ns_mov_b64 exec, 0xffffff")
    E("buffer_store_dwordx2 v[6:7], v4, s[60:63], s56 offen")
    E(f"{lab}_stsk:")

class K2:
    def __init__(self, name, stamps=False, exp="", nxt=None, fused=False):
        self.nxt = nxt; self.fused = fused
        self.name = name; self.E = Emit(); self.stamps = stamps; self.exp = exp
        self.uid = 0; self.rare = []
    def ist(self, i):
        if "ist" in self.exp: stamp_code(self.E, i, True)
    def lab(self, s):
        self.uid += 1
        return f"{self.name}_{s}{self.uid}"

    def head_items(self, Sc, nxt, vmw=16, dma_gaps=None, sw=False, sg=False, m0gap=6):
        if isinstance(vmw, int): w = f"s_waitcnt vmcnt({vmw})"
        else: w = vmw
        Sc.put(1, 0, w + ("\ns_barrier" if "nobar" not in self.exp else ""))
        if sg:
            a, b = self.lab("sg"), self.lab("sgb")
            Sc.put(13, 0, f"s_cmp_eq_u32 s{sSig}, 1\ns_cbranch_scc1 {a}\n{b}:")
            self.rare.append(("signal", a, b))
        g0 = 2
        if sw:
            a, b = self.lab("sw"), self.lab("swb")
            Sc.put(2, 0, f"s_cmp_eq_u32 s{sC}, s{sNKV}\ns_cbranch_scc1 {a}\n{b}:")
            self.rare.append(("switch", a, b))
        Sc.put(3, 4, f"v_readlane_b32 s{sOff}, v{vTab}, s{sC}")
        Sc.put(4, 0, f"s_add_u32 s{sRdN}, s{sRdN}, {CH}\ns_cmp_eq_u32 s{sRdN}, {NS*CH}\ns_cselect_b32 s{sRdN}, 0, s{sRdN}")
        Sc.put(6, 0, f"s_add_u32 s{sC}, s{sC}, 1")
        Sc.put(m0gap, 0, f"s_add_u32 m0, s{sWr}, s{sM0}")
        g = 6
        for reg, base in nxt:
            while Sc.c[g] + 4 > 8: g += 1
            Sc.put(g, 4, f"v_add_u32 v{reg}, s{sRdN}, v{base}")
        dg = dma_gaps or [9, 15, 21, 27, 33, 39, 45, 51]
        for p in range(8):
            t = f"buffer_load_dwordx4 v{vD+p}, s[{sDM}:{sDM+3}], s{sOff} offen offset:{(p&3)*1024} lds"
            if "nodma" not in self.exp: Sc.put(dg[p], 12, t)
            if p == 3: Sc.put(dg[p] + 1, 0, f"s_add_u32 m0, m0, 4096")
            if p == 7: Sc.put(dg[p] + 1, 0, f"s_add_u32 s{sWr}, s{sWr}, {CH}\ns_cmp_eq_u32 s{sWr}, {NS*CH}\ns_cselect_b32 s{sWr}, 0, s{sWr}")

    def frag_read(self, f, cur, nxt):
        if f < 32: return f"ds_read_b128 {a4(F(f))}, v{cur} offset:{f*1024}"
        return f"ds_read_b128 {a4(F(f))}, v{nxt} offset:{(f-32)*1024}"

    def qk_mfmas(self, par, cinit):
        m = []
        for kb in range(4):
            for ds in range(8):
                f = kb * 8 + ds
                for qt in range(2):
                    d = v4(S(par, kb, qt))
                    c = (v4(NEGM(qt)) if cinit else "0") if ds == 0 else d
                    m.append(f"v_mfma_f32_16x16x32_bf16 {d}, {a4(F(f))}, {a4(Q(qt, ds))}, {c}")
        return m
    def pv_mfmas(self, par):
        m = []
        for s in range(2):
            for db in range(16):
                f = s * 16 + db
                for qt in range(2):
                    d = a4(O(db, qt))
                    m.append(f"v_mfma_f32_16x16x32_bf16 {d}, {a4(F(f))}, {v4(P(par, s, qt))}, {d}")
        return m

    def sm_stream(self, par, half):
        out = []
        for kb in (2 * half, 2 * half + 1):
            for qt in range(2):
                s0 = S(par, kb, qt); t = TMP + ((kb * 2 + qt) % 4) * 4
                p = P(par, kb >> 1, qt) + 2 * (kb & 1)
                for r in range(4): out.append((8, f"v_exp_f32 v{t+r}, v{s0+r}"))
                if kb == 0:
                    out.append((4, f"v_add_f32 v{LS(qt)}, v{t}, v{t+1}"))
                else:
                    out.append((4, f"v_add_f32 v{LS(qt)}, v{LS(qt)}, v{t}"))
                    out.append((4, f"v_add_f32 v{LS(qt)}, v{LS(qt)}, v{t+1}"))
                out.append((4, f"v_cvt_pk_bf16_f32 v{p}, v{t}, v{t+1}"))
                out.append((4, f"v_add_f32 v{LS(qt)}, v{LS(qt)}, v{t+2}"))
                out.append((4, f"v_cvt_pk_bf16_f32 v{p+1}, v{t+2}, v{t+3}"))
                out.append((4, f"v_add_f32 v{LS(qt)}, v{LS(qt)}, v{t+3}"))
        return out

    def emit_phase(self, mf, cur, sm=(), extra=(), tail=(), vmw=16, pre=(), sw=False, sg=False, first=False):
        E = self.E
        nxt = vRB if cur == vRA else vRA
        n = len(mf)
        Sc = Sched(n)
        for f in range(32):
            if "nords" in self.exp: continue
            Sc.put(2 * f, 4, self.frag_read(f + 8, cur, nxt))
        if first:
            g = 3
            for c, so in ((2, 74), (3, 75)):
                for p in range(8):
                    pre_ = f"s_add_u32 m0, s{sM0}, {c*CH}\ns_nop 0\n" if p == 0 else ("s_add_u32 m0, m0, 4096\ns_nop 0\n" if p == 4 else "")
                    Sc.put(g, 12, pre_ + f"buffer_load_dwordx4 v{vD+p}, s[{sDM}:{sDM+3}], s{so} offen offset:{(p&3)*1024} lds"); g += 2
            self.head_items(Sc, [(nxt, vLane16)], 0, dma_gaps=[37, 39, 41, 43, 45, 47, 49, 51], sw=False, m0gap=36)
        else:
            self.head_items(Sc, [(nxt, vLane16)], vmw, sw=sw, sg=sg)
        for g, c, t in pre: Sc.put(g, c, t)
        if "nosm" in self.exp: sm = []
        if sm:
            exps = [t for c, t in sm if c == 8]
            free_odd = [g for g in range(5, n, 2) if Sc.c[g] == 0 and g <= 53]
            assert len(free_odd) >= len(exps), (len(free_odd), len(exps))
            egap = [free_odd[(j * len(free_odd)) // len(exps)] for j in range(len(exps))]
            for t, g in zip(exps, egap): Sc.put(g, 8, t)
            ne = 0; g = 0
            for c, t in sm:
                if c == 8: ne += 1; continue
                g = max(g, egap[ne - 1] + 1)
                while Sc.c[g] + c > 8: g += 1
                Sc.put(g, c, t)
            lastsm = g
        else: lastsm = 0
        if extra:
            left = Sc.put_free(list(extra), start=2, stride=0)
            assert not left or True
        else: left = []
        g = max(lastsm + 1, n - 2 * len(tail) - 2)
        for c, t in tail:
            while Sc.c[g] + c > 8 and g < n - 1: g += 1
            Sc.put(g, c, t)
        before = {8 * k: ["s_waitcnt lgkmcnt(4)"] for k in range(8)}
        Sc.emit(E, mf, before)
        for c, t in left: E(t)

    def mask_block(self, par):
        E = self.E
        E(f"s_lshl_b32 s{sTmp}, s{sT}, 6")
        for qt in range(2): E(f"v_subrev_u32 v{vT0+qt}, s{sTmp}, v{DM(qt)}")
        E(f"v_mov_b32 v{vT0+2}, 0xff800000")
        k = 0
        items = [(qt, kb, r) for qt in range(2) for kb in range(4) for r in range(4)]
        masks = ["s[56:57]", "s[58:59]", "s[60:61]"]
        for i in range(len(items) + 2):
            if i < len(items):
                qt, kb, r = items[i]
                E(f"v_cmp_le_i32 {masks[i % 3]}, {16*kb+r}, v{vT0+qt}")
            if i >= 2:
                qt, kb, r = items[i - 2]
                E(f"v_cndmask_b32 v{S(par,kb,qt)+r}, v{vT0+2}, v{S(par,kb,qt)+r}, {masks[(i-2) % 3]}")
            if i >= len(items): E("s_nop 0")

    def xlane(self, op, r, t):
        E = self.E
        E(f"v_mov_b32 v{t}, v{r}\ns_nop 1")
        E(f"v_permlane16_swap_b32 v{r}, v{t}\ns_nop 1")
        E(f"{op} v{r}, v{r}, v{t}")
        E(f"v_mov_b32 v{t}, v{r}\ns_nop 1")
        E(f"v_permlane32_swap_b32 v{r}, v{t}\ns_nop 1")
        E(f"{op} v{r}, v{r}, v{t}")

    def rowmax_inlane(self, par, qt, r):
        E = self.E
        vals = [S(par, kb, qt) + i for kb in range(4) for i in range(4)]
        E(f"v_max3_f32 v{r}, v{vals[0]}, v{vals[1]}, v{vals[2]}")
        for i in range(3, 15, 2): E(f"v_max3_f32 v{r}, v{r}, v{vals[i]}, v{vals[i+1]}")
        E(f"v_max_f32 v{r}, v{r}, v{vals[15]}")
    def xlane2(self, op, r0, r1, t0, t1):
        E = self.E
        for sw in ("v_permlane16_swap_b32", "v_permlane32_swap_b32"):
            E(f"v_mov_b32 v{t0}, v{r0}\nv_mov_b32 v{t1}, v{r1}\ns_nop 0")
            E(f"{sw} v{r0}, v{t0}\n{sw} v{r1}, v{t1}\ns_nop 0")
            E(f"{op} v{r0}, v{r0}, v{t0}\n{op} v{r1}, v{r1}, v{t1}")

    def init_block(self):
        E = self.E
        for qt in range(2): self.rowmax_inlane(0, qt, M_(qt))
        self.xlane2("v_max_f32", M_(0), M_(1), vT0, vT0 + 1)
        for qt in range(2):
            E(f"v_max_f32 v{M_(qt)}, 0xf149f2ca, v{M_(qt)}")
            for r in range(4): E(f"v_sub_f32 v{NEGM(qt)+r}, 0, v{M_(qt)}")
            E(f"v_mov_b32 v{L_(qt)}, 0")
        for qt in range(2):
            for kb in range(4):
                for r in range(4): E(f"v_sub_f32 v{S(0,kb,qt)+r}, v{S(0,kb,qt)+r}, v{M_(qt)}")

    def slow_block(self, par):
        E = self.E
        E("s_nop 15")
        for qt in range(2):
            d = vT0 + qt
            self.rowmax_inlane(par, qt, d)
            self.xlane("v_max_f32", d, vT0 + 2)
            E(f"v_max_f32 v{d}, 0, v{d}")
            E(f"v_add_f32 v{M_(qt)}, v{M_(qt)}, v{d}")
            for r in range(4): E(f"v_sub_f32 v{NEGM(qt)+r}, v{NEGM(qt)+r}, v{d}")
            for pp in (par, par ^ 1):
                for kb in range(4):
                    for r in range(4): E(f"v_sub_f32 v{S(pp,kb,qt)+r}, v{S(pp,kb,qt)+r}, v{d}")
            E(f"v_sub_f32 v{vT0+3}, 0, v{d}")
            E(f"v_exp_f32 v{vT0+3}, v{vT0+3}\ns_nop 0")
            E(f"v_mul_f32 v{L_(qt)}, v{L_(qt)}, v{vT0+3}")
            for db in range(16):
                for r in range(4):
                    a = O(db, qt) + r
                    E(f"v_accvgpr_read_b32 v{vT0+4}, a{a}")
                    E(f"v_mul_f32 v{vT0+4}, v{vT0+4}, v{vT0+3}")
                    E(f"v_accvgpr_write_b32 a{a}, v{vT0+4}")
        for half in range(2):
            for c, t in self.sm_stream(par, half): E(t)
        E(f"s_nop 2")

    def check_tail(self):
        return [(4, f"v_max_f32 v{vT0}, v{LS(0)}, v{LS(1)}"), (4, f"v_cmp_lt_f32 vcc, {THR}, v{vT0}")]
    def check(self, par, computed):
        E = self.E
        sl = self.lab("slow"); back = self.lab("back")
        if not computed:
            for c, t in self.check_tail(): E(t)
        if "noslow" not in self.exp: E(f"s_cbranch_vccnz {sl}")
        E(f"{back}:")
        for qt in range(2): E(f"v_add_f32 v{L_(qt)}, v{L_(qt)}, v{LS(qt)}")
        self.rare.append(("slow", sl, back, par))

    def maybe_mask(self, par):
        E = self.E
        sk = self.lab("nomask")
        E(f"s_lshl_b32 s{sTmp}, s{sQB}, 1")
        E(f"s_cmp_lt_u32 s{sT}, s{sTmp}")
        E(f"s_cbranch_scc1 {sk}")
        self.mask_block(par)
        E(f"{sk}:")

    def item_loop(self, first=False):
        E = self.E; nm = self.name
        E(f"s_lshl_b32 s{sTmp}, s{sQB}, 7")
        E(f"s_lshl_b32 s{sTmp2}, s{sWave}, 5")
        E(f"s_add_u32 s{sTmp}, s{sTmp}, s{sTmp2}")
        E(f"v_and_b32 v{vT0}, 15, v0")
        E(f"v_bfe_u32 v{vT0+1}, v0, 4, 2")
        E(f"v_lshlrev_b32 v{vT0+1}, 2, v{vT0+1}")
        E(f"v_sub_u32 v{vT0}, v{vT0}, v{vT0+1}")
        E(f"v_add_u32 v{DM(0)}, s{sTmp}, v{vT0}")
        E(f"v_add_u32 v{DM(1)}, 16, v{DM(0)}")
        zero = [(4, f"v_accvgpr_write_b32 a{i}, 0") for i in range(128)]
        self.emit_phase(self.qk_mfmas(0, False), vRA, extra=zero, sw=True, first=first)
        if first:
            if "nopf" not in self.exp: self.prefetch_weights()
            E(f"s_branch {nm}_qk0done")
            return
        E(f"{nm}_qk0done:")
        self.ist(2)
        E("s_nop 7")
        self.maybe_mask(0)
        self.init_block()
        self.ist(3)
        self.emit_phase(self.qk_mfmas(1, True), vRB, sm=self.sm_stream(0, 0))
        for c, t in self.sm_stream(0, 1): E(t)
        self.check(0, False)
        E(f"s_add_u32 s{sT}, s{sT}, 1")
        E(f"s_lshr_b32 s{sI}, s{sN}, 1\ns_sub_u32 s{sI}, s{sI}, 1")
        if "mid" in self.exp: stamp_code(E, 1, True)
        self.ist(4)
        E(f"s_cmp_eq_u32 s{sI}, 0")
        E(f"s_cbranch_scc1 {nm}_last")
        E(f"{nm}_loop:")
        for par in (1, 0):
            if par == 0: self.maybe_mask(0)
            self.emit_phase(self.qk_mfmas(par ^ 1, True), vRA, sm=self.sm_stream(par, 0), sw=(par == 0), sg=(par == 1))
            pre = [(8, 0, f"s_add_u32 s{sT}, s{sT}, 1")]
            if par == 0: pre.append((12, 0, f"s_sub_u32 s{sI}, s{sI}, 1"))
            self.emit_phase(self.pv_mfmas(par ^ 1), vRB, sm=self.sm_stream(par, 1), tail=self.check_tail(), pre=pre)
            self.check(par, True)
        E(f"s_cmp_lg_u32 s{sI}, 0")
        E(f"s_cbranch_scc1 {nm}_loop")
        E(f"{nm}_last:")
        if "mid" in self.exp: stamp_code(E, 2, True)
        self.ist(5)
        self.maybe_mask(1)
        for c, t in self.sm_stream(1, 0): E(t)
        pre = [(7, 12, f"buffer_load_dword v{vFL}, v{vFL+1}, s[{sFL}:{sFL+3}], 0 offen sc1")]
        self.emit_phase(self.pv_mfmas(0), vRA, sm=self.sm_stream(1, 1), tail=self.check_tail(), pre=pre, sg=True)
        self.check(1, True)
        self.ist(6)
        nop_, fin_a, fin_b = self.lab("nopre"), self.lab("fina"), self.lab("finb")
        qn = self.lab("qnext")
        E(f"s_cmp_eq_u32 s{sItem}, 1")
        E(f"s_cbranch_scc0 {qn}")
        E(f"s_cmp_eq_u32 s{sHasP}, 0")
        E(f"s_cbranch_scc1 {nop_}")
        got, pl = self.lab("got"), self.lab("poll")
        E("s_waitcnt vmcnt(7)")
        to = self.lab("to")
        E(f"s_mov_b32 s73, 0")
        E(f"{pl}:")
        E(f"v_readfirstlane_b32 s{sTmp3}, v{vFL}")
        E(f"s_cmp_eq_u32 s{sTmp3}, s95" if self.fused else f"s_cmp_lg_u32 s{sTmp3}, 0")
        E(f"s_cbranch_scc1 {got}")
        E("s_sleep 2")
        E(f"buffer_load_dword v{vFL}, v{vFL+1}, s[{sFL}:{sFL+3}], 0 offen sc1")
        E("s_waitcnt vmcnt(0)")
        E(f"s_add_u32 s73, s73, 1\ns_cmp_lt_u32 s73, {SPIN_MAX}")
        E(f"s_cbranch_scc1 {pl}")
        E(f"v_mov_b32 v{vT0}, 0xbad2\nv_mov_b32 v{vT0+1}, {FLG_ERR}\nbuffer_store_dword v{vT0}, v{vT0+1}, s[{sFL}:{sFL+3}], 0 offen")
        E(f"{got}:")
        E(f"s_lshl_b32 s{sTmp}, s{sWave}, 15")
        for i in range(16):
            E(f"s_add_u32 s{sTmp2}, s{sTmp}, {i*1024}")
            E(f"buffer_load_dwordx4 v[{64+4*i}:{67+4*i}], v{vLane16}, s[{sPT}:{sPT+3}], s{sTmp2} offen sc1")
        E(f"s_add_u32 s{sTmp2}, s{sTmp}, 16384")
        E(f"buffer_load_dwordx4 v[{vPM}:{vPM+3}], v{vLane16}, s[{sPT}:{sPT+3}], s{sTmp2} offen sc1")
        E(f"s_mov_b32 s{sTmp3}, 1")
        E(f"s_branch {fin_a}")
        E(f"{qn}:")
        self.load_q(next_item=True)
        E(f"s_mov_b32 s{sTmp3}, 1")
        E(f"s_branch {fin_a}")
        E(f"{nop_}:")
        E(f"s_mov_b32 s{sTmp3}, 0")
        E(f"{fin_a}:")
        self.ist(7)
        w1, w2 = self.lab("w"), self.lab("w")
        vmw = f"s_cmp_eq_u32 s{sTmp3}, 0\ns_cbranch_scc1 {w1}\ns_waitcnt vmcnt(32)\ns_branch {w2}\n{w1}:\ns_waitcnt vmcnt(16)\n{w2}:"
        self.emit_phase(self.pv_mfmas(1), vRB, vmw=vmw)
        self.ist(8)
        E(f"{nm}_itemdone:")

    def prologue(self):
        E = self.E; nm = self.name
        if self.fused: E(f"{nm}_entry:")
        else:
            E("s_cmp_ge_u32 s2, 256")
            E(f"s_cbranch_scc1 {nm}_end")
        stamp_code(E, 0, self.stamps)
        E("s_load_dwordx2 s[4:5], s[0:1], 96")
        E("s_load_dwordx2 s[6:7], s[0:1], 40")
        E("s_load_dwordx4 s[64:67], s[0:1], 56")
        E("s_load_dwordx2 s[68:69], s[0:1], 72")
        E("s_load_dwordx2 s[78:79], s[0:1], 0")
        E("s_load_dwordx2 s[80:81], s[0:1], 80")
        E("s_and_b32 s45, s2, 7")
        E("s_lshr_b32 s46, s2, 3")
        E("s_and_b32 s47, s46, 1")
        E("s_lshl_b32 s45, s45, 1")
        E(f"s_add_u32 s{sH}, s45, s47")
        E("s_lshr_b32 s46, s46, 1")
        E(f"s_and_b32 s{sType}, s46, 1")
        E(f"s_lshr_b32 s{sPair}, s46, 1")
        E(f"v_lshrrev_b32 v{vT0}, 6, v0")
        E(f"v_and_b32 v1, 63, v0")
        E(f"v_readfirstlane_b32 s{sWave}, v{vT0}")
        E(f"v_lshlrev_b32 v{vLane16}, 4, v1")
        E(f"s_lshl_b32 s45, s{sPair}, 1")
        E(f"s_sub_u32 s46, {32-NA}, s45")
        E(f"s_add_u32 s47, s45, 2")
        E(f"s_cmp_eq_u32 s{sType}, 0")
        E(f"s_cselect_b32 s70, {NA}, s46")
        E(f"s_cselect_b32 s71, 0, {NA}")
        E(f"s_cselect_b32 s72, 0, s47")
        E(f"s_lshl_b32 s55, s70, 1")
        E(f"s_lshl_b32 s{sNKV}, s72, 1\ns_add_u32 s{sNKV}, s{sNKV}, s55")
        t = vT0
        E(f"v_cmp_gt_u32 vcc, s55, v1")
        E(f"v_subrev_u32 v{t+3}, s55, v1")
        E("s_nop 0")
        E(f"v_cndmask_b32 v{t}, v{t+3}, v1, vcc")
        E(f"v_mov_b32 v{t+4}, s72\nv_mov_b32 v{t+5}, s70")
        E(f"v_cndmask_b32 v{t+1}, v{t+4}, v{t+5}, vcc")
        E(f"v_mov_b32 v{t+4}, 0\nv_mov_b32 v{t+5}, s71")
        E(f"v_cndmask_b32 v{t+2}, v{t+4}, v{t+5}, vcc")
        E(f"v_min_u32 v{t+4}, 2, v{t+1}")
        E(f"v_cmp_lt_u32 s[56:57], v{t}, v{t+4}")
        E(f"v_lshlrev_b32 v{t+5}, 1, v{t+1}")
        E(f"v_subrev_u32 v{t+5}, 2, v{t+5}")
        E(f"v_cmp_lt_i32 s[58:59], v{t}, v{t+5}")
        E(f"v_and_b32 v{t+6}, 1, v{t}")
        E(f"v_cmp_eq_u32 s[60:61], 0, v{t+6}")
        E(f"v_sub_u32 v{t+7}, v{t}, v{t+1}")
        E(f"v_lshrrev_b32 v{t+8}, 1, v{t}")
        E(f"v_add_u32 v{t+9}, 1, v{t+8}")
        E(f"v_subrev_u32 v{t+8}, 1, v{t+8}")
        E(f"v_cndmask_b32 v{t+8}, v{t+8}, v{t+9}, s[60:61]")
        E(f"v_cndmask_b32 v{t+7}, v{t+7}, v{t+8}, s[58:59]")
        E(f"v_cndmask_b32 v{t+7}, v{t+7}, v{t}, s[56:57]")
        E(f"s_and_b64 s[58:59], s[58:59], s[60:61]")
        E(f"s_or_b64 s[58:59], s[58:59], s[56:57]")
        E(f"v_mov_b32 v{t+8}, {WS_V - WS_K}\nv_mov_b32 v{t+9}, 0")
        E(f"v_cndmask_b32 v{t+8}, v{t+8}, v{t+9}, s[58:59]")
        E(f"v_add_u32 v{t+7}, v{t+7}, v{t+2}")
        E(f"v_lshlrev_b32 v{t+7}, 15, v{t+7}")
        E(f"v_add_u32 v{t+7}, v{t+7}, v{t+8}")
        E(f"s_lshl_b32 s45, s{sH}, 20")
        E(f"v_add_u32 v{t+7}, s45, v{t+7}")
        E(f"v_subrev_u32 v{t+8}, s{sNKV}, v1")
        E(f"v_and_b32 v{t+9}, 3, v{t+8}\nv_mul_u32_u24 v{t+9}, {64*896}, v{t+9}")
        E(f"v_lshrrev_b32 v{t+10}, 2, v{t+8}\nv_mul_u32_u24 v{t+10}, 448, v{t+10}\nv_add_u32 v{t+9}, v{t+9}, v{t+10}")
        E(f"v_cmp_gt_u32 vcc, 8, v{t+8}\nv_mov_b32 v{t+10}, 0x7ff00000\ns_nop 0")
        E(f"v_cndmask_b32 v{t+9}, v{t+10}, v{t+9}, vcc")
        E(f"v_cmp_gt_u32 vcc, s{sNKV}, v1\ns_nop 1")
        E(f"v_cndmask_b32 v{vTab}, v{t+9}, v{t+7}, vcc")
        E(f"s_lshl_b32 s{sM0}, s{sWave}, 13")
        E(f"v_add_u32 v{vD}, s{sM0}, v{vLane16}")
        for p in range(1, 8): E(f"v_add_u32 v{vD+p}, {4096*(p>>2)}, v{vD}") if p >= 4 else E(f"v_mov_b32 v{vD+p}, v{vD}")
        E("s_waitcnt lgkmcnt(0)")
        def srd(s, lo, off, size):
            if isinstance(off, int) and off == 0: E(f"s_mov_b32 s{s}, s{lo}\ns_mov_b32 s{s+1}, s{lo+1}")
            else: E(f"s_add_u32 s{s}, s{lo}, {off}\ns_addc_u32 s{s+1}, s{lo+1}, 0")
            E(f"s_mov_b32 s{s+2}, {size}\ns_mov_b32 s{s+3}, 0x20000")
        srd(sDM, 4, WS_K, 32 << 20)
        E(f"s_lshl_b32 s45, s{sH}, 20")
        E(f"s_add_u32 s45, s45, {WS_Q}")
        srd(sQ, 4, "s45", 1 << 20)
        E(f"s_mov_b32 s{sN}, s70\ns_mov_b32 s{sT}, s71\ns_sub_u32 s{sQB}, 15, s{sPair}")
        E(f"s_xor_b32 s{sItem}, s{sType}, 1")
        E(f"s_cmp_lg_u32 s70, 0")
        sk = self.lab("n1ok")
        E(f"s_cbranch_scc1 {sk}")
        E(f"s_mov_b32 s{sN}, s72\ns_mov_b32 s{sT}, 0\ns_mov_b32 s{sQB}, s{sPair}\ns_mov_b32 s{sItem}, 1")
        E(f"{sk}:")
        E(f"s_cmp_lt_u32 s{sPair}, 7\ns_cselect_b32 s{sHasP}, 1, 0\ns_cmp_eq_u32 s{sType}, 0\ns_cselect_b32 s{sHasP}, s{sHasP}, 0")
        E(f"s_mov_b32 s{sSig}, 0\ns_mov_b32 s82, 1")
        if self.fused:
            self.wo_setup()
            self.publish_k1()
            if "nocpf" not in self.exp: code_prefetch_shared(E, f"{nm}_entry", 0xd600, nm + "_pf", 72, 74, 8, sWave, which=1)
            self.wait_k1()
        self.load_q()
        for c in range(4):
            E(f"v_readlane_b32 s{sOff}, v{vTab}, {c}")
            E(f"s_add_u32 m0, s{sM0}, {c*CH}")
            E("s_nop 3")
            for p in range(8):
                E(f"buffer_load_dwordx4 v{vD+p}, s[{sDM}:{sDM+3}], s{sOff} offen offset:{(p&3)*1024} lds")
                if p == 3: E("s_add_u32 m0, m0, 4096\ns_nop 0")
        if "nopf" not in self.exp: self.prefetch_weights()
        E(f"s_lshl_b32 s45, s{sH}, 3\ns_add_u32 s{sPI}, s45, s{sPair}")
        E(f"s_lshl_b32 s45, s{sPI}, 17")
        E(f"s_add_u32 s45, s45, {WS_PT}")
        srd(sPT, 4, "s45", 131072)
        E(f"s_mul_i32 s45, s{sH}, {128*14*1024}")
        E(f"s_add_u32 s45, s45, {WS_OP}")
        srd(sOP, 4, "s45", 128*14*1024)
        E(f"s_mul_i32 s45, s{sH}, {256*896}")
        srd(sWO, 6, "s45", 256*896)
        srd(sFL, 4, WS_FLG, FLG_BYTES)
        E(f"s_lshl_b32 s45, s{sPI}, 7\nv_mov_b32 v{vFL+1}, s45")
        E(f"s_mov_b32 s{sC}, 4")
        E(f"s_mov_b32 s{sWr}, {4*CH}")
        E(f"s_mov_b32 s{sRdN}, 0")
        E(f"v_mov_b32 v{vRA}, v{vLane16}")
        if not self.fused: self.wo_setup()
        E(f"s_waitcnt vmcnt({24 + (4 if 'nopf' not in self.exp else 0)})")
        E("s_barrier")
        for f in range(8): E(self.frag_read(32 + f, vRB, vRA))
        if "mid" not in self.exp: stamp_code(E, 1, self.stamps)

    def publish_k1(self):
        E = self.E; nm = self.name
        sk = f"{nm}_pubd"
        E(f"s_add_u32 s{sFL}, s4, {WS_FLG}\ns_addc_u32 s{sFL+1}, s5, 0\ns_mov_b32 s{sFL+2}, {FLG_BYTES}\ns_mov_b32 s{sFL+3}, 0x20000")
        E("s_waitcnt vmcnt(0)\ns_barrier")
        E(f"s_cmp_lg_u32 s{sWave}, 0\ns_cbranch_scc1 {sk}")
        E("v_mov_b32 v4, s90\nv_mov_b32 v5, s91\nv_cmp_eq_u32 vcc, 0, v0\nv_mov_b32 v6, s95\ns_nop 0\nv_cndmask_b32 v4, v5, v4, vcc")
        E(f"s_mov_b64 exec, 3\nbuffer_store_dword v6, v4, s[{sFL}:{sFL+3}], 0 offen sc1\ns_mov_b64 exec, -1")
        E(f"{sk}:")

    def wait_k1(self):
        E = self.E; nm = self.name
        sk, pl = f"{nm}_k1ok", f"{nm}_k1poll"
        E(f"s_add_u32 s{sFL}, s4, {WS_FLG}\ns_addc_u32 s{sFL+1}, s5, 0\ns_mov_b32 s{sFL+2}, {FLG_BYTES}\ns_mov_b32 s{sFL+3}, 0x20000")
        E(f"s_cmp_lg_u32 s{sWave}, 0\ns_cbranch_scc1 {sk}")
        E(f"s_lshl_b32 s45, s{sH}, 7\ns_add_u32 s45, s45, {HEAD_OFF}\nv_lshlrev_b32 v3, 2, v0\nv_add_u32 v3, s45, v3\ns_mov_b32 s46, 0")
        E("s_mov_b32 exec_hi, 0")
        E(f"{pl}:")
        E(f"buffer_load_dword v2, v3, s[{sFL}:{sFL+3}], 0 offen sc1")
        E("s_waitcnt vmcnt(0)")
        E("v_cmp_eq_u32 vcc, s95, v2\ns_nop 0")
        E(f"s_cmp_eq_u32 vcc_lo, -1\ns_cbranch_scc1 {pl}_ok")
        E("s_sleep 1")
        E(f"s_add_u32 s46, s46, 1\ns_cmp_lt_u32 s46, {SPIN_MAX}\ns_cbranch_scc1 {pl}")
        E(f"v_mov_b32 v2, 0xbad7\nv_mov_b32 v3, {FLG_ERR}\nbuffer_store_dword v2, v3, s[{sFL}:{sFL+3}], 0 offen")
        E(f"{pl}_ok:\ns_mov_b64 exec, -1")
        E(f"{sk}:")
        E("s_barrier")

    def load_q(self, next_item=False):
        E = self.E
        qb = sPair if next_item else sQB
        E(f"s_lshl_b32 s{sTmp}, s{qb}, 3\ns_lshl_b32 s{sTmp2}, s{sWave}, 1\ns_add_u32 s{sTmp}, s{sTmp}, s{sTmp2}\ns_lshl_b32 s{sTmp}, s{sTmp}, 13")
        for qt in range(2):
            for hh in range(2):
                E(f"s_add_u32 s{sTmp2}, s{sTmp}, {qt*8192 + hh*4096}")
                for d in range(4):
                    E(f"buffer_load_dwordx4 {a4(Q(qt, hh*4+d))}, v{vLane16}, s[{sQ}:{sQ+3}], s{sTmp2} offen offset:{d*1024}")

    def wo_setup(self):
        E = self.E
        t = vT0
        for p in range(8):
            E(f"s_lshl_b32 s{sTmp}, s{sWave}, 9\ns_add_u32 s{sTmp}, s{sTmp}, {64*p}")
            E(f"v_add_u32 v{t}, s{sTmp}, v1")
            E(f"v_mul_u32_u24 v{t+1}, 9363, v{t}\nv_lshrrev_b32 v{t+1}, 18, v{t+1}")
            E(f"v_mul_u32_u24 v{t+2}, 28, v{t+1}\nv_sub_u32 v{t+3}, v{t}, v{t+2}")
            E(f"v_bfe_u32 v{t+2}, v{t+1}, 2, 1\nv_lshlrev_b32 v{t+2}, 1, v{t+2}\nv_xor_b32 v{t+3}, v{t+3}, v{t+2}")
            E(f"v_lshlrev_b32 v{t+3}, 4, v{t+3}\nv_mul_u32_u24 v{t+1}, 896, v{t+1}\nv_add_u32 v{t+3}, v{t+3}, v{t+1}")
            E(f"v_cmp_gt_u32 vcc, 1792, v{t}\nv_subrev_u32 v{t+3}, {(p&3)*1024}, v{t+3}\nv_mov_b32 v{t+2}, 0x7ff00000")
            E(f"v_add_u32 v{t+3}, 4096, v{t+3}")
            E(f"v_cndmask_b32 v{vW+p}, v{t+2}, v{t+3}, vcc")
        E(f"v_bfe_u32 v{t}, v1, 4, 2\nv_lshlrev_b32 v{t+1}, 2, v{t}\nv_bfe_u32 v{t+2}, v1, 2, 2\nv_add_u32 v{t+1}, v{t+1}, v{t+2}")
        E(f"v_mul_u32_u24 v{t+1}, 448, v{t+1}\nv_and_b32 v{t+2}, 3, v1\nv_lshlrev_b32 v{t+2}, 3, v{t+2}\nv_add_u32 v{t+1}, v{t+1}, v{t+2}")
        E(f"v_and_b32 v{t}, 1, v{t}\nv_lshlrev_b32 v{t}, 5, v{t}")
        E(f"v_add_u32 v{vWA}, v{t+1}, v{t}\nv_sub_u32 v{vWA+1}, v{t+1}, v{t}\nv_add_u32 v{vWA+1}, 32, v{vWA+1}")

    def rare_blocks(self):
        E = self.E
        for r in self.rare:
            if r[0] == "slow":
                E(f"{r[1]}:"); self.slow_block(r[3]); E(f"s_branch {r[2]}")
            elif r[0] == "switch":
                E(f"{r[1]}:")
                for p in range(8): E(f"v_mov_b32 v{vD+p}, v{vW+p}")
                E(f"s_sub_u32 s{sDM}, s{sWO}, 4096\ns_subb_u32 s{sDM+1}, s{sWO+1}, 0\ns_add_u32 s{sDM+2}, s{sWO+2}, 4096\ns_mov_b32 s{sDM+3}, 0x20000")
                E(f"s_branch {r[2]}")
            elif r[0] == "signal":
                sk = self.lab("nosig")
                E(f"{r[1]}:")
                E(f"s_mov_b32 s{sSig}, 0")
                E(f"s_cmp_lg_u32 s{sWave}, 0\ns_cbranch_scc1 {sk}")
                E(f"v_mov_b32 v254, s95" if self.fused else f"v_mov_b32 v254, 1")
                E("s_mov_b64 exec, 1")
                E(f"buffer_store_dword v254, v{vFL+1}, s[{sFL}:{sFL+3}], 0 offen sc1")
                E("s_mov_b64 exec, -1")
                E(f"{sk}:\ns_branch {r[2]}")
        self.rare = []

    def finish(self):
        E = self.E; nm = self.name
        E("s_nop 7")
        self.xlane2("v_add_f32", L_(0), L_(1), vT0, vT0 + 1)
        E(f"s_cmp_eq_u32 s{sItem}, 1")
        E(f"s_cbranch_scc1 {nm}_final")
        E(f"s_lshl_b32 s{sTmp}, s{sWave}, 15")
        for i in range(16):
            t = vT0 + (i % 2) * 12
            qt = i >> 3; s = i & 7
            src = [O(2*s, qt) + r for r in range(4)] + [O(2*s+1, qt) + r for r in range(4)]
            for r in range(8): E(f"v_accvgpr_read_b32 v{t+r}, a{src[r]}")
            for r in range(4): E(f"v_cvt_pk_bf16_f32 v{t+8+r}, v{t+2*r}, v{t+2*r+1}")
            E(f"s_add_u32 s{sTmp2}, s{sTmp}, {i*1024}")
            E(f"buffer_store_dwordx4 v[{t+8}:{t+11}], v{vLane16}, s[{sPT}:{sPT+3}], s{sTmp2} offen sc1")
        E(f"v_mov_b32 v{vPM}, v{M_(0)}\nv_mov_b32 v{vPM+1}, v{M_(1)}\nv_mov_b32 v{vPM+2}, v{L_(0)}\nv_mov_b32 v{vPM+3}, v{L_(1)}")
        E(f"s_add_u32 s{sTmp2}, s{sTmp}, 16384")
        E(f"buffer_store_dwordx4 v[{vPM}:{vPM+3}], v{vLane16}, s[{sPT}:{sPT+3}], s{sTmp2} offen sc1")
        E(f"s_lshl_b32 s{sTmp}, s{sPair}, 1\ns_add_u32 s{sN}, s{sTmp}, 2\ns_mov_b32 s{sT}, 0\ns_mov_b32 s{sQB}, s{sPair}\ns_mov_b32 s{sItem}, 1")
        E(f"s_mov_b32 s{sSig}, 1")
        E("s_waitcnt vmcnt(25)")
        E(f"s_branch {nm}_item")
        E(f"{nm}_final:")
        E(f"s_cmp_eq_u32 s{sHasP}, 0")
        E(f"s_cbranch_scc1 {nm}_plain")
        E("s_waitcnt vmcnt(8)")
        for qt in range(2):
            mB, lB = vPM + qt, vPM + 2 + qt
            ms, fA, fB = vT0 + 12, vT0 + 13, vT0 + 14
            E(f"v_max_f32 v{ms}, v{M_(qt)}, v{mB}")
            E(f"v_sub_f32 v{fA}, v{M_(qt)}, v{ms}\nv_sub_f32 v{fB}, v{mB}, v{ms}")
            E(f"v_exp_f32 v{fA}, v{fA}\nv_exp_f32 v{fB}, v{fB}\ns_nop 0")
            E(f"v_mul_f32 v{ms}, v{L_(qt)}, v{fA}\nv_fmac_f32 v{ms}, v{lB}, v{fB}")
            E(f"v_rcp_f32 v{ms}, v{ms}\ns_nop 0")
            E(f"v_mul_f32 v{vT0+8+qt}, v{fA}, v{ms}\nv_mul_f32 v{vT0+10+qt}, v{fB}, v{ms}")
        self.oproj_first("A")
        E(f"s_branch {nm}_oproj3")
        E(f"{nm}_plain:")
        for qt in range(2): E(f"v_rcp_f32 v{vT0+8+qt}, v{L_(qt)}")
        E("s_nop 0")
        self.oproj_first("P")
        E(f"{nm}_oproj3:")
        self.oproj_rest()

    def conv_unit(self, mode, qt, s, n):
        src = [O(2*s, qt) + r for r in range(4)] + [O(2*s+1, qt) + r for r in range(4)]
        t = 10 + (n % 2) * 12; c = 64 + 4 * (qt * 8 + s)
        u = [f"v_accvgpr_read_b32 v{t+r}, a{src[r]}" for r in range(8)]
        u += [f"v_mul_f32 v{t+r}, v{t+r}, v{vT0+8+qt}" for r in range(8)]
        for r in range(4):
            if mode == "A":
                u += [f"v_lshlrev_b32 v{t+8}, 16, v{c+r}", f"v_and_b32 v{t+9}, 0xffff0000, v{c+r}",
                      f"v_fmac_f32 v{t+2*r}, v{t+8}, v{vT0+10+qt}", f"v_fmac_f32 v{t+2*r+1}, v{t+9}, v{vT0+10+qt}"]
            u.append(f"v_cvt_pk_bf16_f32 v{c+r}, v{t+2*r}, v{t+2*r+1}")
        return [(4, x) for x in u]

    def oproj_first(self, mode):
        self.oproj(mode)
    def oproj_rest(self):
        self.oproj(None)
    def oproj(self, mode):
        E = self.E; nm = self.name
        C = lambda qt, s: 64 + (qt * 8 + s) * 4
        WFR = lambda f: 128 + (f % 16) * 4
        OUT = lambda ps, mb, qt: ((128 if ps == 0 else 0) + (mb * 2 + qt) * 4)
        AD = lambda k, par: 242 + (k & 1) * 2 + par
        D = 6
        def rd(k, f):
            sl, mb = divmod(f, 14)
            fr = WFR(k * 28 + f)
            base = AD(k, mb & 1); off = sl * 14336 + (mb & ~1) * 32
            return [f"ds_read_b64_tr_b16 v[{fr}:{fr+1}], v{base} offset:{off}",
                    f"ds_read_b64_tr_b16 v[{fr+2}:{fr+3}], v{base} offset:{off + 7168}"]
        if mode:
            if "nocpf" not in self.exp: code_prefetch_shared(E, "tl_start", 0x5000, nm + "_t" + mode, 72, 74, 8, sWave)
            if "mid" not in self.exp and "ist" not in self.exp: stamp_code(E, 3, self.stamps)
            for par in range(2): E(f"v_add_u32 v{AD(0,par)}, s{sRdN}, v{vWA+par}")
            for f in range(D):
                for l in rd(0, f): E(l)
            nn = 0
            for s_ in range(2):
                for qt in range(2):
                    for c_, t_ in self.conv_unit(mode, qt, s_, nn): E(t_)
                    nn += 1
            E("s_nop 1")
        if mode: E(f"s_lshl_b32 s{sTmp}, s{sQB}, 3\ns_lshl_b32 s{sTmp2}, s{sWave}, 1\ns_add_u32 s{sTmp}, s{sTmp}, s{sTmp2}\ns_mul_i32 s70, s{sTmp}, {14*1024}")
        def units(ps):
            us = []; n = 0
            for qt in range(2):
                for ms in range(7):
                    t = 168 + (n % 2) * 12 if False else 200 + (n % 2) * 12; n += 1
                    src = [OUT(ps, 2*ms, qt) + r for r in range(4)] + [OUT(ps, 2*ms+1, qt) + r for r in range(4)]
                    u = [(4, f"v_accvgpr_read_b32 v{t+r}, a{src[r]}") for r in range(8)]
                    u += [(4, f"v_cvt_pk_bf16_f32 v{t+8+r}, v{t+2*r}, v{t+2*r+1}") for r in range(4)]
                    u += [(12, f"s_add_u32 s71, s70, {(qt*14 + ps*7 + ms)*1024}\nbuffer_store_dwordx4 v[{t+8}:{t+11}], v{vLane16}, s[{sOP}:{sOP+3}], s71 offen{' sc1' if 'wt' in self.exp else ''}")]
                    us.append(u)
            return us
        pend = []
        nst = 0
        hist = []
        log = [("D", k) for k in range(4) for _ in range(8)]
        if not mode: log += [("D", k) for k in range(4, 7) for _ in range(8)]
        for k in (range(3) if mode else range(3, 8)):
            ps, sp = divmod(k, 4)
            mf = []
            for sl in range(2):
                s = 2 * sp + sl
                for mb in range(14):
                    for qt in range(2):
                        d = a4(OUT(ps, mb, qt)); c = "0" if s == 0 else d
                        mf.append(f"v_mfma_f32_16x16x32_bf16 {d}, {v4(WFR(k*28 + sl*14 + mb))}, {v4(C(qt, s))}, {c}")
            n = len(mf)
            Sc = Sched(n)
            for f in range(28):
                ff = f + D
                if ff < 28: r = rd(k, ff)
                elif k + 1 < 8: r = rd(k + 1, ff - 28)
                else: continue
                Sc.put(2 * f, 4, r[0]); Sc.put(2 * f + 1, 4, r[1])
            if k + 1 < 8:
                idx = max(i for i, t in enumerate(log) if t == ("D", k + 1))
                w = len(log) - 1 - idx
                nxt = [(AD(k + 1, 0), vWA), (AD(k + 1, 1), vWA + 1)]
                if k + 4 < 8:
                    self.head_items(Sc, nxt, w, dma_gaps=[9, 14, 19, 24, 29, 34, 39, 43])
                    order_d = [(g, ("D", k + 4)) for g in [9, 14, 19, 24, 29, 34, 39, 43]]
                else:
                    Sc.put(1, 0, f"s_waitcnt vmcnt({w})\ns_barrier")
                    Sc.put(3, 0, f"s_add_u32 s{sRdN}, s{sRdN}, {CH}\ns_cmp_eq_u32 s{sRdN}, {NS*CH}\ns_cselect_b32 s{sRdN}, 0, s{sRdN}")
                    Sc.put(3, 4, f"v_add_u32 v{nxt[0][0]}, s{sRdN}, v{nxt[0][1]}"); Sc.put(4, 4, f"v_add_u32 v{nxt[1][0]}, s{sRdN}, v{nxt[1][1]}")
                    order_d = []
            else: order_d = []
            if k == 4: pend = [x for u in units(0) for x in u]
            if mode:
                pend = []
                for s_ in (2 * k + 2, 2 * k + 3):
                    for qt in range(2):
                        pend += self.conv_unit(mode, qt, s_, nn); nn += 1
            order_s = []
            if pend:
                cur = 6; j = 0; nun = 0
                while j < len(pend):
                    c, t = pend[j]; g = cur
                    while g < n and Sc.c[g] + (c if c < 12 else 4) > (8 if c < 12 else 8): g += 1
                    if g >= n - (2 if mode else 0): break
                    Sc.put(g, c, t); cur = g; j += 1
                    if c == 12:
                        order_s.append((g, ("S", 0))); nun += 1; cur = g + 1
                        if nun >= 4: break
                pend = pend[j:]
            before = {}
            for i in range(0, n, 4):
                f = i // 2
                rem = D - 2
                if k == 7: rem = min(D - 2, 26 - f)
                before[i] = [f"s_waitcnt lgkmcnt({2*max(rem,0)})"]
            Sc.emit(E, mf, before)
            for g, tg in sorted(order_d + order_s): log.append(tg)
            if mode:
                for c, t in pend: E(t)
                pend = []
                E("s_nop 1")
        if mode: return
        for c, t in pend: E(t)
        if "mid" not in self.exp and "ist" not in self.exp: stamp_code(E, 4, self.stamps)
        E("s_nop 7")
        fill = list(getattr(self, "weave", []))
        un = units(1)
        per = (len(fill) + len(un) - 1) // len(un)
        for u in un:
            for c, t in u: E(t)
            k = min(per, len(fill))
            while k < len(fill) and fill[k].startswith(("s_addc", "s_cselect", "s_subb", "s_cbranch")): k += 1
            for l in fill[:k]: E(l)
            fill = fill[k:]
        for l in fill: E(l)

    def tail_prefetch(self):
        E = self.E
        E(f"s_lshl_b32 s{sTmp}, s2, 2\ns_add_u32 s{sTmp}, s{sTmp}, s{sWave}\ns_mul_i32 s{sTmp}, s{sTmp}, 1568")
        E("v_min_u32 v2, 24, v1\nv_lshlrev_b32 v2, 6, v2")
        for i, lo in enumerate((64, 66, 68)):
            E(f"s_mov_b32 s56, s{lo}\ns_mov_b32 s57, s{lo+1}\ns_mov_b32 s58, {448*1792*2}\ns_mov_b32 s59, 0x20000")
            E(f"buffer_load_dword v{3+i}, v2, s[56:59], s{sTmp} offen")

    def prefetch_weights(self):
        E = self.E
        self.tail_prefetch()
        E(f"s_mov_b32 s56, s6\ns_mov_b32 s57, s7\ns_mov_b32 s58, {16*256*896}\ns_mov_b32 s59, 0x20000")
        E(f"s_lshl_b32 s45, s2, 2\ns_add_u32 s45, s45, s{sWave}\ns_mul_i32 s45, s45, 3584")
        E("v_lshlrev_b32 v2, 6, v1\nbuffer_load_dword v3, v2, s[56:59], s45 offen")

    def gen(self):
        E = self.E; nm = self.name
        self.prologue()
        E(f"{nm}_item:")
        self.item_loop()
        if "ist" in self.exp: self.stamps_tail = False
        if "mid" not in self.exp and "ist" not in self.exp: stamp_code(E, 2, self.stamps)
        self.weave, t2, c1 = tail.tail_setup()
        self.finish()
        if "notail" not in self.exp:
            tail.NONCE[0] = self.fused
            tail.gen_tail(E, nm, lambda i: stamp_code(E, i, self.stamps and "ist" not in self.exp), t2, c1)
        if self.stamps:
            stamp_code(E, 11, True)
            E("s_waitcnt vmcnt(0)")
            stamp_code(E, 12, True)
            stamp_dump(E, 13, nm, 4)
        E("s_endpgm")
        E("tl_end:")
        self.rare_blocks()
        E(f"{nm}_end:")
        E("s_endpgm")
        return E.text()

def gen_k2(name="k2_kernel", **kw):
    return K2(name, **kw).gen()
```

```python
import sys
from asmlib import *
import k0, k1, k2, t1, t2, t3
DOC = """; Kernarg layout (104 bytes, ptrs only, base s[0:1]):
"""
HDR = '.amdgcn_target "amdgcn-amd-amdhsa--gfx950"\n.text\n'
ABBR = [("v_mfma_f32_16x16x32_bf16", "MF"), ("ds_read_b64_tr_b16", "DT"), ("ds_read_b128", "DR"), ("buffer_load_dwordx4", "BL"),
        ("buffer_store_dwordx4", "BS"), ("v_accvgpr_read_b32", "AR"), ("v_accvgpr_write_b32", "AW"), ("v_cvt_pk_bf16_f32", "CV"),
        ("v_exp_f32", "EX"), ("v_add_f32", "FA"), ("v_mul_f32", "FM"), ("s_waitcnt", "WT"), ("v_cndmask_b32", "CM"), ("s_add_u32", "SA"), ("v_sub_f32", "FS")]
def compact(t):
    lines = t.split("\n")
    out = []; started = False
    for l in lines:
        st = l.strip()
        if st.startswith(".amdgcn_target") and not started:
            out.append(st); started = True
            for full, ab in ABBR:
                out.append(f".macro {ab} a:vararg\n{full} \\a\n.endm")
            continue
        if not started or st.startswith("."):
            out.append(l); continue
        p = st.split(None, 1)
        if len(p) == 2:
            for full, ab in ABBR:
                if p[0] == full: st = ab + " " + p[1].replace(", ", ","); break
            else: st = p[0] + " " + p[1].replace(", ", ",")
        out.append(st)
    return "\n".join(out)
def make(kernels, path):
    t = DOC
    for (name, grid, block, lds, body, vgpr, acc) in kernels:
        t += f"; @launch kernel={name} grid=({grid},1,1) block=({block},1,1) lds={lds}\n"
    t += HDR
    seen = set()
    for (name, grid, block, lds, body, vgpr, acc) in kernels:
        if name in seen: continue
        seen.add(name)
        t += kernel_head(name) + body + kernel_desc(name, vgpr, acc)
    open(path, "w").write(compact(t))
K0 = lambda: ("k0_kernel", 256, 256, 0, k0.gen_k0(), 32, 32)
K1 = lambda **kw: ("k1_kernel", 256, 256, 163840, k1.gen_k1(**kw), 512, 256)
K2 = lambda **kw: ("k2_kernel", 256, 256, 163840, k2.gen_k2(**kw), 512, 256)
T1 = lambda **kw: ("t1_kernel", 256, 512, 1024, t1.gen_t1(**kw), 128, 128)
T2 = lambda **kw: ("t2_kernel", 224, 256, 147456, t2.gen_t2(**kw), 384, 256)
T3 = lambda **kw: ("t3_kernel", 224, 256, 131072, t3.gen_t3(**kw), 320, 256)
NX = {"k1": ("k2_kernel", 0xd600)}
def pipeline(path, exp="", stamps=False, cpf=True):
    ks = []
    for i, (f, key) in enumerate([(K1, "k1"), (K2, None)]):
        k1.STAMP_OFF[0] = i * 65536
        kw = dict(stamps=stamps, exp=exp)
        if key and cpf: kw["nxt"] = NX[key]
        ks.append(f(**kw))
    k1.STAMP_OFF[0] = 0
    make(ks, path)
KN = "sequential_preLN__compressed_kv_cla__glu_gated_reglu__prompt_kernel"
def fused(path, exp="", stamps=False):
    b1 = k1.gen_k1(name="k1", stamps=stamps, exp=exp, nxt=("k2_entry", 0xd600), fused="k2_entry")
    b2 = k2.gen_k2(name="k2", stamps=stamps, exp=exp, fused=True)
    body = "k1:\n" + b1 + b2
    t = f"; @launch grid=(256,1,1) block=(256,1,1) lds=163840\n" + HDR + kernel_head(KN) + body + kernel_desc(KN, 512, 256)
    open(path, "w").write(compact(t))
BASE = "wt_pf18_ntw_ntq_ntql_cptop_nolast"
if __name__ == "__main__":
    pipeline("full2.s", BASE)
    pipeline("st2.s", BASE, stamps=True)
    pipeline("st2_late.s", BASE + "_late", stamps=True)
    pipeline("full_late.s", BASE + "_late")
```

```python
from asmlib import *
from ws import *
import k0

FUSED_STAMPS = [False]
def stamp_code(E, i, on):
    if on is True:
        if FUSED_STAMPS[0]: E(f"s_memtime s[96:97]\ns_memrealtime s[98:99]\ns_waitcnt lgkmcnt(0)\nv_writelane_b32 v252, s96, {16+i}\nv_writelane_b32 v253, s98, {16+i}")
        else: E(f"s_memtime s[{76+4*i}:{77+4*i}]\ns_memrealtime s[{78+4*i}:{79+4*i}]")

STAMP_OFF = [0]
SPIN_MAX = 0x40000
def stamp_dump(E, n, lab, sws=6):
    E("s_waitcnt vmcnt(0) lgkmcnt(0)")
    E(f"s_mov_b32 s60, s{sws}\ns_mov_b32 s61, s{sws+1}\ns_mov_b32 s62, 0x10000000\ns_mov_b32 s63, 0x20000")
    E(f"s_lshl_b32 s64, s2, 6\ns_add_u32 s64, s64, {WS_DBG + STAMP_OFF[0]}")
    E("v_cmp_eq_u32 vcc, 0, v0\ns_and_saveexec_b64 s[66:67], vcc\ns_cbranch_execz " + f"{lab}_stsk")
    for i in range(n):
        E(f"v_mov_b32 v4, s{76+4*i}\nv_mov_b32 v5, s{78+4*i}\nv_mov_b32 v6, {8*i}")
        E("buffer_store_dwordx2 v[4:5], v6, s[60:63], s64 offen")
        E("s_nop 1")
    E(f"{lab}_stsk:\ns_mov_b64 exec, s[66:67]")

def gen_k1(name="k1_kernel", stamps=False, exp="", nxt=None, fused=None):
    FUSED_STAMPS[0] = bool(fused)
    E = Emit()
    XSLOT = 32768; WBASE = 98304; WSLOT = 16384
    XF = lambda st, i: 64 + st * 32 + i * 4
    WF = lambda st, j: 128 + st * 32 + j * 4
    XA = lambda t, seg: 10 + t * 2 + seg
    WA = lambda j: 14 + j
    XD = lambda p: 22 + p
    WD = lambda p: 26 + p
    XQ = lambda p: 30 + p
    WA2 = lambda j: 40 + j
    sX, sW, sO, sXq, sWq, sOq = 8, 12, 16, 36, 40, 44
    sWave, sXk, sWk, sM0X, sM0W, sSel, sH, sMB = 20, 21, 22, 23, 24, 26, 27, 28
    sXqk, sWqk, sHq, sRB = 48, 49, 50, 51
    NKV, NQ = 32, 14
    SC = ' sc1' if 'wt' in exp else ''
    GLN = 8 if 'g0' not in exp else 0
    if 'lnpro' in exp: GLN = -2
    PL = 8
    if 'bst' in exp: stamps = 'dumponly'
    NG = NKV + NQ
    if "noq" in exp: NG = NKV
    E("s_cmp_ge_u32 s2, 256")
    E(f"s_cbranch_scc1 {name}_end")
    stamp_code(E, 0, stamps)
    E("s_load_dwordx4 s[4:7], s[0:1], 8")
    E("s_load_dwordx4 s[32:35], s[0:1], 24")
    E("s_load_dwordx2 s[52:53], s[0:1], 96")
    E("s_load_dwordx2 s[54:55], s[0:1], 0")
    E("s_load_dwordx2 s[56:57], s[0:1], 88")
    E("s_load_dwordx2 s[58:59], s[0:1], 40")
    E("s_and_b32 s29, s2, 7")
    E("s_lshr_b32 s30, s2, 3")
    E(f"s_lshr_b32 s{sMB}, s30, 2")
    E("s_and_b32 s31, s30, 3")
    E("s_lshl_b32 s25, s29, 2")
    E("s_add_u32 s25, s25, s31")
    E(f"s_lshr_b32 s{sSel}, s25, 4")
    E(f"s_and_b32 s{sH}, s25, 15")
    NCP = 0
    E("s_and_b32 s31, s30, 1")
    E("s_lshl_b32 s29, s29, 1")
    E(f"s_add_u32 s{sHq}, s29, s31")
    E(f"s_lshr_b32 s{sRB}, s2, 4")
    LB = 192
    k0.ln_addr(E, LB)
    E("v_and_b32 v1, 63, v0")
    E("v_lshrrev_b32 v2, 6, v0")
    E("s_nop 0")
    E(f"v_readfirstlane_b32 s{sWave}, v2")
    E("v_lshrrev_b32 v3, 3, v1")
    E("v_lshlrev_b32 v4, 5, v2")
    E("v_add_u32 v3, v3, v4")
    E("v_and_b32 v4, 7, v1")
    E("v_lshrrev_b32 v5, 4, v1")
    E("v_xor_b32 v4, v4, v5")
    E("v_xor_b32 v5, 4, v4")
    E("v_lshlrev_b32 v4, 4, v4")
    E("v_lshlrev_b32 v5, 4, v5")
    E("v_lshlrev_b32 v6, 11, v3")
    E("v_mul_u32_u24 v7, 896, v3")
    for p in range(4):
        c = "v4" if p % 2 == 0 else "v5"
        E(f"v_add_u32 v8, v6, {c}")
        E(f"v_add_u32 v{XD(p)}, {p*(8*2048-1024)}, v8")
        E(f"v_add_u32 v8, v7, {c}")
        E(f"v_add_u32 v{XQ(p)}, {p*(8*896-1024)}, v8")
    E("v_lshrrev_b32 v3, 5, v1")
    E("v_lshlrev_b32 v4, 3, v2")
    E("v_add_u32 v4, v4, v3")
    E("v_lshlrev_b32 v4, 13, v4")
    E("v_and_b32 v5, 31, v1")
    E("v_and_b32 v7, 1, v2")
    E("v_lshlrev_b32 v7, 3, v7")
    E("v_xor_b32 v5, v5, v7")
    for p in range(4):
        E(f"v_add_u32 v6, {2*p}, v3")
        E("v_and_b32 v6, 3, v6")
        E("v_lshlrev_b32 v6, 1, v6")
        E("v_xor_b32 v6, v6, v5")
        E("v_lshlrev_b32 v6, 4, v6")
        E("v_add_u32 v6, v6, v4")
        E(f"v_add_u32 v{WD(p)}, {p*(2*8192-1024)}, v6")
    W3 = "w3" in exp
    X3 = lambda p: 50 + p
    WW3 = lambda p: 56 + p
    sM0N, sMsk, sXo0, sXo1, sWl = 24, 25, 48, 49, 3
    LX, LW = 2, 4
    if W3:
        E("s_lshr_b32 s31, s2, 3\ns_and_b32 s31, s31, 3")
        E(f"s_cmp_lt_u32 s{sWave}, 3")
        E(f"s_cselect_b32 s{sMsk}, -1, 0")
        E(f"s_mul_i32 s29, s{sWave}, 6144\ns_cmp_lt_u32 s{sWave}, 3\ns_cselect_b32 s{sM0N}, s29, 0x30000")
        E(f"s_cselect_b32 s{sXo0}, 0, {LX*128}")
        E(f"s_mov_b32 s29, {128*2048}\ns_mov_b32 s30, {32*2048 + LX*128}\ns_cselect_b32 s{sXo1}, s29, s30")
        E(f"s_cselect_b32 s{sWl}, 0, {LW*32*8192}")
        E(f"s_mul_i32 s29, s{sWave}, 48\ns_lshl_b32 s30, s31, 6\ns_cmp_lt_u32 s{sWave}, 3\ns_cselect_b32 s29, s29, s30")
        E("v_lshrrev_b32 v3, 3, v1\nv_add_u32 v3, s29, v3\nv_lshlrev_b32 v6, 11, v3")
        E("v_and_b32 v4, 7, v1\nv_lshrrev_b32 v5, 4, v1\nv_xor_b32 v4, v4, v5\nv_xor_b32 v5, 4, v4\nv_lshlrev_b32 v4, 4, v4\nv_lshlrev_b32 v5, 4, v5")
        E(f"s_cmp_lt_u32 s{sWave}, 2\ns_cselect_b32 s30, 0, 0x7ff00000")
        for p in range(6):
            c = "v4" if p % 2 == 0 else "v5"
            E(f"v_add_u32 v8, v6, {c}\nv_add_u32 v{X3(p)}, {p*8*2048 - (p&3)*1024}, v8")
            if p >= 4: E(f"v_add_u32 v{X3(p)}, s30, v{X3(p)}")
        E(f"s_mul_i32 s29, s{sWave}, 12\ns_lshl_b32 s30, s{sMB}, 2\ns_cmp_lt_u32 s{sWave}, 3\ns_cselect_b32 s29, s29, s30")
        E("v_lshrrev_b32 v3, 5, v1\nv_add_u32 v3, s29, v3\nv_and_b32 v5, 31, v1")
        for p in range(6):
            E(f"v_add_u32 v4, {2*p}, v3")
            E("v_and_b32 v6, 3, v4\nv_bfe_u32 v7, v4, 3, 1\nv_lshlrev_b32 v7, 2, v7\nv_or_b32 v6, v6, v7\nv_lshlrev_b32 v6, 1, v6\nv_xor_b32 v6, v6, v5\nv_lshlrev_b32 v6, 4, v6")
            E(f"v_lshlrev_b32 v4, 13, v4\nv_add_u32 v4, v4, v6\nv_subrev_u32 v{WW3(p)}, {(p&3)*1024}, v4")
            if p >= 2:
                lim = 3 if p < 4 else 2
                E(f"s_cmp_lt_u32 s{sWave}, {lim}\ns_cselect_b32 s30, 0, 0x7ff00000\nv_add_u32 v{WW3(p)}, s30, v{WW3(p)}")
    E("s_waitcnt lgkmcnt(0)")
    if "pst" in exp: stamp_code(E, 1, True)
    if fused:
        E(f"s_add_u32 s92, s52, {WS_FLG}\ns_addc_u32 s93, s53, 0\ns_load_dword s95, s[92:93], {NONCE_OFF}")
    def srd(s, lo, hi, off_s, size):
        if off_s is None:
            E(f"s_mov_b32 s{s}, s{lo}\ns_mov_b32 s{s+1}, s{hi}")
        else:
            E(f"s_add_u32 s{s}, s{lo}, {off_s}\ns_addc_u32 s{s+1}, s{hi}, 0")
        E(f"s_mov_b32 s{s+2}, {size}\ns_mov_b32 s{s+3}, 0x20000")
    sLI, sLO, sFL, sPF = 60, 64, 68, 72
    srd(sLI, 54, 55, None, 2048*896)
    k0.ln_load(E, LB, sLI, ' nt' if 'ntln' in exp else '')
    E(f"s_lshl_b32 s29, s{sMB}, 19")
    srd(sX, 4, 5, "s29", 0x80000)
    E(f"s_cmp_eq_u32 s{sSel}, 0")
    E("s_cselect_b32 s30, s32, s34")
    E("s_cselect_b32 s31, s33, s35")
    E(f"s_lshl_b32 s29, s{sH}, 9")
    srd(sW, 30, 31, "s29", 0x800000)
    E(f"s_sub_u32 s{sW+2}, s{sW+2}, s29")
    E(f"s_lshl_b32 s{sM0X}, s{sWave}, 12")
    E(f"s_mov_b32 s{sXk}, 0")
    E(f"s_mov_b32 s{sWk}, 0")

    vm = [("C", 0)] * NCP + [("LN", 0)] * 2
    def dma_x(grp, hf):
        slot = grp % 3
        u = []
        if grp < 16 and W3:
            lds = slot * XSLOT + hf * 16384
            for p in range(6):
                pre = ""
                if p == 0: pre = f"s_and_b32 s{sXk}, s{sMsk}, {lds}\ns_add_u32 m0, s{sM0N}, s{sXk}\ns_add_u32 s{sXk}, s{sXo1 if hf else sXo0}, {grp*128}\n"
                if p == 4: pre = "s_add_u32 m0, m0, 4096\ns_nop 0\n"
                u.append(pre + f"buffer_load_dwordx4 v{X3(p)}, s[{sX}:{sX+3}], s{sXk} offen offset:{(p&3)*1024} lds")
            return [(t, ("X", grp)) for t in u]
        if grp < 16:
            so = hf * 128 * 2048 + grp * 128
            reg, srd_, lds = XD, sX, slot * XSLOT + hf * 16384
        else:
            so = (grp - 16) * 128
            reg, srd_, lds = XQ, sXq, slot * XSLOT
        nt = " nt" if "ntx" in exp and grp < 16 else ""
        u.append(f"s_add_u32 m0, s{sM0X}, {lds}\ns_mov_b32 s{sXk}, {so}\nbuffer_load_dwordx4 v{reg(0)}, s[{srd_}:{srd_+3}], s{sXk} offen{nt} lds")
        for p in range(1, 4):
            u.append(f"buffer_load_dwordx4 v{reg(p)}, s[{srd_}:{srd_+3}], s{sXk} offen offset:{p*1024}{nt} lds")
        return [(t, ("X", grp)) for t in u]
    def wslot(G):
        if G < NKV: return WBASE + (G % 4) * WSLOT
        L = [WBASE, WBASE + WSLOT, WBASE + 2*WSLOT, WBASE + 3*WSLOT, 49152, 81920]
        return L[(G - NKV) % 6]
    def dma_w(G):
        if G < NKV and W3:
            u = []
            for p in range(6):
                pre = ""
                if p == 0: pre = f"s_and_b32 s{sWk}, s{sMsk}, {wslot(G)}\ns_add_u32 m0, s{sM0N}, s{sWk}\ns_add_u32 s{sWk}, s{sWl}, {G*32*8192}\n"
                if p == 4: pre = "s_add_u32 m0, m0, 4096\ns_nop 0\n"
                u.append(pre + f"buffer_load_dwordx4 v{WW3(p)}, s[{sW}:{sW+3}], s{sWk} offen offset:{(p&3)*1024} lds")
            return [(t, ("W", G)) for t in u]
        if G < NKV: so, srd_ = G * 32 * 8192, sW
        else: so, srd_ = (G - NKV) * 32 * 8192, sWq
        nt = " nt" if ("ntw" in exp and G < NKV) or ("ntq" in exp and G >= NKV) else ""
        u = [f"s_add_u32 m0, s{sM0X}, {wslot(G)}\ns_mov_b32 s{sWk}, {so}\nbuffer_load_dwordx4 v{WD(0)}, s[{srd_}:{srd_+3}], s{sWk} offen{nt} lds"]
        for p in range(1, 4):
            u.append(f"buffer_load_dwordx4 v{WD(p)}, s[{srd_}:{srd_+3}], s{sWk} offen offset:{p*1024}{nt} lds")
        return [(t, ("W", G)) for t in u]
    def need(*tags):
        idx = max(max(i for i, t in enumerate(vm) if t == tag) for tag in tags)
        return len(vm) - 1 - idx
    def xgrp(G): return G >> 1 if G < NKV else 16 + ((G - NKV) >> 1)
    def reads(G, st):
        grp = xgrp(G); t = G & 1
        slot = grp % 3
        seg = 1 if slot == 2 else 0
        xb = slot * XSLOT - seg * 65536
        nx = 8 if G < NKV else 4
        xr = [f"ds_read_b128 v[{XF(st,i)}:{XF(st,i)+3}], v{XA(t,seg)} offset:{xb + i*2048}" for i in range(nx)]
        ws_ = wslot(G)
        if ws_ >= WBASE: wb, wa = ws_ - WBASE, WA
        else: wb, wa = ws_ - (WBASE - 65536), WA2
        wr = []
        for j in range(8):
            for tt in range(2):
                wr.append(f"ds_read_b64_tr_b16 v[{WF(st,j)+2*tt}:{WF(st,j)+2*tt+1}], v{wa(j)} offset:{wb + tt*2048}")
        if "noxr" in exp and G >= 1: return wr
        if "nowr" in exp and G >= 1: return xr
        return [xr[0]] + wr + xr[1:]
    def mfmas(G, st, sel):
        m = []
        first = G == 0 or G == NKV
        nx = 8 if G < NKV else 4
        for i in range(nx):
            for j in range(8):
                b = (i*8+j)*4
                acc = f"a[{b}:{b+3}]"
                x = f"v[{XF(st,i)}:{XF(st,i)+3}]"; w = f"v[{WF(st,j)}:{WF(st,j)+3}]"
                c = "0" if first else acc
                if sel == 0 or G >= NKV: m.append(f"v_mfma_f32_16x16x32_bf16 {acc}, {w}, {x}, {c}")
                else:                    m.append(f"v_mfma_f32_16x16x32_bf16 {acc}, {x}, {w}, {c}")
        return m

    RAMP = "noramp" not in exp
    pro = dma_x(0,0) + dma_x(0,1) + dma_w(0) + dma_w(1) + dma_x(1,0) + dma_x(1,1) + dma_w(2)
    if not RAMP: pro += dma_w(3) + dma_x(2,0) + dma_x(2,1)
    for u, tg in pro:
        E(u); vm.append(tg)
    backlog0 = [(2, "w", 3), (3, "x", (2, 0)), (3, "x", (2, 1))] if RAMP else []
    if "pst" in exp: stamp_code(E, 2, True)
    if "nocpf" not in exp:
        E(f"s_cmp_eq_u32 s{sSel}, 0\ns_cbranch_scc0 {name}_cpv")
        code_prefetch_shared(E, name, 0xa800, name + "_a", 72, 74, 8, sWave)
        E(f"s_branch {name}_cpd\n{name}_cpv:")
        code_prefetch_shared(E, name + "_v", 0xa800, name + "_b", 72, 74, 8, sWave)
        E(f"{name}_cpd:")
        if fused: code_prefetch_shared(E, nxt[0], nxt[1], name + "_e", 72, 74, 8, sWave, which=2)
    E(f"s_lshl_b32 s29, s{sSel}, 24")
    E(f"s_lshl_b32 s30, s{sH}, 20")
    E("s_add_u32 s29, s29, s30")
    srd(sO, 52, 53, "s29", 0x100000)
    E(f"s_mul_i32 s29, s{sRB}, {128*896}")
    E(f"s_add_u32 s29, s29, {WS_XN}")
    srd(sXq, 52, 53, "s29", 128*896)
    E(f"s_lshl_b32 s29, s{sHq}, 9")
    srd(sWq, 6, 7, "s29", 448*8192)
    E(f"s_sub_u32 s{sWq+2}, s{sWq+2}, s29")
    E(f"s_lshl_b32 s29, s{sHq}, 20")
    E(f"s_add_u32 s29, s29, {WS_Q}")
    srd(sOq, 52, 53, "s29", 0x100000)
    E("v_and_b32 v3, 15, v1")
    E("v_lshrrev_b32 v4, 4, v1")
    E("v_bfe_u32 v5, v1, 1, 3")
    E("v_xor_b32 v4, v4, v5")
    E("v_lshrrev_b32 v6, 7, v0")
    E("v_lshlrev_b32 v6, 7, v6")
    E("v_add_u32 v3, v3, v6")
    E("v_lshlrev_b32 v3, 7, v3")
    for t in range(2):
        E(f"v_xor_b32 v5, {4*t}, v4")
        E("v_lshlrev_b32 v5, 4, v5")
        E(f"v_add_u32 v{XA(t,0)}, v3, v5")
        E(f"v_add_u32 v{XA(t,1)}, 0x10000, v{XA(t,0)}")
    E("v_bfe_u32 v3, v1, 2, 2")
    E("v_lshrrev_b32 v4, 4, v1")
    E("v_lshlrev_b32 v5, 3, v4")
    E("v_add_u32 v5, v5, v3")
    E("v_lshlrev_b32 v5, 9, v5")
    E("v_and_b32 v4, 1, v4")
    E("v_lshlrev_b32 v4, 2, v4")
    E("v_or_b32 v3, v3, v4")
    E("v_and_b32 v6, 3, v1")
    E("v_lshlrev_b32 v6, 3, v6")
    E("v_add_u32 v5, v5, v6")
    E("v_bfe_u32 v6, v0, 6, 1")
    E("v_lshlrev_b32 v6, 8, v6")
    E("v_add_u32 v5, v5, v6")
    E(f"v_add_u32 v5, {WBASE}, v5")
    for j in range(8):
        E(f"v_xor_b32 v6, {j}, v3")
        E("v_lshlrev_b32 v6, 5, v6")
        E(f"v_add_u32 v{WA(j)}, v5, v6")
        E(f"v_subrev_u32 v{WA2(j)}, 0x10000, v{WA(j)}")
    srd(sLO, 52, 53, WS_XN, 2048*896)
    srd(sFL, 56, 57, None, 256)
    PFW, PFX = 34, 35
    PX, PW = 48, 49
    E("s_lshr_b32 s29, s2, 3\ns_and_b32 s29, s29, 3\ns_lshl_b32 s29, s29, 6")
    E(f"s_lshl_b32 s30, s{sWave}, 4\ns_add_u32 s29, s29, s30\nv_and_b32 v3, 15, v1\nv_add_u32 v3, s29, v3\nv_lshlrev_b32 v3, 11, v3\nv_lshrrev_b32 v4, 4, v1\nv_lshlrev_b32 v4, 5, v4\nv_add_u32 v{PX}, v3, v4")
    E(f"s_lshl_b32 s29, s{sMB}, 3\ns_lshl_b32 s30, s{sWave}, 1\ns_add_u32 s29, s29, s30\nv_bfe_u32 v3, v1, 4, 1\nv_add_u32 v3, s29, v3\nv_lshlrev_b32 v3, 13, v3")
    E(f"v_and_b32 v4, 15, v1\nv_lshlrev_b32 v4, 5, v4\nv_add_u32 v{PW}, v3, v4")
    E("s_lshr_b32 s29, s2, 3")
    E(f"s_mul_i32 s30, s{sWave}, 56\nv_min_u32 v3, 55, v1\nv_add_u32 v3, s30, v3")
    E("v_lshrrev_b32 v4, 4, v3\ns_mul_i32 s30, s29, 14\nv_add_u32 v4, s30, v4\nv_lshlrev_b32 v4, 13, v4")
    E("v_and_b32 v3, 15, v3\nv_lshlrev_b32 v3, 6, v3\nv_add_u32 v4, v4, v3")
    E(f"s_and_b32 s30, s{sHq}, 1\ns_lshl_b32 s30, s30, 9")
    E(f"v_subrev_u32 v4, s30, v4\nv_max_i32 v{PFW}, 0, v4")
    E(f"s_mul_i32 s30, s29, 448\ns_mul_i32 s31, s{sWave}, 112\ns_add_u32 s30, s30, s31")
    E(f"v_add_u32 v3, s30, v1\nv_lshlrev_b32 v{PFX}, 7, v3")
    E(f"v_min_u32 v4, 47, v1\nv_add_u32 v4, 64, v4\nv_add_u32 v4, s30, v4\nv_lshlrev_b32 v{PFX+1}, 7, v4")
    class Cap:
        def __init__(self): self.l = []
        def __call__(self, t):
            for x in t.split("\n"):
                if x.strip(): self.l.append(x.strip())
    cap = Cap(); k0.ln_math_store(cap, LB, sLO, "sc1")
    ln_stream = []
    for t in cap.l:
        if t.startswith("buffer_store"): ln_stream.append((12, t, ("LS", 0)))
        elif t.startswith("s_nop"): ln_stream.append((0, t, None))
        elif t.startswith("v_rsq"): ln_stream.append((8, t, None))
        else: ln_stream.append((4, t, None))
    if "tlb" in exp:
        E(f"s_lshl_b32 s29, s{sMB}, 17\ns_lshl_b32 s30, s{sWave}, 15\ns_add_u32 s29, s29, s30\nv_mov_b32 v8, s29")
        E(f"buffer_load_dword v9, v8, s[{sO}:{sO+3}], 0 offen")
        E(f"s_lshl_b32 s29, s{sRB}, 16\ns_lshl_b32 s30, s{sWave}, 14\ns_add_u32 s29, s29, s30\nv_mov_b32 v8, s29")
        E(f"buffer_load_dword v9, v8, s[{sOq}:{sOq+3}], 0 offen")
        E(f"s_mul_i32 s30, s{sWave}, {112*8192}\nv_mov_b32 v8, s30")
        E(f"buffer_load_dword v9, v8, s[{sWq}:{sWq+3}], 0 offen")
        E(f"s_mul_i32 s30, s{sWave}, {32*896}\nv_mov_b32 v8, s30")
        E(f"buffer_load_dword v9, v8, s[{sXq}:{sXq+3}], 0 offen")
        vm.extend([("T", 0)] * 4)
    if "nopf" not in exp and "pf18" not in exp and NG > NKV:
        E(f"buffer_load_dword v7, v{PFW}, s[{sWq}:{sWq+3}], 0 offen"); vm.append(("P", 0))
    if "lnpro" in exp:
        E(f"s_waitcnt vmcnt({need(('LN',0))})")
        for c, t, tg in ln_stream:
            E(t)
            if tg: vm.append(tg)
    E(f"s_waitcnt vmcnt({need(('X',0),('W',0))})")
    if "pst" in exp: stamp_code(E, 3, True)
    E("s_barrier")
    if "pst" in exp: stamps = "dumponly2"; stamp_code(E, 4, True)
    stamp_code(E, 1, stamps)
    for u in reads(0, 0): E(u)
    E(f"s_cmp_eq_u32 s{sSel}, 0")
    E(f"s_cbranch_scc0 {name}_v")
    E(f"{name}_k0:")
    vm0 = list(vm)

    def kv_epi_setup(sel):
        E("v_lshlrev_b32 v3, 4, v1")
        E("v_lshrrev_b32 v4, 7, v0")
        E("v_lshlrev_b32 v4, 16, v4")
        E("v_add_u32 v3, v3, v4")
        E("v_bfe_u32 v4, v0, 6, 1")
        E(f"v_lshlrev_b32 v4, {12 if sel == 0 else 13}, v4")
        E("v_add_u32 v3, v3, v4")
        E(f"s_lshl_b32 s29, s{sMB}, 17")
    def kv_units(sel):
        units = []; n = 0
        for a in range(8 if sel == 0 else 4):
            for b in range(4 if sel == 0 else 8):
                t = 192 + (n % 4) * 12; n += 1
                if sel == 0:
                    src = [(a*8 + 2*b)*4 + r for r in range(8)]; off = a*8192 + b*1024
                else:
                    src = [(2*a*8 + b)*4 + r for r in range(4)] + [((2*a+1)*8 + b)*4 + r for r in range(4)]; off = a*16384 + b*1024
                u = [(4, f"v_accvgpr_read_b32 v{t+r}, a{src[r]}", None) for r in range(8)]
                u += [(4, f"v_cvt_pk_bf16_f32 v{t+8+r}, v{t+2*r}, v{t+2*r+1}", None) for r in range(4)]
                u += [(12, f"s_add_u32 s30, s29, {off}\nbuffer_store_dwordx4 v[{t+8}:{t+11}], v3, s[{sO}:{sO+3}], s30 offen{SC}", ("S", 0))]
                units.append(u)
        assert all(int(x[1].split("a")[-1]) < 128 for u in units[:16] for x in u[:8])
        return units
    def q_epilogue():
        E("s_nop 7")
        E("v_lshlrev_b32 v3, 4, v1")
        E("v_lshrrev_b32 v4, 7, v0")
        E("v_lshlrev_b32 v4, 15, v4")
        E("v_add_u32 v3, v3, v4")
        E("v_bfe_u32 v4, v0, 6, 1")
        E("v_lshlrev_b32 v4, 12, v4")
        E("v_add_u32 v3, v3, v4")
        E(f"s_lshl_b32 s29, s{sRB}, 16")
        E("s_mov_b32 s31, 0x3db8aa3b")
        n = 0
        for a in range(4):
            for b in range(4):
                t = 192 + (n % 4) * 12; n += 1
                src = [(a*8 + 2*b)*4 + r for r in range(8)]; off = a*8192 + b*1024
                for r in range(8): E(f"v_accvgpr_read_b32 v{t+r}, a{src[r]}")
                for r in range(8): E(f"v_mul_f32 v{t+r}, s31, v{t+r}")
                for r in range(4): E(f"v_cvt_pk_bf16_f32 v{t+8+r}, v{t+2*r}, v{t+2*r+1}")
                E(f"s_add_u32 s30, s29, {off}")
                E(f"buffer_store_dwordx4 v[{t+8}:{t+11}], v3, s[{sOq}:{sOq+3}], s30 offen{SC}")

    for sel in range(2):
        lab = f"{name}_{'kv'[sel]}"
        if sel == 1: E(f"{lab}:")
        vm[:] = vm0
        pend = []
        backlog = list(backlog0)
        if 'noln' in exp: vm.append(('LS', 0))
        for G in range(NG):
            st = G & 1
            if G == GLN and 'noln' not in exp and 'lnpro' not in exp: pend = list(ln_stream)
            if G == NKV:
                stamp_code(E, 2, stamps)
                E("v_lshrrev_b32 v4, 7, v0\nv_lshlrev_b32 v4, 13, v4")
                for t in range(2):
                    for seg in range(2): E(f"v_sub_u32 v{XA(t,seg)}, v{XA(t,seg)}, v4")
                for u in reads(NKV, st): E(u)
                E("s_nop 4")
                kv_epi_setup(sel)
                un = kv_units(sel)
                nexp = 32 if "allexp" in exp else (8 if "exp8" in exp else 16)
                for u in un[:nexp]:
                    for c, t, tg in u:
                        E(t)
                        if tg: vm.append(tg)
                pend = [x for u in un[nexp:] for x in u]
                stamp_code(E, 3, stamps)
            if "bst" in exp and G % 6 == 0 and G < 36: E(f"s_memtime s[{76+4*(G//6)}:{77+4*(G//6)}]\ns_memrealtime s[{78+4*(G//6)}:{79+4*(G//6)}]")
            last = G == NG - 1
            ngap = 64 if G < NKV else 32
            S = Sched(ngap)
            tags = {}
            def putv(g, c, t, tg):
                S.put(g, c, t); tags.setdefault(g, []).append(tg)
            if not last:
                E(f"s_waitcnt vmcnt({need(('X', xgrp(G+1)), ('W', G+1))}) lgkmcnt(0)")
                E("s_barrier")
                if G + 1 != NKV:
                    rd = reads(G + 1, st ^ 1)
                    step = 2 if ngap == 64 else 1
                    for k, t in enumerate(rd): S.put(step * k, 4, t)
                reg = []
                if G + 4 < NKV + (4 if NG > NKV else 0) and G < NKV: reg.append((G + 3, "w", G + 4))
                if NG > NKV and G == 28: reg.append((NKV + 3, "w", NKV + 4))
                if NG > NKV and G == 30: reg.append((NKV + 4, "w", NKV + 5))
                if G >= NKV and G + 6 < NG: reg.append((G + 5, "w", G + 6))
                if G < NKV:
                    if G % 2 == 1: grp, hf = (G - 1) // 2 + 3, 0
                    else: grp, hf = G // 2 + 2, 1
                    if G == 0: grp = None
                else:
                    it = G - NKV
                    grp, hf = (16 + (it - 1) // 2 + 3, 0) if it % 2 == 1 else (None, 0)
                if grp is not None:
                    maxg = 16 + 7 if NG > NKV else 16
                    if grp < 16 or (grp < maxg and hf == 0):
                        dl = 2 * grp - 1 if grp < 16 else NKV + 2 * (grp - 16) - 1
                        reg.append((dl, "x", (grp, hf)))
                backlog.extend(reg); backlog.sort(key=lambda x: x[0])
                ntake = 3 if (G < 6 or len(backlog) > 2) else len(backlog)
                take, backlog[:] = backlog[:ntake], backlog[ntake:]
                d = []
                for dl, kind, arg in take:
                    assert dl > G or dl == G, (G, dl, kind, arg)
                    assert dl >= G + 1 or True
                    d += dma_x(*arg) if kind == "x" else dma_w(arg)
                dp = ([5, 11, 17, 23, 29, 35, 41, 47, 51, 55, 59, 63] if len(d) <= 12 else [1, 5, 9, 13, 17, 21, 25, 29, 33, 37, 41, 45, 47, 49, 51, 55, 59, 63]) if ngap == 64 else [20, 22, 24, 26, 21, 23, 25, 27]
                if ngap == 32 and len(d) <= 4: dp = [21, 24, 27, 30]
                elif ngap == 32: dp = [20, 21, 22, 24, 25, 27, 29, 31]
                for (t, tg), g in zip(d, dp):
                    if ("noxd" in exp and tg[0] == "X") or ("nowd" in exp and tg[0] == "W"):
                        pre_ = "\n".join(x for x in t.split("\n") if not x.startswith("buffer"))
                        if pre_: S.put(g, 0, pre_)
                        vm.append(tg); vm.append(("Z", 0)) if False else None
                        continue
                    putv(g, 12, t, tg)
                if "l2pf" in exp and G < NKV:
                    if G % 2 == 1 and (G + PL + 1) // 2 < 16:
                        putv(57, 12, f"s_mov_b32 s31, {((G + PL + 1) // 2) * 128}\nbuffer_load_dword v7, v{PX}, s[{sX}:{sX+3}], s31 offen", ("P", 2))
                    if G % 2 == 0 and G + PL < NKV:
                        putv(57, 12, f"s_mov_b32 s31, {(G + PL) * 32 * 8192}\nbuffer_load_dword v7, v{PW}, s[{sW}:{sW+3}], s31 offen", ("P", 3))
                if G == GLN + 7 and 'nosig' not in exp:
                    assert need(('W', G+1)) <= len(vm) - 1 - max(i for i, t in enumerate(vm) if t == ('LS', 0)) - 0 and True
                    sk = f"{lab}_nosig"
                    S.put(51, 0, f"s_cmp_lg_u32 s{sWave}, 0\ns_cbranch_scc1 {sk}\ns_lshr_b32 s30, s2, 4\ns_lshl_b32 s30, s30, 2\nv_mov_b32 v4, 1\nv_mov_b32 v5, s30\ns_mov_b64 exec, 1\nbuffer_atomic_add v4, v5, s[{sFL}:{sFL+3}], 0 offen sc1\ns_mov_b64 exec, -1\n{sk}:")
                if fused and G == 1: S.put(55, 0, 's_add_u32 s95, s95, 1')
                if G == 4 and not fused:
                    zk = f"{lab}_nozero"
                    putz = f"s_cmp_lg_u32 s{sWave}, 0\ns_cbranch_scc1 {zk}\ns_add_u32 s60, s52, {WS_FLG}\ns_addc_u32 s61, s53, 0\ns_mov_b32 s62, {FLG_BYTES}\ns_mov_b32 s63, 0x20000\ns_lshl_b32 s30, s2, 7\nv_lshlrev_b32 v4, 2, v1\nv_mov_b32 v5, 0\ns_mov_b32 exec_hi, 0\nbuffer_store_dword v5, v4, s[60:63], s30 offen\ns_mov_b64 exec, -1\n{zk}:"
                    S.put(55, 0, putz)
                if NG > NKV and G == GLN + 10 and 'nopoll' not in exp:
                    putv(53, 12, f"s_lshl_b32 s30, s{sRB}, 2\nv_mov_b32 v5, s30\nbuffer_load_dword v6, v5, s[{sFL}:{sFL+3}], 0 offen sc1", ("F", 0))
                if NG > NKV and G == GLN + 14 and 'nopoll' not in exp:
                    ok, pl = f"{lab}_xnok", f"{lab}_xnpoll"
                    to = f"{lab}_xnto"
                    S.put(53, 8, f"v_readfirstlane_b32 s30, v6\ns_cmp_ge_u32 s30, 16\ns_cbranch_scc1 {ok}\ns_mov_b32 s31, 0\n{pl}:\ns_sleep 1\nbuffer_load_dword v6, v5, s[{sFL}:{sFL+3}], 0 offen sc1\ns_waitcnt vmcnt(0)\nv_readfirstlane_b32 s30, v6\ns_add_u32 s31, s31, 1\ns_cmp_ge_u32 s31, {SPIN_MAX}\ns_cbranch_scc1 {to}\ns_cmp_ge_u32 s30, 16\ns_cbranch_scc0 {pl}\ns_branch {ok}\n{to}:\nv_mov_b32 v6, 0xbad1\nv_mov_b32 v7, 128\nbuffer_store_dword v6, v7, s[{sFL}:{sFL+3}], 0 offen\n{ok}:")
                if NG > NKV and G == 18 and "pf18" in exp:
                    putv(53, 12, f"buffer_load_dword v7, v{PFW}, s[{sWq}:{sWq+3}], 0 offen", ("P", 0))
                if NG > NKV and G in (19, 20) and "pfx" in exp:
                    putv(53, 12, f"buffer_load_dword v7, v{PFX}, s[{sLO}:{sLO+3}], 0 offen offset:{0 if G == 19 else 0}" if G == 19 else f"buffer_load_dword v7, v{PFX+1}, s[{sLO}:{sLO+3}], 0 offen", ("P", 1))
                if pend:
                    k = 0; cur = 0
                    while k < len(pend):
                        c, t, tg = pend[k]
                        g = cur
                        while g < ngap and c and not (S.c[g] == 0 if c == 12 else S.c[g] + c <= 8): g += 1
                        if g >= ngap: break
                        if tg: putv(g, c, t, tg)
                        else: S.put(g, c, t)
                        cur = g; k += 1
                        if G >= NKV and k >= 26 and pend[k-1][2]: break
                    pend = pend[k:]
            else:
                E("s_waitcnt lgkmcnt(0)")
            S.emit(E, mfmas(G, st, sel))
            for g in sorted(tags): vm.extend(tags[g])
        for c, t, tg in pend: E(t)
        if NG == NKV:
            stamp_code(E, 2, stamps)
            E("s_nop 7")
            kv_epi_setup(sel)
            for u in kv_units(sel):
                for c, t, tg in u: E(t)
            stamp_code(E, 3, stamps)
        else:
            stamp_code(E, 4, stamps)
            if nxt and "nocpf" not in exp and not fused: code_prefetch_shared(E, nxt[0], nxt[1], f"{lab}_n", 72, 74, 8, sWave)
            q_epilogue()
        if fused:
            E(f"s_lshl_b32 s90, s{sH}, 7\ns_lshl_b32 s30, s{sSel}, 3\ns_add_u32 s30, s30, s{sMB}\ns_lshl_b32 s30, s30, 2\ns_add_u32 s90, s90, s30\ns_add_u32 s90, s90, {HEAD_OFF}")
            E(f"s_lshl_b32 s91, s{sHq}, 7\ns_lshl_b32 s31, s{sRB}, 2\ns_add_u32 s91, s91, s31\ns_add_u32 s91, s91, {HEAD_OFF + 64}")
            stamp_code(E, 5, stamps)
            E(f"s_branch {fused}")
            continue
        if stamps:
            E("s_waitcnt vmcnt(0)")
            stamp_code(E, 5 if NG > NKV else 4, True)
            stamp_dump(E, 6 if NG > NKV else 5, lab, 52)
        E("s_endpgm")
    E(f"{name}_end:")
    E("s_endpgm")
    return E.text()
```

```python
from asmlib import *
from ws import *
from k1 import SPIN_MAX, STAMP_OFF
import tail

NS = 5
CH = 32768
THR = 0x44800000
NA = 18

def O(db, qt): return (db * 2 + qt) * 4
def Q(qt, ds): return 128 + (qt * 8 + ds) * 4
def F(f): return 192 + (f % 16) * 4
def S(par, kb, qt): return 64 + par * 32 + (kb * 2 + qt) * 4
def P(par, s, qt): return 128 + par * 16 + (s * 2 + qt) * 4
def NEGM(qt): return 160 + 4 * qt
TMP = 168
L_ = lambda qt: 184 + qt
LS = lambda qt: 186 + qt
M_ = lambda qt: 188 + qt
DM = lambda qt: 190 + qt
vRA, vRB, vLane16, vTab = 192, 193, 194, 196
vT0 = 200
vD = 224
vW = 232
vWA = 240
vPM = 246
vFL = 250
sDM = 8
sQ = 12
sPT = 16
sOP = 20
sWO = 24
sFL = 28
sWave, sH, sPair, sType = 32, 33, 34, 35
sC, sWr, sRdN, sOff, sN, sI, sT, sQB, sItem = 36, 37, 38, 39, 40, 41, 42, 43, 44
sTmp, sTmp2, sTmp3 = 45, 46, 47
sM0 = 48
sNKV, sSig, sHasP, sPI = 52, 53, 54, 62

def a4(b): return f"a[{b}:{b+3}]"
def v4(b): return f"v[{b}:{b+3}]"

def stamp_code(E, i, on):
    if on: E(f"s_memtime s[96:97]\ns_memrealtime s[98:99]\ns_waitcnt lgkmcnt(0)\nv_writelane_b32 v252, s96, {i}\nv_writelane_b32 v253, s98, {i}")
def stamp_dump(E, n, lab, sws):
    E("s_mov_b64 exec, -1\ns_waitcnt vmcnt(0) lgkmcnt(0)")
    E(f"s_mov_b32 s60, s{sws}\ns_mov_b32 s61, s{sws+1}\ns_mov_b32 s62, 0x10000000\ns_mov_b32 s63, 0x20000")
    E(f"s_lshl_b32 s56, s2, 8\ns_add_u32 s56, s56, {WS_DBG + 65536}")
    E(f"s_cmp_lg_u32 s{sWave}, 0\ns_cbranch_scc1 {lab}_stsk")
    E("v_and_b32 v4, 63, v0\nv_lshlrev_b32 v4, 3, v4\nv_mov_b32 v6, v252\nv_mov_b32 v7, v253\ns_mov_b64 exec, 0xffffff")
    E("buffer_store_dwordx2 v[6:7], v4, s[60:63], s56 offen")
    E(f"{lab}_stsk:")

class K2:
    def __init__(self, name, stamps=False, exp="", nxt=None, fused=False):
        self.nxt = nxt; self.fused = fused
        self.name = name; self.E = Emit(); self.stamps = stamps; self.exp = exp
        self.uid = 0; self.rare = []
    def ist(self, i):
        if "ist" in self.exp: stamp_code(self.E, i, True)
    def lab(self, s):
        self.uid += 1
        return f"{self.name}_{s}{self.uid}"

    def head_items(self, Sc, nxt, vmw=16, dma_gaps=None, sw=False, sg=False, m0gap=6, nt=''):
        if isinstance(vmw, int): w = f"s_waitcnt vmcnt({vmw})"
        else: w = vmw
        Sc.put(1, 0, w + ("\ns_barrier" if "nobar" not in self.exp else ""))
        if sg:
            a, b = self.lab("sg"), self.lab("sgb")
            Sc.put(13, 0, f"s_cmp_eq_u32 s{sSig}, 1\ns_cbranch_scc1 {a}\n{b}:")
            self.rare.append(("signal", a, b))
        g0 = 2
        if sw:
            a, b = self.lab("sw"), self.lab("swb")
            Sc.put(2, 0, f"s_cmp_eq_u32 s{sC}, s{sNKV}\ns_cbranch_scc1 {a}\n{b}:")
            self.rare.append(("switch", a, b))
        Sc.put(3, 4, f"v_readlane_b32 s{sOff}, v{vTab}, s{sC}")
        Sc.put(4, 0, f"s_add_u32 s{sRdN}, s{sRdN}, {CH}\ns_cmp_eq_u32 s{sRdN}, {NS*CH}\ns_cselect_b32 s{sRdN}, 0, s{sRdN}")
        Sc.put(6, 0, f"s_add_u32 s{sC}, s{sC}, 1")
        Sc.put(m0gap, 0, f"s_add_u32 m0, s{sWr}, s{sM0}")
        g = 6
        for reg, base in nxt:
            while Sc.c[g] + 4 > 8: g += 1
            Sc.put(g, 4, f"v_add_u32 v{reg}, s{sRdN}, v{base}")
        dg = dma_gaps or [9, 15, 21, 27, 33, 39, 45, 51]
        for p in range(8):
            t = f"buffer_load_dwordx4 v{vD+p}, s[{sDM}:{sDM+3}], s{sOff} offen offset:{(p&3)*1024}{nt} lds"
            if "nodma" not in self.exp: Sc.put(dg[p], 12, t)
            if p == 3: Sc.put(dg[p] + 1, 0, f"s_add_u32 m0, m0, 4096")
            if p == 7: Sc.put(dg[p] + 1, 0, f"s_add_u32 s{sWr}, s{sWr}, {CH}\ns_cmp_eq_u32 s{sWr}, {NS*CH}\ns_cselect_b32 s{sWr}, 0, s{sWr}")

    def frag_read(self, f, cur, nxt):
        if f < 32: return f"ds_read_b128 {a4(F(f))}, v{cur} offset:{f*1024}"
        return f"ds_read_b128 {a4(F(f))}, v{nxt} offset:{(f-32)*1024}"

    def qk_mfmas(self, par, cinit):
        m = []
        for kb in range(4):
            for ds in range(8):
                f = kb * 8 + ds
                for qt in range(2):
                    d = v4(S(par, kb, qt))
                    c = (v4(NEGM(qt)) if cinit else "0") if ds == 0 else d
                    m.append(f"v_mfma_f32_16x16x32_bf16 {d}, {a4(F(f))}, {a4(Q(qt, ds))}, {c}")
        return m
    def pv_mfmas(self, par):
        m = []
        for s in range(2):
            for db in range(16):
                f = s * 16 + db
                for qt in range(2):
                    d = a4(O(db, qt))
                    m.append(f"v_mfma_f32_16x16x32_bf16 {d}, {a4(F(f))}, {v4(P(par, s, qt))}, {d}")
        return m

    def sm_stream(self, par, half):
        out = []
        for kb in (2 * half, 2 * half + 1):
            for qt in range(2):
                s0 = S(par, kb, qt); t = TMP + ((kb * 2 + qt) % 4) * 4
                p = P(par, kb >> 1, qt) + 2 * (kb & 1)
                for r in range(4): out.append((8, f"v_exp_f32 v{t+r}, v{s0+r}"))
                if kb == 0:
                    out.append((4, f"v_add_f32 v{LS(qt)}, v{t}, v{t+1}"))
                else:
                    out.append((4, f"v_add_f32 v{LS(qt)}, v{LS(qt)}, v{t}"))
                    out.append((4, f"v_add_f32 v{LS(qt)}, v{LS(qt)}, v{t+1}"))
                out.append((4, f"v_cvt_pk_bf16_f32 v{p}, v{t}, v{t+1}"))
                out.append((4, f"v_add_f32 v{LS(qt)}, v{LS(qt)}, v{t+2}"))
                out.append((4, f"v_cvt_pk_bf16_f32 v{p+1}, v{t+2}, v{t+3}"))
                out.append((4, f"v_add_f32 v{LS(qt)}, v{LS(qt)}, v{t+3}"))
        return out

    def emit_phase(self, mf, cur, sm=(), extra=(), tail=(), vmw=16, pre=(), sw=False, sg=False, first=False):
        E = self.E
        nxt = vRB if cur == vRA else vRA
        n = len(mf)
        Sc = Sched(n)
        for f in range(32):
            if "nords" in self.exp: continue
            Sc.put(2 * f, 4, self.frag_read(f + 8, cur, nxt))
        if first:
            g = 3
            for c, so in ((2, 74), (3, 75)):
                for p in range(8):
                    pre_ = f"s_add_u32 m0, s{sM0}, {c*CH}\ns_nop 0\n" if p == 0 else ("s_add_u32 m0, m0, 4096\ns_nop 0\n" if p == 4 else "")
                    Sc.put(g, 12, pre_ + f"buffer_load_dwordx4 v{vD+p}, s[{sDM}:{sDM+3}], s{so} offen offset:{(p&3)*1024} lds"); g += 2
            self.head_items(Sc, [(nxt, vLane16)], 0, dma_gaps=[37, 39, 41, 43, 45, 47, 49, 51], sw=False, m0gap=36)
        else:
            self.head_items(Sc, [(nxt, vLane16)], vmw, sw=sw, sg=sg)
        for g, c, t in pre: Sc.put(g, c, t)
        if "nosm" in self.exp: sm = []
        if sm:
            exps = [t for c, t in sm if c == 8]
            free_odd = [g for g in range(5, n, 2) if Sc.c[g] == 0 and g <= 53]
            assert len(free_odd) >= len(exps), (len(free_odd), len(exps))
            egap = [free_odd[(j * len(free_odd)) // len(exps)] for j in range(len(exps))]
            for t, g in zip(exps, egap): Sc.put(g, 8, t)
            ne = 0; g = 0
            for c, t in sm:
                if c == 8: ne += 1; continue
                g = max(g, egap[ne - 1] + 1)
                while Sc.c[g] + c > 8: g += 1
                Sc.put(g, c, t)
            lastsm = g
        else: lastsm = 0
        if extra:
            left = Sc.put_free(list(extra), start=2, stride=0)
            assert not left or True
        else: left = []
        g = max(lastsm + 1, n - 2 * len(tail) - 2)
        for c, t in tail:
            while Sc.c[g] + c > 8 and g < n - 1: g += 1
            Sc.put(g, c, t)
        before = {8 * k: ["s_waitcnt lgkmcnt(4)"] for k in range(8)}
        Sc.emit(E, mf, before)
        for c, t in left: E(t)

    def mask_block(self, par):
        E = self.E
        E(f"s_lshl_b32 s{sTmp}, s{sT}, 6")
        for qt in range(2): E(f"v_subrev_u32 v{vT0+qt}, s{sTmp}, v{DM(qt)}")
        E(f"v_mov_b32 v{vT0+2}, 0xff800000")
        k = 0
        items = [(qt, kb, r) for qt in range(2) for kb in range(4) for r in range(4)]
        masks = ["s[56:57]", "s[58:59]", "s[60:61]"]
        for i in range(len(items) + 2):
            if i < len(items):
                qt, kb, r = items[i]
                E(f"v_cmp_le_i32 {masks[i % 3]}, {16*kb+r}, v{vT0+qt}")
            if i >= 2:
                qt, kb, r = items[i - 2]
                E(f"v_cndmask_b32 v{S(par,kb,qt)+r}, v{vT0+2}, v{S(par,kb,qt)+r}, {masks[(i-2) % 3]}")
            if i >= len(items): E("s_nop 0")

    def xlane(self, op, r, t):
        E = self.E
        E(f"v_mov_b32 v{t}, v{r}\ns_nop 1")
        E(f"v_permlane16_swap_b32 v{r}, v{t}\ns_nop 1")
        E(f"{op} v{r}, v{r}, v{t}")
        E(f"v_mov_b32 v{t}, v{r}\ns_nop 1")
        E(f"v_permlane32_swap_b32 v{r}, v{t}\ns_nop 1")
        E(f"{op} v{r}, v{r}, v{t}")

    def rowmax_inlane(self, par, qt, r):
        E = self.E
        vals = [S(par, kb, qt) + i for kb in range(4) for i in range(4)]
        E(f"v_max3_f32 v{r}, v{vals[0]}, v{vals[1]}, v{vals[2]}")
        for i in range(3, 15, 2): E(f"v_max3_f32 v{r}, v{r}, v{vals[i]}, v{vals[i+1]}")
        E(f"v_max_f32 v{r}, v{r}, v{vals[15]}")
    def xlane2(self, op, r0, r1, t0, t1):
        E = self.E
        for sw in ("v_permlane16_swap_b32", "v_permlane32_swap_b32"):
            E(f"v_mov_b32 v{t0}, v{r0}\nv_mov_b32 v{t1}, v{r1}\ns_nop 0")
            E(f"{sw} v{r0}, v{t0}\n{sw} v{r1}, v{t1}\ns_nop 0")
            E(f"{op} v{r0}, v{r0}, v{t0}\n{op} v{r1}, v{r1}, v{t1}")

    def init_block(self):
        E = self.E
        for qt in range(2): self.rowmax_inlane(0, qt, M_(qt))
        self.xlane2("v_max_f32", M_(0), M_(1), vT0, vT0 + 1)
        for qt in range(2):
            E(f"v_max_f32 v{M_(qt)}, 0xf149f2ca, v{M_(qt)}")
            for r in range(4): E(f"v_sub_f32 v{NEGM(qt)+r}, 0, v{M_(qt)}")
            E(f"v_mov_b32 v{L_(qt)}, 0")
        for qt in range(2):
            for kb in range(4):
                for r in range(4): E(f"v_sub_f32 v{S(0,kb,qt)+r}, v{S(0,kb,qt)+r}, v{M_(qt)}")

    def slow_block(self, par):
        E = self.E
        E("s_nop 15")
        for qt in range(2):
            d = vT0 + qt
            self.rowmax_inlane(par, qt, d)
            self.xlane("v_max_f32", d, vT0 + 2)
            E(f"v_max_f32 v{d}, 0, v{d}")
            E(f"v_add_f32 v{M_(qt)}, v{M_(qt)}, v{d}")
            for r in range(4): E(f"v_sub_f32 v{NEGM(qt)+r}, v{NEGM(qt)+r}, v{d}")
            for pp in (par, par ^ 1):
                for kb in range(4):
                    for r in range(4): E(f"v_sub_f32 v{S(pp,kb,qt)+r}, v{S(pp,kb,qt)+r}, v{d}")
            E(f"v_sub_f32 v{vT0+3}, 0, v{d}")
            E(f"v_exp_f32 v{vT0+3}, v{vT0+3}\ns_nop 0")
            E(f"v_mul_f32 v{L_(qt)}, v{L_(qt)}, v{vT0+3}")
            for db in range(16):
                for r in range(4):
                    a = O(db, qt) + r
                    E(f"v_accvgpr_read_b32 v{vT0+4}, a{a}")
                    E(f"v_mul_f32 v{vT0+4}, v{vT0+4}, v{vT0+3}")
                    E(f"v_accvgpr_write_b32 a{a}, v{vT0+4}")
        for half in range(2):
            for c, t in self.sm_stream(par, half): E(t)
        E(f"s_nop 2")

    def check_tail(self):
        return [(4, f"v_max_f32 v{vT0}, v{LS(0)}, v{LS(1)}"), (4, f"v_cmp_lt_f32 vcc, {THR}, v{vT0}")]
    def check(self, par, computed):
        E = self.E
        sl = self.lab("slow"); back = self.lab("back")
        if not computed:
            for c, t in self.check_tail(): E(t)
        if "noslow" not in self.exp: E(f"s_cbranch_vccnz {sl}")
        E(f"{back}:")
        for qt in range(2): E(f"v_add_f32 v{L_(qt)}, v{L_(qt)}, v{LS(qt)}")
        self.rare.append(("slow", sl, back, par))

    def maybe_mask(self, par):
        E = self.E
        sk = self.lab("nomask")
        E(f"s_lshl_b32 s{sTmp}, s{sQB}, 1")
        E(f"s_cmp_lt_u32 s{sT}, s{sTmp}")
        E(f"s_cbranch_scc1 {sk}")
        self.mask_block(par)
        E(f"{sk}:")

    def item_loop(self, first=False):
        E = self.E; nm = self.name
        E(f"s_lshl_b32 s{sTmp}, s{sQB}, 7")
        E(f"s_lshl_b32 s{sTmp2}, s{sWave}, 5")
        E(f"s_add_u32 s{sTmp}, s{sTmp}, s{sTmp2}")
        E(f"v_and_b32 v{vT0}, 15, v0")
        E(f"v_bfe_u32 v{vT0+1}, v0, 4, 2")
        E(f"v_lshlrev_b32 v{vT0+1}, 2, v{vT0+1}")
        E(f"v_sub_u32 v{vT0}, v{vT0}, v{vT0+1}")
        E(f"v_add_u32 v{DM(0)}, s{sTmp}, v{vT0}")
        E(f"v_add_u32 v{DM(1)}, 16, v{DM(0)}")
        zero = [(4, f"v_accvgpr_write_b32 a{i}, 0") for i in range(128)]
        self.emit_phase(self.qk_mfmas(0, False), vRA, extra=zero, sw=True, first=first)
        if first:
            if "nopf" not in self.exp: self.prefetch_weights()
            E(f"s_branch {nm}_qk0done")
            return
        E(f"{nm}_qk0done:")
        self.ist(2)
        E("s_nop 7")
        self.maybe_mask(0)
        self.init_block()
        self.ist(3)
        self.emit_phase(self.qk_mfmas(1, True), vRB, sm=self.sm_stream(0, 0))
        for c, t in self.sm_stream(0, 1): E(t)
        self.check(0, False)
        E(f"s_add_u32 s{sT}, s{sT}, 1")
        E(f"s_lshr_b32 s{sI}, s{sN}, 1\ns_sub_u32 s{sI}, s{sI}, 1")
        if "mid" in self.exp: stamp_code(E, 1, True)
        self.ist(4)
        E(f"s_cmp_eq_u32 s{sI}, 0")
        E(f"s_cbranch_scc1 {nm}_last")
        E(f"{nm}_loop:")
        for par in (1, 0):
            if par == 0: self.maybe_mask(0)
            self.emit_phase(self.qk_mfmas(par ^ 1, True), vRA, sm=self.sm_stream(par, 0), sw=(par == 0), sg=(par == 1))
            pre = [(8, 0, f"s_add_u32 s{sT}, s{sT}, 1")]
            if par == 0: pre.append((12, 0, f"s_sub_u32 s{sI}, s{sI}, 1"))
            self.emit_phase(self.pv_mfmas(par ^ 1), vRB, sm=self.sm_stream(par, 1), tail=self.check_tail(), pre=pre)
            self.check(par, True)
        E(f"s_cmp_lg_u32 s{sI}, 0")
        E(f"s_cbranch_scc1 {nm}_loop")
        E(f"{nm}_last:")
        if "mid" in self.exp: stamp_code(E, 2, True)
        self.ist(5)
        self.maybe_mask(1)
        for c, t in self.sm_stream(1, 0): E(t)
        pre = [(7, 12, f"buffer_load_dword v{vFL}, v{vFL+1}, s[{sFL}:{sFL+3}], 0 offen sc1")]
        self.emit_phase(self.pv_mfmas(0), vRA, sm=self.sm_stream(1, 1), tail=self.check_tail(), pre=pre, sg=True)
        self.check(1, True)
        self.ist(6)
        nop_, fin_a, fin_b = self.lab("nopre"), self.lab("fina"), self.lab("finb")
        qn = self.lab("qnext")
        E(f"s_cmp_eq_u32 s{sItem}, 1")
        E(f"s_cbranch_scc0 {qn}")
        E(f"s_cmp_eq_u32 s{sHasP}, 0")
        E(f"s_cbranch_scc1 {nop_}")
        got, pl = self.lab("got"), self.lab("poll")
        E("s_waitcnt vmcnt(7)")
        to = self.lab("to")
        E(f"s_mov_b32 s73, 0")
        E(f"{pl}:")
        E(f"v_readfirstlane_b32 s{sTmp3}, v{vFL}")
        E(f"s_cmp_eq_u32 s{sTmp3}, s95" if self.fused else f"s_cmp_lg_u32 s{sTmp3}, 0")
        E(f"s_cbranch_scc1 {got}")
        E("s_sleep 2")
        E(f"buffer_load_dword v{vFL}, v{vFL+1}, s[{sFL}:{sFL+3}], 0 offen sc1")
        E("s_waitcnt vmcnt(0)")
        E(f"s_add_u32 s73, s73, 1\ns_cmp_lt_u32 s73, {SPIN_MAX}")
        E(f"s_cbranch_scc1 {pl}")
        E(f"v_mov_b32 v{vT0}, 0xbad2\nv_mov_b32 v{vT0+1}, {FLG_ERR}\nbuffer_store_dword v{vT0}, v{vT0+1}, s[{sFL}:{sFL+3}], 0 offen")
        E(f"{got}:")
        E(f"s_lshl_b32 s{sTmp}, s{sWave}, 15")
        for i in range(16):
            E(f"s_add_u32 s{sTmp2}, s{sTmp}, {i*1024}")
            E(f"buffer_load_dwordx4 v[{64+4*i}:{67+4*i}], v{vLane16}, s[{sPT}:{sPT+3}], s{sTmp2} offen sc1")
        E(f"s_add_u32 s{sTmp2}, s{sTmp}, 16384")
        E(f"buffer_load_dwordx4 v[{vPM}:{vPM+3}], v{vLane16}, s[{sPT}:{sPT+3}], s{sTmp2} offen sc1")
        E(f"s_mov_b32 s{sTmp3}, 1")
        E(f"s_branch {fin_a}")
        E(f"{qn}:")
        self.load_q(next_item=True)
        E(f"s_mov_b32 s{sTmp3}, 1")
        E(f"s_branch {fin_a}")
        E(f"{nop_}:")
        E(f"s_mov_b32 s{sTmp3}, 0")
        E(f"{fin_a}:")
        self.ist(7)
        w1, w2 = self.lab("w"), self.lab("w")
        vmw = f"s_cmp_eq_u32 s{sTmp3}, 0\ns_cbranch_scc1 {w1}\ns_waitcnt vmcnt(32)\ns_branch {w2}\n{w1}:\ns_waitcnt vmcnt(16)\n{w2}:"
        self.emit_phase(self.pv_mfmas(1), vRB, vmw=vmw)
        self.ist(8)
        E(f"{nm}_itemdone:")

    def prologue(self):
        E = self.E; nm = self.name
        if self.fused: E(f"{nm}_entry:")
        else:
            E("s_cmp_ge_u32 s2, 256")
            E(f"s_cbranch_scc1 {nm}_end")
        stamp_code(E, 0, self.stamps)
        E("s_load_dwordx2 s[4:5], s[0:1], 96")
        E("s_load_dwordx2 s[6:7], s[0:1], 40")
        E("s_load_dwordx4 s[64:67], s[0:1], 56")
        E("s_load_dwordx2 s[68:69], s[0:1], 72")
        E("s_load_dwordx2 s[78:79], s[0:1], 0")
        E("s_load_dwordx2 s[80:81], s[0:1], 80")
        E("s_and_b32 s45, s2, 7")
        E("s_lshr_b32 s46, s2, 3")
        E("s_and_b32 s47, s46, 1")
        E("s_lshl_b32 s45, s45, 1")
        E(f"s_add_u32 s{sH}, s45, s47")
        E("s_lshr_b32 s46, s46, 1")
        E(f"s_and_b32 s{sType}, s46, 1")
        E(f"s_lshr_b32 s{sPair}, s46, 1")
        E(f"v_lshrrev_b32 v{vT0}, 6, v0")
        E(f"v_and_b32 v1, 63, v0")
        E(f"v_readfirstlane_b32 s{sWave}, v{vT0}")
        E(f"v_lshlrev_b32 v{vLane16}, 4, v1")
        E(f"s_lshl_b32 s45, s{sPair}, 1")
        E(f"s_sub_u32 s46, {32-NA}, s45")
        E(f"s_add_u32 s47, s45, 2")
        E(f"s_cmp_eq_u32 s{sType}, 0")
        E(f"s_cselect_b32 s70, {NA}, s46")
        E(f"s_cselect_b32 s71, 0, {NA}")
        E(f"s_cselect_b32 s72, 0, s47")
        E(f"s_lshl_b32 s55, s70, 1")
        E(f"s_lshl_b32 s{sNKV}, s72, 1\ns_add_u32 s{sNKV}, s{sNKV}, s55")
        t = vT0
        E(f"v_cmp_gt_u32 vcc, s55, v1")
        E(f"v_subrev_u32 v{t+3}, s55, v1")
        E("s_nop 0")
        E(f"v_cndmask_b32 v{t}, v{t+3}, v1, vcc")
        E(f"v_mov_b32 v{t+4}, s72\nv_mov_b32 v{t+5}, s70")
        E(f"v_cndmask_b32 v{t+1}, v{t+4}, v{t+5}, vcc")
        E(f"v_mov_b32 v{t+4}, 0\nv_mov_b32 v{t+5}, s71")
        E(f"v_cndmask_b32 v{t+2}, v{t+4}, v{t+5}, vcc")
        E(f"v_min_u32 v{t+4}, 2, v{t+1}")
        E(f"v_cmp_lt_u32 s[56:57], v{t}, v{t+4}")
        E(f"v_lshlrev_b32 v{t+5}, 1, v{t+1}")
        E(f"v_subrev_u32 v{t+5}, 2, v{t+5}")
        E(f"v_cmp_lt_i32 s[58:59], v{t}, v{t+5}")
        E(f"v_and_b32 v{t+6}, 1, v{t}")
        E(f"v_cmp_eq_u32 s[60:61], 0, v{t+6}")
        E(f"v_sub_u32 v{t+7}, v{t}, v{t+1}")
        E(f"v_lshrrev_b32 v{t+8}, 1, v{t}")
        E(f"v_add_u32 v{t+9}, 1, v{t+8}")
        E(f"v_subrev_u32 v{t+8}, 1, v{t+8}")
        E(f"v_cndmask_b32 v{t+8}, v{t+8}, v{t+9}, s[60:61]")
        E(f"v_cndmask_b32 v{t+7}, v{t+7}, v{t+8}, s[58:59]")
        E(f"v_cndmask_b32 v{t+7}, v{t+7}, v{t}, s[56:57]")
        E(f"s_and_b64 s[58:59], s[58:59], s[60:61]")
        E(f"s_or_b64 s[58:59], s[58:59], s[56:57]")
        E(f"v_mov_b32 v{t+8}, {WS_V - WS_K}\nv_mov_b32 v{t+9}, 0")
        E(f"v_cndmask_b32 v{t+8}, v{t+8}, v{t+9}, s[58:59]")
        E(f"v_add_u32 v{t+7}, v{t+7}, v{t+2}")
        E(f"v_lshlrev_b32 v{t+7}, 15, v{t+7}")
        E(f"v_add_u32 v{t+7}, v{t+7}, v{t+8}")
        E(f"s_lshl_b32 s45, s{sH}, 20")
        E(f"v_add_u32 v{t+7}, s45, v{t+7}")
        E(f"v_subrev_u32 v{t+8}, s{sNKV}, v1")
        E(f"v_and_b32 v{t+9}, 3, v{t+8}\nv_mul_u32_u24 v{t+9}, {64*896}, v{t+9}")
        E(f"v_lshrrev_b32 v{t+10}, 2, v{t+8}\nv_mul_u32_u24 v{t+10}, 448, v{t+10}\nv_add_u32 v{t+9}, v{t+9}, v{t+10}")
        E(f"v_cmp_gt_u32 vcc, 8, v{t+8}\nv_mov_b32 v{t+10}, 0x7ff00000\ns_nop 0")
        E(f"v_cndmask_b32 v{t+9}, v{t+10}, v{t+9}, vcc")
        E(f"v_cmp_gt_u32 vcc, s{sNKV}, v1\ns_nop 1")
        E(f"v_cndmask_b32 v{vTab}, v{t+9}, v{t+7}, vcc")
        E(f"s_lshl_b32 s{sM0}, s{sWave}, 13")
        E(f"v_add_u32 v{vD}, s{sM0}, v{vLane16}")
        for p in range(1, 8): E(f"v_add_u32 v{vD+p}, {4096*(p>>2)}, v{vD}") if p >= 4 else E(f"v_mov_b32 v{vD+p}, v{vD}")
        E("s_waitcnt lgkmcnt(0)")
        def srd(s, lo, off, size):
            if isinstance(off, int) and off == 0: E(f"s_mov_b32 s{s}, s{lo}\ns_mov_b32 s{s+1}, s{lo+1}")
            else: E(f"s_add_u32 s{s}, s{lo}, {off}\ns_addc_u32 s{s+1}, s{lo+1}, 0")
            E(f"s_mov_b32 s{s+2}, {size}\ns_mov_b32 s{s+3}, 0x20000")
        srd(sDM, 4, WS_K, 32 << 20)
        E(f"s_lshl_b32 s45, s{sH}, 20")
        E(f"s_add_u32 s45, s45, {WS_Q}")
        srd(sQ, 4, "s45", 1 << 20)
        E(f"s_mov_b32 s{sN}, s70\ns_mov_b32 s{sT}, s71\ns_sub_u32 s{sQB}, 15, s{sPair}")
        E(f"s_xor_b32 s{sItem}, s{sType}, 1")
        E(f"s_cmp_lg_u32 s70, 0")
        sk = self.lab("n1ok")
        E(f"s_cbranch_scc1 {sk}")
        E(f"s_mov_b32 s{sN}, s72\ns_mov_b32 s{sT}, 0\ns_mov_b32 s{sQB}, s{sPair}\ns_mov_b32 s{sItem}, 1")
        E(f"{sk}:")
        E(f"s_cmp_lt_u32 s{sPair}, 7\ns_cselect_b32 s{sHasP}, 1, 0\ns_cmp_eq_u32 s{sType}, 0\ns_cselect_b32 s{sHasP}, s{sHasP}, 0")
        E(f"s_mov_b32 s{sSig}, 0\ns_mov_b32 s82, 1")
        if self.fused:
            self.wo_setup()
            self.publish_k1()
            if "nocpf" not in self.exp: code_prefetch_shared(E, f"{nm}_entry", 0xd600, nm + "_pf", 72, 74, 8, sWave, which=1)
            self.wait_k1()
        self.load_q()
        for c in range(4):
            E(f"v_readlane_b32 s{sOff}, v{vTab}, {c}")
            E(f"s_add_u32 m0, s{sM0}, {c*CH}")
            E("s_nop 3")
            for p in range(8):
                E(f"buffer_load_dwordx4 v{vD+p}, s[{sDM}:{sDM+3}], s{sOff} offen offset:{(p&3)*1024} lds")
                if p == 3: E("s_add_u32 m0, m0, 4096\ns_nop 0")
        if "nopf" not in self.exp: self.prefetch_weights()
        E(f"s_lshl_b32 s45, s{sH}, 3\ns_add_u32 s{sPI}, s45, s{sPair}")
        E(f"s_lshl_b32 s45, s{sPI}, 17")
        E(f"s_add_u32 s45, s45, {WS_PT}")
        srd(sPT, 4, "s45", 131072)
        E(f"s_mul_i32 s45, s{sH}, {128*14*1024}")
        E(f"s_add_u32 s45, s45, {WS_OP}")
        srd(sOP, 4, "s45", 128*14*1024)
        E(f"s_mul_i32 s45, s{sH}, {256*896}")
        srd(sWO, 6, "s45", 256*896)
        srd(sFL, 4, WS_FLG, FLG_BYTES)
        E(f"s_lshl_b32 s45, s{sPI}, 7\nv_mov_b32 v{vFL+1}, s45")
        E(f"s_mov_b32 s{sC}, 4")
        E(f"s_mov_b32 s{sWr}, {4*CH}")
        E(f"s_mov_b32 s{sRdN}, 0")
        E(f"v_mov_b32 v{vRA}, v{vLane16}")
        if not self.fused: self.wo_setup()
        E(f"s_waitcnt vmcnt({24 + (4 if 'nopf' not in self.exp else 0)})")
        E("s_barrier")
        for f in range(8): E(self.frag_read(32 + f, vRB, vRA))
        if "mid" not in self.exp: stamp_code(E, 1, self.stamps)

    def publish_k1(self):
        E = self.E; nm = self.name
        sk = f"{nm}_pubd"
        E(f"s_add_u32 s{sFL}, s4, {WS_FLG}\ns_addc_u32 s{sFL+1}, s5, 0\ns_mov_b32 s{sFL+2}, {FLG_BYTES}\ns_mov_b32 s{sFL+3}, 0x20000")
        E("s_waitcnt vmcnt(0)\ns_barrier")
        E(f"s_cmp_lg_u32 s{sWave}, 0\ns_cbranch_scc1 {sk}")
        E("v_mov_b32 v4, s90\nv_mov_b32 v5, s91\nv_cmp_eq_u32 vcc, 0, v0\nv_mov_b32 v6, s95\ns_nop 0\nv_cndmask_b32 v4, v5, v4, vcc")
        E(f"s_mov_b64 exec, 3\nbuffer_store_dword v6, v4, s[{sFL}:{sFL+3}], 0 offen sc1\ns_mov_b64 exec, -1")
        E(f"{sk}:")

    def wait_k1(self):
        E = self.E; nm = self.name
        sk, pl = f"{nm}_k1ok", f"{nm}_k1poll"
        E(f"s_add_u32 s{sFL}, s4, {WS_FLG}\ns_addc_u32 s{sFL+1}, s5, 0\ns_mov_b32 s{sFL+2}, {FLG_BYTES}\ns_mov_b32 s{sFL+3}, 0x20000")
        E(f"s_cmp_lg_u32 s{sWave}, 0\ns_cbranch_scc1 {sk}")
        E(f"s_lshl_b32 s45, s{sH}, 7\ns_add_u32 s45, s45, {HEAD_OFF}\nv_lshlrev_b32 v3, 2, v0\nv_add_u32 v3, s45, v3\ns_mov_b32 s46, 0")
        E("s_mov_b32 exec_hi, 0")
        E(f"{pl}:")
        E(f"buffer_load_dword v2, v3, s[{sFL}:{sFL+3}], 0 offen sc1")
        E("s_waitcnt vmcnt(0)")
        E("v_cmp_eq_u32 vcc, s95, v2\ns_nop 0")
        E(f"s_cmp_eq_u32 vcc_lo, -1\ns_cbranch_scc1 {pl}_ok")
        E("s_sleep 1")
        E(f"s_add_u32 s46, s46, 1\ns_cmp_lt_u32 s46, {SPIN_MAX}\ns_cbranch_scc1 {pl}")
        E(f"v_mov_b32 v2, 0xbad7\nv_mov_b32 v3, {FLG_ERR}\nbuffer_store_dword v2, v3, s[{sFL}:{sFL+3}], 0 offen")
        E(f"{pl}_ok:\ns_mov_b64 exec, -1")
        E(f"{sk}:")
        E("s_barrier")

    def load_q(self, next_item=False):
        E = self.E
        qb = sPair if next_item else sQB
        E(f"s_lshl_b32 s{sTmp}, s{qb}, 3\ns_lshl_b32 s{sTmp2}, s{sWave}, 1\ns_add_u32 s{sTmp}, s{sTmp}, s{sTmp2}\ns_lshl_b32 s{sTmp}, s{sTmp}, 13")
        for qt in range(2):
            for hh in range(2):
                E(f"s_add_u32 s{sTmp2}, s{sTmp}, {qt*8192 + hh*4096}")
                for d in range(4):
                    E(f"buffer_load_dwordx4 {a4(Q(qt, hh*4+d))}, v{vLane16}, s[{sQ}:{sQ+3}], s{sTmp2} offen offset:{d*1024}{' nt' if 'ntql' in self.exp else ''}")

    def wo_setup(self):
        E = self.E
        t = vT0
        for p in range(8):
            E(f"s_lshl_b32 s{sTmp}, s{sWave}, 9\ns_add_u32 s{sTmp}, s{sTmp}, {64*p}")
            E(f"v_add_u32 v{t}, s{sTmp}, v1")
            E(f"v_mul_u32_u24 v{t+1}, 9363, v{t}\nv_lshrrev_b32 v{t+1}, 18, v{t+1}")
            E(f"v_mul_u32_u24 v{t+2}, 28, v{t+1}\nv_sub_u32 v{t+3}, v{t}, v{t+2}")
            E(f"v_bfe_u32 v{t+2}, v{t+1}, 2, 1\nv_lshlrev_b32 v{t+2}, 1, v{t+2}\nv_xor_b32 v{t+3}, v{t+3}, v{t+2}")
            E(f"v_lshlrev_b32 v{t+3}, 4, v{t+3}\nv_mul_u32_u24 v{t+1}, 896, v{t+1}\nv_add_u32 v{t+3}, v{t+3}, v{t+1}")
            E(f"v_cmp_gt_u32 vcc, 1792, v{t}\nv_subrev_u32 v{t+3}, {(p&3)*1024}, v{t+3}\nv_mov_b32 v{t+2}, 0x7ff00000")
            E(f"v_add_u32 v{t+3}, 4096, v{t+3}")
            E(f"v_cndmask_b32 v{vW+p}, v{t+2}, v{t+3}, vcc")
        E(f"v_bfe_u32 v{t}, v1, 4, 2\nv_lshlrev_b32 v{t+1}, 2, v{t}\nv_bfe_u32 v{t+2}, v1, 2, 2\nv_add_u32 v{t+1}, v{t+1}, v{t+2}")
        E(f"v_mul_u32_u24 v{t+1}, 448, v{t+1}\nv_and_b32 v{t+2}, 3, v1\nv_lshlrev_b32 v{t+2}, 3, v{t+2}\nv_add_u32 v{t+1}, v{t+1}, v{t+2}")
        E(f"v_and_b32 v{t}, 1, v{t}\nv_lshlrev_b32 v{t}, 5, v{t}")
        E(f"v_add_u32 v{vWA}, v{t+1}, v{t}\nv_sub_u32 v{vWA+1}, v{t+1}, v{t}\nv_add_u32 v{vWA+1}, 32, v{vWA+1}")

    def rare_blocks(self):
        E = self.E
        for r in self.rare:
            if r[0] == "slow":
                E(f"{r[1]}:"); self.slow_block(r[3]); E(f"s_branch {r[2]}")
            elif r[0] == "switch":
                E(f"{r[1]}:")
                for p in range(8): E(f"v_mov_b32 v{vD+p}, v{vW+p}")
                E(f"s_sub_u32 s{sDM}, s{sWO}, 4096\ns_subb_u32 s{sDM+1}, s{sWO+1}, 0\ns_add_u32 s{sDM+2}, s{sWO+2}, 4096\ns_mov_b32 s{sDM+3}, 0x20000")
                E(f"s_branch {r[2]}")
            elif r[0] == "signal":
                sk = self.lab("nosig")
                E(f"{r[1]}:")
                E(f"s_mov_b32 s{sSig}, 0")
                E(f"s_cmp_lg_u32 s{sWave}, 0\ns_cbranch_scc1 {sk}")
                E(f"v_mov_b32 v254, s95" if self.fused else f"v_mov_b32 v254, 1")
                E("s_mov_b64 exec, 1")
                E(f"buffer_store_dword v254, v{vFL+1}, s[{sFL}:{sFL+3}], 0 offen sc1")
                E("s_mov_b64 exec, -1")
                E(f"{sk}:\ns_branch {r[2]}")
        self.rare = []

    def finish(self):
        E = self.E; nm = self.name
        E("s_nop 7")
        self.xlane2("v_add_f32", L_(0), L_(1), vT0, vT0 + 1)
        E(f"s_cmp_eq_u32 s{sItem}, 1")
        E(f"s_cbranch_scc1 {nm}_final")
        E(f"s_lshl_b32 s{sTmp}, s{sWave}, 15")
        for i in range(16):
            t = vT0 + (i % 2) * 12
            qt = i >> 3; s = i & 7
            src = [O(2*s, qt) + r for r in range(4)] + [O(2*s+1, qt) + r for r in range(4)]
            for r in range(8): E(f"v_accvgpr_read_b32 v{t+r}, a{src[r]}")
            for r in range(4): E(f"v_cvt_pk_bf16_f32 v{t+8+r}, v{t+2*r}, v{t+2*r+1}")
            E(f"s_add_u32 s{sTmp2}, s{sTmp}, {i*1024}")
            E(f"buffer_store_dwordx4 v[{t+8}:{t+11}], v{vLane16}, s[{sPT}:{sPT+3}], s{sTmp2} offen sc1")
        E(f"v_mov_b32 v{vPM}, v{M_(0)}\nv_mov_b32 v{vPM+1}, v{M_(1)}\nv_mov_b32 v{vPM+2}, v{L_(0)}\nv_mov_b32 v{vPM+3}, v{L_(1)}")
        E(f"s_add_u32 s{sTmp2}, s{sTmp}, 16384")
        E(f"buffer_store_dwordx4 v[{vPM}:{vPM+3}], v{vLane16}, s[{sPT}:{sPT+3}], s{sTmp2} offen sc1")
        E(f"s_lshl_b32 s{sTmp}, s{sPair}, 1\ns_add_u32 s{sN}, s{sTmp}, 2\ns_mov_b32 s{sT}, 0\ns_mov_b32 s{sQB}, s{sPair}\ns_mov_b32 s{sItem}, 1")
        E(f"s_mov_b32 s{sSig}, 1")
        E("s_waitcnt vmcnt(25)")
        E(f"s_branch {nm}_item")
        E(f"{nm}_final:")
        E(f"s_cmp_eq_u32 s{sHasP}, 0")
        E(f"s_cbranch_scc1 {nm}_plain")
        E("s_waitcnt vmcnt(8)")
        for qt in range(2):
            mB, lB = vPM + qt, vPM + 2 + qt
            ms, fA, fB = vT0 + 12, vT0 + 13, vT0 + 14
            E(f"v_max_f32 v{ms}, v{M_(qt)}, v{mB}")
            E(f"v_sub_f32 v{fA}, v{M_(qt)}, v{ms}\nv_sub_f32 v{fB}, v{mB}, v{ms}")
            E(f"v_exp_f32 v{fA}, v{fA}\nv_exp_f32 v{fB}, v{fB}\ns_nop 0")
            E(f"v_mul_f32 v{ms}, v{L_(qt)}, v{fA}\nv_fmac_f32 v{ms}, v{lB}, v{fB}")
            E(f"v_rcp_f32 v{ms}, v{ms}\ns_nop 0")
            E(f"v_mul_f32 v{vT0+8+qt}, v{fA}, v{ms}\nv_mul_f32 v{vT0+10+qt}, v{fB}, v{ms}")
        self.oproj_first("A")
        E(f"s_branch {nm}_oproj3")
        E(f"{nm}_plain:")
        for qt in range(2): E(f"v_rcp_f32 v{vT0+8+qt}, v{L_(qt)}")
        E("s_nop 0")
        self.oproj_first("P")
        E(f"{nm}_oproj3:")
        self.oproj_rest()

    def conv_unit(self, mode, qt, s, n):
        src = [O(2*s, qt) + r for r in range(4)] + [O(2*s+1, qt) + r for r in range(4)]
        t = 10 + (n % 2) * 12; c = 64 + 4 * (qt * 8 + s)
        u = [f"v_accvgpr_read_b32 v{t+r}, a{src[r]}" for r in range(8)]
        u += [f"v_mul_f32 v{t+r}, v{t+r}, v{vT0+8+qt}" for r in range(8)]
        for r in range(4):
            if mode == "A":
                u += [f"v_lshlrev_b32 v{t+8}, 16, v{c+r}", f"v_and_b32 v{t+9}, 0xffff0000, v{c+r}",
                      f"v_fmac_f32 v{t+2*r}, v{t+8}, v{vT0+10+qt}", f"v_fmac_f32 v{t+2*r+1}, v{t+9}, v{vT0+10+qt}"]
            u.append(f"v_cvt_pk_bf16_f32 v{c+r}, v{t+2*r}, v{t+2*r+1}")
        return [(4, x) for x in u]

    def oproj_first(self, mode):
        self.oproj(mode)
    def oproj_rest(self):
        self.oproj(None)
    def oproj(self, mode):
        E = self.E; nm = self.name
        C = lambda qt, s: 64 + (qt * 8 + s) * 4
        WFR = lambda f: 128 + (f % 16) * 4
        OUT = lambda ps, mb, qt: ((128 if ps == 0 else 0) + (mb * 2 + qt) * 4)
        AD = lambda k, par: 242 + (k & 1) * 2 + par
        D = 6
        def rd(k, f):
            sl, mb = divmod(f, 14)
            fr = WFR(k * 28 + f)
            base = AD(k, mb & 1); off = sl * 14336 + (mb & ~1) * 32
            return [f"ds_read_b64_tr_b16 v[{fr}:{fr+1}], v{base} offset:{off}",
                    f"ds_read_b64_tr_b16 v[{fr+2}:{fr+3}], v{base} offset:{off + 7168}"]
        if mode:
            if "nocpf" not in self.exp: code_prefetch_shared(E, "tl_start", 0x5000, nm + "_t" + mode, 72, 74, 8, sWave)
            if "mid" not in self.exp and "ist" not in self.exp: stamp_code(E, 3, self.stamps)
            for par in range(2): E(f"v_add_u32 v{AD(0,par)}, s{sRdN}, v{vWA+par}")
            for f in range(D):
                for l in rd(0, f): E(l)
            nn = 0
            for s_ in range(2):
                for qt in range(2):
                    for c_, t_ in self.conv_unit(mode, qt, s_, nn): E(t_)
                    nn += 1
            E("s_nop 1")
        if mode: E(f"s_lshl_b32 s{sTmp}, s{sQB}, 3\ns_lshl_b32 s{sTmp2}, s{sWave}, 1\ns_add_u32 s{sTmp}, s{sTmp}, s{sTmp2}\ns_mul_i32 s70, s{sTmp}, {14*1024}")
        def units(ps):
            us = []; n = 0
            for qt in range(2):
                for ms in range(7):
                    t = 168 + (n % 2) * 12 if False else 200 + (n % 2) * 12; n += 1
                    src = [OUT(ps, 2*ms, qt) + r for r in range(4)] + [OUT(ps, 2*ms+1, qt) + r for r in range(4)]
                    u = [(4, f"v_accvgpr_read_b32 v{t+r}, a{src[r]}") for r in range(8)]
                    u += [(4, f"v_cvt_pk_bf16_f32 v{t+8+r}, v{t+2*r}, v{t+2*r+1}") for r in range(4)]
                    u += [(12, f"s_add_u32 s71, s70, {(qt*14 + ps*7 + ms)*1024}\nbuffer_store_dwordx4 v[{t+8}:{t+11}], v{vLane16}, s[{sOP}:{sOP+3}], s71 offen{' sc1' if 'wt' in self.exp else ''}")]
                    us.append(u)
            return us
        pend = []
        nst = 0
        hist = []
        log = [("D", k) for k in range(4) for _ in range(8)]
        if not mode: log += [("D", k) for k in range(4, 7) for _ in range(8)]
        for k in (range(3) if mode else range(3, 8)):
            ps, sp = divmod(k, 4)
            mf = []
            for sl in range(2):
                s = 2 * sp + sl
                for mb in range(14):
                    for qt in range(2):
                        d = a4(OUT(ps, mb, qt)); c = "0" if s == 0 else d
                        mf.append(f"v_mfma_f32_16x16x32_bf16 {d}, {v4(WFR(k*28 + sl*14 + mb))}, {v4(C(qt, s))}, {c}")
            n = len(mf)
            Sc = Sched(n)
            for f in range(28):
                ff = f + D
                if ff < 28: r = rd(k, ff)
                elif k + 1 < 8: r = rd(k + 1, ff - 28)
                else: continue
                Sc.put(2 * f, 4, r[0]); Sc.put(2 * f + 1, 4, r[1])
            if k + 1 < 8:
                idx = max(i for i, t in enumerate(log) if t == ("D", k + 1))
                w = len(log) - 1 - idx
                nxt = [(AD(k + 1, 0), vWA), (AD(k + 1, 1), vWA + 1)]
                if k + 4 < 8:
                    self.head_items(Sc, nxt, w, dma_gaps=[9, 14, 19, 24, 29, 34, 39, 43], nt=(' nt' if 'ntwo' in self.exp else ''))
                    order_d = [(g, ("D", k + 4)) for g in [9, 14, 19, 24, 29, 34, 39, 43]]
                else:
                    Sc.put(1, 0, f"s_waitcnt vmcnt({w})\ns_barrier")
                    Sc.put(3, 0, f"s_add_u32 s{sRdN}, s{sRdN}, {CH}\ns_cmp_eq_u32 s{sRdN}, {NS*CH}\ns_cselect_b32 s{sRdN}, 0, s{sRdN}")
                    Sc.put(3, 4, f"v_add_u32 v{nxt[0][0]}, s{sRdN}, v{nxt[0][1]}"); Sc.put(4, 4, f"v_add_u32 v{nxt[1][0]}, s{sRdN}, v{nxt[1][1]}")
                    order_d = []
            else: order_d = []
            if k == 4: pend = [x for u in units(0) for x in u]
            if mode:
                pend = []
                for s_ in (2 * k + 2, 2 * k + 3):
                    for qt in range(2):
                        pend += self.conv_unit(mode, qt, s_, nn); nn += 1
            order_s = []
            if pend:
                cur = 6; j = 0; nun = 0
                while j < len(pend):
                    c, t = pend[j]; g = cur
                    while g < n and Sc.c[g] + (c if c < 12 else 4) > (8 if c < 12 else 8): g += 1
                    if g >= n - (2 if mode else 0): break
                    Sc.put(g, c, t); cur = g; j += 1
                    if c == 12:
                        order_s.append((g, ("S", 0))); nun += 1; cur = g + 1
                        if nun >= 4: break
                pend = pend[j:]
            before = {}
            for i in range(0, n, 4):
                f = i // 2
                rem = D - 2
                if k == 7: rem = min(D - 2, 26 - f)
                before[i] = [f"s_waitcnt lgkmcnt({2*max(rem,0)})"]
            Sc.emit(E, mf, before)
            for g, tg in sorted(order_d + order_s): log.append(tg)
            if mode:
                for c, t in pend: E(t)
                pend = []
                E("s_nop 1")
        if mode: return
        for c, t in pend: E(t)
        if "mid" not in self.exp and "ist" not in self.exp: stamp_code(E, 4, self.stamps)
        E("s_nop 7")
        fill = list(getattr(self, "weave", []))
        un = units(1)
        per = (len(fill) + len(un) - 1) // len(un)
        for u in un:
            for c, t in u: E(t)
            k = min(per, len(fill))
            while k < len(fill) and fill[k].startswith(("s_addc", "s_cselect", "s_subb", "s_cbranch")): k += 1
            for l in fill[:k]: E(l)
            fill = fill[k:]
        for l in fill: E(l)

    def tail_prefetch(self):
        E = self.E
        E(f"s_lshl_b32 s{sTmp}, s2, 2\ns_add_u32 s{sTmp}, s{sTmp}, s{sWave}\ns_mul_i32 s{sTmp}, s{sTmp}, 1568")
        E("v_min_u32 v2, 24, v1\nv_lshlrev_b32 v2, 6, v2")
        for i, lo in enumerate((64, 66, 68)):
            E(f"s_mov_b32 s56, s{lo}\ns_mov_b32 s57, s{lo+1}\ns_mov_b32 s58, {448*1792*2}\ns_mov_b32 s59, 0x20000")
            E(f"buffer_load_dword v{3+i}, v2, s[56:59], s{sTmp} offen")

    def prefetch_weights(self):
        E = self.E
        self.tail_prefetch()
        E(f"s_mov_b32 s56, s6\ns_mov_b32 s57, s7\ns_mov_b32 s58, {16*256*896}\ns_mov_b32 s59, 0x20000")
        E(f"s_lshl_b32 s45, s2, 2\ns_add_u32 s45, s45, s{sWave}\ns_mul_i32 s45, s45, 3584")
        E("v_lshlrev_b32 v2, 6, v1\nbuffer_load_dword v3, v2, s[56:59], s45 offen")

    def gen(self):
        E = self.E; nm = self.name
        self.prologue()
        E(f"{nm}_item:")
        self.item_loop()
        if "ist" in self.exp: self.stamps_tail = False
        if "mid" not in self.exp and "ist" not in self.exp: stamp_code(E, 2, self.stamps)
        tail.NT[0] = " nt" if "ntff" in self.exp else ""
        tail.NT1[0] = " nt" if "ntop" in self.exp else ""
        self.weave, t2, c1 = tail.tail_setup()
        self.finish()
        if "notail" not in self.exp:
            tail.NONCE[0] = self.fused
            tail.gen_tail(E, nm, lambda i: stamp_code(E, i, self.stamps and "ist" not in self.exp), t2, c1)
        if self.stamps:
            stamp_code(E, 11, True)
            E("s_waitcnt vmcnt(0)")
            stamp_code(E, 12, True)
            stamp_dump(E, 13, nm, 4)
        E("s_endpgm")
        E("tl_end:")
        self.rare_blocks()
        E(f"{nm}_end:")
        E("s_endpgm")
        return E.text()

def gen_k2(name="k2_kernel", **kw):
    return K2(name, **kw).gen()
```

```python
from asmlib import *
from ws import *
from k1 import SPIN_MAX
HSTR = 128 * 14 * 1024
sFL, sWave, sU, sQB, sWS = 28, 32, 33, 43, 4
sWG, sWU, sWD, sX, sOUT = 64, 66, 68, 78, 80
CNT0 = 16384
T = 45

def srd(E, s, lo, off, size):
    if off == 0: E(f"s_mov_b32 s{s}, s{lo}\ns_mov_b32 s{s+1}, s{lo+1}")
    else: E(f"s_add_u32 s{s}, s{lo}, {off}\ns_addc_u32 s{s+1}, s{lo+1}, 0")
    E(f"s_mov_b32 s{s+2}, {size}\ns_mov_b32 s{s+3}, 0x20000")

NONCE = [False]
NT = ['']
SLEEP = ['s_sleep 1']
NT1 = ['']
def cnt_off(E, which):
    E(f"s_mul_i32 s{T}, s{sQB}, 384\ns_add_u32 s{T}, s{T}, {CNT0 + 128*which}")
def signal(E, uid, inc):
    E("s_waitcnt vmcnt(0)\ns_barrier")
    sk = f"tl_sig{uid}"
    E(f"s_cmp_lg_u32 s{sWave}, 0\ns_cbranch_scc1 {sk}")
    cnt_off(E, uid - 1)
    E(f"s_lshl_b32 s{T+1}, s{sU}, 2\ns_add_u32 s{T}, s{T}, s{T+1}")
    E(f"v_mov_b32 v42, {'s95' if NONCE[0] else 1}\nv_mov_b32 v43, s{T}")
    E("s_mov_b64 exec, 1")
    E(f"buffer_store_dword v42, v43, s[{sFL}:{sFL+3}], 0 offen sc1")
    E("s_mov_b64 exec, -1")
    E(f"{sk}:")

def wait(E, uid, shift, target):
    sk, pl = f"tl_w{uid}", f"tl_p{uid}"
    mask = (1 << target) - 1
    E(f"s_cmp_lg_u32 s{sWave}, 0\ns_cbranch_scc1 {sk}")
    cnt_off(E, uid - 1)
    E(f"v_lshlrev_b32 v43, 2, v0\nv_add_u32 v43, s{T}, v43\ns_mov_b32 s{T+1}, 0")
    E(f"s_mov_b64 exec, {mask}")
    E(f"{pl}:")
    E(f"buffer_load_dword v42, v43, s[{sFL}:{sFL+3}], 0 offen sc1")
    E("s_waitcnt vmcnt(0)")
    E("v_cmp_eq_u32 vcc, s95, v42" if NONCE[0] else "v_cmp_ne_u32 vcc, 0, v42")
    E("s_nop 0")
    E(f"s_cmp_eq_u32 vcc_lo, {mask}\ns_cbranch_scc1 {pl}_ok")
    E(SLEEP[0])
    E(f"s_add_u32 s{T+1}, s{T+1}, 1\ns_cmp_lt_u32 s{T+1}, {SPIN_MAX}")
    E(f"s_cbranch_scc1 {pl}")
    E(f"v_mov_b32 v42, {0xbad3 + uid}\nv_mov_b32 v43, {FLG_ERR}\nbuffer_store_dword v42, v43, s[{sFL}:{sFL+3}], 0 offen")
    E(f"{pl}_ok:")
    E("s_mov_b64 exec, -1")
    E(f"{sk}:")
    E("s_barrier")

NH, NW = 10, 5
WB = NH * 8192
class T2:
    HF = staticmethod(lambda st, qt: 64 + st * 48 + qt * 4)
    WF = staticmethod(lambda st, m, fb: 64 + st * 48 + 16 + (m * 4 + fb) * 4)
    DH = staticmethod(lambda i: 16 + i)
    DW = staticmethod(lambda i: 18 + i)
    GA = staticmethod(lambda fb, qt: (fb * 4 + qt) * 4)
    UA = staticmethod(lambda fb, qt: 64 + (fb * 4 + qt) * 4)
    sHN, sG, sUp, sO = 8, 12, 16, 20
    def __init__(self, E): self.E = E; self.vm = []
    def setup(self):
        E = self.E
        E("v_and_b32 v1, 63, v0\nv_lshrrev_b32 v2, 6, v0\nv_lshlrev_b32 v3, 4, v1")
        E(f"v_mul_u32_u24 v4, {2*14336}, v2\nv_add_u32 v4, v4, v3")
        E(f"v_mov_b32 v{self.DH(0)}, v4\nv_add_u32 v{self.DH(1)}, {14336-1024}, v4")
        for i in range(2):
            E(f"v_lshlrev_b32 v4, 3, v2\nv_add_u32 v4, {4*i}, v4\nv_lshrrev_b32 v5, 4, v1\nv_add_u32 v4, v4, v5")
            E("v_and_b32 v5, 7, v4\nv_lshlrev_b32 v5, 1, v5\nv_and_b32 v6, 15, v1\nv_xor_b32 v5, v5, v6\nv_lshlrev_b32 v5, 4, v5")
            E(f"v_mul_u32_u24 v4, 3584, v4\nv_add_u32 v4, v4, v5")
            E(f"v_subrev_u32 v{self.DW(i)}, {i*1024}, v4")
        E(f"s_mul_i32 s{T}, s{sQB}, {8*14336}\ns_add_u32 s{T}, s{T}, {WS_HN}")
        srd(E, self.sHN, sWS, f"s{T}", 8 * 14336)
        E(f"s_lshl_b32 s{T}, s{sU}, 8")
        srd(E, self.sG, sWG, f"s{T}", 448 * 3584); E(f"s_sub_u32 s{self.sG+2}, s{self.sG+2}, s{T}")
        srd(E, self.sUp, sWU, f"s{T}", 448 * 3584); E(f"s_sub_u32 s{self.sUp+2}, s{self.sUp+2}, s{T}")
        E(f"s_lshl_b32 s52, s{sWave}, 11")
        E("v_lshrrev_b32 v4, 7, v0\nv_lshlrev_b32 v4, 12, v4\nv_add_u32 v20, v4, v3\nv_add_u32 v21, 0x10000, v20")
        E("v_bfe_u32 v4, v1, 4, 2\nv_lshlrev_b32 v4, 2, v4\nv_bfe_u32 v5, v1, 2, 2\nv_add_u32 v4, v4, v5")
        E("v_and_b32 v5, 7, v4")
        E(f"v_lshlrev_b32 v4, 8, v4\nv_and_b32 v6, 3, v1\nv_lshlrev_b32 v6, 3, v6\nv_add_u32 v4, v4, v6\nv_add_u32 v4, {WB}, v4")
        E("v_bfe_u32 v6, v0, 6, 1\nv_lshlrev_b32 v6, 2, v6")
        for fb in range(4):
            E(f"v_add_u32 v7, {fb}, v6\nv_xor_b32 v7, v7, v5\nv_lshlrev_b32 v7, 5, v7\nv_add_u32 v{24+2*fb}, v7, v4\nv_add_u32 v{25+2*fb}, 0x10000, v{24+2*fb}")
    def dmaW(self, s):
        base = WB + (s % NW) * 16384
        u = [f"s_add_u32 m0, s52, {base}\ns_mov_b32 s53, {s*32*3584}\nbuffer_load_dwordx4 v{self.DW(0)}, s[{self.sG}:{self.sG+3}], s53 offen{NT[0]} lds",
             f"buffer_load_dwordx4 v{self.DW(1)}, s[{self.sG}:{self.sG+3}], s53 offen offset:1024{NT[0]} lds",
             f"s_add_u32 m0, s52, {base+8192}\ns_nop 0\nbuffer_load_dwordx4 v{self.DW(0)}, s[{self.sUp}:{self.sUp+3}], s53 offen{NT[0]} lds",
             f"buffer_load_dwordx4 v{self.DW(1)}, s[{self.sUp}:{self.sUp+3}], s53 offen offset:1024{NT[0]} lds"]
        self.vm.extend([("W", s)] * 4); return u
    def dmaH(self, s):
        base = (s % NH) * 8192
        u = [f"s_add_u32 m0, s52, {base}\ns_mov_b32 s53, {s*1024}\nbuffer_load_dwordx4 v{self.DH(0)}, s[{self.sHN}:{self.sHN+3}], s53 offen lds",
             f"buffer_load_dwordx4 v{self.DH(1)}, s[{self.sHN}:{self.sHN+3}], s53 offen offset:1024 lds"]
        self.vm.extend([("H", s)] * 2); return u
    def need(self, s):
        idx = max(i for i, t in enumerate(self.vm) if t in (("W", s), ("H", s))); return len(self.vm) - 1 - idx
    def reads(self, s, st):
        hs = s % NH; hb, hr = (hs * 8192, 20) if hs < 8 else (hs * 8192 - 65536, 21)
        wsl = s % NW; wb, wo = (wsl * 16384, 0) if wsl < 4 else (wsl * 16384 - 65536, 1)
        hn = [f"ds_read_b128 v[{self.HF(st,qt)}:{self.HF(st,qt)+3}], v{hr} offset:{hb + qt*1024}" for qt in range(4)]
        w = []
        for fb in range(4):
            for m in range(2):
                for t in range(2):
                    w.append(f"ds_read_b64_tr_b16 v[{self.WF(st,m,fb)+2*t}:{self.WF(st,m,fb)+2*t+1}], v{24+2*fb+wo} offset:{wb + m*8192 + t*4096}")
        return [hn[0]] + w[:4] + hn[1:] + w[4:]
    def pre(self):
        for s in range(NW - 1):
            for u in self.dmaW(s): self.E(u)
    def main(self):
        E = self.E
        self.vm = [("W", s) for s in range(NW - 1) for _ in range(4)]
        nh = 5
        for s in range(nh):
            for u in self.dmaH(s): E(u)
        E(f"s_mul_i32 s{T}, s{sQB}, {8*56*1024}\ns_add_u32 s{T}, s{T}, {WS_HM}")
        srd(E, self.sO, sWS, f"s{T}", 8 * 56 * 1024)
        E(f"s_waitcnt vmcnt({self.need(0)})\ns_barrier")
        for u in self.reads(0, 0): E(u)
        for s in range(14):
            st = s & 1
            Sc = Sched(32)
            if s + 1 < 14:
                E(f"s_waitcnt vmcnt({self.need(s+1)}) lgkmcnt(0)\ns_barrier")
                for k, t in enumerate(self.reads(s + 1, st ^ 1)): Sc.put(k, 4, t)
                d = []
                k_ = 0
                while nh < 14 and nh <= s + NH - 1 and k_ < 2:
                    d += self.dmaH(nh); nh += 1; k_ += 1
                if s + NW - 1 < 14: d += self.dmaW(s + NW - 1)
                gaps = [20, 21, 22, 24, 26, 28, 30, 31][:len(d)] if len(d) > 6 else [20, 22, 24, 26, 28, 30][:len(d)]
                for g, t in zip(gaps, d): Sc.put(g, 12, t)
            else:
                E("s_waitcnt lgkmcnt(0)")
            mf = []
            for fb in range(4):
                for qt in range(4):
                    for m in range(2):
                        a = (self.GA if m == 0 else self.UA)(fb, qt); d_ = f"a[{a}:{a+3}]"
                        mf.append(f"v_mfma_f32_16x16x32_bf16 {d_}, v[{self.WF(st,m,fb)}:{self.WF(st,m,fb)+3}], v[{self.HF(st,qt)}:{self.HF(st,qt)+3}], {'0' if s == 0 else d_}")
            Sc.emit(E, mf)
        E("s_nop 7")
        E(f"v_lshrrev_b32 v4, 7, v0\nv_mul_u32_u24 v4, {4*56*1024}, v4\nv_add_u32 v4, v4, v3")
        E("v_bfe_u32 v5, v0, 6, 1\nv_lshlrev_b32 v5, 11, v5\nv_add_u32 v4, v4, v5")
        E(f"s_lshl_b32 s{T}, s{sU}, 12")
        n = 0
        for qt in range(4):
            for k in range(2):
                t = 160 + (n % 2) * 24; n += 1
                for j in range(2):
                    for r in range(4):
                        E(f"v_accvgpr_read_b32 v{t+4*j+r}, a{self.GA(2*k+j, qt)+r}")
                        E(f"v_accvgpr_read_b32 v{t+8+4*j+r}, a{self.UA(2*k+j, qt)+r}")
                for r in range(8): E(f"v_max_f32 v{t+r}, 0, v{t+r}")
                for r in range(8): E(f"v_mul_f32 v{t+r}, v{t+r}, v{t+8+r}")
                for r in range(4): E(f"v_cvt_pk_bf16_f32 v{t+16+r}, v{t+2*r}, v{t+2*r+1}")
                E(f"s_add_u32 s53, s{T}, {qt*56*1024 + k*1024}")
                E(f"buffer_store_dwordx4 v[{t+16}:{t+19}], v4, s[{self.sO}:{self.sO+3}], s53 offen sc1")

def t1_part(E):
    LDS = 0
    sOPs, sXs, sH_, sHN_ = 8 + 16, 8 + 0, 0, 0
    sOPs, sXs, sHo, sHNo = 56, 60, 24, 36
    srd(E, sOPs, sWS, WS_OP, 16 * HSTR)
    srd(E, sXs, sX, 0, 2048 * 896)
    srd(E, sHo, sWS, WS_H, 2048 * 896)
    srd(E, sHNo, sWS, WS_HN, 2048 * 896)
    E("v_and_b32 v36, 7, v1\nv_bfe_u32 v37, v1, 3, 2\nv_lshrrev_b32 v38, 5, v1")
    E(f"s_lshl_b32 s{T}, s{sQB}, 3\ns_lshr_b32 s{T+1}, s{sU}, 1\ns_add_u32 s{T}, s{T}, s{T+1}")
    E(f"s_and_b32 s{T+1}, s{sU}, 1\ns_lshl_b32 s{T+1}, s{T+1}, 3")
    E(f"s_mul_i32 s{T+2}, s{T}, 14336")
    E(f"v_lshlrev_b32 v39, 4, v37\nv_add_u32 v39, v39, v36\nv_add_u32 v39, s{T+1}, v39\nv_lshlrev_b32 v39, 4, v39")
    E(f"v_lshlrev_b32 v40, 10, v38\nv_add_u32 v39, v39, v40\nv_add_u32 v39, s{T+2}, v39")
    E(f"s_lshl_b32 s{T+2}, s{sQB}, 7\ns_lshl_b32 s{T+3}, s{sU}, 3\ns_add_u32 s{T+2}, s{T+2}, s{T+3}")
    E(f"v_add_u32 v41, s{T+2}, v36\nv_mul_u32_u24 v41, 896, v41\nv_lshlrev_b32 v40, 6, v38\nv_add_u32 v41, v41, v40\nv_lshlrev_b32 v40, 3, v37\nv_add_u32 v41, v41, v40")
    for k in range(2):
        E(f"s_add_u32 s{T}, s{sWave}, {4*k}")
        E(f"s_lshl_b32 s{54+k}, s{T}, 11")
        E(f"s_lshl_b32 s{T+1}, s{T}, 7")
        if k == 1:
            E(f"s_cmp_lt_u32 s{T}, 7\ns_cselect_b32 s{54+k}, s{54+k}, 0x7ff00000\ns_cselect_b32 s{T+1}, s{T+1}, 0x7ff00000")
        E(f"buffer_load_dwordx2 v[{48+4*k}:{49+4*k}], v41, s[{sXs}:{sXs+3}], s{T+1} offen")
        E(f"buffer_load_dwordx2 v[{50+4*k}:{51+4*k}], v41, s[{sXs}:{sXs+3}], s{T+1} offen offset:32")
    return dict(LDS=LDS, sOPs=sOPs, sHo=sHo, sHNo=sHNo)

def t1_main(E, c):
    LDS, sOPs, sHo, sHNo = c["LDS"], c["sOPs"], c["sHo"], c["sHNo"]
    D = lambda k, h: 64 + k * 64 + h * 4
    for k in range(2):
        for h in range(16):
            E(f"s_add_u32 s{T}, s{54+k}, {h*HSTR}")
            E(f"buffer_load_dwordx4 v[{D(k,h)}:{D(k,h)+3}], v39, s[{sOPs}:{sOPs+3}], s{T} offen{NT1[0]}")
    A = lambda k: 192 + 8 * k
    for k in range(2):
        for h in range(16):
            if h % 4 == 0: E(f"s_waitcnt vmcnt({32 - (k*16 + h + 4)})")
            for r in range(4):
                src = D(k, h) + r
                if h == 0:
                    E(f"v_lshlrev_b32 v{A(k)+2*r}, 16, v{src}\nv_and_b32 v{A(k)+2*r+1}, 0xffff0000, v{src}")
                else:
                    t = 44 + (r & 1) * 2
                    E(f"v_lshlrev_b32 v{t}, 16, v{src}\nv_and_b32 v{t+1}, 0xffff0000, v{src}")
                    E(f"v_pk_add_f32 v[{A(k)+2*r}:{A(k)+2*r+1}], v[{A(k)+2*r}:{A(k)+2*r+1}], v[{t}:{t+1}]")
        for r in range(4):
            xs = 48 + 4*k + r
            E(f"v_lshlrev_b32 v44, 16, v{xs}\nv_and_b32 v45, 0xffff0000, v{xs}")
            E(f"v_add_f32 v{A(k)+2*r}, v{A(k)+2*r}, v44\nv_add_f32 v{A(k)+2*r+1}, v{A(k)+2*r+1}, v45")
            E(f"v_cvt_pk_bf16_f32 v{208+4*k+r}, v{A(k)+2*r}, v{A(k)+2*r+1}")
            E(f"v_lshlrev_b32 v{A(k)+2*r}, 16, v{208+4*k+r}\nv_and_b32 v{A(k)+2*r+1}, 0xffff0000, v{208+4*k+r}")
    E(f"buffer_store_dwordx4 v[208:211], v39, s[{sHo}:{sHo+3}], s54 offen sc1")
    E(f"buffer_store_dwordx4 v[212:215], v39, s[{sHo}:{sHo+3}], s55 offen sc1")
    E("v_add_f32 v216, v192, v193\nv_mul_f32 v217, v192, v192\nv_fmac_f32 v217, v193, v193")
    for r in range(194, 208): E(f"v_add_f32 v216, v216, v{r}\nv_fmac_f32 v217, v{r}, v{r}")
    E("s_nop 1")
    E("v_add_f32_dpp v216, v216, v216 row_ror:8 row_mask:0xf bank_mask:0xf\nv_add_f32_dpp v217, v217, v217 row_ror:8 row_mask:0xf bank_mask:0xf")
    for sw in ("v_permlane16_swap_b32", "v_permlane32_swap_b32"):
        E("v_mov_b32 v218, v216\nv_mov_b32 v219, v217\ns_nop 0")
        E(f"{sw} v216, v218\n{sw} v217, v219\ns_nop 0")
        E("v_add_f32 v216, v216, v218\nv_add_f32 v217, v217, v219")
    E(f"v_lshlrev_b32 v220, 3, v36\ns_lshl_b32 s{T}, s{sWave}, 6\ns_add_u32 s{T}, s{T}, {LDS}\nv_add_u32 v221, s{T}, v220")
    E("s_mov_b64 exec, 0xff\nds_write_b64 v221, v[216:217]\ns_mov_b64 exec, -1")
    E("s_waitcnt lgkmcnt(0)\ns_barrier")
    E(f"v_add_u32 v220, {LDS}, v220")
    for w in range(4): E(f"ds_read_b64 v[{222+2*w}:{223+2*w}], v220 offset:{64*w}")
    E("s_waitcnt lgkmcnt(0)")
    E("v_add_f32 v216, v222, v224\nv_add_f32 v217, v223, v225\nv_add_f32 v218, v226, v228\nv_add_f32 v219, v227, v229")
    E("v_add_f32 v216, v216, v218\nv_add_f32 v217, v217, v219")
    E("v_mul_f32 v216, 0x3b124925, v216")
    E("v_mul_f32 v217, 0x3b124925, v217")
    E("v_fma_f32 v217, -v216, v216, v217")
    E("v_max_f32 v217, 0, v217")
    E("v_add_f32 v217, 0x3727c5ac, v217")
    E("v_rsq_f32 v217, v217\ns_nop 0")
    for r in range(192, 208): E(f"v_sub_f32 v{r}, v{r}, v216")
    for r in range(192, 208): E(f"v_mul_f32 v{r}, v{r}, v217")
    for r in range(8): E(f"v_cvt_pk_bf16_f32 v{208+r}, v{192+2*r}, v{193+2*r}")
    E(f"buffer_store_dwordx4 v[208:211], v39, s[{sHNo}:{sHNo+3}], s54 offen sc1")
    E(f"buffer_store_dwordx4 v[212:215], v39, s[{sHNo}:{sHNo+3}], s55 offen sc1")

class T3:
    NSL = 10; DEP = 8; NB = 8
    sHM, sWDs, sH, sO = 8, 12, 16, 20
    def __init__(self, E): self.E = E; self.vm = []
    def BF(self, s, qt): return 64 + (s % self.NB) * 16 + qt * 4
    def WF(self, st, mb): return 192 + st * 16 + mb * 4
    def setup(self):
        E = self.E
        E(f"s_cmp_ge_u32 s{sU}, 7\ns_cselect_b32 s{T}, 1, 0\ns_lshl_b32 s54, s{sQB}, 1\ns_add_u32 s54, s54, s{T}\ns_mul_i32 s{T}, s{T}, 7\ns_sub_u32 s55, s{sU}, s{T}")
        E("v_and_b32 v1, 63, v0\nv_lshlrev_b32 v3, 4, v1")
        E("v_lshrrev_b32 v4, 3, v1\nv_bfe_u32 v5, v4, 1, 2\nv_lshlrev_b32 v5, 1, v5\nv_and_b32 v6, 7, v1\nv_xor_b32 v5, v5, v6\nv_lshlrev_b32 v5, 4, v5")
        E("v_mul_u32_u24 v4, 896, v4\nv_add_u32 v4, v4, v5")
        for p in range(4): E(f"v_add_u32 v{16+p}, {p*(8*896-1024)}, v4")
        E(f"s_mul_i32 s{T}, s54, {4*56*1024}\ns_mul_i32 s{T+1}, s{sWave}, {14*1024}\ns_add_u32 s{T}, s{T}, s{T+1}\ns_add_u32 s{T}, s{T}, {WS_HM}")
        srd(E, self.sHM, sWS, f"s{T}", 4 * 56 * 1024); E(f"s_sub_u32 s{self.sHM+2}, s{self.sHM+2}, s{T+1}")
        E(f"s_mul_i32 s{T}, s{sWave}, {14*32*896}\ns_lshl_b32 s{T+1}, s55, 7\ns_add_u32 s{T}, s{T}, s{T+1}")
        srd(E, self.sWDs, sWD, f"s{T}", 1792 * 896); E(f"s_sub_u32 s{self.sWDs+2}, s{self.sWDs+2}, s{T}")
        E(f"s_mul_i32 s52, s{sWave}, {10*4096}")
        E("v_bfe_u32 v4, v1, 4, 2\nv_lshlrev_b32 v4, 2, v4\nv_bfe_u32 v5, v1, 2, 2\nv_add_u32 v4, v4, v5")
        E("v_bfe_u32 v5, v4, 1, 2\nv_lshlrev_b32 v4, 7, v4\nv_and_b32 v6, 3, v1\nv_lshlrev_b32 v6, 3, v6\nv_add_u32 v4, v4, v6\nv_add_u32 v4, s52, v4")
        for mb in range(4): E(f"v_xor_b32 v7, {mb}, v5\nv_lshlrev_b32 v7, 5, v7\nv_add_u32 v{20+mb}, v4, v7")
    def dmaW(self, s):
        u = [f"s_add_u32 m0, s52, {(s % self.NSL)*4096}\ns_mov_b32 s53, {s*32*896}\nbuffer_load_dwordx4 v16, s[{self.sWDs}:{self.sWDs+3}], s53 offen{NT[0]} lds"]
        for p in range(1, 4): u.append(f"buffer_load_dwordx4 v{16+p}, s[{self.sWDs}:{self.sWDs+3}], s53 offen offset:{p*1024}{NT[0]} lds")
        self.vm.extend([s] * 4); return u
    def ldB(self, s):
        u = []
        for qt in range(4):
            u.append(f"s_mov_b32 s53, {qt*56*1024 + s*1024}\nbuffer_load_dwordx4 v[{self.BF(s,qt)}:{self.BF(s,qt)+3}], v3, s[{self.sHM}:{self.sHM+3}], s53 offen")
        self.vm.extend([s] * 4); return u
    def need(self, s):
        idx = max(i for i, t in enumerate(self.vm) if t == s); return len(self.vm) - 1 - idx
    def reads(self, s, st):
        b = (s % self.NSL) * 4096
        return [f"ds_read_b64_tr_b16 v[{self.WF(st,mb)+2*t}:{self.WF(st,mb)+2*t+1}], v{20+mb} offset:{b + t*2048}" for mb in range(4) for t in range(2)]
    NPRE = 5
    def pre(self):
        for s in range(self.NPRE):
            for u in self.dmaW(s): self.E(u)
    def main(self):
        E = self.E
        AC = lambda mb, qt: (mb * 4 + qt) * 4
        self.vm = []
        for s in range(self.NB - 1):
            for u in self.ldB(s): E(u)
        for u in self.dmaW(self.NPRE): E(u)
        srd(E, self.sH, sWS, WS_H, 2048 * 896)
        E(f"s_lshl_b32 s{T}, s54, 2\ns_add_u32 s{T}, s{T}, s{sWave}\ns_mul_i32 s{T}, s{T}, 14336\ns_lshl_b32 s{T+1}, s55, 11\ns_add_u32 s{T}, s{T}, s{T+1}")
        E(f"buffer_load_dwordx4 v[24:27], v3, s[{self.sH}:{self.sH+3}], s{T} offen")
        E(f"buffer_load_dwordx4 v[28:31], v3, s[{self.sH}:{self.sH+3}], s{T} offen offset:1024")
        self.vm.extend(["H"] * 2)
        E(f"s_waitcnt vmcnt({self.need(0)})")
        for u in self.reads(0, 0): E(u)
        for s in range(14):
            st = s & 1
            Sc = Sched(16)
            if s + 1 < 14:
                E(f"s_waitcnt vmcnt({self.need(s+1)}) lgkmcnt(0)")
                for k, t in enumerate(self.reads(s + 1, st ^ 1)): Sc.put(k, 4, t)
                d = []
                if s + self.NPRE + 1 < 14: d += self.dmaW(s + self.NPRE + 1)
                if s + self.NB - 1 < 14: d += self.ldB(s + self.NB - 1)
                for g, t in zip(range(8, 16), d): Sc.put(g, 12, t)
            else:
                E("s_waitcnt lgkmcnt(0)")
            mf = []
            for mb in range(4):
                for qt in range(4):
                    d_ = f"a[{AC(mb,qt)}:{AC(mb,qt)+3}]"
                    mf.append(f"v_mfma_f32_16x16x32_bf16 {d_}, v[{self.WF(st,mb)}:{self.WF(st,mb)+3}], v[{self.BF(s,qt)}:{self.BF(s,qt)+3}], {'0' if s == 0 else d_}")
            Sc.emit(E, mf)
        E("s_nop 7\ns_barrier")
        E(f"s_lshl_b32 s{T}, s{sWave}, 14\nv_add_u32 v4, s{T}, v3")
        for t in range(16): E(f"ds_write_b128 v4, a[{4*t}:{4*t+3}] offset:{t*1024}")
        E("s_waitcnt lgkmcnt(0)\ns_barrier")
        E(f"s_lshl_b32 s{T}, s{sWave}, 10\nv_add_u32 v4, s{T}, v3")
        for mb in range(4):
            for w in range(4):
                E(f"ds_read_b128 v[{64+mb*16+w*4}:{67+mb*16+w*4}], v4 offset:{w*16384 + mb*4096}")
        E(f"s_mov_b32 s{self.sO}, s{sOUT}\ns_mov_b32 s{self.sO+1}, s{sOUT+1}\ns_mov_b32 s{self.sO+2}, {2048*896}\ns_mov_b32 s{self.sO+3}, 0x20000")
        E(f"s_lshl_b32 s{T}, s54, 6\ns_lshl_b32 s{T+1}, s{sWave}, 4\ns_add_u32 s{T}, s{T}, s{T+1}")
        E(f"v_and_b32 v4, 15, v1\nv_add_u32 v4, s{T}, v4\nv_mul_u32_u24 v4, 896, v4")
        E("v_bfe_u32 v5, v1, 4, 1\nv_lshlrev_b32 v5, 5, v5\nv_add_u32 v4, v4, v5")
        E("v_bfe_u32 v5, v1, 5, 1\nv_lshlrev_b32 v5, 4, v5\nv_add_u32 v4, v4, v5")
        E(f"s_lshl_b32 s{T+1}, s55, 7")
        E("s_waitcnt vmcnt(0) lgkmcnt(0)")
        for mb in range(4):
            b = 64 + mb * 16
            for r in range(4):
                E(f"v_add_f32 v{b+r}, v{b+r}, v{b+4+r}\nv_add_f32 v{b+8+r}, v{b+8+r}, v{b+12+r}")
            for r in range(4): E(f"v_add_f32 v{b+r}, v{b+r}, v{b+8+r}")
            hsrc = 24 + (mb >> 1) * 4 + (mb & 1) * 2
            for j in range(2):
                E(f"v_lshlrev_b32 v10, 16, v{hsrc+j}\nv_and_b32 v11, 0xffff0000, v{hsrc+j}")
                E(f"v_add_f32 v{b+2*j}, v{b+2*j}, v10\nv_add_f32 v{b+2*j+1}, v{b+2*j+1}, v11")
        for k in range(2):
            A = 64 + (2*k) * 16; B = 64 + (2*k+1) * 16; t = 32 + 4 * k
            E(f"v_cvt_pk_bf16_f32 v{t}, v{A}, v{A+1}\nv_cvt_pk_bf16_f32 v{t+1}, v{A+2}, v{A+3}")
            E(f"v_cvt_pk_bf16_f32 v{t+2}, v{B}, v{B+1}\nv_cvt_pk_bf16_f32 v{t+3}, v{B+2}, v{B+3}")
            E("s_nop 1")
            E(f"v_permlane16_swap_b32 v{t}, v{t+2}\nv_permlane16_swap_b32 v{t+1}, v{t+3}")
            E("s_nop 1")
            E(f"buffer_store_dwordx4 v[{t}:{t+3}], v4, s[{self.sO}:{self.sO+3}], s{T+1} offen offset:{64*k}")

class Cap:
    def __init__(self): self.l = []
    def __call__(self, t):
        for x in t.split("\n"):
            if x.strip(): self.l.append(x.strip())
def tail_setup():
    cap = Cap()
    t2 = T2(cap); t2.setup()
    c = t1_part(cap)
    return cap.l, t2, c
def gen_tail(E, name, stamp, t2, c):
    E("tl_start:")
    t2.E = E
    signal(E, 1, 1)
    E(f"s_cmp_ge_u32 s{sU}, 14\ns_cbranch_scc1 tl_now2")
    t2.pre()
    E("tl_now2:")
    stamp(5)
    wait(E, 1, 0, 16)
    if NONCE[0]:
        E(f"s_or_b32 s{T}, s{sQB}, s{sU}\ns_or_b32 s{T}, s{T}, s{sWave}\ns_cmp_lg_u32 s{T}, 0\ns_cbranch_scc1 tl_noep")
        E(f"v_mov_b32 v42, s95\nv_mov_b32 v43, {NONCE_OFF}\ns_mov_b64 exec, 1\nbuffer_store_dword v42, v43, s[{sFL}:{sFL+3}], 0 offen sc1\ns_mov_b64 exec, -1")
        E("tl_noep:")
    stamp(6)
    t1_main(E, c)
    signal(E, 2, 0x100)
    stamp(7)
    E(f"s_cmp_ge_u32 s{sU}, 14\ns_cbranch_scc1 tl_done")
    wait(E, 2, 8, 16)
    stamp(8)
    t2.main()
    t3 = T3(E)
    t3.setup()
    signal(E, 3, 0x10000)
    t3.pre()
    stamp(9)
    wait(E, 3, 16, 14)
    stamp(10)
    t3.main()
    E("tl_done:")
```

```python
from asmlib import *
from ws import *
import k0

FUSED_STAMPS = [False]
def stamp_code(E, i, on):
    if on is True:
        if FUSED_STAMPS[0]: E(f"s_memtime s[96:97]\ns_memrealtime s[98:99]\ns_waitcnt lgkmcnt(0)\nv_writelane_b32 v252, s96, {16+i}\nv_writelane_b32 v253, s98, {16+i}")
        else: E(f"s_memtime s[{76+4*i}:{77+4*i}]\ns_memrealtime s[{78+4*i}:{79+4*i}]")

STAMP_OFF = [0]
SPIN_MAX = 0x40000
def stamp_dump(E, n, lab, sws=6):
    E("s_waitcnt vmcnt(0) lgkmcnt(0)")
    E(f"s_mov_b32 s60, s{sws}\ns_mov_b32 s61, s{sws+1}\ns_mov_b32 s62, 0x10000000\ns_mov_b32 s63, 0x20000")
    E(f"s_lshl_b32 s64, s2, 6\ns_add_u32 s64, s64, {WS_DBG + STAMP_OFF[0]}")
    E("v_cmp_eq_u32 vcc, 0, v0\ns_and_saveexec_b64 s[66:67], vcc\ns_cbranch_execz " + f"{lab}_stsk")
    for i in range(n):
        E(f"v_mov_b32 v4, s{76+4*i}\nv_mov_b32 v5, s{78+4*i}\nv_mov_b32 v6, {8*i}")
        E("buffer_store_dwordx2 v[4:5], v6, s[60:63], s64 offen")
        E("s_nop 1")
    E(f"{lab}_stsk:\ns_mov_b64 exec, s[66:67]")

def gen_k1(name="k1_kernel", stamps=False, exp="", nxt=None, fused=None):
    FUSED_STAMPS[0] = bool(fused)
    E = Emit()
    XSLOT = 32768; WBASE = 98304; WSLOT = 16384
    XF = lambda st, i: 64 + st * 32 + i * 4
    WF = lambda st, j: 128 + st * 32 + j * 4
    XA = lambda t, seg: 10 + t * 2 + seg
    WA = lambda j: 14 + j
    XD = lambda p: 22 + p
    WD = lambda p: 26 + p
    XQ = lambda p: 30 + p
    WA2 = lambda j: 40 + j
    sX, sW, sO, sXq, sWq, sOq = 8, 12, 16, 36, 40, 44
    sWave, sXk, sWk, sM0X, sM0W, sSel, sH, sMB = 20, 21, 22, 23, 24, 26, 27, 28
    sXqk, sWqk, sHq, sRB = 48, 49, 50, 51
    NKV, NQ = 32, 14
    SC = ' sc1' if 'wt' in exp else ''
    GLN = 8 if 'g0' not in exp else 0
    if 'lnpro' in exp: GLN = -2
    PL = 8
    if 'bst' in exp: stamps = 'dumponly'
    NG = NKV + NQ
    if "noq" in exp: NG = NKV
    E("s_cmp_ge_u32 s2, 256")
    E(f"s_cbranch_scc1 {name}_end")
    stamp_code(E, 0, stamps)
    E("s_load_dwordx4 s[4:7], s[0:1], 8")
    E("s_load_dwordx4 s[32:35], s[0:1], 24")
    E("s_load_dwordx2 s[52:53], s[0:1], 96")
    E("s_load_dwordx2 s[54:55], s[0:1], 0")
    E("s_load_dwordx2 s[56:57], s[0:1], 88")
    E("s_load_dwordx2 s[58:59], s[0:1], 40")
    E("s_and_b32 s29, s2, 7")
    E("s_lshr_b32 s30, s2, 3")
    E(f"s_lshr_b32 s{sMB}, s30, 2")
    E("s_and_b32 s31, s30, 3")
    E("s_lshl_b32 s25, s29, 2")
    E("s_add_u32 s25, s25, s31")
    E(f"s_lshr_b32 s{sSel}, s25, 4")
    E(f"s_and_b32 s{sH}, s25, 15")
    NCP = 0
    E("s_and_b32 s31, s30, 1")
    E("s_lshl_b32 s29, s29, 1")
    E(f"s_add_u32 s{sHq}, s29, s31")
    E(f"s_lshr_b32 s{sRB}, s2, 4")
    LB = 192
    k0.ln_addr(E, LB)
    E("v_and_b32 v1, 63, v0")
    E("v_lshrrev_b32 v2, 6, v0")
    E("s_nop 0")
    E(f"v_readfirstlane_b32 s{sWave}, v2")
    if "cptop" in exp and "nocpf" not in exp:
        E(f"s_cmp_eq_u32 s{sSel}, 0\ns_cbranch_scc0 {name}_cpv")
        code_prefetch_shared(E, name, 0xa800, name + "_a", 72, 74, 8, sWave)
        E(f"s_branch {name}_cpd\n{name}_cpv:")
        code_prefetch_shared(E, name + "_v", 0xa800, name + "_b", 72, 74, 8, sWave)
        E(f"{name}_cpd:")
    E("v_lshrrev_b32 v3, 3, v1")
    E("v_lshlrev_b32 v4, 5, v2")
    E("v_add_u32 v3, v3, v4")
    E("v_and_b32 v4, 7, v1")
    E("v_lshrrev_b32 v5, 4, v1")
    E("v_xor_b32 v4, v4, v5")
    E("v_xor_b32 v5, 4, v4")
    E("v_lshlrev_b32 v4, 4, v4")
    E("v_lshlrev_b32 v5, 4, v5")
    E("v_lshlrev_b32 v6, 11, v3")
    E("v_mul_u32_u24 v7, 896, v3")
    for p in range(4):
        c = "v4" if p % 2 == 0 else "v5"
        E(f"v_add_u32 v8, v6, {c}")
        E(f"v_add_u32 v{XD(p)}, {p*(8*2048-1024)}, v8")
        E(f"v_add_u32 v8, v7, {c}")
        E(f"v_add_u32 v{XQ(p)}, {p*(8*896-1024)}, v8")
    E("v_lshrrev_b32 v3, 5, v1")
    E("v_lshlrev_b32 v4, 3, v2")
    E("v_add_u32 v4, v4, v3")
    E("v_lshlrev_b32 v4, 13, v4")
    E("v_and_b32 v5, 31, v1")
    E("v_and_b32 v7, 1, v2")
    E("v_lshlrev_b32 v7, 3, v7")
    E("v_xor_b32 v5, v5, v7")
    for p in range(4):
        E(f"v_add_u32 v6, {2*p}, v3")
        E("v_and_b32 v6, 3, v6")
        E("v_lshlrev_b32 v6, 1, v6")
        E("v_xor_b32 v6, v6, v5")
        E("v_lshlrev_b32 v6, 4, v6")
        E("v_add_u32 v6, v6, v4")
        E(f"v_add_u32 v{WD(p)}, {p*(2*8192-1024)}, v6")
    W3 = "w3" in exp
    X3 = lambda p: 50 + p
    WW3 = lambda p: 56 + p
    sM0N, sMsk, sXo0, sXo1, sWl = 24, 25, 48, 49, 3
    LX, LW = 2, 4
    if W3:
        E("s_lshr_b32 s31, s2, 3\ns_and_b32 s31, s31, 3")
        E(f"s_cmp_lt_u32 s{sWave}, 3")
        E(f"s_cselect_b32 s{sMsk}, -1, 0")
        E(f"s_mul_i32 s29, s{sWave}, 6144\ns_cmp_lt_u32 s{sWave}, 3\ns_cselect_b32 s{sM0N}, s29, 0x30000")
        E(f"s_cselect_b32 s{sXo0}, 0, {LX*128}")
        E(f"s_mov_b32 s29, {128*2048}\ns_mov_b32 s30, {32*2048 + LX*128}\ns_cselect_b32 s{sXo1}, s29, s30")
        E(f"s_cselect_b32 s{sWl}, 0, {LW*32*8192}")
        E(f"s_mul_i32 s29, s{sWave}, 48\ns_lshl_b32 s30, s31, 6\ns_cmp_lt_u32 s{sWave}, 3\ns_cselect_b32 s29, s29, s30")
        E("v_lshrrev_b32 v3, 3, v1\nv_add_u32 v3, s29, v3\nv_lshlrev_b32 v6, 11, v3")
        E("v_and_b32 v4, 7, v1\nv_lshrrev_b32 v5, 4, v1\nv_xor_b32 v4, v4, v5\nv_xor_b32 v5, 4, v4\nv_lshlrev_b32 v4, 4, v4\nv_lshlrev_b32 v5, 4, v5")
        E(f"s_cmp_lt_u32 s{sWave}, 2\ns_cselect_b32 s30, 0, 0x7ff00000")
        for p in range(6):
            c = "v4" if p % 2 == 0 else "v5"
            E(f"v_add_u32 v8, v6, {c}\nv_add_u32 v{X3(p)}, {p*8*2048 - (p&3)*1024}, v8")
            if p >= 4: E(f"v_add_u32 v{X3(p)}, s30, v{X3(p)}")
        E(f"s_mul_i32 s29, s{sWave}, 12\ns_lshl_b32 s30, s{sMB}, 2\ns_cmp_lt_u32 s{sWave}, 3\ns_cselect_b32 s29, s29, s30")
        E("v_lshrrev_b32 v3, 5, v1\nv_add_u32 v3, s29, v3\nv_and_b32 v5, 31, v1")
        for p in range(6):
            E(f"v_add_u32 v4, {2*p}, v3")
            E("v_and_b32 v6, 3, v4\nv_bfe_u32 v7, v4, 3, 1\nv_lshlrev_b32 v7, 2, v7\nv_or_b32 v6, v6, v7\nv_lshlrev_b32 v6, 1, v6\nv_xor_b32 v6, v6, v5\nv_lshlrev_b32 v6, 4, v6")
            E(f"v_lshlrev_b32 v4, 13, v4\nv_add_u32 v4, v4, v6\nv_subrev_u32 v{WW3(p)}, {(p&3)*1024}, v4")
            if p >= 2:
                lim = 3 if p < 4 else 2
                E(f"s_cmp_lt_u32 s{sWave}, {lim}\ns_cselect_b32 s30, 0, 0x7ff00000\nv_add_u32 v{WW3(p)}, s30, v{WW3(p)}")
    E("s_waitcnt lgkmcnt(0)")
    if "pst" in exp: stamp_code(E, 1, True)
    if fused:
        E(f"s_add_u32 s92, s52, {WS_FLG}\ns_addc_u32 s93, s53, 0\ns_load_dword s95, s[92:93], {NONCE_OFF}")
    def srd(s, lo, hi, off_s, size):
        if off_s is None:
            E(f"s_mov_b32 s{s}, s{lo}\ns_mov_b32 s{s+1}, s{hi}")
        else:
            E(f"s_add_u32 s{s}, s{lo}, {off_s}\ns_addc_u32 s{s+1}, s{hi}, 0")
        E(f"s_mov_b32 s{s+2}, {size}\ns_mov_b32 s{s+3}, 0x20000")
    sLI, sLO, sFL, sPF = 60, 64, 68, 72
    srd(sLI, 54, 55, None, 2048*896)
    k0.ln_load(E, LB, sLI, ' nt' if 'ntln' in exp else '')
    E(f"s_lshl_b32 s29, s{sMB}, 19")
    srd(sX, 4, 5, "s29", 0x80000)
    E(f"s_cmp_eq_u32 s{sSel}, 0")
    E("s_cselect_b32 s30, s32, s34")
    E("s_cselect_b32 s31, s33, s35")
    E(f"s_lshl_b32 s29, s{sH}, 9")
    srd(sW, 30, 31, "s29", 0x800000)
    E(f"s_sub_u32 s{sW+2}, s{sW+2}, s29")
    E(f"s_lshl_b32 s{sM0X}, s{sWave}, 12")
    E(f"s_mov_b32 s{sXk}, 0")
    E(f"s_mov_b32 s{sWk}, 0")

    vm = [("C", 0)] * NCP + [("LN", 0)] * 2
    def dma_x(grp, hf):
        slot = grp % 3
        u = []
        if grp < 16 and W3:
            lds = slot * XSLOT + hf * 16384
            for p in range(6):
                pre = ""
                if p == 0: pre = f"s_and_b32 s{sXk}, s{sMsk}, {lds}\ns_add_u32 m0, s{sM0N}, s{sXk}\ns_add_u32 s{sXk}, s{sXo1 if hf else sXo0}, {grp*128}\n"
                if p == 4: pre = "s_add_u32 m0, m0, 4096\ns_nop 0\n"
                u.append(pre + f"buffer_load_dwordx4 v{X3(p)}, s[{sX}:{sX+3}], s{sXk} offen offset:{(p&3)*1024} lds")
            return [(t, ("X", grp)) for t in u]
        if grp < 16:
            so = hf * 128 * 2048 + grp * 128
            reg, srd_, lds = XD, sX, slot * XSLOT + hf * 16384
        else:
            so = (grp - 16) * 128
            reg, srd_, lds = XQ, sXq, slot * XSLOT
        nt = " nt" if "ntx" in exp and grp < 16 else ""
        u.append(f"s_add_u32 m0, s{sM0X}, {lds}\ns_mov_b32 s{sXk}, {so}\nbuffer_load_dwordx4 v{reg(0)}, s[{srd_}:{srd_+3}], s{sXk} offen{nt} lds")
        for p in range(1, 4):
            u.append(f"buffer_load_dwordx4 v{reg(p)}, s[{srd_}:{srd_+3}], s{sXk} offen offset:{p*1024}{nt} lds")
        return [(t, ("X", grp)) for t in u]
    def wslot(G):
        if G < NKV: return WBASE + (G % 4) * WSLOT
        L = [WBASE, WBASE + WSLOT, WBASE + 2*WSLOT, WBASE + 3*WSLOT, 49152, 81920]
        return L[(G - NKV) % 6]
    def dma_w(G):
        if G < NKV and W3:
            u = []
            for p in range(6):
                pre = ""
                if p == 0: pre = f"s_and_b32 s{sWk}, s{sMsk}, {wslot(G)}\ns_add_u32 m0, s{sM0N}, s{sWk}\ns_add_u32 s{sWk}, s{sWl}, {G*32*8192}\n"
                if p == 4: pre = "s_add_u32 m0, m0, 4096\ns_nop 0\n"
                u.append(pre + f"buffer_load_dwordx4 v{WW3(p)}, s[{sW}:{sW+3}], s{sWk} offen offset:{(p&3)*1024} lds")
            return [(t, ("W", G)) for t in u]
        if G < NKV: so, srd_ = G * 32 * 8192, sW
        else: so, srd_ = (G - NKV) * 32 * 8192, sWq
        nt = " nt" if ("ntw" in exp and G < NKV) or ("ntq" in exp and G >= NKV) else ""
        u = [f"s_add_u32 m0, s{sM0X}, {wslot(G)}\ns_mov_b32 s{sWk}, {so}\nbuffer_load_dwordx4 v{WD(0)}, s[{srd_}:{srd_+3}], s{sWk} offen{nt} lds"]
        for p in range(1, 4):
            u.append(f"buffer_load_dwordx4 v{WD(p)}, s[{srd_}:{srd_+3}], s{sWk} offen offset:{p*1024}{nt} lds")
        return [(t, ("W", G)) for t in u]
    def need(*tags):
        idx = max(max(i for i, t in enumerate(vm) if t == tag) for tag in tags)
        return len(vm) - 1 - idx
    def xgrp(G): return G >> 1 if G < NKV else 16 + ((G - NKV) >> 1)
    def reads(G, st):
        grp = xgrp(G); t = G & 1
        slot = grp % 3
        seg = 1 if slot == 2 else 0
        xb = slot * XSLOT - seg * 65536
        nx = 8 if G < NKV else 4
        xr = [f"ds_read_b128 v[{XF(st,i)}:{XF(st,i)+3}], v{XA(t,seg)} offset:{xb + i*2048}" for i in range(nx)]
        ws_ = wslot(G)
        if ws_ >= WBASE: wb, wa = ws_ - WBASE, WA
        else: wb, wa = ws_ - (WBASE - 65536), WA2
        wr = []
        for j in range(8):
            for tt in range(2):
                wr.append(f"ds_read_b64_tr_b16 v[{WF(st,j)+2*tt}:{WF(st,j)+2*tt+1}], v{wa(j)} offset:{wb + tt*2048}")
        if "noxr" in exp and G >= 1: return wr
        if "nowr" in exp and G >= 1: return xr
        return [xr[0]] + wr + xr[1:]
    def mfmas(G, st, sel):
        m = []
        first = G == 0 or G == NKV
        nx = 8 if G < NKV else 4
        for i in range(nx):
            for j in range(8):
                b = (i*8+j)*4
                acc = f"a[{b}:{b+3}]"
                x = f"v[{XF(st,i)}:{XF(st,i)+3}]"; w = f"v[{WF(st,j)}:{WF(st,j)+3}]"
                c = "0" if first else acc
                if sel == 0 or G >= NKV: m.append(f"v_mfma_f32_16x16x32_bf16 {acc}, {w}, {x}, {c}")
                else:                    m.append(f"v_mfma_f32_16x16x32_bf16 {acc}, {x}, {w}, {c}")
        return m

    RAMP = "noramp" not in exp
    pro = dma_x(0,0) + dma_x(0,1) + dma_w(0) + dma_w(1) + dma_x(1,0) + dma_x(1,1) + dma_w(2)
    if not RAMP: pro += dma_w(3) + dma_x(2,0) + dma_x(2,1)
    for u, tg in pro:
        E(u); vm.append(tg)
    backlog0 = [(2, "w", 3), (3, "x", (2, 0)), (3, "x", (2, 1))] if RAMP else []
    if "pst" in exp: stamp_code(E, 2, True)
    if "cptop" not in exp:
        if "nocpf" not in exp:
            E(f"s_cmp_eq_u32 s{sSel}, 0\ns_cbranch_scc0 {name}_cpv")
            code_prefetch_shared(E, name, 0xa800, name + "_a", 72, 74, 8, sWave)
            E(f"s_branch {name}_cpd\n{name}_cpv:")
            code_prefetch_shared(E, name + "_v", 0xa800, name + "_b", 72, 74, 8, sWave)
            E(f"{name}_cpd:")
            if fused: code_prefetch_shared(E, nxt[0], nxt[1], name + "_e", 72, 74, 8, sWave, which=2)
    E(f"s_lshl_b32 s29, s{sSel}, 24")
    E(f"s_lshl_b32 s30, s{sH}, 20")
    E("s_add_u32 s29, s29, s30")
    srd(sO, 52, 53, "s29", 0x100000)
    E(f"s_mul_i32 s29, s{sRB}, {128*896}")
    E(f"s_add_u32 s29, s29, {WS_XN}")
    srd(sXq, 52, 53, "s29", 128*896)
    E(f"s_lshl_b32 s29, s{sHq}, 9")
    srd(sWq, 6, 7, "s29", 448*8192)
    E(f"s_sub_u32 s{sWq+2}, s{sWq+2}, s29")
    E(f"s_lshl_b32 s29, s{sHq}, 20")
    E(f"s_add_u32 s29, s29, {WS_Q}")
    srd(sOq, 52, 53, "s29", 0x100000)
    E("v_and_b32 v3, 15, v1")
    E("v_lshrrev_b32 v4, 4, v1")
    E("v_bfe_u32 v5, v1, 1, 3")
    E("v_xor_b32 v4, v4, v5")
    E("v_lshrrev_b32 v6, 7, v0")
    E("v_lshlrev_b32 v6, 7, v6")
    E("v_add_u32 v3, v3, v6")
    E("v_lshlrev_b32 v3, 7, v3")
    for t in range(2):
        E(f"v_xor_b32 v5, {4*t}, v4")
        E("v_lshlrev_b32 v5, 4, v5")
        E(f"v_add_u32 v{XA(t,0)}, v3, v5")
        E(f"v_add_u32 v{XA(t,1)}, 0x10000, v{XA(t,0)}")
    E("v_bfe_u32 v3, v1, 2, 2")
    E("v_lshrrev_b32 v4, 4, v1")
    E("v_lshlrev_b32 v5, 3, v4")
    E("v_add_u32 v5, v5, v3")
    E("v_lshlrev_b32 v5, 9, v5")
    E("v_and_b32 v4, 1, v4")
    E("v_lshlrev_b32 v4, 2, v4")
    E("v_or_b32 v3, v3, v4")
    E("v_and_b32 v6, 3, v1")
    E("v_lshlrev_b32 v6, 3, v6")
    E("v_add_u32 v5, v5, v6")
    E("v_bfe_u32 v6, v0, 6, 1")
    E("v_lshlrev_b32 v6, 8, v6")
    E("v_add_u32 v5, v5, v6")
    E(f"v_add_u32 v5, {WBASE}, v5")
    for j in range(8):
        E(f"v_xor_b32 v6, {j}, v3")
        E("v_lshlrev_b32 v6, 5, v6")
        E(f"v_add_u32 v{WA(j)}, v5, v6")
        E(f"v_subrev_u32 v{WA2(j)}, 0x10000, v{WA(j)}")
    srd(sLO, 52, 53, WS_XN, 2048*896)
    srd(sFL, 56, 57, None, 256)
    PFW, PFX = 34, 35
    PX, PW = 48, 49
    E("s_lshr_b32 s29, s2, 3\ns_and_b32 s29, s29, 3\ns_lshl_b32 s29, s29, 6")
    E(f"s_lshl_b32 s30, s{sWave}, 4\ns_add_u32 s29, s29, s30\nv_and_b32 v3, 15, v1\nv_add_u32 v3, s29, v3\nv_lshlrev_b32 v3, 11, v3\nv_lshrrev_b32 v4, 4, v1\nv_lshlrev_b32 v4, 5, v4\nv_add_u32 v{PX}, v3, v4")
    E(f"s_lshl_b32 s29, s{sMB}, 3\ns_lshl_b32 s30, s{sWave}, 1\ns_add_u32 s29, s29, s30\nv_bfe_u32 v3, v1, 4, 1\nv_add_u32 v3, s29, v3\nv_lshlrev_b32 v3, 13, v3")
    E(f"v_and_b32 v4, 15, v1\nv_lshlrev_b32 v4, 5, v4\nv_add_u32 v{PW}, v3, v4")
    E("s_lshr_b32 s29, s2, 3")
    E(f"s_mul_i32 s30, s{sWave}, 56\nv_min_u32 v3, 55, v1\nv_add_u32 v3, s30, v3")
    E("v_lshrrev_b32 v4, 4, v3\ns_mul_i32 s30, s29, 14\nv_add_u32 v4, s30, v4\nv_lshlrev_b32 v4, 13, v4")
    E("v_and_b32 v3, 15, v3\nv_lshlrev_b32 v3, 6, v3\nv_add_u32 v4, v4, v3")
    E(f"s_and_b32 s30, s{sHq}, 1\ns_lshl_b32 s30, s30, 9")
    E(f"v_subrev_u32 v4, s30, v4\nv_max_i32 v{PFW}, 0, v4")
    E(f"s_mul_i32 s30, s29, 448\ns_mul_i32 s31, s{sWave}, 112\ns_add_u32 s30, s30, s31")
    E(f"v_add_u32 v3, s30, v1\nv_lshlrev_b32 v{PFX}, 7, v3")
    E(f"v_min_u32 v4, 47, v1\nv_add_u32 v4, 64, v4\nv_add_u32 v4, s30, v4\nv_lshlrev_b32 v{PFX+1}, 7, v4")
    class Cap:
        def __init__(self): self.l = []
        def __call__(self, t):
            for x in t.split("\n"):
                if x.strip(): self.l.append(x.strip())
    cap = Cap(); k0.ln_math_store(cap, LB, sLO, "sc1")
    ln_stream = []
    for t in cap.l:
        if t.startswith("buffer_store"): ln_stream.append((12, t, ("LS", 0)))
        elif t.startswith("s_nop"): ln_stream.append((0, t, None))
        elif t.startswith("v_rsq"): ln_stream.append((8, t, None))
        else: ln_stream.append((4, t, None))
    if "tlb" in exp:
        E(f"s_lshl_b32 s29, s{sMB}, 17\ns_lshl_b32 s30, s{sWave}, 15\ns_add_u32 s29, s29, s30\nv_mov_b32 v8, s29")
        E(f"buffer_load_dword v9, v8, s[{sO}:{sO+3}], 0 offen")
        E(f"s_lshl_b32 s29, s{sRB}, 16\ns_lshl_b32 s30, s{sWave}, 14\ns_add_u32 s29, s29, s30\nv_mov_b32 v8, s29")
        E(f"buffer_load_dword v9, v8, s[{sOq}:{sOq+3}], 0 offen")
        E(f"s_mul_i32 s30, s{sWave}, {112*8192}\nv_mov_b32 v8, s30")
        E(f"buffer_load_dword v9, v8, s[{sWq}:{sWq+3}], 0 offen")
        E(f"s_mul_i32 s30, s{sWave}, {32*896}\nv_mov_b32 v8, s30")
        E(f"buffer_load_dword v9, v8, s[{sXq}:{sXq+3}], 0 offen")
        vm.extend([("T", 0)] * 4)
    if "nopf" not in exp and "pf18" not in exp and NG > NKV:
        E(f"buffer_load_dword v7, v{PFW}, s[{sWq}:{sWq+3}], 0 offen"); vm.append(("P", 0))
    if "lnpro" in exp:
        E(f"s_waitcnt vmcnt({need(('LN',0))})")
        for c, t, tg in ln_stream:
            E(t)
            if tg: vm.append(tg)
    E(f"s_waitcnt vmcnt({need(('X',0),('W',0))})")
    if "pst" in exp: stamp_code(E, 3, True)
    E("s_barrier")
    if "pst" in exp: stamps = "dumponly2"; stamp_code(E, 4, True)
    stamp_code(E, 1, stamps)
    for u in reads(0, 0): E(u)
    E(f"s_cmp_eq_u32 s{sSel}, 0")
    E(f"s_cbranch_scc0 {name}_v")
    E(f"{name}_k0:")
    vm0 = list(vm)

    def kv_epi_setup(sel):
        E("v_lshlrev_b32 v3, 4, v1")
        E("v_lshrrev_b32 v4, 7, v0")
        E("v_lshlrev_b32 v4, 16, v4")
        E("v_add_u32 v3, v3, v4")
        E("v_bfe_u32 v4, v0, 6, 1")
        E(f"v_lshlrev_b32 v4, {12 if sel == 0 else 13}, v4")
        E("v_add_u32 v3, v3, v4")
        E(f"s_lshl_b32 s29, s{sMB}, 17")
    def kv_units(sel):
        units = []; n = 0
        for a in range(8 if sel == 0 else 4):
            for b in range(4 if sel == 0 else 8):
                t = 192 + (n % 4) * 12; n += 1
                if sel == 0:
                    src = [(a*8 + 2*b)*4 + r for r in range(8)]; off = a*8192 + b*1024
                else:
                    src = [(2*a*8 + b)*4 + r for r in range(4)] + [((2*a+1)*8 + b)*4 + r for r in range(4)]; off = a*16384 + b*1024
                u = [(4, f"v_accvgpr_read_b32 v{t+r}, a{src[r]}", None) for r in range(8)]
                u += [(4, f"v_cvt_pk_bf16_f32 v{t+8+r}, v{t+2*r}, v{t+2*r+1}", None) for r in range(4)]
                u += [(12, f"s_add_u32 s30, s29, {off}\nbuffer_store_dwordx4 v[{t+8}:{t+11}], v3, s[{sO}:{sO+3}], s30 offen{SC}", ("S", 0))]
                units.append(u)
        assert all(int(x[1].split("a")[-1]) < 128 for u in units[:16] for x in u[:8])
        return units
    def q_epilogue():
        E("s_nop 7")
        E("v_lshlrev_b32 v3, 4, v1")
        E("v_lshrrev_b32 v4, 7, v0")
        E("v_lshlrev_b32 v4, 15, v4")
        E("v_add_u32 v3, v3, v4")
        E("v_bfe_u32 v4, v0, 6, 1")
        E("v_lshlrev_b32 v4, 12, v4")
        E("v_add_u32 v3, v3, v4")
        E(f"s_lshl_b32 s29, s{sRB}, 16")
        E("s_mov_b32 s31, 0x3db8aa3b")
        n = 0
        for a in range(4):
            for b in range(4):
                t = 192 + (n % 4) * 12; n += 1
                src = [(a*8 + 2*b)*4 + r for r in range(8)]; off = a*8192 + b*1024
                for r in range(8): E(f"v_accvgpr_read_b32 v{t+r}, a{src[r]}")
                for r in range(8): E(f"v_mul_f32 v{t+r}, s31, v{t+r}")
                for r in range(4): E(f"v_cvt_pk_bf16_f32 v{t+8+r}, v{t+2*r}, v{t+2*r+1}")
                E(f"s_add_u32 s30, s29, {off}")
                E(f"buffer_store_dwordx4 v[{t+8}:{t+11}], v3, s[{sOq}:{sOq+3}], s30 offen{SC}")

    for sel in range(2):
        lab = f"{name}_{'kv'[sel]}"
        if sel == 1: E(f"{lab}:")
        vm[:] = vm0
        pend = []
        backlog = list(backlog0)
        if 'noln' in exp: vm.append(('LS', 0))
        for G in range(NG):
            st = G & 1
            if G == GLN and 'noln' not in exp and 'lnpro' not in exp: pend = list(ln_stream)
            if G == NKV:
                stamp_code(E, 2, stamps)
                E("v_lshrrev_b32 v4, 7, v0\nv_lshlrev_b32 v4, 13, v4")
                for t in range(2):
                    for seg in range(2): E(f"v_sub_u32 v{XA(t,seg)}, v{XA(t,seg)}, v4")
                for u in reads(NKV, st): E(u)
                E("s_nop 4")
                kv_epi_setup(sel)
                un = kv_units(sel)
                nexp = 32 if "allexp" in exp else (8 if "exp8" in exp else 16)
                for u in un[:nexp]:
                    for c, t, tg in u:
                        E(t)
                        if tg: vm.append(tg)
                pend = [x for u in un[nexp:] for x in u]
                stamp_code(E, 3, stamps)
            if "bst" in exp and G % 6 == 0 and G < 36: E(f"s_memtime s[{76+4*(G//6)}:{77+4*(G//6)}]\ns_memrealtime s[{78+4*(G//6)}:{79+4*(G//6)}]")
            last = G == NG - 1
            ngap = 64 if G < NKV else 32
            S = Sched(ngap)
            tags = {}
            def putv(g, c, t, tg):
                S.put(g, c, t); tags.setdefault(g, []).append(tg)
            if not last:
                E(f"s_waitcnt vmcnt({need(('X', xgrp(G+1)), ('W', G+1))}) lgkmcnt(0)")
                E("s_barrier")
                if G + 1 != NKV:
                    rd = reads(G + 1, st ^ 1)
                    step = 2 if ngap == 64 else 1
                    for k, t in enumerate(rd): S.put(step * k, 4, t)
                reg = []
                if G + 4 < NKV + (4 if NG > NKV else 0) and G < NKV: reg.append((G + 3, "w", G + 4))
                if NG > NKV and G == 28: reg.append((NKV + 3, "w", NKV + 4))
                if NG > NKV and G == 30: reg.append((NKV + 4, "w", NKV + 5))
                if G >= NKV and G + 6 < NG: reg.append((G + 5, "w", G + 6))
                if G < NKV:
                    if G % 2 == 1: grp, hf = (G - 1) // 2 + 3, 0
                    else: grp, hf = G // 2 + 2, 1
                    if G == 0: grp = None
                else:
                    it = G - NKV
                    grp, hf = (16 + (it - 1) // 2 + 3, 0) if it % 2 == 1 else (None, 0)
                if grp is not None:
                    maxg = 16 + 7 if NG > NKV else 16
                    if grp < 16 or (grp < maxg and hf == 0):
                        dl = 2 * grp - 1 if grp < 16 else NKV + 2 * (grp - 16) - 1
                        reg.append((dl, "x", (grp, hf)))
                backlog.extend(reg); backlog.sort(key=lambda x: x[0])
                ntake = 3 if (G < 6 or len(backlog) > 2) else len(backlog)
                take, backlog[:] = backlog[:ntake], backlog[ntake:]
                d = []
                for dl, kind, arg in take:
                    assert dl > G or dl == G, (G, dl, kind, arg)
                    assert dl >= G + 1 or True
                    d += dma_x(*arg) if kind == "x" else dma_w(arg)
                dp = ([5, 11, 17, 23, 29, 35, 41, 47, 51, 55, 59, 63] if len(d) <= 12 else [1, 5, 9, 13, 17, 21, 25, 29, 33, 37, 41, 45, 47, 49, 51, 55, 59, 63]) if ngap == 64 else [20, 22, 24, 26, 21, 23, 25, 27]
                if ngap == 32 and len(d) <= 4: dp = [21, 24, 27, 30]
                elif ngap == 32: dp = [20, 21, 22, 24, 25, 27, 29, 31]
                for (t, tg), g in zip(d, dp):
                    if ("noxd" in exp and tg[0] == "X") or ("nowd" in exp and tg[0] == "W"):
                        pre_ = "\n".join(x for x in t.split("\n") if not x.startswith("buffer"))
                        if pre_: S.put(g, 0, pre_)
                        vm.append(tg); vm.append(("Z", 0)) if False else None
                        continue
                    putv(g, 12, t, tg)
                if "l2pf" in exp and G < NKV:
                    if G % 2 == 1 and (G + PL + 1) // 2 < 16:
                        putv(57, 12, f"s_mov_b32 s31, {((G + PL + 1) // 2) * 128}\nbuffer_load_dword v7, v{PX}, s[{sX}:{sX+3}], s31 offen", ("P", 2))
                    if G % 2 == 0 and G + PL < NKV:
                        putv(57, 12, f"s_mov_b32 s31, {(G + PL) * 32 * 8192}\nbuffer_load_dword v7, v{PW}, s[{sW}:{sW+3}], s31 offen", ("P", 3))
                if G == GLN + 7 and 'nosig' not in exp:
                    assert need(('W', G+1)) <= len(vm) - 1 - max(i for i, t in enumerate(vm) if t == ('LS', 0)) - 0 and True
                    sk = f"{lab}_nosig"
                    S.put(51, 0, f"s_cmp_lg_u32 s{sWave}, 0\ns_cbranch_scc1 {sk}\ns_lshr_b32 s30, s2, 4\ns_lshl_b32 s30, s30, 2\nv_mov_b32 v4, 1\nv_mov_b32 v5, s30\ns_mov_b64 exec, 1\nbuffer_atomic_add v4, v5, s[{sFL}:{sFL+3}], 0 offen sc1\ns_mov_b64 exec, -1\n{sk}:")
                if fused and G == 1: S.put(55, 0, 's_add_u32 s95, s95, 1')
                if G == 4 and not fused:
                    zk = f"{lab}_nozero"
                    putz = f"s_cmp_lg_u32 s{sWave}, 0\ns_cbranch_scc1 {zk}\ns_add_u32 s60, s52, {WS_FLG}\ns_addc_u32 s61, s53, 0\ns_mov_b32 s62, {FLG_BYTES}\ns_mov_b32 s63, 0x20000\ns_lshl_b32 s30, s2, 7\nv_lshlrev_b32 v4, 2, v1\nv_mov_b32 v5, 0\ns_mov_b32 exec_hi, 0\nbuffer_store_dword v5, v4, s[60:63], s30 offen\ns_mov_b64 exec, -1\n{zk}:"
                    S.put(55, 0, putz)
                if NG > NKV and G == GLN + 10 and 'nopoll' not in exp:
                    putv(53, 12, f"s_lshl_b32 s30, s{sRB}, 2\nv_mov_b32 v5, s30\nbuffer_load_dword v6, v5, s[{sFL}:{sFL+3}], 0 offen sc1", ("F", 0))
                if NG > NKV and G == GLN + 14 and 'nopoll' not in exp:
                    ok, pl = f"{lab}_xnok", f"{lab}_xnpoll"
                    to = f"{lab}_xnto"
                    S.put(53, 8, f"v_readfirstlane_b32 s30, v6\ns_cmp_ge_u32 s30, 16\ns_cbranch_scc1 {ok}\ns_mov_b32 s31, 0\n{pl}:\ns_sleep 1\nbuffer_load_dword v6, v5, s[{sFL}:{sFL+3}], 0 offen sc1\ns_waitcnt vmcnt(0)\nv_readfirstlane_b32 s30, v6\ns_add_u32 s31, s31, 1\ns_cmp_ge_u32 s31, {SPIN_MAX}\ns_cbranch_scc1 {to}\ns_cmp_ge_u32 s30, 16\ns_cbranch_scc0 {pl}\ns_branch {ok}\n{to}:\nv_mov_b32 v6, 0xbad1\nv_mov_b32 v7, 128\nbuffer_store_dword v6, v7, s[{sFL}:{sFL+3}], 0 offen\n{ok}:")
                if NG > NKV and G == 18 and "pf18" in exp:
                    putv(53, 12, f"buffer_load_dword v7, v{PFW}, s[{sWq}:{sWq+3}], 0 offen", ("P", 0))
                if NG > NKV and G in (19, 20) and "pfx" in exp:
                    putv(53, 12, f"buffer_load_dword v7, v{PFX}, s[{sLO}:{sLO+3}], 0 offen offset:{0 if G == 19 else 0}" if G == 19 else f"buffer_load_dword v7, v{PFX+1}, s[{sLO}:{sLO+3}], 0 offen", ("P", 1))
                if pend:
                    k = 0; cur = 0
                    while k < len(pend):
                        c, t, tg = pend[k]
                        g = cur
                        while g < ngap and c and not (S.c[g] == 0 if c == 12 else S.c[g] + c <= 8): g += 1
                        if g >= ngap: break
                        if tg: putv(g, c, t, tg)
                        else: S.put(g, c, t)
                        cur = g; k += 1
                        if G >= NKV and k >= 26 and pend[k-1][2]: break
                    pend = pend[k:]
            else:
                E("s_waitcnt lgkmcnt(0)")
            S.emit(E, mfmas(G, st, sel))
            for g in sorted(tags): vm.extend(tags[g])
        for c, t, tg in pend: E(t)
        if NG == NKV:
            stamp_code(E, 2, stamps)
            E("s_nop 7")
            kv_epi_setup(sel)
            for u in kv_units(sel):
                for c, t, tg in u: E(t)
            stamp_code(E, 3, stamps)
        else:
            stamp_code(E, 4, stamps)
            if nxt and "nocpf" not in exp and not fused: code_prefetch_shared(E, nxt[0], nxt[1], f"{lab}_n", 72, 74, 8, sWave)
            q_epilogue()
        if fused:
            E(f"s_lshl_b32 s90, s{sH}, 7\ns_lshl_b32 s30, s{sSel}, 3\ns_add_u32 s30, s30, s{sMB}\ns_lshl_b32 s30, s30, 2\ns_add_u32 s90, s90, s30\ns_add_u32 s90, s90, {HEAD_OFF}")
            E(f"s_lshl_b32 s91, s{sHq}, 7\ns_lshl_b32 s31, s{sRB}, 2\ns_add_u32 s91, s91, s31\ns_add_u32 s91, s91, {HEAD_OFF + 64}")
            stamp_code(E, 5, stamps)
            E(f"s_branch {fused}")
            continue
        if stamps:
            E("s_waitcnt vmcnt(0)")
            stamp_code(E, 5 if NG > NKV else 4, True)
            stamp_dump(E, 6 if NG > NKV else 5, lab, 52)
        E("s_endpgm")
    E(f"{name}_end:")
    E("s_endpgm")
    return E.text()
```

```python
from asmlib import *
from ws import *
from k1 import SPIN_MAX, STAMP_OFF
import tail

NS = 5
CH = 32768
THR = 0x44800000
NA = 18

def O(db, qt): return (db * 2 + qt) * 4
def Q(qt, ds): return 128 + (qt * 8 + ds) * 4
def F(f): return 192 + (f % 16) * 4
def S(par, kb, qt): return 64 + par * 32 + (kb * 2 + qt) * 4
def P(par, s, qt): return 128 + par * 16 + (s * 2 + qt) * 4
def NEGM(qt): return 160 + 4 * qt
TMP = 168
L_ = lambda qt: 184 + qt
LS = lambda qt: 186 + qt
M_ = lambda qt: 188 + qt
DM = lambda qt: 190 + qt
vRA, vRB, vLane16, vTab = 192, 193, 194, 196
vT0 = 200
vD = 224
vW = 232
vWA = 240
vPM = 246
vFL = 250
sDM = 8
sQ = 12
sPT = 16
sOP = 20
sWO = 24
sFL = 28
sWave, sH, sPair, sType = 32, 33, 34, 35
sC, sWr, sRdN, sOff, sN, sI, sT, sQB, sItem = 36, 37, 38, 39, 40, 41, 42, 43, 44
sTmp, sTmp2, sTmp3 = 45, 46, 47
sM0 = 48
sNKV, sSig, sHasP, sPI = 52, 53, 54, 62

def a4(b): return f"a[{b}:{b+3}]"
def v4(b): return f"v[{b}:{b+3}]"

def stamp_code(E, i, on):
    if on: E(f"s_memtime s[96:97]\ns_memrealtime s[98:99]\ns_waitcnt lgkmcnt(0)\nv_writelane_b32 v252, s96, {i}\nv_writelane_b32 v253, s98, {i}")
def stamp_dump(E, n, lab, sws):
    E("s_mov_b64 exec, -1\ns_waitcnt vmcnt(0) lgkmcnt(0)")
    E(f"s_mov_b32 s60, s{sws}\ns_mov_b32 s61, s{sws+1}\ns_mov_b32 s62, 0x10000000\ns_mov_b32 s63, 0x20000")
    E(f"s_lshl_b32 s56, s2, 8\ns_add_u32 s56, s56, {WS_DBG + 65536}")
    E(f"s_cmp_lg_u32 s{sWave}, 0\ns_cbranch_scc1 {lab}_stsk")
    E("v_and_b32 v4, 63, v0\nv_lshlrev_b32 v4, 3, v4\nv_mov_b32 v6, v252\nv_mov_b32 v7, v253\ns_mov_b64 exec, 0xffffff")
    E("buffer_store_dwordx2 v[6:7], v4, s[60:63], s56 offen")
    E(f"{lab}_stsk:")

class K2:
    def __init__(self, name, stamps=False, exp="", nxt=None, fused=False):
        self.nxt = nxt; self.fused = fused
        self.name = name; self.E = Emit(); self.stamps = stamps; self.exp = exp
        self.uid = 0; self.rare = []
    def ist(self, i):
        if "ist" in self.exp: stamp_code(self.E, i, True)
    def lab(self, s):
        self.uid += 1
        return f"{self.name}_{s}{self.uid}"

    def head_items(self, Sc, nxt, vmw=16, dma_gaps=None, sw=False, sg=False, m0gap=6, nt=''):
        if isinstance(vmw, int): w = f"s_waitcnt vmcnt({vmw})"
        else: w = vmw
        Sc.put(1, 0, w + ("\ns_barrier" if "nobar" not in self.exp else ""))
        INL = "noinl" not in self.exp
        if sg:
            a, b = self.lab("sg"), self.lab("sgb")
            if INL:
                body = (f"s_cmp_lg_u32 s{sSig}, 1\ns_cbranch_scc1 {b}\ns_mov_b32 s{sSig}, 0\ns_cmp_lg_u32 s{sWave}, 0\ns_cbranch_scc1 {b}\n"
                        + (f"v_mov_b32 v254, s95" if self.fused else "v_mov_b32 v254, 1")
                        + f"\ns_mov_b64 exec, 1\nbuffer_store_dword v254, v{vFL+1}, s[{sFL}:{sFL+3}], 0 offen sc1\ns_mov_b64 exec, -1\n{b}:")
                Sc.put(13, 0, body)
            else:
                Sc.put(13, 0, f"s_cmp_eq_u32 s{sSig}, 1\ns_cbranch_scc1 {a}\n{b}:")
                self.rare.append(("signal", a, b))
        g0 = 2
        if sw:
            a, b = self.lab("sw"), self.lab("swb")
            if INL:
                body = f"s_cmp_lg_u32 s{sC}, s{sNKV}\ns_cbranch_scc1 {b}\n" + "".join(f"v_mov_b32 v{vD+p}, v{vW+p}\n" for p in range(8))
                body += f"s_sub_u32 s{sDM}, s{sWO}, 4096\ns_subb_u32 s{sDM+1}, s{sWO+1}, 0\ns_add_u32 s{sDM+2}, s{sWO+2}, 4096\ns_mov_b32 s{sDM+3}, 0x20000\n{b}:"
                Sc.put(2, 0, body)
            else:
                Sc.put(2, 0, f"s_cmp_eq_u32 s{sC}, s{sNKV}\ns_cbranch_scc1 {a}\n{b}:")
                self.rare.append(("switch", a, b))
        Sc.put(3, 4, f"v_readlane_b32 s{sOff}, v{vTab}, s{sC}")
        Sc.put(4, 0, f"s_add_u32 s{sRdN}, s{sRdN}, {CH}\ns_cmp_eq_u32 s{sRdN}, {NS*CH}\ns_cselect_b32 s{sRdN}, 0, s{sRdN}")
        Sc.put(6, 0, f"s_add_u32 s{sC}, s{sC}, 1")
        Sc.put(m0gap, 0, f"s_add_u32 m0, s{sWr}, s{sM0}")
        g = 6
        for reg, base in nxt:
            while Sc.c[g] + 4 > 8: g += 1
            Sc.put(g, 4, f"v_add_u32 v{reg}, s{sRdN}, v{base}")
        dg = dma_gaps or [9, 15, 21, 27, 33, 39, 45, 51]
        for p in range(8):
            t = f"buffer_load_dwordx4 v{vD+p}, s[{sDM}:{sDM+3}], s{sOff} offen offset:{(p&3)*1024}{nt} lds"
            if "nodma" not in self.exp: Sc.put(dg[p], 12, t)
            if p == 3: Sc.put(dg[p] + 1, 0, f"s_add_u32 m0, m0, 4096")
            if p == 7: Sc.put(dg[p] + 1, 0, f"s_add_u32 s{sWr}, s{sWr}, {CH}\ns_cmp_eq_u32 s{sWr}, {NS*CH}\ns_cselect_b32 s{sWr}, 0, s{sWr}")

    def frag_read(self, f, cur, nxt):
        if f < 32: return f"ds_read_b128 {a4(F(f))}, v{cur} offset:{f*1024}"
        return f"ds_read_b128 {a4(F(f))}, v{nxt} offset:{(f-32)*1024}"

    def qk_mfmas(self, par, cinit):
        m = []
        for kb in range(4):
            for ds in range(8):
                f = kb * 8 + ds
                for qt in range(2):
                    d = v4(S(par, kb, qt))
                    c = (v4(NEGM(qt)) if cinit else "0") if ds == 0 else d
                    m.append(f"v_mfma_f32_16x16x32_bf16 {d}, {a4(F(f))}, {a4(Q(qt, ds))}, {c}")
        return m
    def pv_mfmas(self, par):
        m = []
        for s in range(2):
            for db in range(16):
                f = s * 16 + db
                for qt in range(2):
                    d = a4(O(db, qt))
                    m.append(f"v_mfma_f32_16x16x32_bf16 {d}, {a4(F(f))}, {v4(P(par, s, qt))}, {d}")
        return m

    def sm_stream(self, par, half):
        out = []
        for kb in (2 * half, 2 * half + 1):
            for qt in range(2):
                s0 = S(par, kb, qt); t = TMP + ((kb * 2 + qt) % 4) * 4
                p = P(par, kb >> 1, qt) + 2 * (kb & 1)
                for r in range(4): out.append((8, f"v_exp_f32 v{t+r}, v{s0+r}"))
                if kb == 0:
                    out.append((4, f"v_add_f32 v{LS(qt)}, v{t}, v{t+1}"))
                else:
                    out.append((4, f"v_add_f32 v{LS(qt)}, v{LS(qt)}, v{t}"))
                    out.append((4, f"v_add_f32 v{LS(qt)}, v{LS(qt)}, v{t+1}"))
                out.append((4, f"v_cvt_pk_bf16_f32 v{p}, v{t}, v{t+1}"))
                out.append((4, f"v_add_f32 v{LS(qt)}, v{LS(qt)}, v{t+2}"))
                out.append((4, f"v_cvt_pk_bf16_f32 v{p+1}, v{t+2}, v{t+3}"))
                out.append((4, f"v_add_f32 v{LS(qt)}, v{LS(qt)}, v{t+3}"))
        return out

    def emit_phase(self, mf, cur, sm=(), extra=(), tail=(), vmw=16, pre=(), sw=False, sg=False, first=False):
        E = self.E
        nxt = vRB if cur == vRA else vRA
        n = len(mf)
        Sc = Sched(n)
        for f in range(32):
            if "nords" in self.exp: continue
            Sc.put(2 * f, 4, self.frag_read(f + 8, cur, nxt))
        if first:
            g = 3
            for c, so in ((2, 74), (3, 75)):
                for p in range(8):
                    pre_ = f"s_add_u32 m0, s{sM0}, {c*CH}\ns_nop 0\n" if p == 0 else ("s_add_u32 m0, m0, 4096\ns_nop 0\n" if p == 4 else "")
                    Sc.put(g, 12, pre_ + f"buffer_load_dwordx4 v{vD+p}, s[{sDM}:{sDM+3}], s{so} offen offset:{(p&3)*1024} lds"); g += 2
            self.head_items(Sc, [(nxt, vLane16)], 0, dma_gaps=[37, 39, 41, 43, 45, 47, 49, 51], sw=False, m0gap=36)
        else:
            self.head_items(Sc, [(nxt, vLane16)], vmw, sw=sw, sg=sg)
        for g, c, t in pre: Sc.put(g, c, t)
        if "nosm" in self.exp: sm = []
        if sm:
            exps = [t for c, t in sm if c == 8]
            free_odd = [g for g in range(5, n, 2) if Sc.c[g] == 0 and g <= 53]
            assert len(free_odd) >= len(exps), (len(free_odd), len(exps))
            egap = [free_odd[(j * len(free_odd)) // len(exps)] for j in range(len(exps))]
            for t, g in zip(exps, egap): Sc.put(g, 8, t)
            ne = 0; g = 0
            for c, t in sm:
                if c == 8: ne += 1; continue
                g = max(g, egap[ne - 1] + 1)
                while Sc.c[g] + c > 8: g += 1
                Sc.put(g, c, t)
            lastsm = g
        else: lastsm = 0
        if extra:
            left = Sc.put_free(list(extra), start=2, stride=0)
            assert not left or True
        else: left = []
        g = max(lastsm + 1, n - 2 * len(tail) - 2)
        for c, t in tail:
            while Sc.c[g] + c > 8 and g < n - 1: g += 1
            Sc.put(g, c, t)
        before = {8 * k: ["s_waitcnt lgkmcnt(4)"] for k in range(8)}
        Sc.emit(E, mf, before)
        for c, t in left: E(t)

    def mask_block(self, par):
        E = self.E
        E(f"s_lshl_b32 s{sTmp}, s{sT}, 6")
        for qt in range(2): E(f"v_subrev_u32 v{vT0+qt}, s{sTmp}, v{DM(qt)}")
        E(f"v_mov_b32 v{vT0+2}, 0xff800000")
        k = 0
        items = [(qt, kb, r) for qt in range(2) for kb in range(4) for r in range(4)]
        masks = ["s[56:57]", "s[58:59]", "s[60:61]"]
        for i in range(len(items) + 2):
            if i < len(items):
                qt, kb, r = items[i]
                E(f"v_cmp_le_i32 {masks[i % 3]}, {16*kb+r}, v{vT0+qt}")
            if i >= 2:
                qt, kb, r = items[i - 2]
                E(f"v_cndmask_b32 v{S(par,kb,qt)+r}, v{vT0+2}, v{S(par,kb,qt)+r}, {masks[(i-2) % 3]}")
            if i >= len(items): E("s_nop 0")

    def xlane(self, op, r, t):
        E = self.E
        E(f"v_mov_b32 v{t}, v{r}\ns_nop 1")
        E(f"v_permlane16_swap_b32 v{r}, v{t}\ns_nop 1")
        E(f"{op} v{r}, v{r}, v{t}")
        E(f"v_mov_b32 v{t}, v{r}\ns_nop 1")
        E(f"v_permlane32_swap_b32 v{r}, v{t}\ns_nop 1")
        E(f"{op} v{r}, v{r}, v{t}")

    def rowmax_inlane(self, par, qt, r):
        E = self.E
        vals = [S(par, kb, qt) + i for kb in range(4) for i in range(4)]
        E(f"v_max3_f32 v{r}, v{vals[0]}, v{vals[1]}, v{vals[2]}")
        for i in range(3, 15, 2): E(f"v_max3_f32 v{r}, v{r}, v{vals[i]}, v{vals[i+1]}")
        E(f"v_max_f32 v{r}, v{r}, v{vals[15]}")
    def xlane2(self, op, r0, r1, t0, t1):
        E = self.E
        for sw in ("v_permlane16_swap_b32", "v_permlane32_swap_b32"):
            E(f"v_mov_b32 v{t0}, v{r0}\nv_mov_b32 v{t1}, v{r1}\ns_nop 0")
            E(f"{sw} v{r0}, v{t0}\n{sw} v{r1}, v{t1}\ns_nop 0")
            E(f"{op} v{r0}, v{r0}, v{t0}\n{op} v{r1}, v{r1}, v{t1}")

    def init_block(self):
        E = self.E
        for qt in range(2): self.rowmax_inlane(0, qt, M_(qt))
        self.xlane2("v_max_f32", M_(0), M_(1), vT0, vT0 + 1)
        for qt in range(2):
            E(f"v_max_f32 v{M_(qt)}, 0xf149f2ca, v{M_(qt)}")
            for r in range(4): E(f"v_sub_f32 v{NEGM(qt)+r}, 0, v{M_(qt)}")
            E(f"v_mov_b32 v{L_(qt)}, 0")
        for qt in range(2):
            for kb in range(4):
                for r in range(4): E(f"v_sub_f32 v{S(0,kb,qt)+r}, v{S(0,kb,qt)+r}, v{M_(qt)}")

    def slow_block(self, par):
        E = self.E
        E("s_nop 15")
        for qt in range(2):
            d = vT0 + qt
            self.rowmax_inlane(par, qt, d)
            self.xlane("v_max_f32", d, vT0 + 2)
            E(f"v_max_f32 v{d}, 0, v{d}")
            E(f"v_add_f32 v{M_(qt)}, v{M_(qt)}, v{d}")
            for r in range(4): E(f"v_sub_f32 v{NEGM(qt)+r}, v{NEGM(qt)+r}, v{d}")
            for pp in (par, par ^ 1):
                for kb in range(4):
                    for r in range(4): E(f"v_sub_f32 v{S(pp,kb,qt)+r}, v{S(pp,kb,qt)+r}, v{d}")
            E(f"v_sub_f32 v{vT0+3}, 0, v{d}")
            E(f"v_exp_f32 v{vT0+3}, v{vT0+3}\ns_nop 0")
            E(f"v_mul_f32 v{L_(qt)}, v{L_(qt)}, v{vT0+3}")
            for db in range(16):
                for r in range(4):
                    a = O(db, qt) + r
                    E(f"v_accvgpr_read_b32 v{vT0+4}, a{a}")
                    E(f"v_mul_f32 v{vT0+4}, v{vT0+4}, v{vT0+3}")
                    E(f"v_accvgpr_write_b32 a{a}, v{vT0+4}")
        for half in range(2):
            for c, t in self.sm_stream(par, half): E(t)
        E(f"s_nop 2")

    def check_tail(self):
        return [(4, f"v_max_f32 v{vT0}, v{LS(0)}, v{LS(1)}"), (4, f"v_cmp_lt_f32 vcc, {THR}, v{vT0}")]
    def check(self, par, computed):
        E = self.E
        sl = self.lab("slow"); back = self.lab("back")
        if not computed:
            for c, t in self.check_tail(): E(t)
        if "noslow" not in self.exp: E(f"s_cbranch_vccnz {sl}")
        E(f"{back}:")
        for qt in range(2): E(f"v_add_f32 v{L_(qt)}, v{L_(qt)}, v{LS(qt)}")
        self.rare.append(("slow", sl, back, par))

    def maybe_mask(self, par):
        E = self.E
        sk = self.lab("nomask")
        E(f"s_lshl_b32 s{sTmp}, s{sQB}, 1")
        E(f"s_cmp_lt_u32 s{sT}, s{sTmp}")
        E(f"s_cbranch_scc1 {sk}")
        self.mask_block(par)
        E(f"{sk}:")

    def item_loop(self, first=False):
        E = self.E; nm = self.name
        E(f"s_lshl_b32 s{sTmp}, s{sQB}, 7")
        E(f"s_lshl_b32 s{sTmp2}, s{sWave}, 5")
        E(f"s_add_u32 s{sTmp}, s{sTmp}, s{sTmp2}")
        E(f"v_and_b32 v{vT0}, 15, v0")
        E(f"v_bfe_u32 v{vT0+1}, v0, 4, 2")
        E(f"v_lshlrev_b32 v{vT0+1}, 2, v{vT0+1}")
        E(f"v_sub_u32 v{vT0}, v{vT0}, v{vT0+1}")
        E(f"v_add_u32 v{DM(0)}, s{sTmp}, v{vT0}")
        E(f"v_add_u32 v{DM(1)}, 16, v{DM(0)}")
        zero = [(4, f"v_accvgpr_write_b32 a{i}, 0") for i in range(128)]
        self.emit_phase(self.qk_mfmas(0, False), vRA, extra=zero, sw=True, first=first)
        if first:
            if "nopf" not in self.exp: self.prefetch_weights()
            E(f"s_branch {nm}_qk0done")
            return
        E(f"{nm}_qk0done:")
        self.ist(2)
        E("s_nop 7")
        self.maybe_mask(0)
        self.init_block()
        self.ist(3)
        self.emit_phase(self.qk_mfmas(1, True), vRB, sm=self.sm_stream(0, 0))
        for c, t in self.sm_stream(0, 1): E(t)
        self.check(0, False)
        E(f"s_add_u32 s{sT}, s{sT}, 1")
        E(f"s_lshr_b32 s{sI}, s{sN}, 1\ns_sub_u32 s{sI}, s{sI}, 1")
        if "mid" in self.exp: stamp_code(E, 1, True)
        self.ist(4)
        E(f"s_cmp_eq_u32 s{sI}, 0")
        E(f"s_cbranch_scc1 {nm}_last")
        E(f"{nm}_loop:")
        for par in (1, 0):
            if par == 0: self.maybe_mask(0)
            self.emit_phase(self.qk_mfmas(par ^ 1, True), vRA, sm=self.sm_stream(par, 0), sw=(par == 0), sg=(par == 1))
            pre = [(8, 0, f"s_add_u32 s{sT}, s{sT}, 1")]
            if par == 0: pre.append((12, 0, f"s_sub_u32 s{sI}, s{sI}, 1"))
            self.emit_phase(self.pv_mfmas(par ^ 1), vRB, sm=self.sm_stream(par, 1), tail=self.check_tail(), pre=pre)
            self.check(par, True)
        E(f"s_cmp_lg_u32 s{sI}, 0")
        E(f"s_cbranch_scc1 {nm}_loop")
        E(f"{nm}_last:")
        if "nocpf" not in self.exp and "nolast" not in self.exp: code_prefetch_shared(E, f"{nm}_last", 0x7000, nm + "_l", 72, 74, 8, sWave)
        if "mid" in self.exp: stamp_code(E, 2, True)
        self.ist(5)
        self.maybe_mask(1)
        for c, t in self.sm_stream(1, 0): E(t)
        pre = [(7, 12, f"buffer_load_dword v{vFL}, v{vFL+1}, s[{sFL}:{sFL+3}], 0 offen sc1")]
        self.emit_phase(self.pv_mfmas(0), vRA, sm=self.sm_stream(1, 1), tail=self.check_tail(), pre=pre, sg=True)
        self.check(1, True)
        self.ist(6)
        nop_, fin_a, fin_b = self.lab("nopre"), self.lab("fina"), self.lab("finb")
        qn = self.lab("qnext")
        E(f"s_cmp_eq_u32 s{sItem}, 1")
        E(f"s_cbranch_scc0 {qn}")
        E(f"s_cmp_eq_u32 s{sHasP}, 0")
        E(f"s_cbranch_scc1 {nop_}")
        got, pl = self.lab("got"), self.lab("poll")
        E("s_waitcnt vmcnt(7)")
        to = self.lab("to")
        E(f"s_mov_b32 s73, 0")
        E(f"{pl}:")
        E(f"v_readfirstlane_b32 s{sTmp3}, v{vFL}")
        E(f"s_cmp_eq_u32 s{sTmp3}, s95" if self.fused else f"s_cmp_lg_u32 s{sTmp3}, 0")
        E(f"s_cbranch_scc1 {got}")
        E("s_sleep 2")
        E(f"buffer_load_dword v{vFL}, v{vFL+1}, s[{sFL}:{sFL+3}], 0 offen sc1")
        E("s_waitcnt vmcnt(0)")
        E(f"s_add_u32 s73, s73, 1\ns_cmp_lt_u32 s73, {SPIN_MAX}")
        E(f"s_cbranch_scc1 {pl}")
        E(f"v_mov_b32 v{vT0}, 0xbad2\nv_mov_b32 v{vT0+1}, {FLG_ERR}\nbuffer_store_dword v{vT0}, v{vT0+1}, s[{sFL}:{sFL+3}], 0 offen")
        E(f"{got}:")
        E(f"s_lshl_b32 s{sTmp}, s{sWave}, 15")
        for i in range(16):
            E(f"s_add_u32 s{sTmp2}, s{sTmp}, {i*1024}")
            E(f"buffer_load_dwordx4 v[{64+4*i}:{67+4*i}], v{vLane16}, s[{sPT}:{sPT+3}], s{sTmp2} offen sc1")
        E(f"s_add_u32 s{sTmp2}, s{sTmp}, 16384")
        E(f"buffer_load_dwordx4 v[{vPM}:{vPM+3}], v{vLane16}, s[{sPT}:{sPT+3}], s{sTmp2} offen sc1")
        E(f"s_mov_b32 s{sTmp3}, 1")
        E(f"s_branch {fin_a}")
        E(f"{qn}:")
        self.load_q(next_item=True)
        E(f"s_mov_b32 s{sTmp3}, 1")
        E(f"s_branch {fin_a}")
        E(f"{nop_}:")
        E(f"s_mov_b32 s{sTmp3}, 0")
        E(f"{fin_a}:")
        self.ist(7)
        w1, w2 = self.lab("w"), self.lab("w")
        vmw = f"s_cmp_eq_u32 s{sTmp3}, 0\ns_cbranch_scc1 {w1}\ns_waitcnt vmcnt(32)\ns_branch {w2}\n{w1}:\ns_waitcnt vmcnt(16)\n{w2}:"
        self.emit_phase(self.pv_mfmas(1), vRB, vmw=vmw)
        self.ist(8)
        E(f"{nm}_itemdone:")

    def prologue(self):
        E = self.E; nm = self.name
        if self.fused: E(f"{nm}_entry:")
        else:
            E("s_cmp_ge_u32 s2, 256")
            E(f"s_cbranch_scc1 {nm}_end")
        stamp_code(E, 0, self.stamps)
        E("s_load_dwordx2 s[4:5], s[0:1], 96")
        E("s_load_dwordx2 s[6:7], s[0:1], 40")
        E("s_load_dwordx4 s[64:67], s[0:1], 56")
        E("s_load_dwordx2 s[68:69], s[0:1], 72")
        E("s_load_dwordx2 s[78:79], s[0:1], 0")
        E("s_load_dwordx2 s[80:81], s[0:1], 80")
        E("s_and_b32 s45, s2, 7")
        E("s_lshr_b32 s46, s2, 3")
        E("s_and_b32 s47, s46, 1")
        E("s_lshl_b32 s45, s45, 1")
        E(f"s_add_u32 s{sH}, s45, s47")
        E("s_lshr_b32 s46, s46, 1")
        E(f"s_and_b32 s{sType}, s46, 1")
        E(f"s_lshr_b32 s{sPair}, s46, 1")
        E(f"v_lshrrev_b32 v{vT0}, 6, v0")
        E(f"v_and_b32 v1, 63, v0")
        E(f"v_readfirstlane_b32 s{sWave}, v{vT0}")
        E(f"v_lshlrev_b32 v{vLane16}, 4, v1")
        E(f"s_lshl_b32 s45, s{sPair}, 1")
        E(f"s_sub_u32 s46, {32-NA}, s45")
        E(f"s_add_u32 s47, s45, 2")
        E(f"s_cmp_eq_u32 s{sType}, 0")
        E(f"s_cselect_b32 s70, {NA}, s46")
        E(f"s_cselect_b32 s71, 0, {NA}")
        E(f"s_cselect_b32 s72, 0, s47")
        E(f"s_lshl_b32 s55, s70, 1")
        E(f"s_lshl_b32 s{sNKV}, s72, 1\ns_add_u32 s{sNKV}, s{sNKV}, s55")
        t = vT0
        E(f"v_cmp_gt_u32 vcc, s55, v1")
        E(f"v_subrev_u32 v{t+3}, s55, v1")
        E("s_nop 0")
        E(f"v_cndmask_b32 v{t}, v{t+3}, v1, vcc")
        E(f"v_mov_b32 v{t+4}, s72\nv_mov_b32 v{t+5}, s70")
        E(f"v_cndmask_b32 v{t+1}, v{t+4}, v{t+5}, vcc")
        E(f"v_mov_b32 v{t+4}, 0\nv_mov_b32 v{t+5}, s71")
        E(f"v_cndmask_b32 v{t+2}, v{t+4}, v{t+5}, vcc")
        E(f"v_min_u32 v{t+4}, 2, v{t+1}")
        E(f"v_cmp_lt_u32 s[56:57], v{t}, v{t+4}")
        E(f"v_lshlrev_b32 v{t+5}, 1, v{t+1}")
        E(f"v_subrev_u32 v{t+5}, 2, v{t+5}")
        E(f"v_cmp_lt_i32 s[58:59], v{t}, v{t+5}")
        E(f"v_and_b32 v{t+6}, 1, v{t}")
        E(f"v_cmp_eq_u32 s[60:61], 0, v{t+6}")
        E(f"v_sub_u32 v{t+7}, v{t}, v{t+1}")
        E(f"v_lshrrev_b32 v{t+8}, 1, v{t}")
        E(f"v_add_u32 v{t+9}, 1, v{t+8}")
        E(f"v_subrev_u32 v{t+8}, 1, v{t+8}")
        E(f"v_cndmask_b32 v{t+8}, v{t+8}, v{t+9}, s[60:61]")
        E(f"v_cndmask_b32 v{t+7}, v{t+7}, v{t+8}, s[58:59]")
        E(f"v_cndmask_b32 v{t+7}, v{t+7}, v{t}, s[56:57]")
        E(f"s_and_b64 s[58:59], s[58:59], s[60:61]")
        E(f"s_or_b64 s[58:59], s[58:59], s[56:57]")
        E(f"v_mov_b32 v{t+8}, {WS_V - WS_K}\nv_mov_b32 v{t+9}, 0")
        E(f"v_cndmask_b32 v{t+8}, v{t+8}, v{t+9}, s[58:59]")
        E(f"v_add_u32 v{t+7}, v{t+7}, v{t+2}")
        E(f"v_lshlrev_b32 v{t+7}, 15, v{t+7}")
        E(f"v_add_u32 v{t+7}, v{t+7}, v{t+8}")
        E(f"s_lshl_b32 s45, s{sH}, 20")
        E(f"v_add_u32 v{t+7}, s45, v{t+7}")
        E(f"v_subrev_u32 v{t+8}, s{sNKV}, v1")
        E(f"v_and_b32 v{t+9}, 3, v{t+8}\nv_mul_u32_u24 v{t+9}, {64*896}, v{t+9}")
        E(f"v_lshrrev_b32 v{t+10}, 2, v{t+8}\nv_mul_u32_u24 v{t+10}, 448, v{t+10}\nv_add_u32 v{t+9}, v{t+9}, v{t+10}")
        E(f"v_cmp_gt_u32 vcc, 8, v{t+8}\nv_mov_b32 v{t+10}, 0x7ff00000\ns_nop 0")
        E(f"v_cndmask_b32 v{t+9}, v{t+10}, v{t+9}, vcc")
        E(f"v_cmp_gt_u32 vcc, s{sNKV}, v1\ns_nop 1")
        E(f"v_cndmask_b32 v{vTab}, v{t+9}, v{t+7}, vcc")
        E(f"s_lshl_b32 s{sM0}, s{sWave}, 13")
        E(f"v_add_u32 v{vD}, s{sM0}, v{vLane16}")
        for p in range(1, 8): E(f"v_add_u32 v{vD+p}, {4096*(p>>2)}, v{vD}") if p >= 4 else E(f"v_mov_b32 v{vD+p}, v{vD}")
        E("s_waitcnt lgkmcnt(0)")
        def srd(s, lo, off, size):
            if isinstance(off, int) and off == 0: E(f"s_mov_b32 s{s}, s{lo}\ns_mov_b32 s{s+1}, s{lo+1}")
            else: E(f"s_add_u32 s{s}, s{lo}, {off}\ns_addc_u32 s{s+1}, s{lo+1}, 0")
            E(f"s_mov_b32 s{s+2}, {size}\ns_mov_b32 s{s+3}, 0x20000")
        srd(sDM, 4, WS_K, 32 << 20)
        E(f"s_lshl_b32 s45, s{sH}, 20")
        E(f"s_add_u32 s45, s45, {WS_Q}")
        srd(sQ, 4, "s45", 1 << 20)
        E(f"s_mov_b32 s{sN}, s70\ns_mov_b32 s{sT}, s71\ns_sub_u32 s{sQB}, 15, s{sPair}")
        E(f"s_xor_b32 s{sItem}, s{sType}, 1")
        E(f"s_cmp_lg_u32 s70, 0")
        sk = self.lab("n1ok")
        E(f"s_cbranch_scc1 {sk}")
        E(f"s_mov_b32 s{sN}, s72\ns_mov_b32 s{sT}, 0\ns_mov_b32 s{sQB}, s{sPair}\ns_mov_b32 s{sItem}, 1")
        E(f"{sk}:")
        E(f"s_cmp_lt_u32 s{sPair}, 7\ns_cselect_b32 s{sHasP}, 1, 0\ns_cmp_eq_u32 s{sType}, 0\ns_cselect_b32 s{sHasP}, s{sHasP}, 0")
        E(f"s_mov_b32 s{sSig}, 0\ns_mov_b32 s82, 1")
        if self.fused:
            self.wo_setup()
            self.publish_k1()
            if "nocpf" not in self.exp: code_prefetch_shared(E, f"{nm}_entry", 0xd600, nm + "_pf", 72, 74, 8, sWave, which=1)
            self.wait_k1()
        self.load_q()
        for c in range(4):
            E(f"v_readlane_b32 s{sOff}, v{vTab}, {c}")
            E(f"s_add_u32 m0, s{sM0}, {c*CH}")
            E("s_nop 3")
            for p in range(8):
                E(f"buffer_load_dwordx4 v{vD+p}, s[{sDM}:{sDM+3}], s{sOff} offen offset:{(p&3)*1024} lds")
                if p == 3: E("s_add_u32 m0, m0, 4096\ns_nop 0")
        if "nopf" not in self.exp: self.prefetch_weights()
        E(f"s_lshl_b32 s45, s{sH}, 3\ns_add_u32 s{sPI}, s45, s{sPair}")
        E(f"s_lshl_b32 s45, s{sPI}, 17")
        E(f"s_add_u32 s45, s45, {WS_PT}")
        srd(sPT, 4, "s45", 131072)
        E(f"s_mul_i32 s45, s{sH}, {128*14*1024}")
        E(f"s_add_u32 s45, s45, {WS_OP}")
        srd(sOP, 4, "s45", 128*14*1024)
        E(f"s_mul_i32 s45, s{sH}, {256*896}")
        srd(sWO, 6, "s45", 256*896)
        srd(sFL, 4, WS_FLG, FLG_BYTES)
        E(f"s_lshl_b32 s45, s{sPI}, 7\nv_mov_b32 v{vFL+1}, s45")
        E(f"s_mov_b32 s{sC}, 4")
        E(f"s_mov_b32 s{sWr}, {4*CH}")
        E(f"s_mov_b32 s{sRdN}, 0")
        E(f"v_mov_b32 v{vRA}, v{vLane16}")
        if not self.fused: self.wo_setup()
        E(f"s_waitcnt vmcnt({24 + (4 if 'nopf' not in self.exp else 0)})")
        E("s_barrier")
        for f in range(8): E(self.frag_read(32 + f, vRB, vRA))
        if "mid" not in self.exp: stamp_code(E, 1, self.stamps)

    def publish_k1(self):
        E = self.E; nm = self.name
        sk = f"{nm}_pubd"
        E(f"s_add_u32 s{sFL}, s4, {WS_FLG}\ns_addc_u32 s{sFL+1}, s5, 0\ns_mov_b32 s{sFL+2}, {FLG_BYTES}\ns_mov_b32 s{sFL+3}, 0x20000")
        E("s_waitcnt vmcnt(0)\ns_barrier")
        E(f"s_cmp_lg_u32 s{sWave}, 0\ns_cbranch_scc1 {sk}")
        E("v_mov_b32 v4, s90\nv_mov_b32 v5, s91\nv_cmp_eq_u32 vcc, 0, v0\nv_mov_b32 v6, s95\ns_nop 0\nv_cndmask_b32 v4, v5, v4, vcc")
        E(f"s_mov_b64 exec, 3\nbuffer_store_dword v6, v4, s[{sFL}:{sFL+3}], 0 offen sc1\ns_mov_b64 exec, -1")
        E(f"{sk}:")

    def wait_k1(self):
        E = self.E; nm = self.name
        sk, pl = f"{nm}_k1ok", f"{nm}_k1poll"
        E(f"s_add_u32 s{sFL}, s4, {WS_FLG}\ns_addc_u32 s{sFL+1}, s5, 0\ns_mov_b32 s{sFL+2}, {FLG_BYTES}\ns_mov_b32 s{sFL+3}, 0x20000")
        E(f"s_cmp_lg_u32 s{sWave}, 0\ns_cbranch_scc1 {sk}")
        E(f"s_lshl_b32 s45, s{sH}, 7\ns_add_u32 s45, s45, {HEAD_OFF}\nv_lshlrev_b32 v3, 2, v0\nv_add_u32 v3, s45, v3\ns_mov_b32 s46, 0")
        E("s_mov_b32 exec_hi, 0")
        E(f"{pl}:")
        E(f"buffer_load_dword v2, v3, s[{sFL}:{sFL+3}], 0 offen sc1")
        E("s_waitcnt vmcnt(0)")
        E("v_cmp_eq_u32 vcc, s95, v2\ns_nop 0")
        E(f"s_cmp_eq_u32 vcc_lo, -1\ns_cbranch_scc1 {pl}_ok")
        E("s_sleep 1")
        E(f"s_add_u32 s46, s46, 1\ns_cmp_lt_u32 s46, {SPIN_MAX}\ns_cbranch_scc1 {pl}")
        E(f"v_mov_b32 v2, 0xbad7\nv_mov_b32 v3, {FLG_ERR}\nbuffer_store_dword v2, v3, s[{sFL}:{sFL+3}], 0 offen")
        E(f"{pl}_ok:\ns_mov_b64 exec, -1")
        E(f"{sk}:")
        E("s_barrier")

    def load_q(self, next_item=False):
        E = self.E
        qb = sPair if next_item else sQB
        E(f"s_lshl_b32 s{sTmp}, s{qb}, 3\ns_lshl_b32 s{sTmp2}, s{sWave}, 1\ns_add_u32 s{sTmp}, s{sTmp}, s{sTmp2}\ns_lshl_b32 s{sTmp}, s{sTmp}, 13")
        for qt in range(2):
            for hh in range(2):
                E(f"s_add_u32 s{sTmp2}, s{sTmp}, {qt*8192 + hh*4096}")
                for d in range(4):
                    E(f"buffer_load_dwordx4 {a4(Q(qt, hh*4+d))}, v{vLane16}, s[{sQ}:{sQ+3}], s{sTmp2} offen offset:{d*1024}{' nt' if 'ntql' in self.exp else ''}")

    def wo_setup(self):
        E = self.E
        t = vT0
        for p in range(8):
            E(f"s_lshl_b32 s{sTmp}, s{sWave}, 9\ns_add_u32 s{sTmp}, s{sTmp}, {64*p}")
            E(f"v_add_u32 v{t}, s{sTmp}, v1")
            E(f"v_mul_u32_u24 v{t+1}, 9363, v{t}\nv_lshrrev_b32 v{t+1}, 18, v{t+1}")
            E(f"v_mul_u32_u24 v{t+2}, 28, v{t+1}\nv_sub_u32 v{t+3}, v{t}, v{t+2}")
            E(f"v_bfe_u32 v{t+2}, v{t+1}, 2, 1\nv_lshlrev_b32 v{t+2}, 1, v{t+2}\nv_xor_b32 v{t+3}, v{t+3}, v{t+2}")
            E(f"v_lshlrev_b32 v{t+3}, 4, v{t+3}\nv_mul_u32_u24 v{t+1}, 896, v{t+1}\nv_add_u32 v{t+3}, v{t+3}, v{t+1}")
            E(f"v_cmp_gt_u32 vcc, 1792, v{t}\nv_subrev_u32 v{t+3}, {(p&3)*1024}, v{t+3}\nv_mov_b32 v{t+2}, 0x7ff00000")
            E(f"v_add_u32 v{t+3}, 4096, v{t+3}")
            E(f"v_cndmask_b32 v{vW+p}, v{t+2}, v{t+3}, vcc")
        E(f"v_bfe_u32 v{t}, v1, 4, 2\nv_lshlrev_b32 v{t+1}, 2, v{t}\nv_bfe_u32 v{t+2}, v1, 2, 2\nv_add_u32 v{t+1}, v{t+1}, v{t+2}")
        E(f"v_mul_u32_u24 v{t+1}, 448, v{t+1}\nv_and_b32 v{t+2}, 3, v1\nv_lshlrev_b32 v{t+2}, 3, v{t+2}\nv_add_u32 v{t+1}, v{t+1}, v{t+2}")
        E(f"v_and_b32 v{t}, 1, v{t}\nv_lshlrev_b32 v{t}, 5, v{t}")
        E(f"v_add_u32 v{vWA}, v{t+1}, v{t}\nv_sub_u32 v{vWA+1}, v{t+1}, v{t}\nv_add_u32 v{vWA+1}, 32, v{vWA+1}")

    def rare_blocks(self):
        E = self.E
        for r in self.rare:
            if r[0] == "slow":
                E(f"{r[1]}:"); self.slow_block(r[3]); E(f"s_branch {r[2]}")
            elif r[0] == "switch":
                E(f"{r[1]}:")
                for p in range(8): E(f"v_mov_b32 v{vD+p}, v{vW+p}")
                E(f"s_sub_u32 s{sDM}, s{sWO}, 4096\ns_subb_u32 s{sDM+1}, s{sWO+1}, 0\ns_add_u32 s{sDM+2}, s{sWO+2}, 4096\ns_mov_b32 s{sDM+3}, 0x20000")
                E(f"s_branch {r[2]}")
            elif r[0] == "signal":
                sk = self.lab("nosig")
                E(f"{r[1]}:")
                E(f"s_mov_b32 s{sSig}, 0")
                E(f"s_cmp_lg_u32 s{sWave}, 0\ns_cbranch_scc1 {sk}")
                E(f"v_mov_b32 v254, s95" if self.fused else f"v_mov_b32 v254, 1")
                E("s_mov_b64 exec, 1")
                E(f"buffer_store_dword v254, v{vFL+1}, s[{sFL}:{sFL+3}], 0 offen sc1")
                E("s_mov_b64 exec, -1")
                E(f"{sk}:\ns_branch {r[2]}")
        self.rare = []

    def finish(self):
        E = self.E; nm = self.name
        E("s_nop 7")
        self.xlane2("v_add_f32", L_(0), L_(1), vT0, vT0 + 1)
        E(f"s_cmp_eq_u32 s{sItem}, 1")
        E(f"s_cbranch_scc1 {nm}_final")
        E(f"s_lshl_b32 s{sTmp}, s{sWave}, 15")
        for i in range(16):
            t = vT0 + (i % 2) * 12
            qt = i >> 3; s = i & 7
            src = [O(2*s, qt) + r for r in range(4)] + [O(2*s+1, qt) + r for r in range(4)]
            for r in range(8): E(f"v_accvgpr_read_b32 v{t+r}, a{src[r]}")
            for r in range(4): E(f"v_cvt_pk_bf16_f32 v{t+8+r}, v{t+2*r}, v{t+2*r+1}")
            E(f"s_add_u32 s{sTmp2}, s{sTmp}, {i*1024}")
            E(f"buffer_store_dwordx4 v[{t+8}:{t+11}], v{vLane16}, s[{sPT}:{sPT+3}], s{sTmp2} offen sc1")
        E(f"v_mov_b32 v{vPM}, v{M_(0)}\nv_mov_b32 v{vPM+1}, v{M_(1)}\nv_mov_b32 v{vPM+2}, v{L_(0)}\nv_mov_b32 v{vPM+3}, v{L_(1)}")
        E(f"s_add_u32 s{sTmp2}, s{sTmp}, 16384")
        E(f"buffer_store_dwordx4 v[{vPM}:{vPM+3}], v{vLane16}, s[{sPT}:{sPT+3}], s{sTmp2} offen sc1")
        E(f"s_lshl_b32 s{sTmp}, s{sPair}, 1\ns_add_u32 s{sN}, s{sTmp}, 2\ns_mov_b32 s{sT}, 0\ns_mov_b32 s{sQB}, s{sPair}\ns_mov_b32 s{sItem}, 1")
        E(f"s_mov_b32 s{sSig}, 1")
        E("s_waitcnt vmcnt(25)")
        E(f"s_branch {nm}_item")
        E(f"{nm}_final:")
        E(f"s_cmp_eq_u32 s{sHasP}, 0")
        E(f"s_cbranch_scc1 {nm}_plain")
        E("s_waitcnt vmcnt(8)")
        for qt in range(2):
            mB, lB = vPM + qt, vPM + 2 + qt
            ms, fA, fB = vT0 + 12, vT0 + 13, vT0 + 14
            E(f"v_max_f32 v{ms}, v{M_(qt)}, v{mB}")
            E(f"v_sub_f32 v{fA}, v{M_(qt)}, v{ms}\nv_sub_f32 v{fB}, v{mB}, v{ms}")
            E(f"v_exp_f32 v{fA}, v{fA}\nv_exp_f32 v{fB}, v{fB}\ns_nop 0")
            E(f"v_mul_f32 v{ms}, v{L_(qt)}, v{fA}\nv_fmac_f32 v{ms}, v{lB}, v{fB}")
            E(f"v_rcp_f32 v{ms}, v{ms}\ns_nop 0")
            E(f"v_mul_f32 v{vT0+8+qt}, v{fA}, v{ms}\nv_mul_f32 v{vT0+10+qt}, v{fB}, v{ms}")
        self.oproj_first("A")
        E(f"s_branch {nm}_oproj3")
        E(f"{nm}_plain:")
        for qt in range(2): E(f"v_rcp_f32 v{vT0+8+qt}, v{L_(qt)}")
        E("s_nop 0")
        self.oproj_first("P")
        E(f"{nm}_oproj3:")
        self.oproj_rest()

    def conv_unit(self, mode, qt, s, n):
        src = [O(2*s, qt) + r for r in range(4)] + [O(2*s+1, qt) + r for r in range(4)]
        t = 10 + (n % 2) * 12; c = 64 + 4 * (qt * 8 + s)
        u = [f"v_accvgpr_read_b32 v{t+r}, a{src[r]}" for r in range(8)]
        u += [f"v_mul_f32 v{t+r}, v{t+r}, v{vT0+8+qt}" for r in range(8)]
        for r in range(4):
            if mode == "A":
                u += [f"v_lshlrev_b32 v{t+8}, 16, v{c+r}", f"v_and_b32 v{t+9}, 0xffff0000, v{c+r}",
                      f"v_fmac_f32 v{t+2*r}, v{t+8}, v{vT0+10+qt}", f"v_fmac_f32 v{t+2*r+1}, v{t+9}, v{vT0+10+qt}"]
            u.append(f"v_cvt_pk_bf16_f32 v{c+r}, v{t+2*r}, v{t+2*r+1}")
        return [(4, x) for x in u]

    def oproj_first(self, mode):
        self.oproj(mode)
    def oproj_rest(self):
        self.oproj(None)
    def oproj(self, mode):
        E = self.E; nm = self.name
        C = lambda qt, s: 64 + (qt * 8 + s) * 4
        WFR = lambda f: 128 + (f % 16) * 4
        OUT = lambda ps, mb, qt: ((128 if ps == 0 else 0) + (mb * 2 + qt) * 4)
        AD = lambda k, par: 242 + (k & 1) * 2 + par
        D = 6
        def rd(k, f):
            sl, mb = divmod(f, 14)
            fr = WFR(k * 28 + f)
            base = AD(k, mb & 1); off = sl * 14336 + (mb & ~1) * 32
            return [f"ds_read_b64_tr_b16 v[{fr}:{fr+1}], v{base} offset:{off}",
                    f"ds_read_b64_tr_b16 v[{fr+2}:{fr+3}], v{base} offset:{off + 7168}"]
        if mode:
            if "nocpf" not in self.exp: code_prefetch_shared(E, "tl_start", 0x5000, nm + "_t" + mode, 72, 74, 8, sWave)
            if "mid" not in self.exp and "ist" not in self.exp: stamp_code(E, 3, self.stamps)
            for par in range(2): E(f"v_add_u32 v{AD(0,par)}, s{sRdN}, v{vWA+par}")
            for f in range(D):
                for l in rd(0, f): E(l)
            nn = 0
            for s_ in range(2):
                for qt in range(2):
                    for c_, t_ in self.conv_unit(mode, qt, s_, nn): E(t_)
                    nn += 1
            E("s_nop 1")
        if mode: E(f"s_lshl_b32 s{sTmp}, s{sQB}, 3\ns_lshl_b32 s{sTmp2}, s{sWave}, 1\ns_add_u32 s{sTmp}, s{sTmp}, s{sTmp2}\ns_mul_i32 s70, s{sTmp}, {14*1024}")
        def units(ps):
            us = []; n = 0
            for qt in range(2):
                for ms in range(7):
                    t = 168 + (n % 2) * 12 if False else 200 + (n % 2) * 12; n += 1
                    src = [OUT(ps, 2*ms, qt) + r for r in range(4)] + [OUT(ps, 2*ms+1, qt) + r for r in range(4)]
                    u = [(4, f"v_accvgpr_read_b32 v{t+r}, a{src[r]}") for r in range(8)]
                    u += [(4, f"v_cvt_pk_bf16_f32 v{t+8+r}, v{t+2*r}, v{t+2*r+1}") for r in range(4)]
                    u += [(12, f"s_add_u32 s71, s70, {(qt*14 + ps*7 + ms)*1024}\nbuffer_store_dwordx4 v[{t+8}:{t+11}], v{vLane16}, s[{sOP}:{sOP+3}], s71 offen{' sc1' if 'wt' in self.exp else ''}")]
                    us.append(u)
            return us
        pend = []
        nst = 0
        hist = []
        log = [("D", k) for k in range(4) for _ in range(8)]
        if not mode: log += [("D", k) for k in range(4, 7) for _ in range(8)]
        for k in (range(3) if mode else range(3, 8)):
            ps, sp = divmod(k, 4)
            mf = []
            for sl in range(2):
                s = 2 * sp + sl
                for mb in range(14):
                    for qt in range(2):
                        d = a4(OUT(ps, mb, qt)); c = "0" if s == 0 else d
                        mf.append(f"v_mfma_f32_16x16x32_bf16 {d}, {v4(WFR(k*28 + sl*14 + mb))}, {v4(C(qt, s))}, {c}")
            n = len(mf)
            Sc = Sched(n)
            for f in range(28):
                ff = f + D
                if ff < 28: r = rd(k, ff)
                elif k + 1 < 8: r = rd(k + 1, ff - 28)
                else: continue
                Sc.put(2 * f, 4, r[0]); Sc.put(2 * f + 1, 4, r[1])
            if k + 1 < 8:
                idx = max(i for i, t in enumerate(log) if t == ("D", k + 1))
                w = len(log) - 1 - idx
                nxt = [(AD(k + 1, 0), vWA), (AD(k + 1, 1), vWA + 1)]
                if k + 4 < 8:
                    self.head_items(Sc, nxt, w, dma_gaps=[9, 14, 19, 24, 29, 34, 39, 43], nt=(' nt' if 'ntwo' in self.exp else ''))
                    order_d = [(g, ("D", k + 4)) for g in [9, 14, 19, 24, 29, 34, 39, 43]]
                else:
                    Sc.put(1, 0, f"s_waitcnt vmcnt({w})\ns_barrier")
                    Sc.put(3, 0, f"s_add_u32 s{sRdN}, s{sRdN}, {CH}\ns_cmp_eq_u32 s{sRdN}, {NS*CH}\ns_cselect_b32 s{sRdN}, 0, s{sRdN}")
                    Sc.put(3, 4, f"v_add_u32 v{nxt[0][0]}, s{sRdN}, v{nxt[0][1]}"); Sc.put(4, 4, f"v_add_u32 v{nxt[1][0]}, s{sRdN}, v{nxt[1][1]}")
                    order_d = []
            else: order_d = []
            if k == 4: pend = [x for u in units(0) for x in u]
            if mode:
                pend = []
                for s_ in (2 * k + 2, 2 * k + 3):
                    for qt in range(2):
                        pend += self.conv_unit(mode, qt, s_, nn); nn += 1
            order_s = []
            if pend:
                cur = 6; j = 0; nun = 0
                while j < len(pend):
                    c, t = pend[j]; g = cur
                    while g < n and Sc.c[g] + (c if c < 12 else 4) > (8 if c < 12 else 8): g += 1
                    if g >= n - (2 if mode else 0): break
                    Sc.put(g, c, t); cur = g; j += 1
                    if c == 12:
                        order_s.append((g, ("S", 0))); nun += 1; cur = g + 1
                        if nun >= 4: break
                pend = pend[j:]
            before = {}
            for i in range(0, n, 4):
                f = i // 2
                rem = D - 2
                if k == 7: rem = min(D - 2, 26 - f)
                before[i] = [f"s_waitcnt lgkmcnt({2*max(rem,0)})"]
            Sc.emit(E, mf, before)
            for g, tg in sorted(order_d + order_s): log.append(tg)
            if mode:
                for c, t in pend: E(t)
                pend = []
                E("s_nop 1")
        if mode: return
        for c, t in pend: E(t)
        if "mid" not in self.exp and "ist" not in self.exp: stamp_code(E, 4, self.stamps)
        E("s_nop 7")
        fill = list(getattr(self, "weave", []))
        un = units(1)
        per = (len(fill) + len(un) - 1) // len(un)
        for u in un:
            for c, t in u: E(t)
            k = min(per, len(fill))
            while k < len(fill) and fill[k].startswith(("s_addc", "s_cselect", "s_subb", "s_cbranch")): k += 1
            for l in fill[:k]: E(l)
            fill = fill[k:]
        for l in fill: E(l)

    def tail_prefetch(self):
        E = self.E
        E(f"s_lshl_b32 s{sTmp}, s2, 2\ns_add_u32 s{sTmp}, s{sTmp}, s{sWave}\ns_mul_i32 s{sTmp}, s{sTmp}, 1568")
        E("v_min_u32 v2, 24, v1\nv_lshlrev_b32 v2, 6, v2")
        for i, lo in enumerate((64, 66, 68)):
            E(f"s_mov_b32 s56, s{lo}\ns_mov_b32 s57, s{lo+1}\ns_mov_b32 s58, {448*1792*2}\ns_mov_b32 s59, 0x20000")
            E(f"buffer_load_dword v{3+i}, v2, s[56:59], s{sTmp} offen")

    def prefetch_weights(self):
        E = self.E
        self.tail_prefetch()
        E(f"s_mov_b32 s56, s6\ns_mov_b32 s57, s7\ns_mov_b32 s58, {16*256*896}\ns_mov_b32 s59, 0x20000")
        E(f"s_lshl_b32 s45, s2, 2\ns_add_u32 s45, s45, s{sWave}\ns_mul_i32 s45, s45, 3584")
        E("v_lshlrev_b32 v2, 6, v1\nbuffer_load_dword v3, v2, s[56:59], s45 offen")

    def gen(self):
        E = self.E; nm = self.name
        self.prologue()
        E(f"{nm}_item:")
        self.item_loop()
        if "ist" in self.exp: self.stamps_tail = False
        if "mid" not in self.exp and "ist" not in self.exp: stamp_code(E, 2, self.stamps)
        tail.SLEEP[0] = "s_nop 0" if "sl0" in self.exp else ("s_sleep 4" if "sl4" in self.exp else "s_sleep 1")
        tail.NT[0] = " nt" if "ntff" in self.exp else ""
        tail.NT1[0] = " nt" if "ntop" in self.exp else ""
        self.weave, t2, c1 = tail.tail_setup()
        self.finish()
        if "notail" not in self.exp:
            tail.NONCE[0] = self.fused
            tail.gen_tail(E, nm, lambda i: stamp_code(E, i, self.stamps and "ist" not in self.exp), t2, c1)
        if self.stamps:
            stamp_code(E, 11, True)
            E("s_waitcnt vmcnt(0)")
            stamp_code(E, 12, True)
            stamp_dump(E, 13, nm, 4)
        E("s_endpgm")
        E("tl_end:")
        self.rare_blocks()
        E(f"{nm}_end:")
        E("s_endpgm")
        return E.text()

def gen_k2(name="k2_kernel", **kw):
    return K2(name, **kw).gen()
```

```python
from asmlib import *
from ws import *
import k0

FUSED_STAMPS = [False]
def stamp_code(E, i, on):
    if on is True:
        if FUSED_STAMPS[0]: E(f"s_memtime s[96:97]\ns_memrealtime s[98:99]\ns_waitcnt lgkmcnt(0)\nv_writelane_b32 v252, s96, {16+i}\nv_writelane_b32 v253, s98, {16+i}")
        else: E(f"s_memtime s[{76+4*i}:{77+4*i}]\ns_memrealtime s[{78+4*i}:{79+4*i}]")

STAMP_OFF = [0]
SPIN_MAX = 0x40000
def stamp_dump(E, n, lab, sws=6):
    E("s_waitcnt vmcnt(0) lgkmcnt(0)")
    E(f"s_mov_b32 s60, s{sws}\ns_mov_b32 s61, s{sws+1}\ns_mov_b32 s62, 0x10000000\ns_mov_b32 s63, 0x20000")
    E(f"s_lshl_b32 s64, s2, 6\ns_add_u32 s64, s64, {WS_DBG + STAMP_OFF[0]}")
    E("v_cmp_eq_u32 vcc, 0, v0\ns_and_saveexec_b64 s[66:67], vcc\ns_cbranch_execz " + f"{lab}_stsk")
    for i in range(n):
        E(f"v_mov_b32 v4, s{76+4*i}\nv_mov_b32 v5, s{78+4*i}\nv_mov_b32 v6, {8*i}")
        E("buffer_store_dwordx2 v[4:5], v6, s[60:63], s64 offen")
        E("s_nop 1")
    E(f"{lab}_stsk:\ns_mov_b64 exec, s[66:67]")

def gen_k1(name="k1_kernel", stamps=False, exp="", nxt=None, fused=None):
    FUSED_STAMPS[0] = bool(fused)
    E = Emit()
    XSLOT = 32768; WBASE = 98304; WSLOT = 16384
    XF = lambda st, i: 64 + st * 32 + i * 4
    WF = lambda st, j: 128 + st * 32 + j * 4
    XA = lambda t, seg: 10 + t * 2 + seg
    WA = lambda j: 14 + j
    XD = lambda p: 22 + p
    WD = lambda p: 26 + p
    XQ = lambda p: 30 + p
    WA2 = lambda j: 40 + j
    sX, sW, sO, sXq, sWq, sOq = 8, 12, 16, 36, 40, 44
    sWave, sXk, sWk, sM0X, sM0W, sSel, sH, sMB = 20, 21, 22, 23, 24, 26, 27, 28
    sXqk, sWqk, sHq, sRB = 48, 49, 50, 51
    NKV, NQ = 32, 14
    SC = ' sc1' if 'wt' in exp else ''
    GLN = 8 if 'g0' not in exp else 0
    if 'lnpro' in exp: GLN = -2
    PL = 8
    if 'bst' in exp: stamps = 'dumponly'
    NG = NKV + NQ
    if "noq" in exp: NG = NKV
    E("s_cmp_ge_u32 s2, 256")
    E(f"s_cbranch_scc1 {name}_end")
    stamp_code(E, 0, stamps)
    E("s_load_dwordx4 s[4:7], s[0:1], 8")
    E("s_load_dwordx4 s[32:35], s[0:1], 24")
    E("s_load_dwordx2 s[52:53], s[0:1], 96")
    E("s_load_dwordx2 s[54:55], s[0:1], 0")
    E("s_load_dwordx2 s[56:57], s[0:1], 88")
    E("s_load_dwordx2 s[58:59], s[0:1], 40")
    E("s_and_b32 s29, s2, 7")
    E("s_lshr_b32 s30, s2, 3")
    E(f"s_lshr_b32 s{sMB}, s30, 2")
    E("s_and_b32 s31, s30, 3")
    E("s_lshl_b32 s25, s29, 2")
    E("s_add_u32 s25, s25, s31")
    E(f"s_lshr_b32 s{sSel}, s25, 4")
    E(f"s_and_b32 s{sH}, s25, 15")
    NCP = 0
    E("s_and_b32 s31, s30, 1")
    E("s_lshl_b32 s29, s29, 1")
    E(f"s_add_u32 s{sHq}, s29, s31")
    E(f"s_lshr_b32 s{sRB}, s2, 4")
    LB = 192
    LATE = 'late' in exp
    if not LATE: k0.ln_addr(E, LB)
    E("v_and_b32 v1, 63, v0")
    E("v_lshrrev_b32 v2, 6, v0")
    E("s_nop 0")
    E(f"v_readfirstlane_b32 s{sWave}, v2")
    if "cptop" in exp and "nocpf" not in exp:
        E(f"s_cmp_eq_u32 s{sSel}, 0\ns_cbranch_scc0 {name}_cpv")
        code_prefetch_shared(E, name, 0xa800, name + "_a", 72, 74, 8, sWave)
        E(f"s_branch {name}_cpd\n{name}_cpv:")
        code_prefetch_shared(E, name + "_v", 0xa800, name + "_b", 72, 74, 8, sWave)
        E(f"{name}_cpd:")
    E("v_lshrrev_b32 v3, 3, v1")
    E("v_lshlrev_b32 v4, 5, v2")
    E("v_add_u32 v3, v3, v4")
    E("v_and_b32 v4, 7, v1")
    E("v_lshrrev_b32 v5, 4, v1")
    E("v_xor_b32 v4, v4, v5")
    E("v_xor_b32 v5, 4, v4")
    E("v_lshlrev_b32 v4, 4, v4")
    E("v_lshlrev_b32 v5, 4, v5")
    E("v_lshlrev_b32 v6, 11, v3")
    E("v_mul_u32_u24 v7, 896, v3")
    for p in range(4):
        c = "v4" if p % 2 == 0 else "v5"
        E(f"v_add_u32 v8, v6, {c}")
        E(f"v_add_u32 v{XD(p)}, {p*(8*2048-1024)}, v8")
        if not LATE:
            E(f"v_add_u32 v8, v7, {c}")
            E(f"v_add_u32 v{XQ(p)}, {p*(8*896-1024)}, v8")
    E("v_lshrrev_b32 v3, 5, v1")
    E("v_lshlrev_b32 v4, 3, v2")
    E("v_add_u32 v4, v4, v3")
    E("v_lshlrev_b32 v4, 13, v4")
    E("v_and_b32 v5, 31, v1")
    E("v_and_b32 v7, 1, v2")
    E("v_lshlrev_b32 v7, 3, v7")
    E("v_xor_b32 v5, v5, v7")
    for p in range(4):
        E(f"v_add_u32 v6, {2*p}, v3")
        E("v_and_b32 v6, 3, v6")
        E("v_lshlrev_b32 v6, 1, v6")
        E("v_xor_b32 v6, v6, v5")
        E("v_lshlrev_b32 v6, 4, v6")
        E("v_add_u32 v6, v6, v4")
        E(f"v_add_u32 v{WD(p)}, {p*(2*8192-1024)}, v6")
    W3 = "w3" in exp
    X3 = lambda p: 50 + p
    WW3 = lambda p: 56 + p
    sM0N, sMsk, sXo0, sXo1, sWl = 24, 25, 48, 49, 3
    LX, LW = 2, 4
    if W3:
        E("s_lshr_b32 s31, s2, 3\ns_and_b32 s31, s31, 3")
        E(f"s_cmp_lt_u32 s{sWave}, 3")
        E(f"s_cselect_b32 s{sMsk}, -1, 0")
        E(f"s_mul_i32 s29, s{sWave}, 6144\ns_cmp_lt_u32 s{sWave}, 3\ns_cselect_b32 s{sM0N}, s29, 0x30000")
        E(f"s_cselect_b32 s{sXo0}, 0, {LX*128}")
        E(f"s_mov_b32 s29, {128*2048}\ns_mov_b32 s30, {32*2048 + LX*128}\ns_cselect_b32 s{sXo1}, s29, s30")
        E(f"s_cselect_b32 s{sWl}, 0, {LW*32*8192}")
        E(f"s_mul_i32 s29, s{sWave}, 48\ns_lshl_b32 s30, s31, 6\ns_cmp_lt_u32 s{sWave}, 3\ns_cselect_b32 s29, s29, s30")
        E("v_lshrrev_b32 v3, 3, v1\nv_add_u32 v3, s29, v3\nv_lshlrev_b32 v6, 11, v3")
        E("v_and_b32 v4, 7, v1\nv_lshrrev_b32 v5, 4, v1\nv_xor_b32 v4, v4, v5\nv_xor_b32 v5, 4, v4\nv_lshlrev_b32 v4, 4, v4\nv_lshlrev_b32 v5, 4, v5")
        E(f"s_cmp_lt_u32 s{sWave}, 2\ns_cselect_b32 s30, 0, 0x7ff00000")
        for p in range(6):
            c = "v4" if p % 2 == 0 else "v5"
            E(f"v_add_u32 v8, v6, {c}\nv_add_u32 v{X3(p)}, {p*8*2048 - (p&3)*1024}, v8")
            if p >= 4: E(f"v_add_u32 v{X3(p)}, s30, v{X3(p)}")
        E(f"s_mul_i32 s29, s{sWave}, 12\ns_lshl_b32 s30, s{sMB}, 2\ns_cmp_lt_u32 s{sWave}, 3\ns_cselect_b32 s29, s29, s30")
        E("v_lshrrev_b32 v3, 5, v1\nv_add_u32 v3, s29, v3\nv_and_b32 v5, 31, v1")
        for p in range(6):
            E(f"v_add_u32 v4, {2*p}, v3")
            E("v_and_b32 v6, 3, v4\nv_bfe_u32 v7, v4, 3, 1\nv_lshlrev_b32 v7, 2, v7\nv_or_b32 v6, v6, v7\nv_lshlrev_b32 v6, 1, v6\nv_xor_b32 v6, v6, v5\nv_lshlrev_b32 v6, 4, v6")
            E(f"v_lshlrev_b32 v4, 13, v4\nv_add_u32 v4, v4, v6\nv_subrev_u32 v{WW3(p)}, {(p&3)*1024}, v4")
            if p >= 2:
                lim = 3 if p < 4 else 2
                E(f"s_cmp_lt_u32 s{sWave}, {lim}\ns_cselect_b32 s30, 0, 0x7ff00000\nv_add_u32 v{WW3(p)}, s30, v{WW3(p)}")
    E("s_waitcnt lgkmcnt(0)")
    if "pst" in exp: stamp_code(E, 1, True)
    if fused:
        E(f"s_add_u32 s92, s52, {WS_FLG}\ns_addc_u32 s93, s53, 0\ns_load_dword s95, s[92:93], {NONCE_OFF}")
    def srd(s, lo, hi, off_s, size):
        if off_s is None:
            E(f"s_mov_b32 s{s}, s{lo}\ns_mov_b32 s{s+1}, s{hi}")
        else:
            E(f"s_add_u32 s{s}, s{lo}, {off_s}\ns_addc_u32 s{s+1}, s{hi}, 0")
        E(f"s_mov_b32 s{s+2}, {size}\ns_mov_b32 s{s+3}, 0x20000")
    sLI, sLO, sFL, sPF = 60, 64, 68, 72
    if not LATE:
        srd(sLI, 54, 55, None, 2048*896)
        k0.ln_load(E, LB, sLI, ' nt' if 'ntln' in exp else '')
    E(f"s_lshl_b32 s29, s{sMB}, 19")
    srd(sX, 4, 5, "s29", 0x80000)
    E(f"s_cmp_eq_u32 s{sSel}, 0")
    E("s_cselect_b32 s30, s32, s34")
    E("s_cselect_b32 s31, s33, s35")
    E(f"s_lshl_b32 s29, s{sH}, 9")
    srd(sW, 30, 31, "s29", 0x800000)
    E(f"s_sub_u32 s{sW+2}, s{sW+2}, s29")
    E(f"s_lshl_b32 s{sM0X}, s{sWave}, 12")
    E(f"s_mov_b32 s{sXk}, 0")
    E(f"s_mov_b32 s{sWk}, 0")

    vm = [("C", 0)] * NCP + ([("LN", 0)] * 2 if not LATE else [])
    def dma_x(grp, hf):
        slot = grp % 3
        u = []
        if grp < 16 and W3:
            lds = slot * XSLOT + hf * 16384
            for p in range(6):
                pre = ""
                if p == 0: pre = f"s_and_b32 s{sXk}, s{sMsk}, {lds}\ns_add_u32 m0, s{sM0N}, s{sXk}\ns_add_u32 s{sXk}, s{sXo1 if hf else sXo0}, {grp*128}\n"
                if p == 4: pre = "s_add_u32 m0, m0, 4096\ns_nop 0\n"
                u.append(pre + f"buffer_load_dwordx4 v{X3(p)}, s[{sX}:{sX+3}], s{sXk} offen offset:{(p&3)*1024} lds")
            return [(t, ("X", grp)) for t in u]
        if grp < 16:
            so = hf * 128 * 2048 + grp * 128
            reg, srd_, lds = XD, sX, slot * XSLOT + hf * 16384
        else:
            so = (grp - 16) * 128
            reg, srd_, lds = XQ, sXq, slot * XSLOT
        nt = " nt" if "ntx" in exp and grp < 16 else ""
        u.append(f"s_add_u32 m0, s{sM0X}, {lds}\ns_mov_b32 s{sXk}, {so}\nbuffer_load_dwordx4 v{reg(0)}, s[{srd_}:{srd_+3}], s{sXk} offen{nt} lds")
        for p in range(1, 4):
            u.append(f"buffer_load_dwordx4 v{reg(p)}, s[{srd_}:{srd_+3}], s{sXk} offen offset:{p*1024}{nt} lds")
        return [(t, ("X", grp)) for t in u]
    def wslot(G):
        if G < NKV: return WBASE + (G % 4) * WSLOT
        L = [WBASE, WBASE + WSLOT, WBASE + 2*WSLOT, WBASE + 3*WSLOT, 49152, 81920]
        return L[(G - NKV) % 6]
    def dma_w(G):
        if G < NKV and W3:
            u = []
            for p in range(6):
                pre = ""
                if p == 0: pre = f"s_and_b32 s{sWk}, s{sMsk}, {wslot(G)}\ns_add_u32 m0, s{sM0N}, s{sWk}\ns_add_u32 s{sWk}, s{sWl}, {G*32*8192}\n"
                if p == 4: pre = "s_add_u32 m0, m0, 4096\ns_nop 0\n"
                u.append(pre + f"buffer_load_dwordx4 v{WW3(p)}, s[{sW}:{sW+3}], s{sWk} offen offset:{(p&3)*1024} lds")
            return [(t, ("W", G)) for t in u]
        if G < NKV: so, srd_ = G * 32 * 8192, sW
        else: so, srd_ = (G - NKV) * 32 * 8192, sWq
        nt = " nt" if ("ntw" in exp and G < NKV) or ("ntq" in exp and G >= NKV) else ""
        u = [f"s_add_u32 m0, s{sM0X}, {wslot(G)}\ns_mov_b32 s{sWk}, {so}\nbuffer_load_dwordx4 v{WD(0)}, s[{srd_}:{srd_+3}], s{sWk} offen{nt} lds"]
        for p in range(1, 4):
            u.append(f"buffer_load_dwordx4 v{WD(p)}, s[{srd_}:{srd_+3}], s{sWk} offen offset:{p*1024}{nt} lds")
        return [(t, ("W", G)) for t in u]
    def need(*tags):
        idx = max(max(i for i, t in enumerate(vm) if t == tag) for tag in tags)
        return len(vm) - 1 - idx
    def xgrp(G): return G >> 1 if G < NKV else 16 + ((G - NKV) >> 1)
    def reads(G, st):
        grp = xgrp(G); t = G & 1
        slot = grp % 3
        seg = 1 if slot == 2 else 0
        xb = slot * XSLOT - seg * 65536
        nx = 8 if G < NKV else 4
        xr = [f"ds_read_b128 v[{XF(st,i)}:{XF(st,i)+3}], v{XA(t,seg)} offset:{xb + i*2048}" for i in range(nx)]
        ws_ = wslot(G)
        if ws_ >= WBASE: wb, wa = ws_ - WBASE, WA
        else: wb, wa = ws_ - (WBASE - 65536), WA2
        wr = []
        for j in range(8):
            for tt in range(2):
                wr.append(f"ds_read_b64_tr_b16 v[{WF(st,j)+2*tt}:{WF(st,j)+2*tt+1}], v{wa(j)} offset:{wb + tt*2048}")
        if "noxr" in exp and G >= 1: return wr
        if "nowr" in exp and G >= 1: return xr
        return [xr[0]] + wr + xr[1:]
    def mfmas(G, st, sel):
        m = []
        first = G == 0 or G == NKV
        nx = 8 if G < NKV else 4
        for i in range(nx):
            for j in range(8):
                b = (i*8+j)*4
                acc = f"a[{b}:{b+3}]"
                x = f"v[{XF(st,i)}:{XF(st,i)+3}]"; w = f"v[{WF(st,j)}:{WF(st,j)+3}]"
                c = "0" if first else acc
                if sel == 0 or G >= NKV: m.append(f"v_mfma_f32_16x16x32_bf16 {acc}, {w}, {x}, {c}")
                else:                    m.append(f"v_mfma_f32_16x16x32_bf16 {acc}, {x}, {w}, {c}")
        return m

    RAMP = "noramp" not in exp
    pro = dma_x(0,0) + dma_x(0,1) + dma_w(0) + dma_w(1) + dma_x(1,0) + dma_x(1,1) + dma_w(2)
    if not RAMP: pro += dma_w(3) + dma_x(2,0) + dma_x(2,1)
    for u, tg in pro:
        E(u); vm.append(tg)
    backlog0 = [(2, "w", 3), (3, "x", (2, 0)), (3, "x", (2, 1))] if RAMP else []
    if "pst" in exp: stamp_code(E, 2, True)
    if LATE:
        k0.ln_addr(E, LB)
        srd(sLI, 54, 55, None, 2048*896)
        k0.ln_load(E, LB, sLI, '')
        vm.extend([("LN", 0)] * 2)
        E("v_lshrrev_b32 v3, 3, v1\nv_lshlrev_b32 v4, 5, v2\nv_add_u32 v3, v3, v4\nv_and_b32 v4, 7, v1\nv_lshrrev_b32 v5, 4, v1\nv_xor_b32 v4, v4, v5\nv_xor_b32 v5, 4, v4\nv_lshlrev_b32 v4, 4, v4\nv_lshlrev_b32 v5, 4, v5\nv_mul_u32_u24 v7, 896, v3")
        for p in range(4):
            c = "v4" if p % 2 == 0 else "v5"
            E(f"v_add_u32 v8, v7, {c}\nv_add_u32 v{XQ(p)}, {p*(8*896-1024)}, v8")
    if "cptop" not in exp:
        if "nocpf" not in exp:
            E(f"s_cmp_eq_u32 s{sSel}, 0\ns_cbranch_scc0 {name}_cpv")
            code_prefetch_shared(E, name, 0xa800, name + "_a", 72, 74, 8, sWave)
            E(f"s_branch {name}_cpd\n{name}_cpv:")
            code_prefetch_shared(E, name + "_v", 0xa800, name + "_b", 72, 74, 8, sWave)
            E(f"{name}_cpd:")
            if fused: code_prefetch_shared(E, nxt[0], nxt[1], name + "_e", 72, 74, 8, sWave, which=2)
    E(f"s_lshl_b32 s29, s{sSel}, 24")
    E(f"s_lshl_b32 s30, s{sH}, 20")
    E("s_add_u32 s29, s29, s30")
    srd(sO, 52, 53, "s29", 0x100000)
    E(f"s_mul_i32 s29, s{sRB}, {128*896}")
    E(f"s_add_u32 s29, s29, {WS_XN}")
    srd(sXq, 52, 53, "s29", 128*896)
    E(f"s_lshl_b32 s29, s{sHq}, 9")
    srd(sWq, 6, 7, "s29", 448*8192)
    E(f"s_sub_u32 s{sWq+2}, s{sWq+2}, s29")
    E(f"s_lshl_b32 s29, s{sHq}, 20")
    E(f"s_add_u32 s29, s29, {WS_Q}")
    srd(sOq, 52, 53, "s29", 0x100000)
    E("v_and_b32 v3, 15, v1")
    E("v_lshrrev_b32 v4, 4, v1")
    E("v_bfe_u32 v5, v1, 1, 3")
    E("v_xor_b32 v4, v4, v5")
    E("v_lshrrev_b32 v6, 7, v0")
    E("v_lshlrev_b32 v6, 7, v6")
    E("v_add_u32 v3, v3, v6")
    E("v_lshlrev_b32 v3, 7, v3")
    for t in range(2):
        E(f"v_xor_b32 v5, {4*t}, v4")
        E("v_lshlrev_b32 v5, 4, v5")
        E(f"v_add_u32 v{XA(t,0)}, v3, v5")
        E(f"v_add_u32 v{XA(t,1)}, 0x10000, v{XA(t,0)}")
    E("v_bfe_u32 v3, v1, 2, 2")
    E("v_lshrrev_b32 v4, 4, v1")
    E("v_lshlrev_b32 v5, 3, v4")
    E("v_add_u32 v5, v5, v3")
    E("v_lshlrev_b32 v5, 9, v5")
    E("v_and_b32 v4, 1, v4")
    E("v_lshlrev_b32 v4, 2, v4")
    E("v_or_b32 v3, v3, v4")
    E("v_and_b32 v6, 3, v1")
    E("v_lshlrev_b32 v6, 3, v6")
    E("v_add_u32 v5, v5, v6")
    E("v_bfe_u32 v6, v0, 6, 1")
    E("v_lshlrev_b32 v6, 8, v6")
    E("v_add_u32 v5, v5, v6")
    E(f"v_add_u32 v5, {WBASE}, v5")
    for j in range(8):
        E(f"v_xor_b32 v6, {j}, v3")
        E("v_lshlrev_b32 v6, 5, v6")
        E(f"v_add_u32 v{WA(j)}, v5, v6")
        E(f"v_subrev_u32 v{WA2(j)}, 0x10000, v{WA(j)}")
    srd(sLO, 52, 53, WS_XN, 2048*896)
    srd(sFL, 56, 57, None, 256)
    PFW, PFX = 34, 35
    PX, PW = 48, 49
    E("s_lshr_b32 s29, s2, 3\ns_and_b32 s29, s29, 3\ns_lshl_b32 s29, s29, 6")
    E(f"s_lshl_b32 s30, s{sWave}, 4\ns_add_u32 s29, s29, s30\nv_and_b32 v3, 15, v1\nv_add_u32 v3, s29, v3\nv_lshlrev_b32 v3, 11, v3\nv_lshrrev_b32 v4, 4, v1\nv_lshlrev_b32 v4, 5, v4\nv_add_u32 v{PX}, v3, v4")
    E(f"s_lshl_b32 s29, s{sMB}, 3\ns_lshl_b32 s30, s{sWave}, 1\ns_add_u32 s29, s29, s30\nv_bfe_u32 v3, v1, 4, 1\nv_add_u32 v3, s29, v3\nv_lshlrev_b32 v3, 13, v3")
    E(f"v_and_b32 v4, 15, v1\nv_lshlrev_b32 v4, 5, v4\nv_add_u32 v{PW}, v3, v4")
    E("s_lshr_b32 s29, s2, 3")
    E(f"s_mul_i32 s30, s{sWave}, 56\nv_min_u32 v3, 55, v1\nv_add_u32 v3, s30, v3")
    E("v_lshrrev_b32 v4, 4, v3\ns_mul_i32 s30, s29, 14\nv_add_u32 v4, s30, v4\nv_lshlrev_b32 v4, 13, v4")
    E("v_and_b32 v3, 15, v3\nv_lshlrev_b32 v3, 6, v3\nv_add_u32 v4, v4, v3")
    E(f"s_and_b32 s30, s{sHq}, 1\ns_lshl_b32 s30, s30, 9")
    E(f"v_subrev_u32 v4, s30, v4\nv_max_i32 v{PFW}, 0, v4")
    E(f"s_mul_i32 s30, s29, 448\ns_mul_i32 s31, s{sWave}, 112\ns_add_u32 s30, s30, s31")
    E(f"v_add_u32 v3, s30, v1\nv_lshlrev_b32 v{PFX}, 7, v3")
    E(f"v_min_u32 v4, 47, v1\nv_add_u32 v4, 64, v4\nv_add_u32 v4, s30, v4\nv_lshlrev_b32 v{PFX+1}, 7, v4")
    class Cap:
        def __init__(self): self.l = []
        def __call__(self, t):
            for x in t.split("\n"):
                if x.strip(): self.l.append(x.strip())
    cap = Cap(); k0.ln_math_store(cap, LB, sLO, "sc1")
    ln_stream = []
    for t in cap.l:
        if t.startswith("buffer_store"): ln_stream.append((12, t, ("LS", 0)))
        elif t.startswith("s_nop"): ln_stream.append((0, t, None))
        elif t.startswith("v_rsq"): ln_stream.append((8, t, None))
        else: ln_stream.append((4, t, None))
    if "tlb" in exp:
        E(f"s_lshl_b32 s29, s{sMB}, 17\ns_lshl_b32 s30, s{sWave}, 15\ns_add_u32 s29, s29, s30\nv_mov_b32 v8, s29")
        E(f"buffer_load_dword v9, v8, s[{sO}:{sO+3}], 0 offen")
        E(f"s_lshl_b32 s29, s{sRB}, 16\ns_lshl_b32 s30, s{sWave}, 14\ns_add_u32 s29, s29, s30\nv_mov_b32 v8, s29")
        E(f"buffer_load_dword v9, v8, s[{sOq}:{sOq+3}], 0 offen")
        E(f"s_mul_i32 s30, s{sWave}, {112*8192}\nv_mov_b32 v8, s30")
        E(f"buffer_load_dword v9, v8, s[{sWq}:{sWq+3}], 0 offen")
        E(f"s_mul_i32 s30, s{sWave}, {32*896}\nv_mov_b32 v8, s30")
        E(f"buffer_load_dword v9, v8, s[{sXq}:{sXq+3}], 0 offen")
        vm.extend([("T", 0)] * 4)
    if "nopf" not in exp and "pf18" not in exp and NG > NKV:
        E(f"buffer_load_dword v7, v{PFW}, s[{sWq}:{sWq+3}], 0 offen"); vm.append(("P", 0))
    if "lnpro" in exp:
        E(f"s_waitcnt vmcnt({need(('LN',0))})")
        for c, t, tg in ln_stream:
            E(t)
            if tg: vm.append(tg)
    E(f"s_waitcnt vmcnt({need(('X',0),('W',0))})")
    if "pst" in exp: stamp_code(E, 3, True)
    E("s_barrier")
    if "pst" in exp: stamps = "dumponly2"; stamp_code(E, 4, True)
    stamp_code(E, 1, stamps)
    for u in reads(0, 0): E(u)
    E(f"s_cmp_eq_u32 s{sSel}, 0")
    E(f"s_cbranch_scc0 {name}_v")
    E(f"{name}_k0:")
    vm0 = list(vm)

    def kv_epi_setup(sel):
        E("v_lshlrev_b32 v3, 4, v1")
        E("v_lshrrev_b32 v4, 7, v0")
        E("v_lshlrev_b32 v4, 16, v4")
        E("v_add_u32 v3, v3, v4")
        E("v_bfe_u32 v4, v0, 6, 1")
        E(f"v_lshlrev_b32 v4, {12 if sel == 0 else 13}, v4")
        E("v_add_u32 v3, v3, v4")
        E(f"s_lshl_b32 s29, s{sMB}, 17")
    def kv_units(sel):
        units = []; n = 0
        for a in range(8 if sel == 0 else 4):
            for b in range(4 if sel == 0 else 8):
                t = 192 + (n % 4) * 12; n += 1
                if sel == 0:
                    src = [(a*8 + 2*b)*4 + r for r in range(8)]; off = a*8192 + b*1024
                else:
                    src = [(2*a*8 + b)*4 + r for r in range(4)] + [((2*a+1)*8 + b)*4 + r for r in range(4)]; off = a*16384 + b*1024
                u = [(4, f"v_accvgpr_read_b32 v{t+r}, a{src[r]}", None) for r in range(8)]
                u += [(4, f"v_cvt_pk_bf16_f32 v{t+8+r}, v{t+2*r}, v{t+2*r+1}", None) for r in range(4)]
                u += [(12, f"s_add_u32 s30, s29, {off}\nbuffer_store_dwordx4 v[{t+8}:{t+11}], v3, s[{sO}:{sO+3}], s30 offen{SC}", ("S", 0))]
                units.append(u)
        assert all(int(x[1].split("a")[-1]) < 128 for u in units[:16] for x in u[:8])
        return units
    def q_epilogue():
        E("s_nop 7")
        E("v_lshlrev_b32 v3, 4, v1")
        E("v_lshrrev_b32 v4, 7, v0")
        E("v_lshlrev_b32 v4, 15, v4")
        E("v_add_u32 v3, v3, v4")
        E("v_bfe_u32 v4, v0, 6, 1")
        E("v_lshlrev_b32 v4, 12, v4")
        E("v_add_u32 v3, v3, v4")
        E(f"s_lshl_b32 s29, s{sRB}, 16")
        E("s_mov_b32 s31, 0x3db8aa3b")
        n = 0
        for a in range(4):
            for b in range(4):
                t = 192 + (n % 4) * 12; n += 1
                src = [(a*8 + 2*b)*4 + r for r in range(8)]; off = a*8192 + b*1024
                for r in range(8): E(f"v_accvgpr_read_b32 v{t+r}, a{src[r]}")
                for r in range(8): E(f"v_mul_f32 v{t+r}, s31, v{t+r}")
                for r in range(4): E(f"v_cvt_pk_bf16_f32 v{t+8+r}, v{t+2*r}, v{t+2*r+1}")
                E(f"s_add_u32 s30, s29, {off}")
                E(f"buffer_store_dwordx4 v[{t+8}:{t+11}], v3, s[{sOq}:{sOq+3}], s30 offen{SC}")

    for sel in range(2):
        lab = f"{name}_{'kv'[sel]}"
        if sel == 1: E(f"{lab}:")
        vm[:] = vm0
        pend = []
        backlog = list(backlog0)
        if 'noln' in exp: vm.append(('LS', 0))
        for G in range(NG):
            st = G & 1
            if G == GLN and 'noln' not in exp and 'lnpro' not in exp: pend = list(ln_stream)
            if G == NKV:
                stamp_code(E, 2, stamps)
                E("v_lshrrev_b32 v4, 7, v0\nv_lshlrev_b32 v4, 13, v4")
                for t in range(2):
                    for seg in range(2): E(f"v_sub_u32 v{XA(t,seg)}, v{XA(t,seg)}, v4")
                for u in reads(NKV, st): E(u)
                E("s_nop 4")
                kv_epi_setup(sel)
                un = kv_units(sel)
                nexp = 32 if "allexp" in exp else (8 if "exp8" in exp else 16)
                for u in un[:nexp]:
                    for c, t, tg in u:
                        E(t)
                        if tg: vm.append(tg)
                pend = [x for u in un[nexp:] for x in u]
                stamp_code(E, 3, stamps)
            if "bst" in exp and G % 6 == 0 and G < 36: E(f"s_memtime s[{76+4*(G//6)}:{77+4*(G//6)}]\ns_memrealtime s[{78+4*(G//6)}:{79+4*(G//6)}]")
            last = G == NG - 1
            ngap = 64 if G < NKV else 32
            S = Sched(ngap)
            tags = {}
            def putv(g, c, t, tg):
                S.put(g, c, t); tags.setdefault(g, []).append(tg)
            if not last:
                E(f"s_waitcnt vmcnt({need(('X', xgrp(G+1)), ('W', G+1))}) lgkmcnt(0)")
                E("s_barrier")
                if G + 1 != NKV:
                    rd = reads(G + 1, st ^ 1)
                    step = 2 if ngap == 64 else 1
                    for k, t in enumerate(rd): S.put(step * k, 4, t)
                reg = []
                if G + 4 < NKV + (4 if NG > NKV else 0) and G < NKV: reg.append((G + 3, "w", G + 4))
                if NG > NKV and G == 28: reg.append((NKV + 3, "w", NKV + 4))
                if NG > NKV and G == 30: reg.append((NKV + 4, "w", NKV + 5))
                if G >= NKV and G + 6 < NG: reg.append((G + 5, "w", G + 6))
                if G < NKV:
                    if G % 2 == 1: grp, hf = (G - 1) // 2 + 3, 0
                    else: grp, hf = G // 2 + 2, 1
                    if G == 0: grp = None
                else:
                    it = G - NKV
                    grp, hf = (16 + (it - 1) // 2 + 3, 0) if it % 2 == 1 else (None, 0)
                if grp is not None:
                    maxg = 16 + 7 if NG > NKV else 16
                    if grp < 16 or (grp < maxg and hf == 0):
                        dl = 2 * grp - 1 if grp < 16 else NKV + 2 * (grp - 16) - 1
                        reg.append((dl, "x", (grp, hf)))
                backlog.extend(reg); backlog.sort(key=lambda x: x[0])
                ntake = 3 if (G < 6 or len(backlog) > 2) else len(backlog)
                take, backlog[:] = backlog[:ntake], backlog[ntake:]
                d = []
                for dl, kind, arg in take:
                    assert dl > G or dl == G, (G, dl, kind, arg)
                    assert dl >= G + 1 or True
                    d += dma_x(*arg) if kind == "x" else dma_w(arg)
                dp = ([5, 11, 17, 23, 29, 35, 41, 47, 51, 55, 59, 63] if len(d) <= 12 else [1, 5, 9, 13, 17, 21, 25, 29, 33, 37, 41, 45, 47, 49, 51, 55, 59, 63]) if ngap == 64 else [20, 22, 24, 26, 21, 23, 25, 27]
                if ngap == 32 and len(d) <= 4: dp = [21, 24, 27, 30]
                elif ngap == 32: dp = [20, 21, 22, 24, 25, 27, 29, 31]
                for (t, tg), g in zip(d, dp):
                    if ("noxd" in exp and tg[0] == "X") or ("nowd" in exp and tg[0] == "W"):
                        pre_ = "\n".join(x for x in t.split("\n") if not x.startswith("buffer"))
                        if pre_: S.put(g, 0, pre_)
                        vm.append(tg); vm.append(("Z", 0)) if False else None
                        continue
                    putv(g, 12, t, tg)
                if "l2pf" in exp and G < NKV:
                    if G % 2 == 1 and (G + PL + 1) // 2 < 16:
                        putv(57, 12, f"s_mov_b32 s31, {((G + PL + 1) // 2) * 128}\nbuffer_load_dword v7, v{PX}, s[{sX}:{sX+3}], s31 offen", ("P", 2))
                    if G % 2 == 0 and G + PL < NKV:
                        putv(57, 12, f"s_mov_b32 s31, {(G + PL) * 32 * 8192}\nbuffer_load_dword v7, v{PW}, s[{sW}:{sW+3}], s31 offen", ("P", 3))
                if G == GLN + 7 and 'nosig' not in exp:
                    assert need(('W', G+1)) <= len(vm) - 1 - max(i for i, t in enumerate(vm) if t == ('LS', 0)) - 0 and True
                    sk = f"{lab}_nosig"
                    S.put(51, 0, f"s_cmp_lg_u32 s{sWave}, 0\ns_cbranch_scc1 {sk}\ns_lshr_b32 s30, s2, 4\ns_lshl_b32 s30, s30, 2\nv_mov_b32 v4, 1\nv_mov_b32 v5, s30\ns_mov_b64 exec, 1\nbuffer_atomic_add v4, v5, s[{sFL}:{sFL+3}], 0 offen sc1\ns_mov_b64 exec, -1\n{sk}:")
                if fused and G == 1: S.put(55, 0, 's_add_u32 s95, s95, 1')
                if G == 4 and not fused:
                    zk = f"{lab}_nozero"
                    putz = f"s_cmp_lg_u32 s{sWave}, 0\ns_cbranch_scc1 {zk}\ns_add_u32 s60, s52, {WS_FLG}\ns_addc_u32 s61, s53, 0\ns_mov_b32 s62, {FLG_BYTES}\ns_mov_b32 s63, 0x20000\ns_lshl_b32 s30, s2, 7\nv_lshlrev_b32 v4, 2, v1\nv_mov_b32 v5, 0\ns_mov_b32 exec_hi, 0\nbuffer_store_dword v5, v4, s[60:63], s30 offen\ns_mov_b64 exec, -1\n{zk}:"
                    S.put(55, 0, putz)
                if NG > NKV and G == GLN + 10 and 'nopoll' not in exp:
                    putv(53, 12, f"s_lshl_b32 s30, s{sRB}, 2\nv_mov_b32 v5, s30\nbuffer_load_dword v6, v5, s[{sFL}:{sFL+3}], 0 offen sc1", ("F", 0))
                if NG > NKV and G == GLN + 14 and 'nopoll' not in exp:
                    ok, pl = f"{lab}_xnok", f"{lab}_xnpoll"
                    to = f"{lab}_xnto"
                    S.put(53, 8, f"v_readfirstlane_b32 s30, v6\ns_cmp_ge_u32 s30, 16\ns_cbranch_scc1 {ok}\ns_mov_b32 s31, 0\n{pl}:\ns_sleep 1\nbuffer_load_dword v6, v5, s[{sFL}:{sFL+3}], 0 offen sc1\ns_waitcnt vmcnt(0)\nv_readfirstlane_b32 s30, v6\ns_add_u32 s31, s31, 1\ns_cmp_ge_u32 s31, {SPIN_MAX}\ns_cbranch_scc1 {to}\ns_cmp_ge_u32 s30, 16\ns_cbranch_scc0 {pl}\ns_branch {ok}\n{to}:\nv_mov_b32 v6, 0xbad1\nv_mov_b32 v7, 128\nbuffer_store_dword v6, v7, s[{sFL}:{sFL+3}], 0 offen\n{ok}:")
                if NG > NKV and G == 18 and "pf18" in exp:
                    putv(53, 12, f"buffer_load_dword v7, v{PFW}, s[{sWq}:{sWq+3}], 0 offen", ("P", 0))
                if NG > NKV and G in (19, 20) and "pfx" in exp:
                    putv(53, 12, f"buffer_load_dword v7, v{PFX}, s[{sLO}:{sLO+3}], 0 offen offset:{0 if G == 19 else 0}" if G == 19 else f"buffer_load_dword v7, v{PFX+1}, s[{sLO}:{sLO+3}], 0 offen", ("P", 1))
                if pend:
                    k = 0; cur = 0
                    while k < len(pend):
                        c, t, tg = pend[k]
                        g = cur
                        while g < ngap and c and not (S.c[g] == 0 if c == 12 else S.c[g] + c <= 8): g += 1
                        if g >= ngap: break
                        if tg: putv(g, c, t, tg)
                        else: S.put(g, c, t)
                        cur = g; k += 1
                        if G >= NKV and k >= 26 and pend[k-1][2]: break
                    pend = pend[k:]
            else:
                E("s_waitcnt lgkmcnt(0)")
            S.emit(E, mfmas(G, st, sel))
            for g in sorted(tags): vm.extend(tags[g])
        for c, t, tg in pend: E(t)
        if NG == NKV:
            stamp_code(E, 2, stamps)
            E("s_nop 7")
            kv_epi_setup(sel)
            for u in kv_units(sel):
                for c, t, tg in u: E(t)
            stamp_code(E, 3, stamps)
        else:
            stamp_code(E, 4, stamps)
            if nxt and "nocpf" not in exp and not fused: code_prefetch_shared(E, nxt[0], nxt[1], f"{lab}_n", 72, 74, 8, sWave)
            q_epilogue()
        if fused:
            E(f"s_lshl_b32 s90, s{sH}, 7\ns_lshl_b32 s30, s{sSel}, 3\ns_add_u32 s30, s30, s{sMB}\ns_lshl_b32 s30, s30, 2\ns_add_u32 s90, s90, s30\ns_add_u32 s90, s90, {HEAD_OFF}")
            E(f"s_lshl_b32 s91, s{sHq}, 7\ns_lshl_b32 s31, s{sRB}, 2\ns_add_u32 s91, s91, s31\ns_add_u32 s91, s91, {HEAD_OFF + 64}")
            stamp_code(E, 5, stamps)
            E(f"s_branch {fused}")
            continue
        if stamps:
            E("s_waitcnt vmcnt(0)")
            stamp_code(E, 5 if NG > NKV else 4, True)
            stamp_dump(E, 6 if NG > NKV else 5, lab, 52)
        E("s_endpgm")
    E(f"{name}_end:")
    E("s_endpgm")
    return E.text()
```
